```python
import torch

def _softmax(x, axis=-1):
    return torch.softmax(x, dim=axis)

def _gelu(x):
    return torch.nn.functional.gelu(x, approximate='tanh')

def _silu(x):
    return torch.nn.functional.silu(x)

def _sigmoid(x):
    return torch.sigmoid(x)

def _layernorm(x, axis=-1, eps=1e-05):
    m = x.mean(dim=axis, keepdim=True)
    v = x.var(dim=axis, keepdim=True, unbiased=False)
    return (x - m) / torch.sqrt(v + eps)

def _scatter_add(tgt, idx, src, axis=0):
    return tgt.clone().index_add_(axis, idx, src)

def _segment_sum(src, seg, n):
    out = torch.zeros((n,) + src.shape[1:], dtype=src.dtype)
    return out.index_add_(0, seg, src)

def _pad(x, pw):
    flat = tuple((v for pair in reversed(pw) for v in pair))
    return torch.nn.functional.pad(x, flat)
kernel_name = 'gather_scatter__tensor_product_equiv_equiformer__graph'

def setup_inputs():

    _w = lambda a: (lambda t: t.to(torch.bfloat16) if t.is_floating_point() else t)(torch.as_tensor(a))
    N, deg, C, De = (50000, 16, 64, max(16, 1))
    E = N * deg
    src = (lambda lo, hi, *s: torch.randint(lo, hi, s))(0, N, E).to(torch.int64)
    dst = (lambda lo, hi, *s: torch.randint(lo, hi, s))(0, N, E).to(torch.int64)
    rvec = (lambda *s: torch.randn(*s, dtype=torch.bfloat16) * 0.05)(E, 3).to(float)
    rn = (torch.linalg.norm(rvec, dim=-1, keepdim=True) + 1e-06).to(float)
    rhat = (rvec / rn).to(float)
    eps = torch.zeros((3, 3, 3), dtype=float)
    eps[0, 1, 2] = eps[1, 2, 0] = eps[2, 0, 1] = 1.0
    eps[0, 2, 1] = eps[2, 1, 0] = eps[1, 0, 2] = -1.0
    return {'x': _w((lambda *s: torch.randn(*s, dtype=torch.bfloat16) * 0.2)(N, 4 * C).to(float)), 'rhat': _w(rhat), 'e_attr': _w((lambda *s: torch.randn(*s, dtype=torch.bfloat16) * 0.2)(E, De).to(float)), 'src': _w(src), 'dst': _w(dst), 'w_rad': _w((lambda *s: torch.randn(*s, dtype=torch.bfloat16) * 0.2)(De, 5 * C).to(float)), 'w_si0': _w((lambda *s: torch.randn(*s, dtype=torch.bfloat16) * 0.2)(2 * C, C).to(float)), 'w_si1': _w((lambda *s: torch.randn(*s, dtype=torch.bfloat16) * 0.05)(3 * C, C).to(float)), 'cg_eps': _w(eps)}

def reference(x, rhat, e_attr, src, dst, w_rad, w_si0, w_si1, cg_eps):
    N = x.shape[0]
    C = w_si0.shape[1]
    E = rhat.shape[0]
    x0 = x[:, :C].clone()
    x1 = x[:, C:].reshape(N, 3, C)
    R = (e_attr @ w_rad).reshape(E, 5, C)
    f0 = x0[src]
    f1 = x1[src]
    Y1 = rhat
    p00_0 = f0 * R[:, 0, :]
    p11_0 = torch.einsum('ejc,ej->ec', f1, Y1) * R[:, 1, :]
    p01_1 = torch.einsum('ec,ej->ejc', f0, Y1) * R[:, 2, :][:, None, :]
    p10_1 = f1 * R[:, 3, :][:, None, :]
    p11_1 = torch.einsum('ijk,ekc,ej->eic', cg_eps, f1, Y1) * R[:, 4, :][:, None, :]
    m0 = torch.concatenate([p00_0, p11_0], axis=-1) @ w_si0
    m1 = torch.einsum('ejp,pc->ejc', torch.concatenate([p01_1, p10_1, p11_1], axis=-1), w_si1)
    agg0 = _segment_sum(m0, dst, N)
    agg1 = _segment_sum(m1.reshape(E, 3 * C), dst, N).reshape(N, 3, C)
    gate = _sigmoid(agg0)
    out1 = agg1 * gate[:, None, :]
    return torch.concatenate([agg0, out1.reshape(N, 3 * C)], axis=-1)
```

```python
import re

def _regs(tok):
    tok = tok.strip()
    neg = tok.lstrip('-')
    if neg.startswith('abs(') and neg.endswith(')'): neg = neg[4:-1]
    if neg.startswith('|') and neg.endswith('|'): neg = neg[1:-1]
    m = re.fullmatch(r'([vsa])(\d+)', neg)
    if m: return [(m.group(1), int(m.group(2)))]
    m = re.fullmatch(r'([vsa])\[(\d+):(\d+)\]', neg)
    if m: return [(m.group(1), i) for i in range(int(m.group(2)), int(m.group(3)) + 1)]
    if neg == 'vcc': return [('s', 106), ('s', 107)]
    if neg == 'vcc_lo': return [('s', 106)]
    if neg == 'vcc_hi': return [('s', 107)]
    if neg == 'exec': return [('s', 126), ('s', 127)]
    if neg == 'exec_lo': return [('s', 126)]
    if neg == 'exec_hi': return [('s', 127)]
    if neg == 'm0': return [('s', 124)]
    return []

TRANS = ('v_exp_f32', 'v_log_f32', 'v_rcp_f32', 'v_rsq_f32', 'v_sqrt_f32', 'v_sin_f32', 'v_cos_f32', 'v_rcp_iflag_f32')

class Ins:
    def __init__(self, text):
        self.text = text
        t = text.split(';')[0].strip()
        self.is_label = t.endswith(':')
        self.is_dir = t.startswith('.') and not self.is_label
        self.mn = ''
        self.w = []; self.r = []
        self.kind = 'other'
        if self.is_label or self.is_dir or not t: return
        parts = t.split(None, 1)
        self.mn = mn = parts[0]
        rest = parts[1] if len(parts) > 1 else ''
        ops = []; depth = 0; cur = ''
        for ch in rest:
            if ch in '[(': depth += 1
            if ch in '])': depth -= 1
            if ch == ',' and depth == 0: ops.append(cur.strip()); cur = ''
            else: cur += ch
        if cur.strip(): ops.append(cur.strip())
        mods = ''
        if ops:
            sp = ops[-1].split(None, 1)
            if len(sp) > 1:
                ops[-1] = sp[0]; mods = sp[1]
        self.ops = ops; self.mods = mods
        R = lambda i: _regs(ops[i]) if i < len(ops) else []
        allr = lambda a: sum((R(i) for i in range(a, len(ops))), [])
        self.dpp = ('quad_perm' in mods or 'row_' in mods or mn.endswith('_dpp'))
        if mn.startswith('v_mfma'):
            self.kind = 'mfma'; self.w = R(0); self.A = R(1); self.B = R(2); self.C = R(3); self.r = self.A + self.B + self.C
            self.passes = 8 if '32x32' in mn else 4
        elif mn.startswith('v_'):
            self.kind = 'valu'
            if mn.startswith('v_cmp'):
                self.w = R(0); self.r = allr(1)
            elif mn.startswith('v_readlane') or mn.startswith('v_readfirstlane'):
                self.w = R(0); self.r = allr(1)
            elif mn.startswith('v_writelane'):
                self.w = R(0); self.r = allr(0)
            elif re.match(r'v_(add|sub|subrev)_co_u32', mn):
                self.w = R(0) + R(1); self.r = allr(2)
            elif re.match(r'v_(addc|subb|subbrev)_co_u32', mn):
                self.w = R(0) + R(1); self.r = allr(2)
            elif mn.startswith('v_fmac') or mn.startswith('v_dot2c') or mn.startswith('v_mac'):
                self.w = R(0); self.r = allr(0)
            elif mn.startswith('v_permlane') or mn.startswith('v_swap'):
                self.w = R(0) + R(1); self.r = allr(0)
            elif mn == 'v_nop':
                pass
            else:
                self.w = R(0); self.r = allr(1)
                if self.dpp: self.r += R(0)
        elif mn.startswith('ds_'):
            self.kind = 'ds'
            if mn.startswith('ds_read') or 'rtn' in mn or mn.startswith('ds_bpermute') or mn.startswith('ds_permute') or mn.startswith('ds_swizzle'):
                self.w = R(0); self.r = allr(1)
            else:
                self.r = allr(0)
        elif mn.startswith('buffer_') or mn.startswith('global_'):
            self.kind = 'vmem'
            islds = ' lds' in (' ' + mods)
            if 'load' in mn and not islds:
                self.w = R(0); self.r = allr(1)
            elif 'atomic' in mn and ('sc0' in mods):
                self.w = R(0); self.r = allr(0)
            else:
                self.r = allr(0)
            self.lds = islds
            self.store_wide = ('store' in mn and ('x3' in mn or 'x4' in mn))
            if 'store' in mn:
                self.sdata = R(0) if mn.startswith('buffer_') else R(1)
        elif mn.startswith('s_'):
            self.kind = 'salu'
            if mn in ('s_waitcnt', 's_barrier', 's_nop', 's_endpgm', 's_setprio', 's_sleep', 's_branch') or mn.startswith('s_cbranch'):
                self.kind = 'ctl' if (mn.startswith('s_cbranch') or mn in ('s_branch', 's_endpgm')) else 'misc'
            elif mn.startswith('s_cmp') or mn.startswith('s_bitcmp'):
                self.r = allr(0)
            elif mn.startswith('s_load') :
                self.kind = 'smem'; self.w = R(0); self.r = allr(1)
            elif 'saveexec' in mn:
                self.w = R(0) + _regs('exec'); self.r = allr(1) + _regs('exec')
            elif mn.startswith('s_setpc') or mn.startswith('s_swappc'):
                self.kind = 'ctl'
            else:
                self.w = R(0); self.r = allr(1)
        self.nstates = 1
        if mn == 's_nop': self.nstates = int(ops[0], 0) + 1

class Asm:
    def __init__(self):
        self.items = []
    def __call__(self, text):
        for line in text.split('\n'):
            line = line.strip()
            if line and not line.startswith(';'): self.items.append(Ins(line))
    def raw(self, text):
        i = Ins('.raw'); i.text = text; i.is_dir = True; self.items.append(i)
    def finalize(self, stats=None):
        out = []
        pos = 0
        valu_v = {}; valu_s = {}; trans_v = {}; mfma_d = {}; mfma_c = {}; store_d = {}; salu_m0 = [-99]
        ninserted = 0
        def need(p, n):
            return max(0, n - (pos - p - 1))
        def drain():
            k = 0
            for d, n in ((valu_v, 2), (valu_s, 5), (trans_v, 1), (store_d, 2)):
                for p in d.values(): k = max(k, need(p, n))
            for (p, ps, regs) in mfma_d.values(): k = max(k, need(p, 12 if ps == 8 else 8))
            for (p, ps) in mfma_c.values(): k = max(k, need(p, 7 if ps == 8 else 3))
            k = max(k, need(salu_m0[0], 1))
            return k
        def emit_nop(k):
            nonlocal pos, ninserted
            while k > 0:
                c = min(k, 16)
                out.append('\ts_nop %d' % (c - 1)); pos += c; k -= c; ninserted += 1
        for it in self.items:
            if it.is_dir:
                out.append(it.text); continue
            if it.is_label:
                emit_nop(drain())
                out.append(it.text); continue
            k = 0
            rv = [r for r in it.r if r[0] in 'va']; rs = [r for r in it.r if r[0] == 's']
            wv = [r for r in it.w if r[0] in 'va']
            if it.kind == 'ctl':
                k = max(0, drain() - 1) if it.mn != 's_endpgm' else 0
            if it.kind == 'mfma':
                for r in rv:
                    if r in valu_v: k = max(k, need(valu_v[r], 2))
                for r in it.A + it.B:
                    if r in mfma_d: k = max(k, need(mfma_d[r][0], 12 if mfma_d[r][1] == 8 else 8))
                for r in it.C:
                    if r in mfma_d:
                        p, ps, regs = mfma_d[r]
                        if regs != tuple(it.C) : k = max(k, need(p, 10 if ps == 8 else 6))
                        elif ps != it.passes: k = max(k, need(p, 10 if ps == 8 else 6))
                if not it.C or tuple(it.C) != tuple(it.w):
                    for r in it.w:
                        if r in mfma_d and (not it.C or r not in it.C):
                            p, ps, regs = mfma_d[r]
                            k = max(k, need(p, 10 if ps == 8 else 6))
            if it.kind == 'valu':
                for r in rv + wv:
                    if r in mfma_d: k = max(k, need(mfma_d[r][0], 12 if mfma_d[r][1] == 8 else 8))
                for r in wv:
                    if r in mfma_c: k = max(k, need(mfma_c[r][0], 7 if mfma_c[r][1] == 8 else 3))
                    if r in store_d: k = max(k, need(store_d[r], 2))
                for r in rv:
                    if r in trans_v and it.mn.replace('_e32','').replace('_e64','') not in TRANS: k = max(k, need(trans_v[r], 1))
                    if it.dpp and r in valu_v: k = max(k, need(valu_v[r], 2))
                    if it.mn.startswith('v_permlane') and r in valu_v: k = max(k, need(valu_v[r], 2))
                    if (it.mn.startswith('v_readlane') or it.mn.startswith('v_readfirstlane')) and r in valu_v: k = max(k, need(valu_v[r], 1))
                for r in rs:
                    if r in valu_s:
                        n = 4 if (it.mn.startswith('v_readlane') or it.mn.startswith('v_writelane')) else 2
                        k = max(k, need(valu_s[r], n))
                if it.mn.startswith('v_cndmask') or it.mn.startswith('v_addc') or it.mn.startswith('v_subb'):
                    for r in (('s', 106), ('s', 107)):
                        if r in valu_s and ('vcc' in it.text): k = max(k, need(valu_s[r], 2))
            if it.kind in ('vmem', 'ds'):
                for r in rv + wv:
                    if r in mfma_d: k = max(k, need(mfma_d[r][0], 12 if mfma_d[r][1] == 8 else 8))
                if it.kind == 'vmem':
                    for r in rs:
                        if r in valu_s: k = max(k, need(valu_s[r], 5))
                    if getattr(it, 'lds', False): k = max(k, need(salu_m0[0], 1))
                for r in wv:
                    if r in store_d: k = max(k, need(store_d[r], 1))
            if it.kind in ('salu', 'smem'):
                for r in rs:
                    if r in valu_s: k = max(k, need(valu_s[r], 1))
            emit_nop(k)
            out.append('\t' + it.text)
            if it.kind == 'valu':
                for r in it.w:
                    if r[0] in 'va':
                        valu_v[r] = pos
                        if it.mn.replace('_e32','').replace('_e64','') in TRANS: trans_v[r] = pos
                        else: trans_v.pop(r, None)
                        mfma_d.pop(r, None)
                    else: valu_s[r] = pos
            elif it.kind == 'mfma':
                for r in it.w:
                    mfma_d[r] = (pos, it.passes, tuple(it.w)); valu_v.pop(r, None); trans_v.pop(r, None)
                for r in it.C: mfma_c[r] = (pos, it.passes)
            elif it.kind in ('vmem', 'ds'):
                for r in it.w:
                    valu_v.pop(r, None); trans_v.pop(r, None); mfma_d.pop(r, None)
                if it.kind == 'vmem' and getattr(it, 'store_wide', False):
                    for r in it.sdata: store_d[r] = pos
            elif it.kind in ('salu', 'smem'):
                for r in it.w:
                    valu_s.pop(r, None)
                    if r == ('s', 124): salu_m0[0] = pos
            pos += it.nstates
            for d in (valu_v, valu_s, trans_v, store_d):
                for r in [r for r, p in d.items() if pos - p > 16]: del d[r]
            for d in (mfma_d, mfma_c):
                for r in [r for r, p in d.items() if pos - p[0] > 24]: del d[r]
        if stats is not None: stats['nops'] = ninserted
        return '\n'.join(out) + '\n'
```

```python
from gen import *

ACC = 0; R = 44; RAD = 84; XS = 124; AS = 172; YP = 184; F = 196; TMP = 212; Y = 220
vLaneX = 228; vLaneMask = 229; vRecA = 230; vRecB = 231; vSteps = 232; vEN = 233; vXA0 = 234; vXA1 = 235; vEA = 236
vTa = 237; vTb = 238; vPW = 239; vPR0 = 240; vPR1 = 241; vWR = 242; vOut0 = 243; vOut1 = 244; vOrd = 245
vLane = 246; vTid = 247; vT = 248
sWave = 20; sTp = 21; sEnd = 22; sQ = 23; sQ1 = 24; sCnt = 25; s512 = 26; sHi = 27; sOffA = 28; sOffB = 29; sNode = 30; sT = 31
sM1 = 32; sM2 = 34; sM3 = 36; sSave = 38; sMask = 40; sOvf = 82; sU = 84
OPT = {}
YSEP = ((220, 222, 224), (226, 248, 250))
COST_STEP = 8; COST_FLUSH = 11

def pr(x): return f'v[{x}:{x+1}]'
def q4(x): return f'v[{x}:{x+3}]'

def prologue(a, opt):
    a(f's_cmp_ge_u32 s2, {NB}')
    a('s_cbranch_scc1 K2_end')
    a('s_load_dwordx2 s[4:5], s[0:1], 0')
    a('s_load_dwordx2 s[8:9], s[0:1], 16')
    a('s_load_dwordx2 s[12:13], s[0:1], 72')
    a('s_load_dwordx2 s[16:17], s[0:1], 88')
    a(f'v_mov_b32 v{vTid}, v0')
    a(f'v_and_b32 v{vLane}, 63, v0')
    a(f'v_lshrrev_b32 v{vT}, 6, v0')
    a(f'v_lshlrev_b32 v{vT+1}, 2, v0')
    a(f'v_readfirstlane_b32 s{sWave}, v{vT}')
    a(f'v_mov_b32 v200, 0')
    a(f'v_cmp_gt_u32 vcc, 336, v{vTid}')
    a(f's_and_saveexec_b64 s[{sSave}:{sSave+1}], vcc')
    a('s_cbranch_execz K2_z')
    a(f'ds_write_b32 v{vT+1}, v200')
    a('K2_z:')
    a(f's_mov_b64 exec, s[{sSave}:{sSave+1}]')
    a('v_mov_b32 v200, 0xffff'); a('v_mov_b32 v201, 0'); a('v_mov_b32 v202, 0xffff'); a('v_mov_b32 v203, 0')
    for k in range(4): a(f'v_mov_b32 v{204+k}, 2.0')
    a(f'v_lshlrev_b32 v{vT+2}, 4, v{vTid}')
    for k in range(4): a(f'ds_write_b128 v{vT+2}, v[200:203] offset:{L_RECA + k*8192}')
    for k in range(2): a(f'ds_write_b128 v{vT+2}, v[204:207] offset:{L_RECB + k*8192}')
    a(f'v_lshrrev_b32 v{vT+3}, 4, v{vTid}')
    a('s_lshl_b32 s3, s2, 2')
    a(f'v_lshl_add_u32 v{vT+4}, v{vT+3}, 10, s3')
    a(f'v_lshlrev_b32 v{vT+5}, 4, v{vLane}')
    a('s_waitcnt lgkmcnt(0)')
    srd(a, 4, N * 512); srd(a, 8, E * 32); srd(a, 12, N * 512); srd(a, 16, WS_USED)
    TB = 124
    for k in range(7):
        a(f's_mov_b32 s{sU+k}, {TAB_OFF + k*32768}')
    for k in range(7):
        a(f'buffer_load_dword v{TB+k}, v{vT+4}, s[16:19], s{sU+k} offen')
    WS_ = 132
    a(f's_mul_i32 s{sU+7}, s{sWave}, 5120')
    a(f's_add_u32 s{sU+7}, s{sU+7}, {WIMG_OFF + 10240}')
    a(f's_add_u32 s{sU+8}, s{sU+7}, 4096')
    for u in range(4):
        a(f'buffer_load_dwordx4 {q4(WS_+4*u)}, v{vT+5}, s[16:19], s{sU+7} offen offset:{u*1024}')
    a(f'buffer_load_dwordx4 {q4(WS_+16)}, v{vT+5}, s[16:19], s{sU+8} offen')
    for g3 in range(3):
        a(f's_mov_b32 s{sU+9+g3}, {WIMG_OFF + g3*4096}')
    for t in range(10):
        a(f'buffer_load_dwordx4 {q4(RAD+4*t)}, v{vT+5}, s[16:19], s{sU+9+t//4} offen offset:{(t%4)*1024}')
    vJ = 152; vG = 153; CN = 154; AD = 161
    a(f'v_and_b32 v{vJ}, 15, v{vTid}')
    a(f'v_mul_u32_u24 v{vG}, {CH*12}, v{vT+3}')
    a(f'v_add_u32 v168, 16, v{vJ}')
    a(f'v_add_u32 v169, 32, v{vJ}')
    a(f's_mov_b64 s[{sOvf}:{sOvf+1}], 0')
    for k in range(7): a(f's_mov_b32 s{sU+k}, {REC_OFF + k*32*CH*12}')
    a('s_waitcnt vmcnt(15)')
    for k in range(7):
        a(f'v_lshrrev_b32 v{CN+k}, 16, v{TB+k}')
        a(f'v_and_b32 v{AD+k}, 0xffff, v{TB+k}')
        a(f'v_add_u32 v{AD+k}, v{AD+k}, v{vJ}')
        a(f'v_mad_u32_u24 v{AD+k}, v{AD+k}, 12, v{vG}')
        a(f'v_cmp_gt_u32 s[{sMask+2*k}:{sMask+2*k+1}], v{CN+k}, v{vJ}')
        a(f'v_cmp_gt_u32 s[{sMask+14+2*k}:{sMask+14+2*k+1}], v{CN+k}, v168')
        a(f'v_cmp_gt_u32 s[{sMask+28+2*k}:{sMask+28+2*k+1}], v{CN+k}, v169')
        a(f'v_cmp_lt_u32 vcc, 48, v{CN+k}')
        a(f's_or_b64 s[{sOvf}:{sOvf+1}], s[{sOvf}:{sOvf+1}], vcc')
    def rec_loads(beta):
        for k in range(7):
            u = beta*7 + k
            a(f's_mov_b64 exec, s[{sMask+2*u}:{sMask+2*u+1}]')
            a(f'buffer_load_dwordx3 v[{4*u}:{4*u+2}], v{AD+k}, s[16:19], s{sU+k} offen offset:{beta*192}')
        a('s_mov_b64 exec, -1')
    rec_loads(0); rec_loads(1)
    a(f's_mul_i32 s{sT}, s{sWave}, 5120')
    a(f's_add_u32 s{sT}, s{sT}, {L_W}')
    a(f'v_add_u32 v{vT+6}, s{sT}, v{vT+5}')
    a('s_waitcnt vmcnt(24)')
    for u in range(5):
        a(f'ds_write_b128 v{vT+6}, {q4(WS_+4*u)} offset:{u*1024}')
    sB2 = sU + 12
    a(f's_mov_b64 s[{sB2}:{sB2+1}], 0')
    for k in range(7):
        a(f's_or_b64 s[{sB2}:{sB2+1}], s[{sB2}:{sB2+1}], s[{sMask+28+2*k}:{sMask+28+2*k+1}]')
    a('s_cbranch_scc0 K2_nb2a')
    rec_loads(2)
    a('K2_nb2a:')
    a('s_waitcnt lgkmcnt(0)')
    a('s_barrier')
    a(f's_cmp_eq_u64 s[{sOvf}:{sOvf+1}], 0')
    a('s_cbranch_scc1 K2_novf')
    a(f'v_mov_b32 v{vT}, {L_FLAG}')
    a(f'v_mov_b32 v{vT+1}, 1')
    a(f'ds_write_b32 v{vT}, v{vT+1}')
    a('K2_novf:')
    a(f'v_mov_b32 v170, 1')
    a('s_waitcnt vmcnt(0)')
    def hist(beta):
        for k in range(7):
            u = beta*7 + k
            a(f's_mov_b64 exec, s[{sMask+2*u}:{sMask+2*u+1}]')
            a(f'v_lshrrev_b32 v{161+k}, 22, v{4*u+2}')
            a(f'v_and_b32 v{161+k}, 0x3fc, v{161+k}')
            a(f'ds_add_rtn_u32 v{4*u+3}, v{161+k}, v170 offset:{L_CNT}')
        a('s_mov_b64 exec, -1')
    hist(0); hist(1)
    a(f's_cmp_eq_u64 s[{sB2}:{sB2+1}], 0')
    a('s_cbranch_scc1 K2_nb2b')
    hist(2)
    a('K2_nb2b:')
    a('s_waitcnt lgkmcnt(0)')
    a('s_barrier')
    vDeg = 171; vKey = 172; vRk = 173; vPos = 174
    a(f'v_mov_b32 v{vT}, {L_FLAG}')
    a(f'ds_read_b32 v{vT+1}, v{vT}')
    a(f'v_lshlrev_b32 v{vT+2}, 2, v{vTid}')
    a(f'v_mov_b32 v{vKey}, 0')
    a(f'v_mov_b32 v{vRk}, 0')
    a(f'v_mov_b32 v{vDeg}, 0')
    a(f'v_cmp_gt_u32 s[{sU}:{sU+1}], {NPB}, v{vTid}') if False else None
    a(f'v_cmp_gt_u32 vcc, {NPB}, v{vTid}')
    a(f's_mov_b64 s[{sU}:{sU+1}], vcc')
    a('s_waitcnt lgkmcnt(0)')
    a(f'v_readfirstlane_b32 s{sT}, v{vT+1}')
    a(f's_cmp_lg_u32 s{sT}, 0')
    a('s_cbranch_scc1 K2_slow')
    a(f's_mov_b64 exec, s[{sU}:{sU+1}]')
    a('s_cbranch_execz K2_p4')
    a(f'ds_read_b32 v{vDeg}, v{vT+2} offset:{L_CNT}')
    a('s_waitcnt lgkmcnt(0)')
    a(f'v_min_u32 v{vKey}, 63, v{vDeg}')
    a(f'v_sub_u32 v{vKey}, 63, v{vKey}')
    a(f'v_lshlrev_b32 v{vKey}, 2, v{vKey}')
    a(f'ds_add_rtn_u32 v{vRk}, v{vKey}, v170 offset:{L_BINS}')
    a('K2_p4:')
    a('s_mov_b64 exec, -1')
    a('s_waitcnt lgkmcnt(0)')
    a('s_barrier')
    a(f'v_lshlrev_b32 v{vT}, 2, v{vLane}')
    a(f'ds_read_b32 v{vT+1}, v{vT} offset:{L_BINS}')
    a('s_waitcnt lgkmcnt(0)')
    a(f'v_mov_b32 v{vT+3}, v{vT+1}')
    wave_scan(a, vT+3)
    a(f'v_sub_u32 v{vT+3}, v{vT+3}, v{vT+1}')
    a(f'ds_bpermute_b32 v{vPos}, v{vKey}, v{vT+3}')
    a('s_waitcnt lgkmcnt(0)')
    a(f'v_add_u32 v{vPos}, v{vPos}, v{vRk}')
    a(f'v_lshl_or_b32 v{vT+4}, v{vDeg}, 8, v{vTid}')
    a(f'v_lshlrev_b32 v{vT+5}, 2, v{vPos}')
    a(f's_mov_b64 exec, s[{sU}:{sU+1}]')
    a('s_cbranch_execz K2_p5')
    a(f'ds_write_b32 v{vT+5}, v{vT+4} offset:{L_SORT}')
    a('K2_p5:')
    a('s_mov_b64 exec, -1')
    a('s_waitcnt lgkmcnt(0)')
    a('s_barrier')
    a(f'v_lshlrev_b32 v{vT}, 4, v{vLane}')
    a(f'ds_read_b128 v[176:179], v{vT} offset:{L_SORT}')
    a(f'v_cmp_gt_u32 vcc, 49, v{vLane}')
    a('s_waitcnt lgkmcnt(0)')
    a('v_max3_u32 v176, v176, v177, v178')
    a('v_max_u32 v176, v176, v179')
    a('v_lshrrev_b32 v176, 8, v176')
    a('v_add_u32 v176, 1, v176')
    a('v_lshrrev_b32 v176, 1, v176')
    a('v_max_u32 v176, 1, v176')
    a(f'v_cndmask_b32 v{vSteps}, 0, v176, vcc')
    a(f'v_mov_b32 v177, v{vSteps}')
    wave_scan(a, 177)
    a(f'v_sub_u32 v180, v177, v{vSteps}')
    a(f'v_readlane_b32 s{sT}, v177, 63')
    a(f's_cmp_gt_u32 s{sT}, {NULLSTEP}')
    a('s_cbranch_scc1 K2_slow')
    a(f'v_mad_u32_u24 v178, v{vSteps}, {COST_STEP}, {COST_FLUSH}')
    a(f'v_cndmask_b32 v178, 0, v178, vcc')
    a('v_mov_b32 v179, v178')
    wave_scan(a, 179)
    a(f'v_readlane_b32 s{sU+2}, v179, 63')
    a('v_lshlrev_b32 v179, 1, v179')
    a('v_sub_u32 v179, v179, v178')
    a('v_lshlrev_b32 v179, 2, v179')
    a('v_cndmask_b32 v179, -1, v179, vcc')
    a(f's_mul_i32 s{sU+3}, s{sU+2}, s{sWave}')
    a(f's_add_u32 s{sU+4}, s{sU+3}, s{sU+2}')
    a(f'v_cmp_gt_u32 vcc, s{sU+3}, v179')
    a(f's_bcnt1_i32_b64 s{sQ}, vcc')
    a(f'v_cmp_gt_u32 vcc, s{sU+4}, v179')
    a(f's_bcnt1_i32_b64 s{sQ1}, vcc')
    a(f'v_readlane_b32 s{sTp}, v180, s{sQ}')
    a(f'v_readlane_b32 s{sEnd}, v180, s{sQ1}')
    a(f'v_lshrrev_b32 v{vT+1}, 2, v{vPos}')
    a(f'v_lshlrev_b32 v{vT+1}, 2, v{vT+1}')
    a(f'ds_bpermute_b32 v{vT+2}, v{vT+1}, v180')
    a(f'v_and_b32 v{vT+3}, 3, v{vPos}')
    a(f'v_lshlrev_b32 v{vT+3}, 1, v{vT+3}')
    a(f'v_lshlrev_b32 v{vT+4}, 2, v{vTid}')
    a('s_waitcnt lgkmcnt(0)')
    a(f'v_lshl_add_u32 v{vT+2}, v{vT+2}, 3, v{vT+3}')
    a(f's_mov_b64 exec, s[{sU}:{sU+1}]')
    a('s_cbranch_execz K2_p6')
    a(f'ds_write_b32 v{vT+4}, v{vT+2} offset:{L_BASE}')
    a('K2_p6:')
    a('s_mov_b64 exec, -1')
    a('s_waitcnt lgkmcnt(0)')
    a('s_barrier')
    def scat(beta):
        for k in range(7):
            u = beta*7 + k
            a(f's_mov_b64 exec, s[{sMask+2*u}:{sMask+2*u+1}]')
            a(f'v_lshrrev_b32 v{161+k}, 22, v{4*u+2}')
            a(f'v_and_b32 v{161+k}, 0x3fc, v{161+k}')
            a(f'ds_read_b32 v{176+k}, v{161+k} offset:{L_BASE}')
        for k in range(7):
            u = beta*7 + k
            a(f's_mov_b64 exec, s[{sMask+2*u}:{sMask+2*u+1}]')
            a(f'v_lshrrev_b32 v{vT}, 1, v{4*u+3}')
            a(f'v_and_b32 v{vT+1}, 1, v{4*u+3}')
            a(f'v_and_b32 v{vT+2}, 0xffffff, v{4*u+2}')
            a(f'v_lshlrev_b32 v{vT+2}, 5, v{vT+2}')
            a(f's_waitcnt lgkmcnt({min(15, 6 - k + 2*k)})') if False else None
            if k == 0: a('s_waitcnt lgkmcnt(0)')
            a(f'v_lshl_add_u32 v{vT}, v{vT}, 3, v{176+k}')
            a(f'v_add_u32 v{vT}, v{vT}, v{vT+1}')
            a(f'v_lshlrev_b32 v{vT+3}, 3, v{vT}')
            a(f'v_lshlrev_b32 v{vT+4}, 2, v{vT}')
            a(f'ds_write_b64 v{vT+3}, v[{4*u}:{4*u+1}] offset:{L_RECA}')
            a(f'ds_write_b32 v{vT+4}, v{vT+2} offset:{L_RECB}')
        a('s_mov_b64 exec, -1')
    scat(0); scat(1)
    a(f's_cmp_eq_u64 s[{sB2}:{sB2+1}], 0')
    a('s_cbranch_scc1 K2_nb2c')
    scat(2)
    a('K2_nb2c:')
    i_, g_ = vT, vT+1
    a(f'v_and_b32 v{i_}, 15, v{vLane}')
    a(f'v_lshrrev_b32 v{g_}, 4, v{vLane}')
    a(f'v_lshlrev_b32 v{vLaneX}, 3, v{i_}')
    a(f'v_lshrrev_b32 v{vT+2}, 1, v{g_}')
    a(f'v_and_b32 v{vT+3}, 1, v{i_}')
    a(f'v_cmp_eq_u32 vcc, v{vT+2}, v{vT+3}')
    a(f'v_and_b32 v{vT+4}, 1, v{g_}')
    a(f'v_lshlrev_b32 v{vT+4}, 4, v{vT+4}')
    a(f'v_mov_b32 v{vT+5}, 2.0')
    a(f'v_cndmask_b32 v{vLaneMask}, v{vT+5}, v{vT+4}, vcc')
    a(f'v_lshlrev_b32 v{vRecA}, 4, v{g_}')
    a(f'v_add_u32 v{vRecA}, {L_RECA}, v{vRecA}')
    a(f'v_lshrrev_b32 v{vRecB}, 1, v{i_}')
    a(f'v_lshlrev_b32 v{vRecB}, 2, v{vRecB}')
    a(f'v_add_u32 v{vRecB}, {L_RECB}, v{vRecB}')
    a(f's_mul_i32 s{sT}, s{sWave}, {4*PS}')
    a(f's_add_u32 s{sT}, s{sT}, {L_P}')
    a(f'v_mul_u32_u24 v{vPW}, {PS}, v{g_}')
    a(f'v_add3_u32 v{vPW}, v{vPW}, v{vLaneX}, s{sT}')
    a(f'v_lshrrev_b32 v{vT+2}, 2, v{i_}')
    a(f'v_mul_u32_u24 v{vPR0}, {PS}, v{vT+2}')
    a(f'v_lshlrev_b32 v{vT+3}, 4, v{g_}')
    a(f'v_add3_u32 v{vPR0}, v{vPR0}, v{vT+3}, s{sT}')
    a(f'v_and_b32 v{vT+3}, 3, v{i_}')
    a(f'v_min_u32 v{vT+4}, 2, v{vT+3}')
    a(f'v_mul_u32_u24 v{vT+4}, {PJS}, v{vT+4}')
    a(f'v_add_u32 v{vT+4}, 256, v{vT+4}')
    a(f'v_add_u32 v{vPR1}, v{vPR0}, v{vT+4}')
    a(f'v_lshlrev_b32 v{vWR}, 4, v{vLane}')
    a(f'v_add_u32 v{vWR}, {L_W}, v{vWR}')
    a(f'v_lshlrev_b32 v{vT+4}, 5, v{g_}')
    a(f'v_lshl_add_u32 v{vOut0}, v{vT+3}, 3, v{vT+4}')
    a(f'v_lshl_add_u32 v{vOut1}, v{vT+3}, 7, v{vT+4}')
    a(f'v_add_u32 v{vOut1}, 128, v{vOut1}')
    a(f'v_cmp_eq_u32 vcc, 3, v{vT+3}')
    a(f'v_cndmask_b32 v{vOut1}, v{vOut1}, v{vT+5}, vcc')
    a(f'v_lshlrev_b32 v{vOrd}, 2, v{vT+2}')
    a(f'v_add_u32 v{vOrd}, {L_SORT}, v{vOrd}')
    a(f's_mov_b32 s{s512}, 512')
    a(f's_mov_b32 s{sHi}, 0xffff0000')
    a(f's_mul_i32 s{sNode}, s2, {NPB*512}')
    for m, pat in ((sM1, 0x22222222), (sM2, 0x44444444), (sM3, 0x88888888)):
        a(f's_mov_b32 s{m}, {pat}'); a(f's_mov_b32 s{m+1}, {pat}')
    a('s_waitcnt lgkmcnt(0)')
    a('s_barrier')

def rec_read(a, sg):
    a(f's_cmp_lt_u32 s{sTp}, s{sEnd}')
    a(f's_cselect_b32 s{sOffB}, s{sTp}, {NULLSTEP}')
    a(f's_add_u32 s{sTp}, s{sTp}, 1')
    a(f's_lshl_b32 s{sOffA}, s{sOffB}, 6')
    a(f's_lshl_b32 s{sOffB}, s{sOffB}, 5')
    a(f'v_add_u32 v{vTa}, s{sOffA}, v{vRecA}')
    a(f'v_add_u32 v{vTb}, s{sOffB}, v{vRecB}')
    a(f'ds_read_b128 {q4(YP+4*sg)}, v{vTa}')
    a(f'ds_read_b32 v{vEN}, v{vTb}')

def issue_loads(a, sg, opt):
    a(f'v_mad_u32_u16 v{vXA0}, v{YP+4*sg}, s{s512}, v{vLaneX}')
    a(f'v_mad_u32_u16 v{vXA1}, v{YP+4*sg+2}, s{s512}, v{vLaneX}')
    a(f'v_or_b32 v{vEA}, v{vEN}, v{vLaneMask}')
    ent = ' nt' if opt.get('eant', 1) else ''
    a(f'buffer_load_dwordx4 {q4(AS+4*sg)}, v{vEA}, s[8:11], 0 offen{ent}')
    for s, va in ((0, vXA0), (1, vXA1)):
        for v in range(4):
            a(f'buffer_load_dwordx2 {pr(XS+16*sg+8*s+2*v)}, v{va}, s[4:7], 0 offen offset:{128*v}')

def Fp(v, h): return F + 8*h + 2*v
def Rp(p, h, s): return R + (2*p + h)*4 + 2*s
def Ap(f, h): return ACC + 4*f + 2*h

def unpack_ops(sg, s):
    ops = []
    for v in range(4):
        for h in range(2):
            src = XS + 16*sg + 8*s + 2*v + h
            ops.append(f'v_lshlrev_b32 v{Fp(v,h)}, 16, v{src}')
            ops.append(f'v_and_b32 v{Fp(v,h)+1}, s{sHi}, v{src}')
    return ops

def compute_slot(a, s):
    Yb = Y + 4*s
    def ysel(j):
        if OPT.get('ysep', 1): return (pr(YSEP[s][j]), 0)
        return (pr(Yb), j) if j < 2 else (pr(Yb+2), 0)
    def fma(d, x, y, h): a(f'v_pk_fma_f32 {pr(d)}, {pr(x)}, {pr(y)}, {pr(d)}')
    def mul(d, x, y): a(f'v_pk_mul_f32 {pr(d)}, {pr(x)}, {pr(y)}')
    def fmaY(d, x, j, neg=False):
        yr, sel = ysel(j)
        n = ' neg_lo:[0,1,0] neg_hi:[0,1,0]' if neg else ''
        a(f'v_pk_fma_f32 {pr(d)}, {pr(x)}, {yr}, {pr(d)} op_sel:[0,{sel},0] op_sel_hi:[1,{sel},1]{n}')
    def mulY(d, x, j):
        yr, sel = ysel(j)
        a(f'v_pk_mul_f32 {pr(d)}, {pr(x)}, {yr} op_sel:[0,{sel}] op_sel_hi:[1,{sel}]')
    dot = lambda h: TMP + 2*h
    t = lambda h: TMP + 4 + 2*h
    seq = [
        lambda h: fma(Ap(0,h), Fp(0,h), Rp(0,h,s), h),
        lambda h: mulY(dot(h), Fp(1,h), 0),
        lambda h: mul(t(h), Fp(0,h), Rp(2,h,s)),
        lambda h: fmaY(dot(h), Fp(2,h), 1),
        lambda h: fma(Ap(5,h), Fp(1,h), Rp(3,h,s), h),
        lambda h: fmaY(dot(h), Fp(3,h), 2),
        lambda h: fmaY(Ap(2,h), t(h), 0),
        lambda h: fma(Ap(6,h), Fp(2,h), Rp(3,h,s), h),
        lambda h: fmaY(Ap(3,h), t(h), 1),
        lambda h: fma(Ap(7,h), Fp(3,h), Rp(3,h,s), h),
        lambda h: fmaY(Ap(4,h), t(h), 2),
        lambda h: fma(Ap(1,h), dot(h), Rp(1,h,s), h),
        lambda h: mul(Fp(1,h), Fp(1,h), Rp(4,h,s)),
        lambda h: mul(Fp(2,h), Fp(2,h), Rp(4,h,s)),
        lambda h: mul(Fp(3,h), Fp(3,h), Rp(4,h,s)),
        lambda h: fmaY(Ap(9,h), Fp(1,h), 2),
        lambda h: fmaY(Ap(10,h), Fp(2,h), 0),
        lambda h: fmaY(Ap(8,h), Fp(3,h), 1),
        lambda h: fmaY(Ap(10,h), Fp(1,h), 1, True),
        lambda h: fmaY(Ap(8,h), Fp(2,h), 2, True),
        lambda h: fmaY(Ap(9,h), Fp(3,h), 0, True),
    ]
    for op in seq:
        op(0); op(1)

def step(a, sg, D, opt):
    a(f's_waitcnt vmcnt({9*(D-1)})')
    yops = []
    for s in range(2):
        yr = YSEP[s] if opt.get('ysep', 1) else (Y+4*s, Y+4*s+1, Y+4*s+2)
        yops.append(f'v_and_b32 v{yr[0]}, s{sHi}, v{YP+4*sg+2*s}')
        yops.append(f'v_lshlrev_b32 v{yr[1]}, 16, v{YP+4*sg+2*s+1}')
        yops.append(f'v_and_b32 v{yr[2]}, s{sHi}, v{YP+4*sg+2*s+1}')
    fill = yops + unpack_ops(sg, 0)
    mf = []
    for p in (0, 2, 3, 1, 4):
        for h in range(2):
            mf.append(f'v_mfma_f32_16x16x32_bf16 {q4(R+(2*p+h)*4)}, {q4(AS+4*sg)}, {q4(RAD+(2*p+h)*4)}, 0')
    fi = 0
    for k, m in enumerate(mf):
        a(m)
        for _ in range(2):
            if fi < len(fill): a(fill[fi]); fi += 1
        if fi == 6 and k == 2:
            rec_read(a, sg)
    while fi < len(fill): a(fill[fi]); fi += 1
    compute_slot(a, 0)
    for o in unpack_ops(sg, 1): a(o)
    compute_slot(a, 1)
    a('s_waitcnt lgkmcnt(0)')
    issue_loads(a, sg, opt)

def featoff(f):
    if f < 2: return 128*f
    f -= 2; kind, j = f // 3, f % 3
    return 256 + PJS*j + 128*kind

def flush(a, opt):
    D0 = R; D1 = R + 16; BR = R + 32; AR = F
    NA = 6
    issued = []
    def ds(text):
        issued.append(text); a(text)
    state = {'done': 0}
    def wait_for(idx):
        n = len(issued) - 1 - idx
        if idx >= state['done']:
            a(f's_waitcnt lgkmcnt({min(n, 15)})'); state['done'] = len(issued) - min(n, 15)
    def room():
        if len(issued) - state['done'] >= 15: wait_for(len(issued) - 12)
    a(f's_lshl_b32 s{sT}, s{sQ}, 4')
    a(f'v_add_u32 v{vTa}, s{sT}, v{vOrd}')
    ds(f'ds_read_b32 v{vTb}, v{vTa}')
    for f in range(11):
        t0 = Y + 2*(f % 4)
        a(f'v_cvt_pk_bf16_f32 v{t0}, v{ACC+4*f}, v{ACC+4*f+1}')
        a(f'v_cvt_pk_bf16_f32 v{t0+1}, v{ACC+4*f+2}, v{ACC+4*f+3}')
        room()
        ds(f'ds_write_b64 v{vPW}, {pr(t0)} offset:{featoff(f)}')
    groups = [(0, ks) for ks in range(4)] + [(1, ks) for ks in range(6)]
    idxA = {}; idxB = {}
    def loadB(gi):
        c, ks = groups[gi]
        room(); idxB[gi] = len(issued)
        ds(f'ds_read_b128 {q4(BR+4*(gi%2))}, v{vPR1 if c else vPR0} offset:{ks*64}')
    def loadA(u):
        gi, t = divmod(u, 4); c, ks = groups[gi]
        tile = (ks*4 + t) + (16 if c else 0)
        room(); idxA[u] = len(issued)
        ds(f'ds_read_b128 {q4(AR+4*(u%NA))}, v{vWR} offset:{tile*1024}')
    loadB(0)
    for u in range(4): loadA(u)
    loadB(1)
    for u in range(4, NA): loadA(u)
    for k in range(22): a(f'v_pk_mov_b32 {pr(ACC+2*k)}, 0, 0')
    for u in range(40):
        gi, t = divmod(u, 4); c, ks = groups[gi]
        wait_for(max(idxA[u], idxB[gi]))
        Dr = (D1 if c else D0) + 4*t
        cop = '0' if ks == 0 else q4(Dr)
        a(f'v_mfma_f32_16x16x32_bf16 {q4(Dr)}, {q4(AR+4*(u%NA))}, {q4(BR+4*(gi%2))}, {cop}')
        if t == 3 and gi + 2 < len(groups): loadB(gi + 2)
        if u + NA < 40: loadA(u + NA)
    SEL = F; G = F + 4; O1 = F + 8; O0 = TMP
    a(f'v_and_b32 v{vTb}, 0xff, v{vTb}')
    a(f'v_lshl_add_u32 v{vTb}, v{vTb}, 9, s{sNode}')
    a(f'v_add_u32 v{vTa}, v{vTb}, v{vOut0}')
    a(f'v_add_u32 v{vTb}, v{vTb}, v{vOut1}')
    for r in range(4): a(f'v_cndmask_b32 v{SEL+r}, v{D0+r}, v{D0+4+r}, s[{sM1}:{sM1+1}]')
    for r in range(4): a(f'v_cndmask_b32 v{SEL+r}, v{SEL+r}, v{D0+8+r}, s[{sM2}:{sM2+1}]')
    for r in range(4): a(f'v_cndmask_b32 v{SEL+r}, v{SEL+r}, v{D0+12+r}, s[{sM3}:{sM3+1}]')
    for r in range(4): a(f'v_mul_f32 v{G+r}, 0xbfb8aa3b, v{SEL+r}')
    for r in range(4): a(f'v_exp_f32 v{G+r}, v{G+r}')
    for r in range(4): a(f'v_add_f32 v{G+r}, 1.0, v{G+r}')
    for r in range(4): a(f'v_rcp_f32 v{G+r}, v{G+r}')
    a(f'v_cvt_pk_bf16_f32 v{O0}, v{SEL}, v{SEL+1}')
    a(f'v_cvt_pk_bf16_f32 v{O0+1}, v{SEL+2}, v{SEL+3}')
    a(f'buffer_store_dwordx2 {pr(O0)}, v{vTa}, s[12:15], 0 offen')
    for t in range(4):
        for r in range(4):
            a(f'v_mul_f32_dpp v{D1+4*t+r}, v{G+r}, v{D1+4*t+r} quad_perm:[{t},{t},{t},{t}] row_mask:0xf bank_mask:0xf')
    for t in range(4):
        a(f'v_cvt_pk_bf16_f32 v{O1+2*t}, v{D1+4*t}, v{D1+4*t+1}')
        a(f'v_cvt_pk_bf16_f32 v{O1+2*t+1}, v{D1+4*t+2}, v{D1+4*t+3}')
    a(f'buffer_store_dwordx4 {q4(O1)}, v{vTb}, s[12:15], 0 offen')
    a(f'buffer_store_dwordx4 {q4(O1+4)}, v{vTb}, s[12:15], 0 offen offset:16')

def gen_k2(a, opt):
    D = opt.get('D', 3)
    OPT.update(opt)
    a(f'{KN}_kernel:')
    prologue(a, opt)
    a(f's_cmp_eq_u32 s{sQ}, s{sQ1}')
    a('s_cbranch_scc1 K2_end')
    for sg in range(D):
        rec_read(a, sg)
        a('s_waitcnt lgkmcnt(0)')
        issue_loads(a, sg, opt)
    for k in range(22): a(f'v_pk_mov_b32 {pr(ACC+2*k)}, 0, 0')
    a(f'v_readlane_b32 s{sCnt}, v{vSteps}, s{sQ}')
    for sg in range(D):
        a(f'K2_s{sg}:')
        step(a, sg, D, opt)
        a(f's_sub_u32 s{sCnt}, s{sCnt}, 1')
        a(f's_cmp_lg_u32 s{sCnt}, 0')
        a(f's_cbranch_scc1 K2_s{(sg+1) % D}')
        flush(a, opt)
        a(f's_add_u32 s{sQ}, s{sQ}, 1')
        a(f's_cmp_eq_u32 s{sQ}, s{sQ1}')
        a('s_cbranch_scc1 K2_end')
        a(f'v_readlane_b32 s{sCnt}, v{vSteps}, s{sQ}')
        if sg == D - 1: a('s_branch K2_s0')
    a('K2_slow:')
    a('K2_end:')
    a('s_endpgm')
    return 256, 102
```

```python
import sys
from asmlib import Asm

KN = 'gather_scatter__tensor_product_equiv_equiformer__graph'
N = 50000; E = 800000
NCH = 224; CH = 3584; BLK1 = 896; NPB = 196; NB = 256
NPREP = 15
REC_OFF = 0; TAB_OFF = 0x940000; WIMG_OFF = 0x980000; WS_USED = 0x9A0000
MAGIC = 85599
L_CNT = 0; L_BINS = 1024; L_FLAG = 1280; L_SORT = 2048; L_BASE = 3072
L_RECA = 4096; L_RECB = 36864; L_W = 53248; L_P = 94208
PS = 1440; PJS = 384
LDS2 = L_P + 8 * 4 * PS
NULLSTEP = 511

def srd(a, r, size):
    a(f's_and_b32 s{r+1}, s{r+1}, 0xffff')
    a(f's_mov_b32 s{r+2}, {size}')
    a(f's_mov_b32 s{r+3}, 0x20000')

def wave_scan(a, v):
    for sh in (1, 2, 4, 8):
        a(f'v_add_u32_dpp v{v}, v{v}, v{v} row_shr:{sh} row_mask:0xf bank_mask:0xf bound_ctrl:1')
    a(f'v_add_u32_dpp v{v}, v{v}, v{v} row_bcast:15 row_mask:0xa bank_mask:0xf')
    a(f'v_add_u32_dpp v{v}, v{v}, v{v} row_bcast:31 row_mask:0xc bank_mask:0xf')

def gen_k1(a, opt):
    a(f'k1_sort_kernel:')
    a(f's_cmp_ge_u32 s2, {NCH}')
    a('s_cbranch_scc1 K1_prep')
    a('s_load_dwordx2 s[12:13], s[0:1], 8')
    a('s_load_dwordx2 s[8:9], s[0:1], 24')
    a('s_load_dwordx2 s[4:5], s[0:1], 32')
    a('s_load_dwordx2 s[16:17], s[0:1], 88')
    a('v_lshlrev_b32 v1, 2, v0')
    a('v_mov_b32 v2, 0')
    a('v_cmp_gt_u32 vcc, 256, v0')
    a('s_and_saveexec_b64 s[26:27], vcc')
    a('s_cbranch_execz K1_z')
    a('ds_write_b32 v1, v2')
    a('K1_z:')
    a('s_mov_b64 exec, s[26:27]')
    a(f's_mul_i32 s3, s2, {CH}')
    a('v_add_u32 v3, s3, v1')
    a('v_lshlrev_b32 v4, 2, v3')
    a('v_mul_u32_u24 v5, 6, v3')
    a(f's_mov_b32 s20, {E}')
    a(f's_mov_b32 s21, {MAGIC}')
    a('s_mov_b32 s22, 0xffff0000')
    a('s_waitcnt lgkmcnt(0)')
    srd(a, 4, E * 4); srd(a, 8, E * 4); srd(a, 12, E * 6); srd(a, 16, WS_USED)
    a('v_cmp_gt_u32 vcc, s20, v3')
    a('s_and_saveexec_b64 s[26:27], vcc')
    a('s_mov_b64 s[28:29], exec')
    a('s_cbranch_execz K1_a')
    a('buffer_load_dwordx4 v[8:11], v4, s[4:7], 0 offen')
    a('buffer_load_dwordx4 v[12:15], v4, s[8:11], 0 offen')
    a('buffer_load_dwordx4 v[16:19], v5, s[12:15], 0 offen')
    a('buffer_load_dwordx2 v[20:21], v5, s[12:15], 0 offen offset:16')
    a('K1_a:')
    a('s_mov_b64 exec, s[26:27]')
    a('s_waitcnt lgkmcnt(0)')
    a('s_barrier')
    a('s_mov_b64 exec, s[28:29]')
    a('s_cbranch_execz K1_b')
    a('v_mov_b32 v6, 1')
    a('s_waitcnt vmcnt(3)')
    for k in range(4):
        a(f'v_mul_u32_u24 v{24+k}, s21, v{8+k}')
    for k in range(4):
        a(f'v_lshrrev_b32 v{24+k}, 24, v{24+k}')
    for k in range(4):
        a(f'v_mul_u32_u24 v{28+k}, {NPB}, v{24+k}')
        a(f'v_lshlrev_b32 v{24+k}, 2, v{24+k}')
    for k in range(4):
        a(f'ds_add_rtn_u32 v{35+4*k}, v{24+k}, v6')
    for k in range(4):
        a(f'v_sub_u32 v{28+k}, v{8+k}, v{28+k}')
        a(f'v_add_u32 v7, {k}, v3')
        a(f'v_lshl_or_b32 v{34+4*k}, v{28+k}, 24, v7')
    a('s_waitcnt vmcnt(0)')
    a('v_lshl_or_b32 v32, v16, 16, v12')
    a('v_alignbit_b32 v33, v17, v16, 16')
    a('v_and_or_b32 v36, v17, s22, v13')
    a('v_mov_b32 v37, v18')
    a('v_lshl_or_b32 v40, v19, 16, v14')
    a('v_alignbit_b32 v41, v20, v19, 16')
    a('v_and_or_b32 v44, v20, s22, v15')
    a('v_mov_b32 v45, v21')
    a('K1_b:')
    a('s_mov_b64 exec, s[26:27]')
    a('s_waitcnt lgkmcnt(0)')
    a('s_barrier')
    a('v_and_b32 v48, 63, v0')
    a('v_lshlrev_b32 v48, 4, v48')
    a('ds_read_b128 v[52:55], v48')
    a('s_waitcnt lgkmcnt(0)')
    a('v_add_u32 v56, v52, v53')
    a('v_add_u32 v57, v56, v54')
    a('v_add_u32 v58, v57, v55')
    a('v_mov_b32 v59, v58')
    wave_scan(a, 59)
    a('v_sub_u32 v60, v59, v58')
    a('v_add_u32 v61, v60, v52')
    a('v_add_u32 v62, v60, v56')
    a('v_add_u32 v63, v60, v57')
    a('ds_write_b128 v48, v[60:63] offset:1024')
    a('v_cmp_gt_u32 vcc, 64, v0')
    a('s_and_saveexec_b64 s[30:31], vcc')
    a('s_cbranch_execz K1_t')
    for k in range(4):
        a(f'v_lshl_or_b32 v{64+k}, v{52+k}, 16, v{60+k}')
    a('s_lshl_b32 s23, s2, 10')
    a(f's_add_u32 s23, s23, {TAB_OFF}')
    a('buffer_store_dwordx4 v[64:67], v48, s[16:19], s23 offen')
    a('K1_t:')
    a('s_mov_b64 exec, s[28:29]')
    a('s_cbranch_execz K1_done')
    for k in range(4):
        a(f'ds_read_b32 v{8+k}, v{24+k} offset:1024')
    a(f's_mul_i32 s24, s2, {CH*12}')
    for k in range(4):
        a(f's_waitcnt lgkmcnt({3-k})')
        a(f'v_add_u32 v{8+k}, v{8+k}, v{35+4*k}')
        a(f'v_mad_u32_u24 v{8+k}, v{8+k}, 12, s24')
        a(f'buffer_store_dwordx3 v[{32+4*k}:{34+4*k}], v{8+k}, s[16:19], 0 offen')
    a('K1_done:')
    a('s_endpgm')
    a('K1_prep:')
    a(f's_sub_u32 s3, s2, {NCH}')
    a(f's_cmp_ge_u32 s3, {NPREP}')
    a('s_cbranch_scc1 K1_done2')
    a('s_load_dwordx2 s[4:5], s[0:1], 40')
    a('s_load_dwordx4 s[20:23], s[0:1], 48')
    a('s_load_dwordx2 s[16:17], s[0:1], 88')
    a(f's_mul_i32 s3, s3, {BLK1}')
    a('v_add_u32 v1, s3, v0')
    a('s_nop 0')
    a('v_readfirstlane_b32 s24, v1')
    a('s_cmp_ge_u32 s24, 12800')
    a('s_cbranch_scc1 K1_done2')
    a('s_lshr_b32 s24, s24, 8')
    a('v_lshrrev_b32 v2, 2, v1')
    a('v_and_b32 v2, 63, v2')
    a('v_and_b32 v3, 3, v1')
    a('v_and_b32 v4, 15, v2')
    a('v_lshrrev_b32 v5, 4, v2')
    a('s_waitcnt lgkmcnt(0)')
    srd(a, 16, WS_USED)
    a('s_cmp_ge_u32 s24, 10')
    a('s_cbranch_scc1 K1_pw')
    srd(a, 4, 16 * 320 * 2)
    a('s_lshr_b32 s25, s24, 1')
    a('s_and_b32 s26, s24, 1')
    a('s_lshl_b32 s25, s25, 6')
    a('s_lshl_b32 s26, s26, 1')
    a('s_add_u32 s25, s25, s26')
    a('v_lshlrev_b32 v6, 2, v4')
    a('v_lshrrev_b32 v7, 1, v5')
    a('v_add3_u32 v6, v6, v7, s25')
    a('v_and_b32 v7, 1, v5')
    a('v_lshlrev_b32 v7, 3, v7')
    a('v_lshl_add_u32 v7, v3, 1, v7')
    a('v_mul_u32_u24 v7, 320, v7')
    a('v_add_lshl_u32 v6, v6, v7, 1')
    a('buffer_load_ushort v8, v6, s[4:7], 0 offen')
    a('buffer_load_ushort v9, v6, s[4:7], 0 offen offset:640')
    a('s_branch K1_pst')
    a('K1_pw:')
    a('s_sub_u32 s25, s24, 10')
    a('s_cmp_ge_u32 s25, 16')
    a('s_cbranch_scc1 K1_pw1')
    a('s_mov_b32 s4, s20')
    a('s_mov_b32 s5, s21')
    srd(a, 4, 128 * 64 * 2)
    a('s_branch K1_pw2')
    a('K1_pw1:')
    a('s_sub_u32 s25, s25, 16')
    a('s_mov_b32 s4, s22')
    a('s_mov_b32 s5, s23')
    srd(a, 4, 192 * 64 * 2)
    a('K1_pw2:')
    a('s_lshr_b32 s26, s25, 2')
    a('s_and_b32 s27, s25, 3')
    a('s_lshl_b32 s26, s26, 5')
    a('s_lshl_b32 s27, s27, 2')
    a('v_lshrrev_b32 v6, 2, v4')
    a('v_lshlrev_b32 v6, 4, v6')
    a('v_and_b32 v7, 3, v4')
    a('v_add3_u32 v6, v6, v7, s27')
    a('v_lshlrev_b32 v7, 3, v5')
    a('v_lshl_add_u32 v7, v3, 1, v7')
    a('v_add_u32 v7, s26, v7')
    a('v_lshlrev_b32 v7, 6, v7')
    a('v_add_lshl_u32 v6, v6, v7, 1')
    a('buffer_load_ushort v8, v6, s[4:7], 0 offen')
    a('buffer_load_ushort v9, v6, s[4:7], 0 offen offset:128')
    a('K1_pst:')
    a('v_lshlrev_b32 v1, 2, v1')
    a(f's_mov_b32 s28, {WIMG_OFF}')
    a('s_waitcnt vmcnt(0)')
    a('v_lshl_or_b32 v8, v9, 16, v8')
    a('buffer_store_dword v8, v1, s[16:19], s28 offen')
    a('K1_done2:')
    a('s_endpgm')

def desc(name, vgpr, sgpr):
    return f'''.amdhsa_kernel {name}
  .amdhsa_next_free_vgpr {vgpr}
  .amdhsa_next_free_sgpr {sgpr}
  .amdhsa_accum_offset {(vgpr + 3) // 4 * 4}
  .amdhsa_group_segment_fixed_size 0
  .amdhsa_kernarg_size 96
  .amdhsa_user_sgpr_count 2
  .amdhsa_user_sgpr_kernarg_segment_ptr 1
  .amdhsa_system_sgpr_workgroup_id_x 1
.end_amdhsa_kernel
'''

def build(opt):
    from gen_k2 import gen_k2
    header = open('cdna_kernels/%s.s.ref' % KN).read().split('; Override launch')[0]
    out = header
    out += f'; Two launches: k1 bins the edges by destination bucket (and lays out the weights), k2 aggregates per node.\n'
    out += f'; @launch kernel=k1_sort_kernel grid=({NCH+NPREP},1,1) block=({BLK1},1,1) lds=2048\n'
    if not opt.get('k1only'):
        out += f'; @launch kernel={KN}_kernel grid=({NB},1,1) block=(512,1,1) lds={LDS2}\n'
    out += '.amdgcn_target "amdgcn-amd-amdhsa--gfx950"\n.text\n'
    st = {}
    a = Asm(); gen_k1(a, opt)
    out += '.globl k1_sort_kernel\n.p2align 8\n.type k1_sort_kernel,@function\n' + a.finalize(st)
    a = Asm(); nv, ns = gen_k2(a, opt)
    out += f'.globl {KN}_kernel\n.p2align 8\n.type {KN}_kernel,@function\n' + a.finalize(st)
    print('k2 nops inserted', st, file=sys.stderr)
    out += '.section .rodata,"a"\n.p2align 6\n' + desc('k1_sort_kernel', 72, 40) + '.p2align 6\n' + desc(KN + '_kernel', nv, ns)
    return out

if __name__ == '__main__':
    opt = {}
    outp = None
    for x in sys.argv[1:]:
        if '=' in x:
            k, v = x.split('=', 1); opt[k] = int(v, 0)
        else: outp = x
    s = build(opt)
    open(outp or 'cdna_kernels/%s.s' % KN, 'w').write(s)
```

```python
import re

def _regs(tok):
    tok = tok.strip()
    neg = tok.lstrip('-')
    if neg.startswith('abs(') and neg.endswith(')'): neg = neg[4:-1]
    if neg.startswith('|') and neg.endswith('|'): neg = neg[1:-1]
    m = re.fullmatch(r'([vsa])(\d+)', neg)
    if m: return [(m.group(1), int(m.group(2)))]
    m = re.fullmatch(r'([vsa])\[(\d+):(\d+)\]', neg)
    if m: return [(m.group(1), i) for i in range(int(m.group(2)), int(m.group(3)) + 1)]
    if neg == 'vcc': return [('s', 106), ('s', 107)]
    if neg == 'vcc_lo': return [('s', 106)]
    if neg == 'vcc_hi': return [('s', 107)]
    if neg == 'exec': return [('s', 126), ('s', 127)]
    if neg == 'exec_lo': return [('s', 126)]
    if neg == 'exec_hi': return [('s', 127)]
    if neg == 'm0': return [('s', 124)]
    return []

TRANS = ('v_exp_f32', 'v_log_f32', 'v_rcp_f32', 'v_rsq_f32', 'v_sqrt_f32', 'v_sin_f32', 'v_cos_f32', 'v_rcp_iflag_f32')

class Ins:
    def __init__(self, text):
        self.text = text
        t = text.split(';')[0].strip()
        self.is_label = t.endswith(':')
        self.is_dir = t.startswith('.') and not self.is_label
        self.mn = ''
        self.w = []; self.r = []
        self.kind = 'other'
        if self.is_label or self.is_dir or not t: return
        parts = t.split(None, 1)
        self.mn = mn = parts[0]
        rest = parts[1] if len(parts) > 1 else ''
        ops = []; depth = 0; cur = ''
        for ch in rest:
            if ch in '[(': depth += 1
            if ch in '])': depth -= 1
            if ch == ',' and depth == 0: ops.append(cur.strip()); cur = ''
            else: cur += ch
        if cur.strip(): ops.append(cur.strip())
        mods = ''
        if ops:
            sp = ops[-1].split(None, 1)
            if len(sp) > 1:
                ops[-1] = sp[0]; mods = sp[1]
        self.ops = ops; self.mods = mods
        R = lambda i: _regs(ops[i]) if i < len(ops) else []
        allr = lambda a: sum((R(i) for i in range(a, len(ops))), [])
        self.dpp = ('quad_perm' in mods or 'row_' in mods or mn.endswith('_dpp'))
        if mn.startswith('v_mfma'):
            self.kind = 'mfma'; self.w = R(0); self.A = R(1); self.B = R(2); self.C = R(3); self.r = self.A + self.B + self.C
            self.passes = 8 if '32x32' in mn else 4
        elif mn.startswith('v_'):
            self.kind = 'valu'
            if mn.startswith('v_cmp'):
                self.w = R(0); self.r = allr(1)
            elif mn.startswith('v_readlane') or mn.startswith('v_readfirstlane'):
                self.w = R(0); self.r = allr(1)
            elif mn.startswith('v_writelane'):
                self.w = R(0); self.r = allr(0)
            elif re.match(r'v_(add|sub|subrev)_co_u32', mn):
                self.w = R(0) + R(1); self.r = allr(2)
            elif re.match(r'v_(addc|subb|subbrev)_co_u32', mn):
                self.w = R(0) + R(1); self.r = allr(2)
            elif mn.startswith('v_fmac') or mn.startswith('v_dot2c') or mn.startswith('v_mac'):
                self.w = R(0); self.r = allr(0)
            elif mn.startswith('v_permlane') or mn.startswith('v_swap'):
                self.w = R(0) + R(1); self.r = allr(0)
            elif mn == 'v_nop':
                pass
            else:
                self.w = R(0); self.r = allr(1)
                if self.dpp: self.r += R(0)
        elif mn.startswith('ds_'):
            self.kind = 'ds'
            if mn.startswith('ds_read') or 'rtn' in mn or mn.startswith('ds_bpermute') or mn.startswith('ds_permute') or mn.startswith('ds_swizzle'):
                self.w = R(0); self.r = allr(1)
            else:
                self.r = allr(0)
        elif mn.startswith('buffer_') or mn.startswith('global_'):
            self.kind = 'vmem'
            islds = ' lds' in (' ' + mods)
            if 'load' in mn and not islds:
                self.w = R(0); self.r = allr(1)
            elif 'atomic' in mn and ('sc0' in mods):
                self.w = R(0); self.r = allr(0)
            else:
                self.r = allr(0)
            self.lds = islds
            self.store_wide = ('store' in mn and ('x3' in mn or 'x4' in mn))
            if 'store' in mn:
                self.sdata = R(0) if mn.startswith('buffer_') else R(1)
        elif mn.startswith('s_'):
            self.kind = 'salu'
            if mn in ('s_waitcnt', 's_barrier', 's_nop', 's_endpgm', 's_setprio', 's_sleep', 's_branch') or mn.startswith('s_cbranch'):
                self.kind = 'ctl' if (mn.startswith('s_cbranch') or mn in ('s_branch', 's_endpgm')) else 'misc'
            elif mn.startswith('s_cmp') or mn.startswith('s_bitcmp'):
                self.r = allr(0)
            elif mn.startswith('s_load') :
                self.kind = 'smem'; self.w = R(0); self.r = allr(1)
            elif 'saveexec' in mn:
                self.w = R(0) + _regs('exec'); self.r = allr(1) + _regs('exec')
            elif mn.startswith('s_setpc') or mn.startswith('s_swappc'):
                self.kind = 'ctl'
            else:
                self.w = R(0); self.r = allr(1)
        self.nstates = 1
        if mn == 's_nop': self.nstates = int(ops[0], 0) + 1

class Asm:
    def __init__(self):
        self.items = []
    def __call__(self, text):
        for line in text.split('\n'):
            line = line.strip()
            if line and not line.startswith(';'): self.items.append(Ins(line))
    def raw(self, text):
        i = Ins('.raw'); i.text = text; i.is_dir = True; self.items.append(i)
    def finalize(self, stats=None):
        out = []
        pos = 0
        valu_v = {}; valu_s = {}; trans_v = {}; mfma_d = {}; mfma_c = {}; store_d = {}; salu_m0 = [-99]
        ninserted = 0
        seen = set(); fwd = {}
        def need(p, n):
            return max(0, n - (pos - p - 1))
        def drain():
            k = 0
            for d, n in ((valu_v, 2), (valu_s, 5), (trans_v, 1), (store_d, 2)):
                for p in d.values(): k = max(k, need(p, n))
            for (p, ps, regs) in mfma_d.values(): k = max(k, need(p, 12 if ps == 8 else 8))
            for (p, ps) in mfma_c.values(): k = max(k, need(p, 7 if ps == 8 else 3))
            k = max(k, need(salu_m0[0], 1))
            return k
        def emit_nop(k):
            nonlocal pos, ninserted
            while k > 0:
                c = min(k, 16)
                out.append('\ts_nop %d' % (c - 1)); pos += c; k -= c; ninserted += 1
        for it in self.items:
            if it.is_dir:
                out.append(it.text); continue
            if it.is_label:
                name = it.text.split(';')[0].strip()[:-1]
                seen.add(name)
                for bp in fwd.pop(name, []):
                    sh = pos - bp - 1
                    if sh > 0:
                        for d in (valu_v, valu_s, trans_v, store_d):
                            for r in d:
                                if d[r] < bp: d[r] += sh
                        for r in mfma_d:
                            if mfma_d[r][0] < bp: mfma_d[r] = (mfma_d[r][0] + sh,) + mfma_d[r][1:]
                        for r in mfma_c:
                            if mfma_c[r][0] < bp: mfma_c[r] = (mfma_c[r][0] + sh,) + mfma_c[r][1:]
                        if salu_m0[0] < bp: salu_m0[0] += sh
                out.append(it.text); continue
            k = 0; isfwd = False
            rv = [r for r in it.r if r[0] in 'va']; rs = [r for r in it.r if r[0] == 's']
            wv = [r for r in it.w if r[0] in 'va']
            if it.kind == 'ctl' and it.mn != 's_endpgm':
                tgt = it.ops[0] if it.ops else None
                if tgt in seen or tgt is None or it.mn.startswith('s_setpc') or it.mn.startswith('s_swappc'):
                    k = max(0, drain() - 1)
                else:
                    isfwd = True
            if it.kind == 'mfma':
                for r in rv:
                    if r in valu_v: k = max(k, need(valu_v[r], 2))
                for r in it.A + it.B:
                    if r in mfma_d: k = max(k, need(mfma_d[r][0], 12 if mfma_d[r][1] == 8 else 8))
                for r in it.C:
                    if r in mfma_d:
                        p, ps, regs = mfma_d[r]
                        if regs != tuple(it.C) : k = max(k, need(p, 10 if ps == 8 else 6))
                        elif ps != it.passes: k = max(k, need(p, 10 if ps == 8 else 6))
                if not it.C or tuple(it.C) != tuple(it.w):
                    for r in it.w:
                        if r in mfma_d and (not it.C or r not in it.C):
                            p, ps, regs = mfma_d[r]
                            k = max(k, need(p, 10 if ps == 8 else 6))
            if it.kind == 'valu':
                for r in rv + wv:
                    if r in mfma_d: k = max(k, need(mfma_d[r][0], 12 if mfma_d[r][1] == 8 else 8))
                for r in wv:
                    if r in mfma_c: k = max(k, need(mfma_c[r][0], 7 if mfma_c[r][1] == 8 else 3))
                    if r in store_d: k = max(k, need(store_d[r], 2))
                for r in rv:
                    if r in trans_v and it.mn.replace('_e32','').replace('_e64','') not in TRANS: k = max(k, need(trans_v[r], 1))
                    if it.dpp and r in valu_v: k = max(k, need(valu_v[r], 2))
                    if it.mn.startswith('v_permlane') and r in valu_v: k = max(k, need(valu_v[r], 2))
                    if (it.mn.startswith('v_readlane') or it.mn.startswith('v_readfirstlane')) and r in valu_v: k = max(k, need(valu_v[r], 1))
                for r in rs:
                    if r in valu_s:
                        n = 4 if (it.mn.startswith('v_readlane') or it.mn.startswith('v_writelane')) else 2
                        k = max(k, need(valu_s[r], n))
                if it.mn.startswith('v_cndmask') or it.mn.startswith('v_addc') or it.mn.startswith('v_subb'):
                    for r in (('s', 106), ('s', 107)):
                        if r in valu_s and ('vcc' in it.text): k = max(k, need(valu_s[r], 2))
            if it.kind in ('vmem', 'ds'):
                for r in rv + wv:
                    if r in mfma_d: k = max(k, need(mfma_d[r][0], 12 if mfma_d[r][1] == 8 else 8))
                if it.kind == 'vmem':
                    for r in rs:
                        if r in valu_s: k = max(k, need(valu_s[r], 5))
                    if getattr(it, 'lds', False): k = max(k, need(salu_m0[0], 1))
                for r in wv:
                    if r in store_d: k = max(k, need(store_d[r], 1))
            if it.kind in ('salu', 'smem'):
                for r in rs:
                    if r in valu_s: k = max(k, need(valu_s[r], 1))
            emit_nop(k)
            out.append('\t' + it.text)
            if isfwd: fwd.setdefault(it.ops[0], []).append(pos)
            if it.kind == 'valu':
                for r in it.w:
                    if r[0] in 'va':
                        valu_v[r] = pos
                        if it.mn.replace('_e32','').replace('_e64','') in TRANS: trans_v[r] = pos
                        else: trans_v.pop(r, None)
                        mfma_d.pop(r, None)
                    else: valu_s[r] = pos
            elif it.kind == 'mfma':
                for r in it.w:
                    mfma_d[r] = (pos, it.passes, tuple(it.w)); valu_v.pop(r, None); trans_v.pop(r, None)
                for r in it.C: mfma_c[r] = (pos, it.passes)
            elif it.kind in ('vmem', 'ds'):
                for r in it.w:
                    valu_v.pop(r, None); trans_v.pop(r, None); mfma_d.pop(r, None)
                if it.kind == 'vmem' and getattr(it, 'store_wide', False):
                    for r in it.sdata: store_d[r] = pos
            elif it.kind in ('salu', 'smem'):
                for r in it.w:
                    valu_s.pop(r, None)
                    if r == ('s', 124): salu_m0[0] = pos
            pos += it.nstates
            lim = min([pos] + [min(v) for v in fwd.values()])
            for d in (valu_v, valu_s, trans_v, store_d):
                for r in [r for r, p in d.items() if lim - p > 16]: del d[r]
            for d in (mfma_d, mfma_c):
                for r in [r for r, p in d.items() if lim - p[0] > 24]: del d[r]
        if stats is not None: stats['nops'] = ninserted
        return '\n'.join(out) + '\n'
```

```python
from gen import *

ACC = 0; R = 44; RAD = 84; XS = 124
AS = YP = F = TMP = Y = NA = None
def set_map(D):
    global AS, YP, F, TMP, Y, NA
    AS = XS + 16*D; YP = AS + 4*D; F = YP + 4*D; TMP = F + 16; Y = TMP + 8
    NA = 8 if D == 2 else 6
vLaneX = 228; vLaneMask = 229; vRecA = 230; vRecB = 231; vSteps = 232; vEN = 233; vXA0 = 234; vXA1 = 235; vEA = 236
vTa = 237; vTb = 238; vPW = 239; vPR0 = 240; vPR1 = 241; vWR = 242; vOut0 = 243; vOut1 = 244; vOrd = 245
vLane = 246; vTid = 247; vT = 248
vHi = 248; vSBase = 249; vGrab = 250; vCtr = 246; vOne = 247
sWave = 20; sPfT = 21; sPfEnd = 22; sPfQ = 23; sNQ = 24; sCur = 25; s512 = 26; sHi = 27; sOffA = 28; sOffB = 29; sNode = 30; sT = 31
sM1 = 32; sM2 = 34; sM3 = 36; sSave = 38; sMask = 40; sOvf = 82; sU = 84
OPT = {}
POL = ['', ' nt', ' sc1', ' sc0 sc1', ' sc1 nt', ' sc0 sc1 nt', ' sc0']
YSEP = ((220, 222, 224), (226, 248, 250))
sTag = 40
L_CTR = L_FLAG + 16
L_QI = 1344
COST_STEP = 8; COST_FLUSH = 11

def pr(x): return f'v[{x}:{x+1}]'
def q4(x): return f'v[{x}:{x+3}]'

def lane_consts(a, opt):
    i_, g_ = 208, 209
    a(f'v_and_b32 v{i_}, 15, v{vLane}')
    a(f'v_lshrrev_b32 v{g_}, 4, v{vLane}')
    a(f'v_lshlrev_b32 v{vLaneX}, 3, v{i_}')
    a(f'v_lshrrev_b32 v{210}, 1, v{g_}')
    a(f'v_and_b32 v{211}, 1, v{i_}')
    a(f'v_cmp_eq_u32 vcc, v{210}, v{211}')
    a(f'v_and_b32 v{212}, 1, v{g_}')
    a(f'v_lshlrev_b32 v{212}, 4, v{212}')
    a(f'v_mov_b32 v{213}, 2.0')
    a(f'v_cndmask_b32 v{vLaneMask}, v{213}, v{212}, vcc')
    a(f'v_lshlrev_b32 v{vRecA}, 4, v{g_}')
    a(f'v_add_u32 v{vRecA}, {L_RECA}, v{vRecA}')
    a(f'v_lshrrev_b32 v{vRecB}, 1, v{i_}')
    a(f'v_lshlrev_b32 v{vRecB}, 2, v{vRecB}')
    a(f'v_add_u32 v{vRecB}, {L_RECB}, v{vRecB}')
    a(f's_mul_i32 s{sNode}, s{sWave}, {4*PS}')
    a(f's_add_u32 s{sNode}, s{sNode}, {L_P}')
    a(f'v_mul_u32_u24 v{vPW}, {PS}, v{g_}')
    a(f'v_add3_u32 v{vPW}, v{vPW}, v{vLaneX}, s{sNode}')
    a(f'v_lshrrev_b32 v{210}, 2, v{i_}')
    a(f'v_mul_u32_u24 v{vPR0}, {PS}, v{210}')
    a(f'v_lshlrev_b32 v{211}, 4, v{g_}')
    a(f'v_add3_u32 v{vPR0}, v{vPR0}, v{211}, s{sNode}')
    a(f'v_and_b32 v{211}, 3, v{i_}')
    a(f'v_min_u32 v{212}, 2, v{211}')
    a(f'v_mul_u32_u24 v{212}, {PJS}, v{212}')
    a(f'v_add_u32 v{212}, 256, v{212}')
    a(f'v_add_u32 v{vPR1}, v{vPR0}, v{212}')
    a(f'v_lshlrev_b32 v{vWR}, 4, v{vLane}')
    a(f'v_add_u32 v{vWR}, {L_W}, v{vWR}')
    a(f'v_lshlrev_b32 v{212}, 5, v{g_}')
    a(f'v_lshl_add_u32 v{vOut0}, v{211}, 3, v{212}')
    a(f'v_lshl_add_u32 v{vOut1}, v{211}, 7, v{212}')
    a(f'v_add_u32 v{vOut1}, 128, v{vOut1}')
    a(f'v_cmp_eq_u32 vcc, 3, v{211}')
    a(f'v_cndmask_b32 v{vOut1}, v{vOut1}, v{213}, vcc')
    a(f'v_lshlrev_b32 v{vOrd}, 2, v{210}')
    a(f'v_add_u32 v{vOrd}, {L_SORT}, v{vOrd}')
    a(f's_mov_b32 s{s512}, 512')
    a(f's_mov_b32 s{sHi}, 0xffff0000')
    a(f's_mul_i32 s{sNode}, s2, {NPB*512}')
    for m, pat in ((sM1, 0x22222222), (sM2, 0x44444444), (sM3, 0x88888888)):
        a(f's_mov_b32 s{m}, {pat}'); a(f's_mov_b32 s{m+1}, {pat}')

def prologue(a, opt):
    a(f's_cmp_ge_u32 s2, {NB}')
    a('s_cbranch_scc1 K2_end2' if opt.get('ts') else 's_cbranch_scc1 K2_end')
    if opt.get('xcdmap', 1):
        a('s_and_b32 s3, s2, 7')
        a('s_lshl_b32 s3, s3, 5')
        a('s_lshr_b32 s2, s2, 3')
        a('s_add_u32 s2, s2, s3')
    a('s_load_dwordx2 s[4:5], s[0:1], 0')
    a('s_load_dwordx2 s[8:9], s[0:1], 16')
    a('s_load_dwordx2 s[12:13], s[0:1], 72')
    a('s_load_dwordx2 s[16:17], s[0:1], 88')
    a(f'v_mov_b32 v{vTid}, v0')
    a(f'v_and_b32 v{vLane}, 63, v0')
    a(f'v_lshrrev_b32 v{vT}, 6, v0')
    a(f'v_lshlrev_b32 v{vT+1}, 2, v0')
    a(f'v_readfirstlane_b32 s{sWave}, v{vT}')
    if opt.get('ts'): a('v_mov_b32 v255, 0')
    stamp(a, opt, 0, 255)
    a(f'v_mov_b32 v200, 0')
    a(f'v_cmp_gt_u32 vcc, 336, v{vTid}')
    a(f's_and_saveexec_b64 s[{sSave}:{sSave+1}], vcc')
    a('s_cbranch_execz K2_z')
    a(f'ds_write_b32 v{vT+1}, v200')
    a('K2_z:')
    a(f's_mov_b64 exec, s[{sSave}:{sSave+1}]')
    a('v_mov_b32 v200, 0xffff'); a('v_mov_b32 v201, 0'); a('v_mov_b32 v202, 0xffff'); a('v_mov_b32 v203, 0')
    for k in range(4): a(f'v_mov_b32 v{204+k}, 2.0')
    a(f'v_lshlrev_b32 v{vT+2}, 4, v{vTid}')
    for k in range(4): a(f'ds_write_b128 v{vT+2}, v[200:203] offset:{L_RECA + k*8192}')
    for k in range(2): a(f'ds_write_b128 v{vT+2}, v[204:207] offset:{L_RECB + k*8192}')
    a(f'v_lshrrev_b32 v{vT+3}, 4, v{vTid}')
    a('s_lshl_b32 s3, s2, 2')
    a(f'v_lshl_add_u32 v{vT+4}, v{vT+3}, 10, s3')
    a(f'v_lshlrev_b32 v{vT+5}, 4, v{vLane}')
    a('s_waitcnt lgkmcnt(0)')
    srd(a, 4, 0 if opt.get('nomem') else N * 512); srd(a, 8, 0 if opt.get('nomem') or opt.get('noea') else E * 32); srd(a, 12, N * 512); srd(a, 16, WS_USED)
    TB = 124
    for k in range(7):
        a(f's_mov_b32 s{sU+k}, {TAB_OFF + k*32768}')
    for k in range(7):
        a(f'buffer_load_dword v{TB+k}, v{vT+4}, s[16:19], s{sU+k} offen')
    lane_consts(a, opt)
    vJ = 152; vG = 153; CN = 154; AD = 161
    a(f'v_and_b32 v{vJ}, 15, v{vTid}')
    a(f'v_mul_u32_u24 v{vG}, {CH*12}, v{vT+3}')
    a(f'v_add_u32 v168, 16, v{vJ}')
    a(f'v_add_u32 v169, 32, v{vJ}')
    a(f's_mov_b64 s[{sOvf}:{sOvf+1}], 0')
    for k in range(7): a(f's_mov_b32 s{sU+k}, {REC_OFF + k*32*CH*12}')
    a('s_waitcnt vmcnt(0)')
    stamp(a, opt, 1, 255)
    for k in range(7):
        a(f'v_lshrrev_b32 v{CN+k}, 16, v{TB+k}')
        a(f'v_and_b32 v{AD+k}, 0xffff, v{TB+k}')
        a(f'v_add_u32 v{AD+k}, v{AD+k}, v{vJ}')
        a(f'v_mad_u32_u24 v{AD+k}, v{AD+k}, 12, v{vG}')
        a(f'v_cmp_gt_u32 s[{sMask+2*k}:{sMask+2*k+1}], v{CN+k}, v{vJ}')
        a(f'v_cmp_gt_u32 s[{sMask+14+2*k}:{sMask+14+2*k+1}], v{CN+k}, v168')
        a(f'v_cmp_gt_u32 s[{sMask+28+2*k}:{sMask+28+2*k+1}], v{CN+k}, v169')
        a(f'v_cmp_lt_u32 vcc, 48, v{CN+k}')
        a(f's_or_b64 s[{sOvf}:{sOvf+1}], s[{sOvf}:{sOvf+1}], vcc')
    def rec_loads(beta):
        for k in range(7):
            u = beta*7 + k
            a(f's_mov_b64 exec, s[{sMask+2*u}:{sMask+2*u+1}]')
            a(f'buffer_load_dwordx3 v[{4*u}:{4*u+2}], v{AD+k}, s[16:19], s{sU+k} offen offset:{beta*192}')
        a('s_mov_b64 exec, -1')
    rec_loads(0); rec_loads(1)
    sB2 = sU + 12
    a(f's_mov_b64 s[{sB2}:{sB2+1}], 0')
    for k in range(7):
        a(f's_or_b64 s[{sB2}:{sB2+1}], s[{sB2}:{sB2+1}], s[{sMask+28+2*k}:{sMask+28+2*k+1}]')
    a('s_cbranch_scc0 K2_nb2a')
    rec_loads(2)
    a('K2_nb2a:')
    IMG = 124
    a(f'v_lshlrev_b32 v{vT+5}, 4, v{vLane}')
    for u in range(7):
        a(f's_add_u32 s{sU+u}, s{sWave}, {8*u}')
        if u == 6:
            a(f's_min_u32 s{sU+u}, s{sU+u}, 49')
        a(f's_lshl_b32 s{sU+u}, s{sU+u}, 10')
        a(f's_add_u32 s{sT}, s{sU+u}, {WIMG_OFF}')
        a(f'buffer_load_dwordx4 {q4(IMG+4*u)}, v{vT+5}, s[16:19], s{sT} offen')
    a('s_waitcnt lgkmcnt(0)')
    a('s_barrier')
    a(f's_cmp_eq_u64 s[{sOvf}:{sOvf+1}], 0')
    a('s_cbranch_scc1 K2_novf')
    a(f'v_mov_b32 v{vT}, {L_FLAG}')
    a(f'v_mov_b32 v{vT+1}, 1')
    a(f'ds_write_b32 v{vT}, v{vT+1}')
    a('K2_novf:')
    a(f'v_mov_b32 v170, 1')
    a('s_waitcnt vmcnt(7)')
    stamp(a, opt, 2, 255)
    def hist(beta):
        for k in range(7):
            u = beta*7 + k
            a(f's_mov_b64 exec, s[{sMask+2*u}:{sMask+2*u+1}]')
            a(f'v_lshrrev_b32 v{161+k}, 22, v{4*u+2}')
            a(f'v_and_b32 v{161+k}, 0x3fc, v{161+k}')
            a(f'ds_add_rtn_u32 v{4*u+3}, v{161+k}, v170 offset:{L_CNT}')
        a('s_mov_b64 exec, -1')
    hist(0); hist(1)
    a(f's_cmp_eq_u64 s[{sB2}:{sB2+1}], 0')
    a('s_cbranch_scc1 K2_nb2b')
    hist(2)
    a('K2_nb2b:')
    a('s_waitcnt lgkmcnt(0)')
    a('s_barrier')
    stamp(a, opt, 3, 255)
    a('s_waitcnt vmcnt(0)')
    a(f'v_lshlrev_b32 v{vT+5}, 4, v{vLane}')
    a(f's_mov_b32 s{sU+8}, {L_P}')
    a(f's_mov_b32 s{sU+9}, {L_W - 10240}')
    for u in range(7):
        a(f's_cmp_lt_u32 s{sU+u}, 10240')
        a(f's_cselect_b32 s{sT}, s{sU+8}, s{sU+9}')
        a(f's_add_u32 s{sT}, s{sT}, s{sU+u}')
        a(f'v_add_u32 v{vT+6}, s{sT}, v{vT+5}')
        a(f'ds_write_b128 v{vT+6}, {q4(124+4*u)}')
    a(f'v_mov_b32 v{vT}, {L_FLAG}')
    a(f'ds_read_b32 v{vT+1}, v{vT}')
    a('s_waitcnt lgkmcnt(0)')
    a(f'v_readfirstlane_b32 s{sT}, v{vT+1}')
    a(f's_cmp_lg_u32 s{sT}, 0')
    a('s_cbranch_scc1 K2_slow')
    a(f's_cmp_lg_u32 s{sWave}, 0')
    a('s_cbranch_scc1 K2_p6')
    DG = 152; KY = 156; RK = 160; PO = 164; SO = 168
    a(f'v_lshlrev_b32 v{vT}, 4, v{vLane}')
    a(f'ds_read_b128 {q4(DG)}, v{vT} offset:{L_CNT}')
    a(f'v_cmp_gt_u32 vcc, 49, v{vLane}')
    a(f's_mov_b64 s[{sU}:{sU+1}], vcc')
    a(f'v_lshlrev_b32 v{vT+1}, 2, v{vLane}')
    for k in range(4): a(f'v_mov_b32 v{KY+k}, 0'); a(f'v_mov_b32 v{RK+k}, 0')
    a('s_waitcnt lgkmcnt(0)')
    a(f's_mov_b64 exec, s[{sU}:{sU+1}]')
    for k in range(4):
        a(f'v_min_u32 v{KY+k}, 63, v{DG+k}')
        a(f'v_sub_u32 v{KY+k}, 63, v{KY+k}')
        a(f'v_lshlrev_b32 v{KY+k}, 2, v{KY+k}')
        a(f'ds_add_rtn_u32 v{RK+k}, v{KY+k}, v170 offset:{L_BINS}')
    a('s_mov_b64 exec, -1')
    a(f'ds_read_b32 v{vT+2}, v{vT+1} offset:{L_BINS}')
    a('s_waitcnt lgkmcnt(0)')
    a(f'v_mov_b32 v{vT+3}, v{vT+2}')
    wave_scan(a, vT+3)
    a(f'v_sub_u32 v{vT+3}, v{vT+3}, v{vT+2}')
    for k in range(4): a(f'ds_bpermute_b32 v{PO+k}, v{KY+k}, v{vT+3}')
    a('s_waitcnt lgkmcnt(0)')
    a(f's_mov_b64 exec, s[{sU}:{sU+1}]')
    for k in range(4):
        a(f'v_add_u32 v{PO+k}, v{PO+k}, v{RK+k}')
        a(f'v_add_u32 v{vT+4}, {k}, v{vT+1}')
        a(f'v_lshl_or_b32 v{vT+4}, v{DG+k}, 8, v{vT+4}')
        a(f'v_lshlrev_b32 v{vT+5}, 2, v{PO+k}')
        a(f'ds_write_b32 v{vT+5}, v{vT+4} offset:{L_SORT}')
    a('s_mov_b64 exec, -1')
    a(f'ds_read_b128 {q4(SO)}, v{vT} offset:{L_SORT}')
    a(f'v_cmp_gt_u32 vcc, 49, v{vLane}')
    a('s_waitcnt lgkmcnt(0)')
    a(f'v_max3_u32 v{SO}, v{SO}, v{SO+1}, v{SO+2}')
    a(f'v_max_u32 v{SO}, v{SO}, v{SO+3}')
    a(f'v_lshrrev_b32 v{SO}, 8, v{SO}')
    a(f'v_add_u32 v{SO}, 1, v{SO}')
    a(f'v_lshrrev_b32 v{SO}, 1, v{SO}')
    a(f'v_max_u32 v{SO}, 1, v{SO}')
    a(f'v_cndmask_b32 v{SO}, 0, v{SO}, vcc')
    a(f'v_mov_b32 v{SO+1}, v{SO}')
    wave_scan(a, SO+1)
    a(f'v_sub_u32 v{SO+1}, v{SO+1}, v{SO}')
    a(f'v_min_u32 v{SO+2}, 0xffff, v{SO+1}')
    a(f'v_min_u32 v{SO+3}, 0xffff, v{SO}')
    a(f'v_lshl_or_b32 v{SO+2}, v{SO+3}, 16, v{SO+2}')
    a(f'ds_write_b32 v{vT+1}, v{SO+2} offset:{L_QI}')
    for k in range(4):
        a(f'v_and_b32 v{KY+k}, 0xfc, v{PO+k}')
        a(f'ds_bpermute_b32 v{RK+k}, v{KY+k}, v{SO+1}')
    a('s_waitcnt lgkmcnt(0)')
    for k in range(4):
        a(f'v_and_b32 v{PO+k}, 3, v{PO+k}')
        a(f'v_lshlrev_b32 v{PO+k}, 1, v{PO+k}')
        a(f'v_lshl_add_u32 v{RK+k}, v{RK+k}, 3, v{PO+k}')
    a(f's_mov_b64 exec, s[{sU}:{sU+1}]')
    a(f'ds_write_b128 v{vT}, {q4(RK)} offset:{L_BASE}')
    a('s_mov_b64 exec, -1')
    a('K2_p6:')
    a('s_waitcnt lgkmcnt(0)')
    a('s_barrier')
    stamp(a, opt, 4, 255)
    a(f'v_lshlrev_b32 v{vT+1}, 2, v{vLane}')
    a(f'ds_read_b32 v{vT+2}, v{vT+1} offset:{L_QI}')
    a('s_waitcnt lgkmcnt(0)')
    a(f'v_and_b32 v{vT+3}, 0xffff, v{vT+2}')
    a(f'v_lshrrev_b32 v{vSteps}, 16, v{vT+2}')
    a(f'v_mov_b32 v226, v{vT+3}')
    a(f'v_readlane_b32 s{sT}, v{vT+3}, 63')
    if opt.get('ts'): a(f's_mov_b32 s99, s{sT}'); a('s_mov_b32 s45, s99')
    a(f's_cmp_gt_u32 s{sT}, {NULLSTEP}')
    a('s_cbranch_scc1 K2_slow')
    def scat(beta):
        for k in range(7):
            u = beta*7 + k
            a(f's_mov_b64 exec, s[{sMask+2*u}:{sMask+2*u+1}]')
            a(f'v_lshrrev_b32 v{161+k}, 22, v{4*u+2}')
            a(f'v_and_b32 v{161+k}, 0x3fc, v{161+k}')
            a(f'ds_read_b32 v{176+k}, v{161+k} offset:{L_BASE}')
        for k in range(7):
            u = beta*7 + k
            a(f's_mov_b64 exec, s[{sMask+2*u}:{sMask+2*u+1}]')
            a(f'v_lshrrev_b32 v{vT}, 1, v{4*u+3}')
            a(f'v_and_b32 v{vT+1}, 1, v{4*u+3}')
            a(f'v_and_b32 v{vT+2}, 0xffffff, v{4*u+2}')
            a(f'v_lshlrev_b32 v{vT+2}, 5, v{vT+2}')
            a(f's_waitcnt lgkmcnt({min(15, 6 - k + 2*k)})') if False else None
            if k == 0: a('s_waitcnt lgkmcnt(0)')
            a(f'v_lshl_add_u32 v{vT}, v{vT}, 3, v{176+k}')
            a(f'v_add_u32 v{vT}, v{vT}, v{vT+1}')
            a(f'v_lshlrev_b32 v{vT+3}, 3, v{vT}')
            a(f'v_lshlrev_b32 v{vT+4}, 2, v{vT}')
            a(f'ds_write_b64 v{vT+3}, v[{4*u}:{4*u+1}] offset:{L_RECA}')
            a(f'ds_write_b32 v{vT+4}, v{vT+2} offset:{L_RECB}')
        a('s_mov_b64 exec, -1')
    scat(0); scat(1)
    a(f's_cmp_eq_u64 s[{sB2}:{sB2+1}], 0')
    a('s_cbranch_scc1 K2_nb2c')
    scat(2)
    a('K2_nb2c:')
    a(f'v_lshlrev_b32 v{vT}, 4, v{vLane}')
    a(f'v_add_u32 v{vT}, {L_P}, v{vT}')
    for t in range(10): a(f'ds_read_b128 {q4(RAD+4*t)}, v{vT} offset:{t*1024}')
    a('s_waitcnt lgkmcnt(0)')
    a('s_barrier')
    stamp(a, opt, 5, 255)

_uid = [0]
DEFER = []
def rec_read(a, sg):
    _uid[0] += 1; u = _uid[0]
    a(f's_cmp_lg_u32 s{sPfT}, s{sPfEnd}')
    a(f's_cbranch_scc0 K2_sw{u}')
    a(f'K2_have{u}:')
    a(f's_lshl_b32 s{sOffA}, s{sPfT}, 6')
    a(f's_add_u32 s{sPfT}, s{sPfT}, 1')
    a(f's_cmp_eq_u32 s{sPfT}, s{sPfEnd}')
    a(f's_cselect_b32 s{sTag+sg}, s{sPfQ}, -1')
    a(f'K2_go{u}:')
    a(f's_lshr_b32 s{sOffB}, s{sOffA}, 1')
    a(f'v_add_u32 v{vTa}, s{sOffA}, v{vRecA}')
    a(f'v_add_u32 v{vTb}, s{sOffB}, v{vRecB}')
    a(f'ds_read_b128 {q4(YP+4*sg)}, v{vTa}')
    a(f'ds_read_b32 v{vEN}, v{vTb}')
    def cold(a, u=u, sg=sg):
        a(f'K2_sw{u}:')
        a(f's_cmp_ge_u32 s{sNQ}, 49')
        a(f's_cbranch_scc1 K2_exh{u}')
        a(f's_mov_b32 s{sPfQ}, s{sNQ}')
        a(f'v_readlane_b32 s{sPfT}, v{vSBase}, s{sNQ}')
        a(f'v_readlane_b32 s{sT}, v{vSteps}, s{sNQ}')
        a('s_mov_b64 exec, 1')
        a(f'ds_add_rtn_u32 v{vGrab}, v{vCtr}, v{vOne}')
        a('s_mov_b64 exec, -1')
        a(f's_add_u32 s{sPfEnd}, s{sPfT}, s{sT}')
        a(f's_branch K2_have{u}')
        a(f'K2_exh{u}:')
        a(f's_mov_b32 s{sOffA}, {NULLSTEP*64}')
        a(f's_mov_b32 s{sTag+sg}, -2')
        a(f's_branch K2_go{u}')
    DEFER.append(cold)

def grab_result(a):
    a(f'v_readfirstlane_b32 s{sNQ}, v{vGrab}')
    a(f's_add_u32 s{sNQ}, s{sNQ}, 8')

def issue_loads(a, sg, opt):
    a(f'v_mad_u32_u16 v{vXA0}, v{YP+4*sg}, s{s512}, v{vLaneX}')
    a(f'v_mad_u32_u16 v{vXA1}, v{YP+4*sg+2}, s{s512}, v{vLaneX}')
    a(f'v_or_b32 v{vEA}, v{vEN}, v{vLaneMask}')
    ent = POL[opt.get('eapol', 4)]
    if opt.get('noload'): return
    a(f'buffer_load_dwordx4 {q4(AS+4*sg)}, v{vEA}, s[8:11], 0 offen{ent}')
    for s, va in ((0, vXA0), (1, vXA1)):
        for v in range(4):
            a(f'buffer_load_dwordx2 {pr(XS+16*sg+8*s+2*v)}, v{va}, s[4:7], 0 offen offset:{128*v}{POL[opt.get("xpol", 0)]}')

def Fp(v, h): return F + 8*h + 2*v
def Rp(p, h, s): return R + (2*p + h)*4 + 2*s
def Ap(f, h): return ACC + 4*f + 2*h

def unpack_ops(sg, s):
    ops = []
    for v in range(4):
        for h in range(2):
            src = XS + 16*sg + 8*s + 2*v + h
            ops.append(f'v_lshlrev_b32 v{Fp(v,h)}, 16, v{src}')
            ops.append(f'v_and_b32 v{Fp(v,h)+1}, v{vHi}, v{src}')
    return ops

def compute_slot(a, s):
    Yr = (Y + 3*s, Y + 3*s + 1, Y + 3*s + 2)
    ch = [(h, p) for h in range(2) for p in range(2)]
    Fv = lambda v, c: Fp(v, c[0]) + c[1]
    Rv = lambda p, c: Rp(p, c[0], s) + c[1]
    Av = lambda f, c: Ap(f, c[0]) + c[1]
    dot = lambda c: TMP + 2*c[0] + c[1]
    t = lambda c: TMP + 4 + 2*c[0] + c[1]
    fmac = lambda d, x, y: a(f'v_fmac_f32 v{d}, v{x}, v{y}')
    mul = lambda d, x, y: a(f'v_mul_f32 v{d}, v{x}, v{y}')
    fms = lambda d, x, y: a(f'v_fma_f32 v{d}, -v{x}, v{y}, v{d}')
    seq = [
        lambda c: fmac(Av(0,c), Fv(0,c), Rv(0,c)),
        lambda c: mul(dot(c), Fv(1,c), Yr[0]),
        lambda c: mul(t(c), Fv(0,c), Rv(2,c)),
        lambda c: fmac(dot(c), Fv(2,c), Yr[1]),
        lambda c: fmac(Av(5,c), Fv(1,c), Rv(3,c)),
        lambda c: fmac(dot(c), Fv(3,c), Yr[2]),
        lambda c: fmac(Av(2,c), t(c), Yr[0]),
        lambda c: fmac(Av(6,c), Fv(2,c), Rv(3,c)),
        lambda c: fmac(Av(3,c), t(c), Yr[1]),
        lambda c: fmac(Av(7,c), Fv(3,c), Rv(3,c)),
        lambda c: fmac(Av(4,c), t(c), Yr[2]),
        lambda c: fmac(Av(1,c), dot(c), Rv(1,c)),
        lambda c: mul(Fv(1,c), Fv(1,c), Rv(4,c)),
        lambda c: mul(Fv(2,c), Fv(2,c), Rv(4,c)),
        lambda c: mul(Fv(3,c), Fv(3,c), Rv(4,c)),
        lambda c: fmac(Av(9,c), Fv(1,c), Yr[2]),
        lambda c: fmac(Av(10,c), Fv(2,c), Yr[0]),
        lambda c: fmac(Av(8,c), Fv(3,c), Yr[1]),
        lambda c: fms(Av(10,c), Fv(1,c), Yr[1]),
        lambda c: fms(Av(8,c), Fv(2,c), Yr[2]),
        lambda c: fms(Av(9,c), Fv(3,c), Yr[0]),
    ]
    for op in seq:
        for c in ch: op(c)

def step(a, sg, D, opt):
    a(f's_mov_b32 s{sCur}, s{sTag+sg}')
    a(f's_cmp_eq_u32 s{sCur}, -2')
    a('s_cbranch_scc1 K2_end')
    for s in range(2):
        a(f'v_and_b32 v{Y+3*s}, v{vHi}, v{YP+4*sg+2*s}')
        a(f'v_lshlrev_b32 v{Y+3*s+1}, 16, v{YP+4*sg+2*s+1}')
        a(f'v_and_b32 v{Y+3*s+2}, v{vHi}, v{YP+4*sg+2*s+1}')
    rec_read(a, sg)
    a(f's_waitcnt vmcnt({9*(D-1)})')
    fill = unpack_ops(sg, 0)
    mf = []
    for p in (0, 2, 3, 1, 4):
        for h in range(2):
            mf.append(f'v_mfma_f32_16x16x32_bf16 {q4(R+(2*p+h)*4)}, {q4(AS+4*sg)}, {q4(RAD+(2*p+h)*4)}, 0')
    if opt.get('nomfma'): mf = []
    if opt.get('mfb2b', 1):
        for m in mf: a(m)
        for o in fill: a(o)
    else:
        fi = 0
        for k, m in enumerate(mf):
            a(m)
            for _ in range(2):
                if fi < len(fill): a(fill[fi]); fi += 1
        while fi < len(fill): a(fill[fi]); fi += 1
    if not opt.get('nocomp'):
        compute_slot(a, 0)
        for o in unpack_ops(sg, 1): a(o)
        compute_slot(a, 1)
    a('s_waitcnt lgkmcnt(0)')
    grab_result(a)
    issue_loads(a, sg, opt)

def featoff(f):
    if f < 2: return 128*f
    f -= 2; kind, j = f // 3, f % 3
    return 256 + PJS*j + 128*kind

def flush(a, opt):
    if opt.get('noflush'): return
    D0 = R; D1 = R + 16; BR = R + 32; AR = F
    issued = []
    def ds(text):
        issued.append(text); a(text)
    state = {'done': 0}
    def wait_for(idx):
        n = len(issued) - 1 - idx
        if idx >= state['done']:
            a(f's_waitcnt lgkmcnt({min(n, 15)})'); state['done'] = len(issued) - min(n, 15)
    def room():
        if len(issued) - state['done'] >= 15: wait_for(len(issued) - 12)
    a(f's_lshl_b32 s{sT}, s{sCur}, 4')
    a(f'v_add_u32 v{vTa}, s{sT}, v{vOrd}')
    ds(f'ds_read_b32 v{vTb}, v{vTa}')
    for f in range(11):
        t0 = F + 2*(f % 8)
        a(f'v_cvt_pk_bf16_f32 v{t0}, v{ACC+4*f}, v{ACC+4*f+1}')
        a(f'v_cvt_pk_bf16_f32 v{t0+1}, v{ACC+4*f+2}, v{ACC+4*f+3}')
        room()
        ds(f'ds_write_b64 v{vPW}, {pr(t0)} offset:{featoff(f)}')
    groups = [(0, ks) for ks in range(4)] + [(1, ks) for ks in range(6)]
    idxA = {}; idxB = {}
    def loadB(gi):
        c, ks = groups[gi]
        room(); idxB[gi] = len(issued)
        ds(f'ds_read_b128 {q4(BR+4*(gi%2))}, v{vPR1 if c else vPR0} offset:{ks*64}')
    def loadA(u):
        gi, t = divmod(u, 4); c, ks = groups[gi]
        tile = (ks*4 + t) + (16 if c else 0)
        room(); idxA[u] = len(issued)
        ds(f'ds_read_b128 {q4(AR+4*(u%NA))}, v{vWR} offset:{tile*1024}')
    if NA == 8:
        loadB(0)
        for u in range(4): loadA(u)
        loadB(1)
        for u in range(4, 8): loadA(u)
        for k in range(44): a(f'v_mov_b32 v{ACC+k}, 0')
        for gi, (c, ks) in enumerate(groups):
            wait_for(max(idxA[4*gi+3], idxB[gi]))
            for t in range(4):
                u = 4*gi + t
                Dr = (D1 if c else D0) + 4*t
                cop = '0' if ks == 0 else q4(Dr)
                a(f'v_mfma_f32_16x16x32_bf16 {q4(Dr)}, {q4(AR+4*(u%NA))}, {q4(BR+4*(gi%2))}, {cop}')
            if gi + 2 < len(groups):
                loadB(gi + 2)
                for t in range(4): loadA(4*(gi+2) + t)
    else:
        loadB(0)
        for u in range(4): loadA(u)
        loadB(1)
        for u in range(4, NA): loadA(u)
        for k in range(44): a(f'v_mov_b32 v{ACC+k}, 0')
        for u in range(40):
            gi, t = divmod(u, 4); c, ks = groups[gi]
            wait_for(max(idxA[u], idxB[gi]))
            Dr = (D1 if c else D0) + 4*t
            cop = '0' if ks == 0 else q4(Dr)
            a(f'v_mfma_f32_16x16x32_bf16 {q4(Dr)}, {q4(AR+4*(u%NA))}, {q4(BR+4*(gi%2))}, {cop}')
            if t == 3 and gi + 2 < len(groups): loadB(gi + 2)
            if u + NA < 40: loadA(u + NA)
    SEL = F; G = F + 4; O1 = F + 8; O0 = TMP
    a(f'v_and_b32 v{vTb}, 0xff, v{vTb}')
    a(f'v_lshl_add_u32 v{vTb}, v{vTb}, 9, s{sNode}')
    a(f'v_add_u32 v{vTa}, v{vTb}, v{vOut0}')
    a(f'v_add_u32 v{vTb}, v{vTb}, v{vOut1}')
    SEL = D0
    for t, m in ((1, sM1), (2, sM2), (3, sM3)):
        a(f's_mov_b64 exec, s[{m}:{m+1}]')
        for r in range(4): a(f'v_mov_b32 v{SEL+r}, v{D0+4*t+r}')
    a('s_mov_b64 exec, -1')
    for r in range(4): a(f'v_mul_f32 v{G+r}, 0xbfb8aa3b, v{SEL+r}')
    for r in range(4): a(f'v_exp_f32 v{G+r}, v{G+r}')
    for r in range(4): a(f'v_add_f32 v{G+r}, 1.0, v{G+r}')
    for r in range(4): a(f'v_rcp_f32 v{G+r}, v{G+r}')
    a(f'v_cvt_pk_bf16_f32 v{O0}, v{SEL}, v{SEL+1}')
    a(f'v_cvt_pk_bf16_f32 v{O0+1}, v{SEL+2}, v{SEL+3}')
    a(f'buffer_store_dwordx2 {pr(O0)}, v{vTa}, s[12:15], 0 offen{POL[opt.get("stpol", 1)]}')
    for t in range(4):
        for r in range(4):
            a(f'v_mul_f32_dpp v{D1+4*t+r}, v{G+r}, v{D1+4*t+r} quad_perm:[{t},{t},{t},{t}] row_mask:0xf bank_mask:0xf')
    for t in range(4):
        a(f'v_cvt_pk_bf16_f32 v{O1+2*t}, v{D1+4*t}, v{D1+4*t+1}')
        a(f'v_cvt_pk_bf16_f32 v{O1+2*t+1}, v{D1+4*t+2}, v{D1+4*t+3}')
    a(f'buffer_store_dwordx4 {q4(O1)}, v{vTb}, s[12:15], 0 offen{POL[opt.get("stpol", 1)]}')
    a(f'buffer_store_dwordx4 {q4(O1+4)}, v{vTb}, s[12:15], 0 offen offset:16{POL[opt.get("stpol", 1)]}')

def slow_path(a, opt):
    WR = 100; AC = 0; FX = 12; AE = 16; AV = 24; RR = 40; T = 46; TB_ = 52; REC = 56; vL2 = 60; vZ = 61; vPB = 62; vL4 = 63
    G0 = 64; G1 = 65
    sW0 = 52; sW1 = 56; sWR = 48
    sN = 60; sC = 61; sCntS = 62; sStart = 63; sJ = 64; sMask_ = 66; sBit = 68; sD0 = 69; sD1 = 70; sD2 = 71
    sY0 = 72; sY1 = 73; sY2 = 74; sXo = 75; sEo = 76; sK = 77; sRow = 78; sPB = 79; sTmp = 80; sTmp2 = 81; sHiM = 82
    a('s_mov_b64 exec, -1')
    a(f's_load_dwordx2 s[{sWR}:{sWR+1}], s[0:1], 40')
    a(f's_load_dwordx2 s[{sW0}:{sW0+1}], s[0:1], 48')
    a(f's_load_dwordx2 s[{sW1}:{sW1+1}], s[0:1], 56')
    a(f'v_lshlrev_b32 v{vL2}, 1, v{vLane}')
    a(f'v_lshlrev_b32 v{vL4}, 2, v{vLane}')
    a(f'v_mov_b32 v{vZ}, 0')
    a(f's_mov_b32 s{sHiM}, 0xffff0000')
    a(f's_mul_i32 s{sPB}, s{sWave}, {4*PS}')
    a(f's_add_u32 s{sPB}, s{sPB}, {L_P}')
    a(f'v_add_u32 v{vPB}, s{sPB}, v{vL4}')
    a('s_waitcnt lgkmcnt(0)')
    srd(a, sWR, 16*320*2); srd(a, sW0, 128*64*2); srd(a, sW1, 192*64*2)
    for p in range(5):
        for d in range(16):
            off = (d*320 + 64*p)*2
            a(f's_mov_b32 s{sTmp}, {off}')
            a(f'buffer_load_ushort v{WR+16*p+d}, v{vL2}, s[{sWR}:{sWR+3}], s{sTmp} offen')
        a('s_waitcnt vmcnt(0)')
        for d in range(16): a(f'v_lshlrev_b32 v{WR+16*p+d}, 16, v{WR+16*p+d}')
    TBL = 3072
    for k in range(4):
        a(f'v_add_u32 v{T}, {64*k}, v{vLane}')
        a(f'v_cmp_gt_u32 vcc, {NCH}, v{T}')
        a(f'v_lshlrev_b32 v{T+1}, 10, v{T}')
        a(f's_lshl_b32 s{sTmp}, s2, 2')
        a(f's_add_u32 s{sTmp}, s{sTmp}, {TAB_OFF}')
        a(f'buffer_load_dword v{T+2}, v{T+1}, s[16:19], s{sTmp} offen')
        a('s_waitcnt vmcnt(0)')
        a(f'v_cndmask_b32 v{T+2}, 0, v{T+2}, vcc')
        a(f'ds_write_b32 v{vPB}, v{T+2} offset:{TBL + 256*k}')
    a(f's_mov_b32 s{sN}, s{sWave}')
    a('KS_node:')
    a(f's_cmp_ge_u32 s{sN}, {NPB}')
    a('s_cbranch_scc1 K2_end')
    a(f's_mul_i32 s{sRow}, s2, {NPB}')
    a(f's_add_u32 s{sRow}, s{sRow}, s{sN}')
    a(f's_cmp_ge_u32 s{sRow}, {N}')
    a('s_cbranch_scc1 K2_end')
    a(f's_lshl_b32 s{sRow}, s{sRow}, 9')
    for f in range(11): a(f'v_mov_b32 v{AC+f}, 0')
    a(f's_mov_b32 s{sC}, 0')
    a('KS_chunk:')
    a(f's_lshl_b32 s{sTmp}, s{sC}, 2')
    a(f's_add_u32 s{sTmp}, s{sTmp}, s{sPB}')
    a(f'v_mov_b32 v{T}, s{sTmp}')
    a(f'ds_read_b32 v{T+1}, v{T} offset:{TBL}')
    a('s_waitcnt lgkmcnt(0)')
    a(f'v_readfirstlane_b32 s{sTmp}, v{T+1}')
    a(f's_and_b32 s{sStart}, s{sTmp}, 0xffff')
    a(f's_lshr_b32 s{sCntS}, s{sTmp}, 16')
    a(f's_mul_i32 s{sTmp}, s{sC}, {CH}')
    a(f's_add_u32 s{sStart}, s{sStart}, s{sTmp}')
    a(f's_mov_b32 s{sJ}, 0')
    a('KS_batch:')
    a(f's_cmp_ge_u32 s{sJ}, s{sCntS}')
    a('s_cbranch_scc1 KS_chunk_next')
    a(f'v_add_u32 v{T}, s{sJ}, v{vLane}')
    a(f'v_cmp_gt_u32 vcc, s{sCntS}, v{T}')
    a(f'v_add_u32 v{T}, s{sStart}, v{T}')
    a(f'v_mul_u32_u24 v{T}, 12, v{T}')
    a(f'v_mov_b32 v{T+1}, 2.0')
    a(f'v_cndmask_b32 v{T}, v{T+1}, v{T}, vcc')
    a(f's_mov_b64 s[{sMask_}:{sMask_+1}], vcc')
    a(f'buffer_load_dwordx3 v[{REC}:{REC+2}], v{T}, s[16:19], 0 offen')
    a('s_waitcnt vmcnt(0)')
    a(f'v_lshrrev_b32 v{T}, 24, v{REC+2}')
    a(f'v_cmp_eq_u32 vcc, s{sN}, v{T}')
    a(f's_and_b64 s[{sMask_}:{sMask_+1}], s[{sMask_}:{sMask_+1}], vcc')
    a('KS_edge:')
    a(f's_cmp_eq_u64 s[{sMask_}:{sMask_+1}], 0')
    a('s_cbranch_scc1 KS_batch_next')
    a(f's_ff1_i32_b64 s{sBit}, s[{sMask_}:{sMask_+1}]')
    a(f's_bitset0_b64 s[{sMask_}:{sMask_+1}], s{sBit}')
    a(f'v_readlane_b32 s{sD0}, v{REC}, s{sBit}')
    a(f'v_readlane_b32 s{sD1}, v{REC+1}, s{sBit}')
    a(f'v_readlane_b32 s{sD2}, v{REC+2}, s{sBit}')
    a(f's_and_b32 s{sXo}, s{sD0}, 0xffff')
    a(f's_lshl_b32 s{sXo}, s{sXo}, 9')
    a(f's_and_b32 s{sEo}, s{sD2}, 0xffffff')
    a(f's_lshl_b32 s{sEo}, s{sEo}, 5')
    a(f's_and_b32 s{sY0}, s{sD0}, s{sHiM}')
    a(f's_lshl_b32 s{sY1}, s{sD1}, 16')
    a(f's_and_b32 s{sY2}, s{sD1}, s{sHiM}')
    for v in range(4): a(f'buffer_load_ushort v{FX+v}, v{vL2}, s[4:7], s{sXo} offen offset:{128*v}')
    a(f'buffer_load_dwordx4 v[{AE}:{AE+3}], v{vZ}, s[8:11], s{sEo} offen')
    a(f'buffer_load_dwordx4 v[{AE+4}:{AE+7}], v{vZ}, s[8:11], s{sEo} offen offset:16')
    a('s_waitcnt vmcnt(0)')
    for v in range(4): a(f'v_lshlrev_b32 v{FX+v}, 16, v{FX+v}')
    for q in range(8):
        a(f'v_lshlrev_b32 v{AV+2*q}, 16, v{AE+q}')
        a(f'v_and_b32 v{AV+2*q+1}, s{sHiM}, v{AE+q}')
    for p in range(5):
        a(f'v_mul_f32 v{RR+p}, v{AV}, v{WR+16*p}')
        for d in range(1, 16): a(f'v_fmac_f32 v{RR+p}, v{AV+d}, v{WR+16*p+d}')
    f0, f1 = FX, FX + 1
    a(f'v_fmac_f32 v{AC+0}, v{f0}, v{RR+0}')
    a(f'v_mul_f32 v{T}, s{sY0}, v{f1}')
    a(f'v_fmac_f32 v{T}, s{sY1}, v{f1+1}')
    a(f'v_fmac_f32 v{T}, s{sY2}, v{f1+2}')
    a(f'v_fmac_f32 v{AC+1}, v{T}, v{RR+1}')
    a(f'v_mul_f32 v{T}, v{f0}, v{RR+2}')
    for j, y in enumerate((sY0, sY1, sY2)): a(f'v_fmac_f32 v{AC+2+j}, s{y}, v{T}')
    for j in range(3): a(f'v_fmac_f32 v{AC+5+j}, v{f1+j}, v{RR+3}')
    for j in range(3): a(f'v_mul_f32 v{T+1+j}, v{f1+j}, v{RR+4}')
    a(f'v_fmac_f32 v{AC+8}, s{sY1}, v{T+3}')
    a(f'v_fma_f32 v{AC+8}, -s{sY2}, v{T+2}, v{AC+8}')
    a(f'v_fmac_f32 v{AC+9}, s{sY2}, v{T+1}')
    a(f'v_fma_f32 v{AC+9}, -s{sY0}, v{T+3}, v{AC+9}')
    a(f'v_fmac_f32 v{AC+10}, s{sY0}, v{T+2}')
    a(f'v_fma_f32 v{AC+10}, -s{sY1}, v{T+1}, v{AC+10}')
    a('s_branch KS_edge')
    a('KS_batch_next:')
    a(f's_add_u32 s{sJ}, s{sJ}, 64')
    a('s_branch KS_batch')
    a('KS_chunk_next:')
    a(f's_add_u32 s{sC}, s{sC}, 1')
    a(f's_cmp_lt_u32 s{sC}, {NCH}')
    a('s_cbranch_scc1 KS_chunk')
    for f in range(11): a(f'ds_write_b32 v{vPB}, v{AC+f} offset:{256*f}')
    for g in range(4): a(f'v_mov_b32 v{G0+g}, 0')
    a(f's_mov_b32 s{sK}, 0')
    a('KS_g0:')
    a(f's_lshl_b32 s{sTmp}, s{sK}, 2')
    a(f's_add_u32 s{sTmp}, s{sTmp}, s{sPB}')
    a(f'v_mov_b32 v{T}, s{sTmp}')
    a(f's_lshl_b32 s{sTmp2}, s{sK}, 7')
    for u in range(8):
        a(f'ds_read_b32 v{AV+u}, v{T} offset:{4*u}')
        a(f'buffer_load_ushort v{AV+8+u}, v{vL2}, s[{sW0}:{sW0+3}], s{sTmp2} offen offset:{128*u}')
    a('s_waitcnt vmcnt(0) lgkmcnt(0)')
    for u in range(8):
        a(f'v_lshlrev_b32 v{AV+8+u}, 16, v{AV+8+u}')
        a(f'v_fmac_f32 v{G0}, v{AV+u}, v{AV+8+u}')
    a(f's_add_u32 s{sK}, s{sK}, 8')
    a(f's_cmp_lt_u32 s{sK}, 128')
    a('s_cbranch_scc1 KS_g0')
    a(f's_mov_b32 s{sK}, 0')
    a('KS_g1:')
    a(f's_lshr_b32 s{sTmp}, s{sK}, 6')
    a(f's_mul_i32 s{sTmp}, s{sTmp}, 768')
    a(f's_and_b32 s{sTmp2}, s{sK}, 63')
    a(f's_lshl_b32 s{sTmp2}, s{sTmp2}, 2')
    a(f's_add_u32 s{sTmp}, s{sTmp}, s{sTmp2}')
    a(f's_add_u32 s{sTmp}, s{sTmp}, s{sPB}')
    a(f'v_mov_b32 v{T}, s{sTmp}')
    a(f's_lshl_b32 s{sTmp2}, s{sK}, 7')
    for u in range(4):
        for j in range(3): a(f'ds_read_b32 v{AV+3*u+j}, v{T} offset:{512 + 256*j + 4*u}')
        a(f'buffer_load_ushort v{AV+12+u}, v{vL2}, s[{sW1}:{sW1+3}], s{sTmp2} offen offset:{128*u}')
    a('s_waitcnt vmcnt(0) lgkmcnt(0)')
    for u in range(4):
        a(f'v_lshlrev_b32 v{AV+12+u}, 16, v{AV+12+u}')
        for j in range(3): a(f'v_fmac_f32 v{G1+j}, v{AV+3*u+j}, v{AV+12+u}')
    a(f's_add_u32 s{sK}, s{sK}, 4')
    a(f's_cmp_lt_u32 s{sK}, 192')
    a('s_cbranch_scc1 KS_g1')
    a(f'v_mul_f32 v{T}, 0xbfb8aa3b, v{G0}')
    a(f'v_exp_f32 v{T}, v{T}')
    a(f'v_add_f32 v{T}, 1.0, v{T}')
    a(f'v_rcp_f32 v{T}, v{T}')
    for j in range(3): a(f'v_mul_f32 v{G1+j}, v{T}, v{G1+j}')
    for g in range(4):
        a(f'v_cvt_pk_bf16_f32 v{G0+g}, v{G0+g}, v{G0+g}')
        a(f'buffer_store_short v{G0+g}, v{vL2}, s[12:15], s{sRow} offen offset:{128*g}')
    a(f's_add_u32 s{sN}, s{sN}, 8')
    a('s_branch KS_node')

def gen_k2(a, opt):
    D = opt.get('D', 2)
    set_map(D)
    OPT.update(opt)
    a(f'{KN}_kernel:')
    prologue(a, opt)
    a(f'v_mov_b32 v{vSBase}, v226')
    a(f's_mov_b32 s{sPfQ}, s{sWave}')
    a(f'v_readlane_b32 s{sPfT}, v{vSBase}, s{sWave}')
    a(f'v_readlane_b32 s{sT}, v{vSteps}, s{sWave}')
    a(f'v_mov_b32 v{vHi}, 0xffff0000')
    a(f'v_mov_b32 v{vCtr}, {L_CTR}')
    a(f'v_mov_b32 v{vOne}, 1')
    a(f's_add_u32 s{sPfEnd}, s{sPfT}, s{sT}')
    a('s_mov_b64 exec, 1')
    a(f'ds_add_rtn_u32 v{vGrab}, v{vCtr}, v{vOne}')
    a('s_mov_b64 exec, -1')
    a('s_waitcnt lgkmcnt(0)')
    grab_result(a)
    for sg in range(D):
        rec_read(a, sg)
        a('s_waitcnt lgkmcnt(0)')
        grab_result(a)
        issue_loads(a, sg, opt)
    for k in range(44): a(f'v_mov_b32 v{ACC+k}, 0')
    for sg in range(D):
        a(f'K2_s{sg}:')
        step(a, sg, D, opt)
        a(f's_cmp_lt_i32 s{sCur}, 0')
        a(f's_cbranch_scc0 K2_fl{sg}')
        if sg == D - 1: a('s_branch K2_s0')
    for sg in range(D):
        a(f'K2_fl{sg}:')
        flush(a, opt)
        a(f's_branch K2_s{(sg+1) % D}')
    for f in DEFER: f(a)
    a('K2_slow:')
    slow_path(a, opt)
    a('K2_end:')
    if opt.get('ts'):
        stamp(a, opt, 6, 255)
        a('s_waitcnt vmcnt(0)')
        stamp(a, opt, 7, 255)
        a(f'v_writelane_b32 v255, s{sNQ}, 8')
        a(f'v_writelane_b32 v255, s45, 9')
        a('s_getreg_b32 s45, hwreg(HW_REG_XCC_ID)')
        a(f'v_writelane_b32 v255, s45, 10')
        a('s_getreg_b32 s45, hwreg(HW_REG_HW_ID)')
        a(f'v_writelane_b32 v255, s45, 11')
        stamp_out(a, opt, 255, 254, sWave, TS_OFF, 8)
        a('K2_end2:')
    a('s_endpgm')
    return 256, 102
```

```python
import sys
from asmlib import Asm

KN = 'gather_scatter__tensor_product_equiv_equiformer__graph'
N = 50000; E = 800000
NCH = 224; CH = 3584; BLK1 = 896; NPB = 196; NB = 256
NPREP = 15
REC_OFF = 0; TAB_OFF = 0x940000; WIMG_OFF = 0x980000; WS_USED = 0x9A0000
MAGIC = 85599
TS_OFF = 0x1000000
def stamp(a, opt, idx, vreg, sreg=98):
    if not opt.get('ts'): return
    a(f's_memrealtime s[{sreg}:{sreg+1}]')
    a('s_waitcnt lgkmcnt(0)')
    a(f'v_writelane_b32 v{vreg}, s{sreg}, {idx}')
def stamp_out(a, opt, vreg, vtmp, wavesgpr, base, nw, srdreg=16):
    if not opt.get('ts'): return
    a(f's_mul_i32 s98, s2, {nw}')
    a(f's_add_u32 s98, s98, s{wavesgpr}')
    a(f's_lshl_b32 s98, s98, 6')
    a(f's_add_u32 s98, s98, {base}')
    a(f'v_mbcnt_lo_u32_b32 v{vtmp}, -1, 0')
    a(f'v_mbcnt_hi_u32_b32 v{vtmp}, -1, v{vtmp}')
    a(f'v_cmp_gt_u32 vcc, 16, v{vtmp}')
    a(f'v_lshlrev_b32 v{vtmp}, 2, v{vtmp}')
    a(f's_and_saveexec_b64 s[100:101], vcc')
    a(f's_mov_b32 s{srdreg+2}, 0x2000000')
    a(f'buffer_store_dword v{vreg}, v{vtmp}, s[{srdreg}:{srdreg+3}], s98 offen')
    a(f's_mov_b64 exec, s[100:101]')
L_CNT = 0; L_BINS = 1024; L_FLAG = 1280; L_SORT = 2048; L_BASE = 3072
L_RECA = 4096; L_RECB = 36864; L_W = 53248; L_P = 94208
PS = 1440; PJS = 384
LDS2 = L_P + 8 * 4 * PS
NULLSTEP = 511

def srd(a, r, size):
    a(f's_and_b32 s{r+1}, s{r+1}, 0xffff')
    a(f's_mov_b32 s{r+2}, {size}')
    a(f's_mov_b32 s{r+3}, 0x20000')

def wave_scan(a, v):
    for sh in (1, 2, 4, 8):
        a(f'v_add_u32_dpp v{v}, v{v}, v{v} row_shr:{sh} row_mask:0xf bank_mask:0xf bound_ctrl:1')
    a(f'v_add_u32_dpp v{v}, v{v}, v{v} row_bcast:15 row_mask:0xa bank_mask:0xf')
    a(f'v_add_u32_dpp v{v}, v{v}, v{v} row_bcast:31 row_mask:0xc bank_mask:0xf')

def gen_k1(a, opt):
    a(f'k1_sort_kernel:')
    a(f's_cmp_ge_u32 s2, {NCH}')
    a('s_cbranch_scc1 K1_prep')
    if opt.get('ts'):
        a('v_mov_b32 v70, 0'); a('v_lshrrev_b32 v71, 6, v0'); a('s_nop 1'); a('v_readfirstlane_b32 s40, v71')
    stamp(a, opt, 0, 70)
    a('s_load_dwordx2 s[12:13], s[0:1], 8')
    a('s_load_dwordx2 s[8:9], s[0:1], 24')
    a('s_load_dwordx2 s[4:5], s[0:1], 32')
    a('s_load_dwordx2 s[16:17], s[0:1], 88')
    a('v_lshlrev_b32 v1, 2, v0')
    a('v_mov_b32 v2, 0')
    a('v_cmp_gt_u32 vcc, 256, v0')
    a('s_and_saveexec_b64 s[26:27], vcc')
    a('s_cbranch_execz K1_z')
    a('ds_write_b32 v1, v2')
    a('K1_z:')
    a('s_mov_b64 exec, s[26:27]')
    a(f's_mul_i32 s3, s2, {CH}')
    a('v_add_u32 v3, s3, v1')
    a('v_lshlrev_b32 v4, 2, v3')
    a('v_mul_u32_u24 v5, 6, v3')
    a(f's_mov_b32 s20, {E}')
    a(f's_mov_b32 s21, {MAGIC}')
    a('s_mov_b32 s22, 0xffff0000')
    a('s_waitcnt lgkmcnt(0)')
    srd(a, 4, E * 4); srd(a, 8, E * 4); srd(a, 12, E * 6); srd(a, 16, WS_USED)
    a('v_cmp_gt_u32 vcc, s20, v3')
    a('s_and_saveexec_b64 s[26:27], vcc')
    a('s_mov_b64 s[28:29], exec')
    a('s_cbranch_execz K1_a')
    a('buffer_load_dwordx4 v[8:11], v4, s[4:7], 0 offen')
    a('buffer_load_dwordx4 v[12:15], v4, s[8:11], 0 offen')
    a('buffer_load_dwordx4 v[16:19], v5, s[12:15], 0 offen')
    a('buffer_load_dwordx2 v[20:21], v5, s[12:15], 0 offen offset:16')
    a('K1_a:')
    a('s_mov_b64 exec, s[26:27]')
    a('s_waitcnt lgkmcnt(0)')
    a('s_barrier')
    stamp(a, opt, 1, 70)
    a('s_mov_b64 exec, s[28:29]')
    a('s_cbranch_execz K1_b')
    a('v_mov_b32 v6, 1')
    a('s_waitcnt vmcnt(3)')
    stamp(a, opt, 2, 70)
    for k in range(4):
        a(f'v_mul_u32_u24 v{24+k}, s21, v{8+k}')
    for k in range(4):
        a(f'v_lshrrev_b32 v{24+k}, 24, v{24+k}')
    for k in range(4):
        a(f'v_mul_u32_u24 v{28+k}, {NPB}, v{24+k}')
        a(f'v_lshlrev_b32 v{24+k}, 2, v{24+k}')
    for k in range(4):
        a(f'ds_add_rtn_u32 v{35+4*k}, v{24+k}, v6')
    for k in range(4):
        a(f'v_sub_u32 v{28+k}, v{8+k}, v{28+k}')
        a(f'v_add_u32 v7, {k}, v3')
        a(f'v_lshl_or_b32 v{34+4*k}, v{28+k}, 24, v7')
    a('s_waitcnt vmcnt(0)')
    a('v_lshl_or_b32 v32, v16, 16, v12')
    a('v_alignbit_b32 v33, v17, v16, 16')
    a('v_and_or_b32 v36, v17, s22, v13')
    a('v_mov_b32 v37, v18')
    a('v_lshl_or_b32 v40, v19, 16, v14')
    a('v_alignbit_b32 v41, v20, v19, 16')
    a('v_and_or_b32 v44, v20, s22, v15')
    a('v_mov_b32 v45, v21')
    a('K1_b:')
    a('s_mov_b64 exec, s[26:27]')
    a('s_waitcnt lgkmcnt(0)')
    a('s_barrier')
    stamp(a, opt, 3, 70)
    a('v_and_b32 v48, 63, v0')
    a('v_lshlrev_b32 v48, 4, v48')
    a('ds_read_b128 v[52:55], v48')
    a('s_waitcnt lgkmcnt(0)')
    a('v_add_u32 v56, v52, v53')
    a('v_add_u32 v57, v56, v54')
    a('v_add_u32 v58, v57, v55')
    a('v_mov_b32 v59, v58')
    wave_scan(a, 59)
    a('v_sub_u32 v60, v59, v58')
    a('v_add_u32 v61, v60, v52')
    a('v_add_u32 v62, v60, v56')
    a('v_add_u32 v63, v60, v57')
    a('ds_write_b128 v48, v[60:63] offset:1024')
    a('v_cmp_gt_u32 vcc, 64, v0')
    a('s_and_saveexec_b64 s[30:31], vcc')
    a('s_cbranch_execz K1_t')
    for k in range(4):
        a(f'v_lshl_or_b32 v{64+k}, v{52+k}, 16, v{60+k}')
    a('s_lshl_b32 s23, s2, 10')
    a(f's_add_u32 s23, s23, {TAB_OFF}')
    a('buffer_store_dwordx4 v[64:67], v48, s[16:19], s23 offen')
    a('K1_t:')
    a('s_mov_b64 exec, s[28:29]')
    a('s_cbranch_execz K1_w')
    for k in range(4):
        a(f'ds_read_b32 v{8+k}, v{24+k} offset:1024')
    for k in range(4):
        a(f's_waitcnt lgkmcnt({3-k})') if k == 0 else None
    a('s_waitcnt lgkmcnt(0)')
    for k in range(4):
        a(f'v_add_u32 v{8+k}, v{8+k}, v{35+4*k}')
        a(f'v_lshlrev_b32 v{8+k}, 4, v{8+k}')
        a(f'ds_write_b96 v{8+k}, v[{32+4*k}:{34+4*k}] offset:2048')
    a('K1_w:')
    a('s_mov_b64 exec, -1')
    a('s_waitcnt lgkmcnt(0)')
    a('s_barrier')
    a('v_lshlrev_b32 v8, 4, v0')
    for k in range(4):
        a(f'ds_read_b96 v[{32+4*k}:{34+4*k}], v8 offset:{2048 + k*BLK1*16}')
    a('v_mul_u32_u24 v9, 12, v0')
    for k in range(4):
        a(f's_mul_i32 s{32+k}, s2, {CH*12}')
        if k: a(f's_add_u32 s{32+k}, s{32+k}, {k*BLK1*12}')
    pol = ['', ' nt', ' sc1', ' sc0 sc1', ' sc1 nt', ' sc0 sc1 nt'][opt.get('k1pol', 0)]
    for k in range(4):
        a(f's_waitcnt lgkmcnt({3-k})')
        a(f'buffer_store_dwordx3 v[{32+4*k}:{34+4*k}], v9, s[16:19], s{32+k} offen{pol}')
    a('K1_done:')
    if opt.get('ts'):
        a('s_mov_b64 exec, -1')
        stamp(a, opt, 4, 70)
        a('s_waitcnt vmcnt(0)')
        stamp(a, opt, 5, 70)
        stamp_out(a, opt, 70, 71, 40, TS_OFF + 0x100000, 14)
    a('s_endpgm')
    a('K1_prep:')
    a(f's_sub_u32 s3, s2, {NCH}')
    a(f's_cmp_ge_u32 s3, {NPREP}')
    a('s_cbranch_scc1 K1_done2')
    a('s_load_dwordx2 s[4:5], s[0:1], 40')
    a('s_load_dwordx4 s[20:23], s[0:1], 48')
    a('s_load_dwordx2 s[16:17], s[0:1], 88')
    a(f's_mul_i32 s3, s3, {BLK1}')
    a('v_add_u32 v1, s3, v0')
    a('s_nop 0')
    a('v_readfirstlane_b32 s24, v1')
    a('s_cmp_ge_u32 s24, 12800')
    a('s_cbranch_scc1 K1_done2')
    a('s_lshr_b32 s24, s24, 8')
    a('v_lshrrev_b32 v2, 2, v1')
    a('v_and_b32 v2, 63, v2')
    a('v_and_b32 v3, 3, v1')
    a('v_and_b32 v4, 15, v2')
    a('v_lshrrev_b32 v5, 4, v2')
    a('s_waitcnt lgkmcnt(0)')
    srd(a, 16, WS_USED)
    a('s_cmp_ge_u32 s24, 10')
    a('s_cbranch_scc1 K1_pw')
    srd(a, 4, 16 * 320 * 2)
    a('s_lshr_b32 s25, s24, 1')
    a('s_and_b32 s26, s24, 1')
    a('s_lshl_b32 s25, s25, 6')
    a('s_lshl_b32 s26, s26, 1')
    a('s_add_u32 s25, s25, s26')
    a('v_lshlrev_b32 v6, 2, v4')
    a('v_lshrrev_b32 v7, 1, v5')
    a('v_add3_u32 v6, v6, v7, s25')
    a('v_and_b32 v7, 1, v5')
    a('v_lshlrev_b32 v7, 3, v7')
    a('v_lshl_add_u32 v7, v3, 1, v7')
    a('v_mul_u32_u24 v7, 320, v7')
    a('v_add_lshl_u32 v6, v6, v7, 1')
    a('buffer_load_ushort v8, v6, s[4:7], 0 offen')
    a('buffer_load_ushort v9, v6, s[4:7], 0 offen offset:640')
    a('s_branch K1_pst')
    a('K1_pw:')
    a('s_sub_u32 s25, s24, 10')
    a('s_cmp_ge_u32 s25, 16')
    a('s_cbranch_scc1 K1_pw1')
    a('s_mov_b32 s4, s20')
    a('s_mov_b32 s5, s21')
    srd(a, 4, 128 * 64 * 2)
    a('s_branch K1_pw2')
    a('K1_pw1:')
    a('s_sub_u32 s25, s25, 16')
    a('s_mov_b32 s4, s22')
    a('s_mov_b32 s5, s23')
    srd(a, 4, 192 * 64 * 2)
    a('K1_pw2:')
    a('s_lshr_b32 s26, s25, 2')
    a('s_and_b32 s27, s25, 3')
    a('s_lshl_b32 s26, s26, 5')
    a('s_lshl_b32 s27, s27, 2')
    a('v_lshrrev_b32 v6, 2, v4')
    a('v_lshlrev_b32 v6, 4, v6')
    a('v_and_b32 v7, 3, v4')
    a('v_add3_u32 v6, v6, v7, s27')
    a('v_lshlrev_b32 v7, 3, v5')
    a('v_lshl_add_u32 v7, v3, 1, v7')
    a('v_add_u32 v7, s26, v7')
    a('v_lshlrev_b32 v7, 6, v7')
    a('v_add_lshl_u32 v6, v6, v7, 1')
    a('buffer_load_ushort v8, v6, s[4:7], 0 offen')
    a('buffer_load_ushort v9, v6, s[4:7], 0 offen offset:128')
    a('K1_pst:')
    a('v_lshlrev_b32 v1, 2, v1')
    a(f's_mov_b32 s28, {WIMG_OFF}')
    a('s_waitcnt vmcnt(0)')
    a('v_lshl_or_b32 v8, v9, 16, v8')
    a('buffer_store_dword v8, v1, s[16:19], s28 offen')
    a('K1_done2:')
    a('s_endpgm')

def desc(name, vgpr, sgpr):
    return f'''.amdhsa_kernel {name}
  .amdhsa_next_free_vgpr {vgpr}
  .amdhsa_next_free_sgpr {sgpr}
  .amdhsa_accum_offset {(vgpr + 3) // 4 * 4}
  .amdhsa_group_segment_fixed_size 0
  .amdhsa_kernarg_size 96
  .amdhsa_user_sgpr_count 2
  .amdhsa_user_sgpr_kernarg_segment_ptr 1
  .amdhsa_system_sgpr_workgroup_id_x 1
.end_amdhsa_kernel
'''

def build(opt):
    from gen_k2 import gen_k2
    header = open('cdna_kernels/%s.s.ref' % KN).read().split('; Override launch')[0]
    out = header
    out += f'; Two launches: k1 bins the edges by destination bucket (and lays out the weights), k2 aggregates per node.\n'
    out += f'; @launch kernel=k1_sort_kernel grid=({NCH+NPREP},1,1) block=({BLK1},1,1) lds={2048 + CH*16}\n'
    if not opt.get('k1only'):
        out += f'; @launch kernel={KN}_kernel grid=({NB},1,1) block=(512,1,1) lds={LDS2}\n'
    out += '.amdgcn_target "amdgcn-amd-amdhsa--gfx950"\n.text\n'
    st = {}
    a = Asm(); gen_k1(a, opt)
    out += '.globl k1_sort_kernel\n.p2align 8\n.type k1_sort_kernel,@function\n' + a.finalize(st)
    a = Asm(); nv, ns = gen_k2(a, opt)
    out += f'.globl {KN}_kernel\n.p2align 8\n.type {KN}_kernel,@function\n' + a.finalize(st)
    print('k2 nops inserted', st, file=sys.stderr)
    out += '.section .rodata,"a"\n.p2align 6\n' + desc('k1_sort_kernel', 72, 102 if opt.get('ts') else 40) + '.p2align 6\n' + desc(KN + '_kernel', nv, ns)
    return out

if __name__ == '__main__':
    opt = {}
    outp = None
    for x in sys.argv[1:]:
        if '=' in x:
            k, v = x.split('=', 1); opt[k] = int(v, 0)
        else: outp = x
    s = build(opt)
    open(outp or 'cdna_kernels/%s.s' % KN, 'w').write(s)
```

```python
from gen import *

ACC = 0; R = 44; RAD = 84; XS = 124; AS = 172; YP = 184; F = 196; TMP = 212; Y = 220
vLaneX = 228; vLaneMask = 229; vRecA = 230; vRecB = 231; vSteps = 232; vEN = 233; vXA0 = 234; vXA1 = 235; vEA = 236
vTa = 237; vTb = 238; vPW = 239; vPR0 = 240; vPR1 = 241; vWR = 242; vOut0 = 243; vOut1 = 244; vOrd = 245
vLane = 246; vTid = 247; vT = 248
vSBase = 226; vGrab = 227; vCtr = 246; vOne = 247
sWave = 20; sPfT = 21; sPfEnd = 22; sPfQ = 23; sNQ = 24; sCur = 25; s512 = 26; sHi = 27; sOffA = 28; sOffB = 29; sNode = 30; sT = 31
sM1 = 32; sM2 = 34; sM3 = 36; sSave = 38; sMask = 40; sOvf = 82; sU = 84
OPT = {}
POL = ['', ' nt', ' sc1', ' sc0 sc1', ' sc1 nt', ' sc0 sc1 nt', ' sc0']
YSEP = ((220, 222, 224), (226, 248, 250))
sTag = 40
L_CTR = L_FLAG + 16
COST_STEP = 8; COST_FLUSH = 11

def pr(x): return f'v[{x}:{x+1}]'
def q4(x): return f'v[{x}:{x+3}]'

def prologue(a, opt):
    a(f's_cmp_ge_u32 s2, {NB}')
    a('s_cbranch_scc1 K2_end2' if opt.get('ts') else 's_cbranch_scc1 K2_end')
    a('s_load_dwordx2 s[4:5], s[0:1], 0')
    a('s_load_dwordx2 s[8:9], s[0:1], 16')
    a('s_load_dwordx2 s[12:13], s[0:1], 72')
    a('s_load_dwordx2 s[16:17], s[0:1], 88')
    a(f'v_mov_b32 v{vTid}, v0')
    a(f'v_and_b32 v{vLane}, 63, v0')
    a(f'v_lshrrev_b32 v{vT}, 6, v0')
    a(f'v_lshlrev_b32 v{vT+1}, 2, v0')
    a(f'v_readfirstlane_b32 s{sWave}, v{vT}')
    if opt.get('ts'): a('v_mov_b32 v255, 0')
    stamp(a, opt, 0, 255)
    a(f'v_mov_b32 v200, 0')
    a(f'v_cmp_gt_u32 vcc, 336, v{vTid}')
    a(f's_and_saveexec_b64 s[{sSave}:{sSave+1}], vcc')
    a('s_cbranch_execz K2_z')
    a(f'ds_write_b32 v{vT+1}, v200')
    a('K2_z:')
    a(f's_mov_b64 exec, s[{sSave}:{sSave+1}]')
    a('v_mov_b32 v200, 0xffff'); a('v_mov_b32 v201, 0'); a('v_mov_b32 v202, 0xffff'); a('v_mov_b32 v203, 0')
    for k in range(4): a(f'v_mov_b32 v{204+k}, 2.0')
    a(f'v_lshlrev_b32 v{vT+2}, 4, v{vTid}')
    for k in range(4): a(f'ds_write_b128 v{vT+2}, v[200:203] offset:{L_RECA + k*8192}')
    for k in range(2): a(f'ds_write_b128 v{vT+2}, v[204:207] offset:{L_RECB + k*8192}')
    a(f'v_lshrrev_b32 v{vT+3}, 4, v{vTid}')
    a('s_lshl_b32 s3, s2, 2')
    a(f'v_lshl_add_u32 v{vT+4}, v{vT+3}, 10, s3')
    a(f'v_lshlrev_b32 v{vT+5}, 4, v{vLane}')
    a('s_waitcnt lgkmcnt(0)')
    srd(a, 4, 0 if opt.get('nomem') else N * 512); srd(a, 8, 0 if opt.get('nomem') or opt.get('noea') else E * 32); srd(a, 12, N * 512); srd(a, 16, WS_USED)
    TB = 124
    for k in range(7):
        a(f's_mov_b32 s{sU+k}, {TAB_OFF + k*32768}')
    for k in range(7):
        a(f'buffer_load_dword v{TB+k}, v{vT+4}, s[16:19], s{sU+k} offen')
    WS_ = 132
    a(f's_mul_i32 s{sU+7}, s{sWave}, 5120')
    a(f's_add_u32 s{sU+7}, s{sU+7}, {WIMG_OFF + 10240}')
    a(f's_add_u32 s{sU+8}, s{sU+7}, 4096')
    for u in range(4):
        a(f'buffer_load_dwordx4 {q4(WS_+4*u)}, v{vT+5}, s[16:19], s{sU+7} offen offset:{u*1024}')
    a(f'buffer_load_dwordx4 {q4(WS_+16)}, v{vT+5}, s[16:19], s{sU+8} offen')
    for g3 in range(3):
        a(f's_mov_b32 s{sU+9+g3}, {WIMG_OFF + g3*4096}')
    for t in range(10):
        a(f'buffer_load_dwordx4 {q4(RAD+4*t)}, v{vT+5}, s[16:19], s{sU+9+t//4} offen offset:{(t%4)*1024}')
    vJ = 152; vG = 153; CN = 154; AD = 161
    a(f'v_and_b32 v{vJ}, 15, v{vTid}')
    a(f'v_mul_u32_u24 v{vG}, {CH*12}, v{vT+3}')
    a(f'v_add_u32 v168, 16, v{vJ}')
    a(f'v_add_u32 v169, 32, v{vJ}')
    a(f's_mov_b64 s[{sOvf}:{sOvf+1}], 0')
    for k in range(7): a(f's_mov_b32 s{sU+k}, {REC_OFF + k*32*CH*12}')
    a('s_waitcnt vmcnt(15)')
    stamp(a, opt, 1, 255)
    for k in range(7):
        a(f'v_lshrrev_b32 v{CN+k}, 16, v{TB+k}')
        a(f'v_and_b32 v{AD+k}, 0xffff, v{TB+k}')
        a(f'v_add_u32 v{AD+k}, v{AD+k}, v{vJ}')
        a(f'v_mad_u32_u24 v{AD+k}, v{AD+k}, 12, v{vG}')
        a(f'v_cmp_gt_u32 s[{sMask+2*k}:{sMask+2*k+1}], v{CN+k}, v{vJ}')
        a(f'v_cmp_gt_u32 s[{sMask+14+2*k}:{sMask+14+2*k+1}], v{CN+k}, v168')
        a(f'v_cmp_gt_u32 s[{sMask+28+2*k}:{sMask+28+2*k+1}], v{CN+k}, v169')
        a(f'v_cmp_lt_u32 vcc, 48, v{CN+k}')
        a(f's_or_b64 s[{sOvf}:{sOvf+1}], s[{sOvf}:{sOvf+1}], vcc')
    def rec_loads(beta):
        for k in range(7):
            u = beta*7 + k
            a(f's_mov_b64 exec, s[{sMask+2*u}:{sMask+2*u+1}]')
            a(f'buffer_load_dwordx3 v[{4*u}:{4*u+2}], v{AD+k}, s[16:19], s{sU+k} offen offset:{beta*192}')
        a('s_mov_b64 exec, -1')
    rec_loads(0); rec_loads(1)
    a(f's_mul_i32 s{sT}, s{sWave}, 5120')
    a(f's_add_u32 s{sT}, s{sT}, {L_W}')
    a(f'v_add_u32 v{vT+6}, s{sT}, v{vT+5}')
    a('s_waitcnt vmcnt(24)')
    for u in range(5):
        a(f'ds_write_b128 v{vT+6}, {q4(WS_+4*u)} offset:{u*1024}')
    sB2 = sU + 12
    a(f's_mov_b64 s[{sB2}:{sB2+1}], 0')
    for k in range(7):
        a(f's_or_b64 s[{sB2}:{sB2+1}], s[{sB2}:{sB2+1}], s[{sMask+28+2*k}:{sMask+28+2*k+1}]')
    a('s_cbranch_scc0 K2_nb2a')
    rec_loads(2)
    a('K2_nb2a:')
    a('s_waitcnt lgkmcnt(0)')
    a('s_barrier')
    a(f's_cmp_eq_u64 s[{sOvf}:{sOvf+1}], 0')
    a('s_cbranch_scc1 K2_novf')
    a(f'v_mov_b32 v{vT}, {L_FLAG}')
    a(f'v_mov_b32 v{vT+1}, 1')
    a(f'ds_write_b32 v{vT}, v{vT+1}')
    a('K2_novf:')
    a(f'v_mov_b32 v170, 1')
    a('s_waitcnt vmcnt(0)')
    stamp(a, opt, 2, 255)
    def hist(beta):
        for k in range(7):
            u = beta*7 + k
            a(f's_mov_b64 exec, s[{sMask+2*u}:{sMask+2*u+1}]')
            a(f'v_lshrrev_b32 v{161+k}, 22, v{4*u+2}')
            a(f'v_and_b32 v{161+k}, 0x3fc, v{161+k}')
            a(f'ds_add_rtn_u32 v{4*u+3}, v{161+k}, v170 offset:{L_CNT}')
        a('s_mov_b64 exec, -1')
    hist(0); hist(1)
    a(f's_cmp_eq_u64 s[{sB2}:{sB2+1}], 0')
    a('s_cbranch_scc1 K2_nb2b')
    hist(2)
    a('K2_nb2b:')
    a('s_waitcnt lgkmcnt(0)')
    a('s_barrier')
    stamp(a, opt, 3, 255)
    vDeg = 171; vKey = 172; vRk = 173; vPos = 174
    a(f'v_mov_b32 v{vT}, {L_FLAG}')
    a(f'ds_read_b32 v{vT+1}, v{vT}')
    a(f'v_lshlrev_b32 v{vT+2}, 2, v{vTid}')
    a(f'v_mov_b32 v{vKey}, 0')
    a(f'v_mov_b32 v{vRk}, 0')
    a(f'v_mov_b32 v{vDeg}, 0')
    a(f'v_cmp_gt_u32 s[{sU}:{sU+1}], {NPB}, v{vTid}') if False else None
    a(f'v_cmp_gt_u32 vcc, {NPB}, v{vTid}')
    a(f's_mov_b64 s[{sU}:{sU+1}], vcc')
    a('s_waitcnt lgkmcnt(0)')
    a(f'v_readfirstlane_b32 s{sT}, v{vT+1}')
    a(f's_cmp_lg_u32 s{sT}, 0')
    a('s_cbranch_scc1 K2_slow')
    a(f's_mov_b64 exec, s[{sU}:{sU+1}]')
    a('s_cbranch_execz K2_p4')
    a(f'ds_read_b32 v{vDeg}, v{vT+2} offset:{L_CNT}')
    a('s_waitcnt lgkmcnt(0)')
    a(f'v_min_u32 v{vKey}, 63, v{vDeg}')
    a(f'v_sub_u32 v{vKey}, 63, v{vKey}')
    a(f'v_lshlrev_b32 v{vKey}, 2, v{vKey}')
    a(f'ds_add_rtn_u32 v{vRk}, v{vKey}, v170 offset:{L_BINS}')
    a('K2_p4:')
    a('s_mov_b64 exec, -1')
    a('s_waitcnt lgkmcnt(0)')
    a('s_barrier')
    a(f'v_lshlrev_b32 v{vT}, 2, v{vLane}')
    a(f'ds_read_b32 v{vT+1}, v{vT} offset:{L_BINS}')
    a('s_waitcnt lgkmcnt(0)')
    a(f'v_mov_b32 v{vT+3}, v{vT+1}')
    wave_scan(a, vT+3)
    a(f'v_sub_u32 v{vT+3}, v{vT+3}, v{vT+1}')
    a(f'ds_bpermute_b32 v{vPos}, v{vKey}, v{vT+3}')
    a('s_waitcnt lgkmcnt(0)')
    a(f'v_add_u32 v{vPos}, v{vPos}, v{vRk}')
    a(f'v_lshl_or_b32 v{vT+4}, v{vDeg}, 8, v{vTid}')
    a(f'v_lshlrev_b32 v{vT+5}, 2, v{vPos}')
    a(f's_mov_b64 exec, s[{sU}:{sU+1}]')
    a('s_cbranch_execz K2_p5')
    a(f'ds_write_b32 v{vT+5}, v{vT+4} offset:{L_SORT}')
    a('K2_p5:')
    a('s_mov_b64 exec, -1')
    a('s_waitcnt lgkmcnt(0)')
    a('s_barrier')
    a(f'v_lshlrev_b32 v{vT}, 4, v{vLane}')
    a(f'ds_read_b128 v[176:179], v{vT} offset:{L_SORT}')
    a(f'v_cmp_gt_u32 vcc, 49, v{vLane}')
    a('s_waitcnt lgkmcnt(0)')
    a('v_max3_u32 v176, v176, v177, v178')
    a('v_max_u32 v176, v176, v179')
    a('v_lshrrev_b32 v176, 8, v176')
    a('v_add_u32 v176, 1, v176')
    a('v_lshrrev_b32 v176, 1, v176')
    a('v_max_u32 v176, 1, v176')
    a(f'v_cndmask_b32 v{vSteps}, 0, v176, vcc')
    a(f'v_mov_b32 v177, v{vSteps}')
    wave_scan(a, 177)
    a(f'v_sub_u32 v180, v177, v{vSteps}')
    a(f'v_readlane_b32 s{sT}, v177, 63')
    if opt.get('ts'): a(f's_mov_b32 s99, s{sT}'); a('s_mov_b32 s45, s99')
    a(f's_cmp_gt_u32 s{sT}, {NULLSTEP}')
    a('s_cbranch_scc1 K2_slow')
    a(f'v_mov_b32 v{vSBase}, v180')
    a(f'v_lshrrev_b32 v{vT+1}, 2, v{vPos}')
    a(f'v_lshlrev_b32 v{vT+1}, 2, v{vT+1}')
    a(f'ds_bpermute_b32 v{vT+2}, v{vT+1}, v180')
    a(f'v_and_b32 v{vT+3}, 3, v{vPos}')
    a(f'v_lshlrev_b32 v{vT+3}, 1, v{vT+3}')
    a(f'v_lshlrev_b32 v{vT+4}, 2, v{vTid}')
    a('s_waitcnt lgkmcnt(0)')
    a(f'v_lshl_add_u32 v{vT+2}, v{vT+2}, 3, v{vT+3}')
    a(f's_mov_b64 exec, s[{sU}:{sU+1}]')
    a('s_cbranch_execz K2_p6')
    a(f'ds_write_b32 v{vT+4}, v{vT+2} offset:{L_BASE}')
    a('K2_p6:')
    a('s_mov_b64 exec, -1')
    a('s_waitcnt lgkmcnt(0)')
    a('s_barrier')
    stamp(a, opt, 4, 255)
    def scat(beta):
        for k in range(7):
            u = beta*7 + k
            a(f's_mov_b64 exec, s[{sMask+2*u}:{sMask+2*u+1}]')
            a(f'v_lshrrev_b32 v{161+k}, 22, v{4*u+2}')
            a(f'v_and_b32 v{161+k}, 0x3fc, v{161+k}')
            a(f'ds_read_b32 v{176+k}, v{161+k} offset:{L_BASE}')
        for k in range(7):
            u = beta*7 + k
            a(f's_mov_b64 exec, s[{sMask+2*u}:{sMask+2*u+1}]')
            a(f'v_lshrrev_b32 v{vT}, 1, v{4*u+3}')
            a(f'v_and_b32 v{vT+1}, 1, v{4*u+3}')
            a(f'v_and_b32 v{vT+2}, 0xffffff, v{4*u+2}')
            a(f'v_lshlrev_b32 v{vT+2}, 5, v{vT+2}')
            a(f's_waitcnt lgkmcnt({min(15, 6 - k + 2*k)})') if False else None
            if k == 0: a('s_waitcnt lgkmcnt(0)')
            a(f'v_lshl_add_u32 v{vT}, v{vT}, 3, v{176+k}')
            a(f'v_add_u32 v{vT}, v{vT}, v{vT+1}')
            a(f'v_lshlrev_b32 v{vT+3}, 3, v{vT}')
            a(f'v_lshlrev_b32 v{vT+4}, 2, v{vT}')
            a(f'ds_write_b64 v{vT+3}, v[{4*u}:{4*u+1}] offset:{L_RECA}')
            a(f'ds_write_b32 v{vT+4}, v{vT+2} offset:{L_RECB}')
        a('s_mov_b64 exec, -1')
    scat(0); scat(1)
    a(f's_cmp_eq_u64 s[{sB2}:{sB2+1}], 0')
    a('s_cbranch_scc1 K2_nb2c')
    scat(2)
    a('K2_nb2c:')
    i_, g_ = vT, vT+1
    a(f'v_and_b32 v{i_}, 15, v{vLane}')
    a(f'v_lshrrev_b32 v{g_}, 4, v{vLane}')
    a(f'v_lshlrev_b32 v{vLaneX}, 3, v{i_}')
    a(f'v_lshrrev_b32 v{vT+2}, 1, v{g_}')
    a(f'v_and_b32 v{vT+3}, 1, v{i_}')
    a(f'v_cmp_eq_u32 vcc, v{vT+2}, v{vT+3}')
    a(f'v_and_b32 v{vT+4}, 1, v{g_}')
    a(f'v_lshlrev_b32 v{vT+4}, 4, v{vT+4}')
    a(f'v_mov_b32 v{vT+5}, 2.0')
    a(f'v_cndmask_b32 v{vLaneMask}, v{vT+5}, v{vT+4}, vcc')
    a(f'v_lshlrev_b32 v{vRecA}, 4, v{g_}')
    a(f'v_add_u32 v{vRecA}, {L_RECA}, v{vRecA}')
    a(f'v_lshrrev_b32 v{vRecB}, 1, v{i_}')
    a(f'v_lshlrev_b32 v{vRecB}, 2, v{vRecB}')
    a(f'v_add_u32 v{vRecB}, {L_RECB}, v{vRecB}')
    a(f's_mul_i32 s{sT}, s{sWave}, {4*PS}')
    a(f's_add_u32 s{sT}, s{sT}, {L_P}')
    a(f'v_mul_u32_u24 v{vPW}, {PS}, v{g_}')
    a(f'v_add3_u32 v{vPW}, v{vPW}, v{vLaneX}, s{sT}')
    a(f'v_lshrrev_b32 v{vT+2}, 2, v{i_}')
    a(f'v_mul_u32_u24 v{vPR0}, {PS}, v{vT+2}')
    a(f'v_lshlrev_b32 v{vT+3}, 4, v{g_}')
    a(f'v_add3_u32 v{vPR0}, v{vPR0}, v{vT+3}, s{sT}')
    a(f'v_and_b32 v{vT+3}, 3, v{i_}')
    a(f'v_min_u32 v{vT+4}, 2, v{vT+3}')
    a(f'v_mul_u32_u24 v{vT+4}, {PJS}, v{vT+4}')
    a(f'v_add_u32 v{vT+4}, 256, v{vT+4}')
    a(f'v_add_u32 v{vPR1}, v{vPR0}, v{vT+4}')
    a(f'v_lshlrev_b32 v{vWR}, 4, v{vLane}')
    a(f'v_add_u32 v{vWR}, {L_W}, v{vWR}')
    a(f'v_lshlrev_b32 v{vT+4}, 5, v{g_}')
    a(f'v_lshl_add_u32 v{vOut0}, v{vT+3}, 3, v{vT+4}')
    a(f'v_lshl_add_u32 v{vOut1}, v{vT+3}, 7, v{vT+4}')
    a(f'v_add_u32 v{vOut1}, 128, v{vOut1}')
    a(f'v_cmp_eq_u32 vcc, 3, v{vT+3}')
    a(f'v_cndmask_b32 v{vOut1}, v{vOut1}, v{vT+5}, vcc')
    a(f'v_lshlrev_b32 v{vOrd}, 2, v{vT+2}')
    a(f'v_add_u32 v{vOrd}, {L_SORT}, v{vOrd}')
    a(f's_mov_b32 s{s512}, 512')
    a(f's_mov_b32 s{sHi}, 0xffff0000')
    a(f's_mul_i32 s{sNode}, s2, {NPB*512}')
    for m, pat in ((sM1, 0x22222222), (sM2, 0x44444444), (sM3, 0x88888888)):
        a(f's_mov_b32 s{m}, {pat}'); a(f's_mov_b32 s{m+1}, {pat}')
    a('s_waitcnt lgkmcnt(0)')
    a('s_barrier')
    stamp(a, opt, 5, 255)

_uid = [0]
def rec_read(a, sg):
    _uid[0] += 1; u = _uid[0]
    a(f's_cmp_lg_u32 s{sPfT}, s{sPfEnd}')
    a(f's_cbranch_scc1 K2_have{u}')
    a(f's_cmp_ge_u32 s{sNQ}, 49')
    a(f's_cbranch_scc1 K2_exh{u}')
    a(f's_mov_b32 s{sPfQ}, s{sNQ}')
    a(f'v_readlane_b32 s{sPfT}, v{vSBase}, s{sNQ}')
    a(f'v_readlane_b32 s{sT}, v{vSteps}, s{sNQ}')
    a('s_mov_b64 exec, 1')
    a(f'ds_add_rtn_u32 v{vGrab}, v{vCtr}, v{vOne}')
    a('s_mov_b64 exec, -1')
    a(f's_add_u32 s{sPfEnd}, s{sPfT}, s{sT}')
    a(f'K2_have{u}:')
    a(f's_lshl_b32 s{sOffA}, s{sPfT}, 6')
    a(f's_add_u32 s{sPfT}, s{sPfT}, 1')
    a(f's_cmp_eq_u32 s{sPfT}, s{sPfEnd}')
    a(f's_cselect_b32 s{sTag+sg}, s{sPfQ}, -1')
    a(f's_branch K2_go{u}')
    a(f'K2_exh{u}:')
    a(f's_mov_b32 s{sOffA}, {NULLSTEP*64}')
    a(f's_mov_b32 s{sTag+sg}, -2')
    a(f'K2_go{u}:')
    a(f's_lshr_b32 s{sOffB}, s{sOffA}, 1')
    a(f'v_add_u32 v{vTa}, s{sOffA}, v{vRecA}')
    a(f'v_add_u32 v{vTb}, s{sOffB}, v{vRecB}')
    a(f'ds_read_b128 {q4(YP+4*sg)}, v{vTa}')
    a(f'ds_read_b32 v{vEN}, v{vTb}')

def grab_result(a):
    a(f'v_readfirstlane_b32 s{sNQ}, v{vGrab}')
    a(f's_add_u32 s{sNQ}, s{sNQ}, 8')

def issue_loads(a, sg, opt):
    a(f'v_mad_u32_u16 v{vXA0}, v{YP+4*sg}, s{s512}, v{vLaneX}')
    a(f'v_mad_u32_u16 v{vXA1}, v{YP+4*sg+2}, s{s512}, v{vLaneX}')
    a(f'v_or_b32 v{vEA}, v{vEN}, v{vLaneMask}')
    ent = POL[opt.get('eapol', 4)]
    a(f'buffer_load_dwordx4 {q4(AS+4*sg)}, v{vEA}, s[8:11], 0 offen{ent}')
    for s, va in ((0, vXA0), (1, vXA1)):
        for v in range(4):
            a(f'buffer_load_dwordx2 {pr(XS+16*sg+8*s+2*v)}, v{va}, s[4:7], 0 offen offset:{128*v}{POL[opt.get("xpol", 0)]}')

def Fp(v, h): return F + 8*h + 2*v
def Rp(p, h, s): return R + (2*p + h)*4 + 2*s
def Ap(f, h): return ACC + 4*f + 2*h

def unpack_ops(sg, s):
    ops = []
    for v in range(4):
        for h in range(2):
            src = XS + 16*sg + 8*s + 2*v + h
            ops.append(f'v_lshlrev_b32 v{Fp(v,h)}, 16, v{src}')
            ops.append(f'v_and_b32 v{Fp(v,h)+1}, s{sHi}, v{src}')
    return ops

def compute_slot(a, s):
    Yr = (Y + 3*s, Y + 3*s + 1, Y + 3*s + 2)
    ch = [(h, p) for h in range(2) for p in range(2)]
    Fv = lambda v, c: Fp(v, c[0]) + c[1]
    Rv = lambda p, c: Rp(p, c[0], s) + c[1]
    Av = lambda f, c: Ap(f, c[0]) + c[1]
    dot = lambda c: TMP + 2*c[0] + c[1]
    t = lambda c: TMP + 4 + 2*c[0] + c[1]
    fmac = lambda d, x, y: a(f'v_fmac_f32 v{d}, v{x}, v{y}')
    mul = lambda d, x, y: a(f'v_mul_f32 v{d}, v{x}, v{y}')
    fms = lambda d, x, y: a(f'v_fma_f32 v{d}, -v{x}, v{y}, v{d}')
    seq = [
        lambda c: fmac(Av(0,c), Fv(0,c), Rv(0,c)),
        lambda c: mul(dot(c), Fv(1,c), Yr[0]),
        lambda c: mul(t(c), Fv(0,c), Rv(2,c)),
        lambda c: fmac(dot(c), Fv(2,c), Yr[1]),
        lambda c: fmac(Av(5,c), Fv(1,c), Rv(3,c)),
        lambda c: fmac(dot(c), Fv(3,c), Yr[2]),
        lambda c: fmac(Av(2,c), t(c), Yr[0]),
        lambda c: fmac(Av(6,c), Fv(2,c), Rv(3,c)),
        lambda c: fmac(Av(3,c), t(c), Yr[1]),
        lambda c: fmac(Av(7,c), Fv(3,c), Rv(3,c)),
        lambda c: fmac(Av(4,c), t(c), Yr[2]),
        lambda c: fmac(Av(1,c), dot(c), Rv(1,c)),
        lambda c: mul(Fv(1,c), Fv(1,c), Rv(4,c)),
        lambda c: mul(Fv(2,c), Fv(2,c), Rv(4,c)),
        lambda c: mul(Fv(3,c), Fv(3,c), Rv(4,c)),
        lambda c: fmac(Av(9,c), Fv(1,c), Yr[2]),
        lambda c: fmac(Av(10,c), Fv(2,c), Yr[0]),
        lambda c: fmac(Av(8,c), Fv(3,c), Yr[1]),
        lambda c: fms(Av(10,c), Fv(1,c), Yr[1]),
        lambda c: fms(Av(8,c), Fv(2,c), Yr[2]),
        lambda c: fms(Av(9,c), Fv(3,c), Yr[0]),
    ]
    for op in seq:
        for c in ch: op(c)

def step(a, sg, D, opt):
    a(f's_mov_b32 s{sCur}, s{sTag+sg}')
    a(f's_cmp_eq_u32 s{sCur}, -2')
    a('s_cbranch_scc1 K2_end')
    for s in range(2):
        a(f'v_and_b32 v{Y+3*s}, s{sHi}, v{YP+4*sg+2*s}')
        a(f'v_lshlrev_b32 v{Y+3*s+1}, 16, v{YP+4*sg+2*s+1}')
        a(f'v_and_b32 v{Y+3*s+2}, s{sHi}, v{YP+4*sg+2*s+1}')
    rec_read(a, sg)
    a(f's_waitcnt vmcnt({9*(D-1)})')
    fill = unpack_ops(sg, 0)
    mf = []
    for p in (0, 2, 3, 1, 4):
        for h in range(2):
            mf.append(f'v_mfma_f32_16x16x32_bf16 {q4(R+(2*p+h)*4)}, {q4(AS+4*sg)}, {q4(RAD+(2*p+h)*4)}, 0')
    fi = 0
    for k, m in enumerate(mf):
        a(m)
        for _ in range(2):
            if fi < len(fill): a(fill[fi]); fi += 1
    while fi < len(fill): a(fill[fi]); fi += 1
    if not opt.get('nocomp'):
        compute_slot(a, 0)
        for o in unpack_ops(sg, 1): a(o)
        compute_slot(a, 1)
    a('s_waitcnt lgkmcnt(0)')
    grab_result(a)
    issue_loads(a, sg, opt)

def featoff(f):
    if f < 2: return 128*f
    f -= 2; kind, j = f // 3, f % 3
    return 256 + PJS*j + 128*kind

def flush(a, opt):
    D0 = R; D1 = R + 16; BR = R + 32; AR = F
    NA = 6
    issued = []
    def ds(text):
        issued.append(text); a(text)
    state = {'done': 0}
    def wait_for(idx):
        n = len(issued) - 1 - idx
        if idx >= state['done']:
            a(f's_waitcnt lgkmcnt({min(n, 15)})'); state['done'] = len(issued) - min(n, 15)
    def room():
        if len(issued) - state['done'] >= 15: wait_for(len(issued) - 12)
    a(f's_lshl_b32 s{sT}, s{sCur}, 4')
    a(f'v_add_u32 v{vTa}, s{sT}, v{vOrd}')
    ds(f'ds_read_b32 v{vTb}, v{vTa}')
    for f in range(11):
        t0 = F + 2*(f % 8)
        a(f'v_cvt_pk_bf16_f32 v{t0}, v{ACC+4*f}, v{ACC+4*f+1}')
        a(f'v_cvt_pk_bf16_f32 v{t0+1}, v{ACC+4*f+2}, v{ACC+4*f+3}')
        room()
        ds(f'ds_write_b64 v{vPW}, {pr(t0)} offset:{featoff(f)}')
    groups = [(0, ks) for ks in range(4)] + [(1, ks) for ks in range(6)]
    idxA = {}; idxB = {}
    def loadB(gi):
        c, ks = groups[gi]
        room(); idxB[gi] = len(issued)
        ds(f'ds_read_b128 {q4(BR+4*(gi%2))}, v{vPR1 if c else vPR0} offset:{ks*64}')
    def loadA(u):
        gi, t = divmod(u, 4); c, ks = groups[gi]
        tile = (ks*4 + t) + (16 if c else 0)
        room(); idxA[u] = len(issued)
        ds(f'ds_read_b128 {q4(AR+4*(u%NA))}, v{vWR} offset:{tile*1024}')
    loadB(0)
    for u in range(4): loadA(u)
    loadB(1)
    for u in range(4, NA): loadA(u)
    for k in range(44): a(f'v_mov_b32 v{ACC+k}, 0')
    for u in range(40):
        gi, t = divmod(u, 4); c, ks = groups[gi]
        wait_for(max(idxA[u], idxB[gi]))
        Dr = (D1 if c else D0) + 4*t
        cop = '0' if ks == 0 else q4(Dr)
        a(f'v_mfma_f32_16x16x32_bf16 {q4(Dr)}, {q4(AR+4*(u%NA))}, {q4(BR+4*(gi%2))}, {cop}')
        if t == 3 and gi + 2 < len(groups): loadB(gi + 2)
        if u + NA < 40: loadA(u + NA)
    SEL = F; G = F + 4; O1 = F + 8; O0 = TMP
    a(f'v_and_b32 v{vTb}, 0xff, v{vTb}')
    a(f'v_lshl_add_u32 v{vTb}, v{vTb}, 9, s{sNode}')
    a(f'v_add_u32 v{vTa}, v{vTb}, v{vOut0}')
    a(f'v_add_u32 v{vTb}, v{vTb}, v{vOut1}')
    for r in range(4): a(f'v_cndmask_b32 v{SEL+r}, v{D0+r}, v{D0+4+r}, s[{sM1}:{sM1+1}]')
    for r in range(4): a(f'v_cndmask_b32 v{SEL+r}, v{SEL+r}, v{D0+8+r}, s[{sM2}:{sM2+1}]')
    for r in range(4): a(f'v_cndmask_b32 v{SEL+r}, v{SEL+r}, v{D0+12+r}, s[{sM3}:{sM3+1}]')
    for r in range(4): a(f'v_mul_f32 v{G+r}, 0xbfb8aa3b, v{SEL+r}')
    for r in range(4): a(f'v_exp_f32 v{G+r}, v{G+r}')
    for r in range(4): a(f'v_add_f32 v{G+r}, 1.0, v{G+r}')
    for r in range(4): a(f'v_rcp_f32 v{G+r}, v{G+r}')
    a(f'v_cvt_pk_bf16_f32 v{O0}, v{SEL}, v{SEL+1}')
    a(f'v_cvt_pk_bf16_f32 v{O0+1}, v{SEL+2}, v{SEL+3}')
    a(f'buffer_store_dwordx2 {pr(O0)}, v{vTa}, s[12:15], 0 offen{POL[opt.get("stpol", 1)]}')
    for t in range(4):
        for r in range(4):
            a(f'v_mul_f32_dpp v{D1+4*t+r}, v{G+r}, v{D1+4*t+r} quad_perm:[{t},{t},{t},{t}] row_mask:0xf bank_mask:0xf')
    for t in range(4):
        a(f'v_cvt_pk_bf16_f32 v{O1+2*t}, v{D1+4*t}, v{D1+4*t+1}')
        a(f'v_cvt_pk_bf16_f32 v{O1+2*t+1}, v{D1+4*t+2}, v{D1+4*t+3}')
    a(f'buffer_store_dwordx4 {q4(O1)}, v{vTb}, s[12:15], 0 offen{POL[opt.get("stpol", 1)]}')
    a(f'buffer_store_dwordx4 {q4(O1+4)}, v{vTb}, s[12:15], 0 offen offset:16{POL[opt.get("stpol", 1)]}')

def slow_path(a, opt):
    WR = 100; AC = 0; FX = 12; AE = 16; AV = 24; RR = 40; T = 46; TB_ = 52; REC = 56; vL2 = 60; vZ = 61; vPB = 62; vL4 = 63
    G0 = 64; G1 = 65
    sW0 = 52; sW1 = 56; sWR = 48
    sN = 60; sC = 61; sCntS = 62; sStart = 63; sJ = 64; sMask_ = 66; sBit = 68; sD0 = 69; sD1 = 70; sD2 = 71
    sY0 = 72; sY1 = 73; sY2 = 74; sXo = 75; sEo = 76; sK = 77; sRow = 78; sPB = 79; sTmp = 80; sTmp2 = 81; sHiM = 82
    a('s_mov_b64 exec, -1')
    a(f's_load_dwordx2 s[{sWR}:{sWR+1}], s[0:1], 40')
    a(f's_load_dwordx2 s[{sW0}:{sW0+1}], s[0:1], 48')
    a(f's_load_dwordx2 s[{sW1}:{sW1+1}], s[0:1], 56')
    a(f'v_lshlrev_b32 v{vL2}, 1, v{vLane}')
    a(f'v_lshlrev_b32 v{vL4}, 2, v{vLane}')
    a(f'v_mov_b32 v{vZ}, 0')
    a(f's_mov_b32 s{sHiM}, 0xffff0000')
    a(f's_mul_i32 s{sPB}, s{sWave}, {4*PS}')
    a(f's_add_u32 s{sPB}, s{sPB}, {L_P}')
    a(f'v_add_u32 v{vPB}, s{sPB}, v{vL4}')
    a('s_waitcnt lgkmcnt(0)')
    srd(a, sWR, 16*320*2); srd(a, sW0, 128*64*2); srd(a, sW1, 192*64*2)
    for p in range(5):
        for d in range(16):
            off = (d*320 + 64*p)*2
            a(f's_mov_b32 s{sTmp}, {off}')
            a(f'buffer_load_ushort v{WR+16*p+d}, v{vL2}, s[{sWR}:{sWR+3}], s{sTmp} offen')
        a('s_waitcnt vmcnt(0)')
        for d in range(16): a(f'v_lshlrev_b32 v{WR+16*p+d}, 16, v{WR+16*p+d}')
    TBL = 3072
    for k in range(4):
        a(f'v_add_u32 v{T}, {64*k}, v{vLane}')
        a(f'v_cmp_gt_u32 vcc, {NCH}, v{T}')
        a(f'v_lshlrev_b32 v{T+1}, 10, v{T}')
        a(f's_lshl_b32 s{sTmp}, s2, 2')
        a(f's_add_u32 s{sTmp}, s{sTmp}, {TAB_OFF}')
        a(f'buffer_load_dword v{T+2}, v{T+1}, s[16:19], s{sTmp} offen')
        a('s_waitcnt vmcnt(0)')
        a(f'v_cndmask_b32 v{T+2}, 0, v{T+2}, vcc')
        a(f'ds_write_b32 v{vPB}, v{T+2} offset:{TBL + 256*k}')
    a(f's_mov_b32 s{sN}, s{sWave}')
    a('KS_node:')
    a(f's_cmp_ge_u32 s{sN}, {NPB}')
    a('s_cbranch_scc1 K2_end')
    a(f's_mul_i32 s{sRow}, s2, {NPB}')
    a(f's_add_u32 s{sRow}, s{sRow}, s{sN}')
    a(f's_cmp_ge_u32 s{sRow}, {N}')
    a('s_cbranch_scc1 K2_end')
    a(f's_lshl_b32 s{sRow}, s{sRow}, 9')
    for f in range(11): a(f'v_mov_b32 v{AC+f}, 0')
    a(f's_mov_b32 s{sC}, 0')
    a('KS_chunk:')
    a(f's_lshl_b32 s{sTmp}, s{sC}, 2')
    a(f's_add_u32 s{sTmp}, s{sTmp}, s{sPB}')
    a(f'v_mov_b32 v{T}, s{sTmp}')
    a(f'ds_read_b32 v{T+1}, v{T} offset:{TBL}')
    a('s_waitcnt lgkmcnt(0)')
    a(f'v_readfirstlane_b32 s{sTmp}, v{T+1}')
    a(f's_and_b32 s{sStart}, s{sTmp}, 0xffff')
    a(f's_lshr_b32 s{sCntS}, s{sTmp}, 16')
    a(f's_mul_i32 s{sTmp}, s{sC}, {CH}')
    a(f's_add_u32 s{sStart}, s{sStart}, s{sTmp}')
    a(f's_mov_b32 s{sJ}, 0')
    a('KS_batch:')
    a(f's_cmp_ge_u32 s{sJ}, s{sCntS}')
    a('s_cbranch_scc1 KS_chunk_next')
    a(f'v_add_u32 v{T}, s{sJ}, v{vLane}')
    a(f'v_cmp_gt_u32 vcc, s{sCntS}, v{T}')
    a(f'v_add_u32 v{T}, s{sStart}, v{T}')
    a(f'v_mul_u32_u24 v{T}, 12, v{T}')
    a(f'v_mov_b32 v{T+1}, 2.0')
    a(f'v_cndmask_b32 v{T}, v{T+1}, v{T}, vcc')
    a(f's_mov_b64 s[{sMask_}:{sMask_+1}], vcc')
    a(f'buffer_load_dwordx3 v[{REC}:{REC+2}], v{T}, s[16:19], 0 offen')
    a('s_waitcnt vmcnt(0)')
    a(f'v_lshrrev_b32 v{T}, 24, v{REC+2}')
    a(f'v_cmp_eq_u32 vcc, s{sN}, v{T}')
    a(f's_and_b64 s[{sMask_}:{sMask_+1}], s[{sMask_}:{sMask_+1}], vcc')
    a('KS_edge:')
    a(f's_cmp_eq_u64 s[{sMask_}:{sMask_+1}], 0')
    a('s_cbranch_scc1 KS_batch_next')
    a(f's_ff1_i32_b64 s{sBit}, s[{sMask_}:{sMask_+1}]')
    a(f's_bitset0_b64 s[{sMask_}:{sMask_+1}], s{sBit}')
    a(f'v_readlane_b32 s{sD0}, v{REC}, s{sBit}')
    a(f'v_readlane_b32 s{sD1}, v{REC+1}, s{sBit}')
    a(f'v_readlane_b32 s{sD2}, v{REC+2}, s{sBit}')
    a(f's_and_b32 s{sXo}, s{sD0}, 0xffff')
    a(f's_lshl_b32 s{sXo}, s{sXo}, 9')
    a(f's_and_b32 s{sEo}, s{sD2}, 0xffffff')
    a(f's_lshl_b32 s{sEo}, s{sEo}, 5')
    a(f's_and_b32 s{sY0}, s{sD0}, s{sHiM}')
    a(f's_lshl_b32 s{sY1}, s{sD1}, 16')
    a(f's_and_b32 s{sY2}, s{sD1}, s{sHiM}')
    for v in range(4): a(f'buffer_load_ushort v{FX+v}, v{vL2}, s[4:7], s{sXo} offen offset:{128*v}')
    a(f'buffer_load_dwordx4 v[{AE}:{AE+3}], v{vZ}, s[8:11], s{sEo} offen')
    a(f'buffer_load_dwordx4 v[{AE+4}:{AE+7}], v{vZ}, s[8:11], s{sEo} offen offset:16')
    a('s_waitcnt vmcnt(0)')
    for v in range(4): a(f'v_lshlrev_b32 v{FX+v}, 16, v{FX+v}')
    for q in range(8):
        a(f'v_lshlrev_b32 v{AV+2*q}, 16, v{AE+q}')
        a(f'v_and_b32 v{AV+2*q+1}, s{sHiM}, v{AE+q}')
    for p in range(5):
        a(f'v_mul_f32 v{RR+p}, v{AV}, v{WR+16*p}')
        for d in range(1, 16): a(f'v_fmac_f32 v{RR+p}, v{AV+d}, v{WR+16*p+d}')
    f0, f1 = FX, FX + 1
    a(f'v_fmac_f32 v{AC+0}, v{f0}, v{RR+0}')
    a(f'v_mul_f32 v{T}, s{sY0}, v{f1}')
    a(f'v_fmac_f32 v{T}, s{sY1}, v{f1+1}')
    a(f'v_fmac_f32 v{T}, s{sY2}, v{f1+2}')
    a(f'v_fmac_f32 v{AC+1}, v{T}, v{RR+1}')
    a(f'v_mul_f32 v{T}, v{f0}, v{RR+2}')
    for j, y in enumerate((sY0, sY1, sY2)): a(f'v_fmac_f32 v{AC+2+j}, s{y}, v{T}')
    for j in range(3): a(f'v_fmac_f32 v{AC+5+j}, v{f1+j}, v{RR+3}')
    for j in range(3): a(f'v_mul_f32 v{T+1+j}, v{f1+j}, v{RR+4}')
    a(f'v_fmac_f32 v{AC+8}, s{sY1}, v{T+3}')
    a(f'v_fma_f32 v{AC+8}, -s{sY2}, v{T+2}, v{AC+8}')
    a(f'v_fmac_f32 v{AC+9}, s{sY2}, v{T+1}')
    a(f'v_fma_f32 v{AC+9}, -s{sY0}, v{T+3}, v{AC+9}')
    a(f'v_fmac_f32 v{AC+10}, s{sY0}, v{T+2}')
    a(f'v_fma_f32 v{AC+10}, -s{sY1}, v{T+1}, v{AC+10}')
    a('s_branch KS_edge')
    a('KS_batch_next:')
    a(f's_add_u32 s{sJ}, s{sJ}, 64')
    a('s_branch KS_batch')
    a('KS_chunk_next:')
    a(f's_add_u32 s{sC}, s{sC}, 1')
    a(f's_cmp_lt_u32 s{sC}, {NCH}')
    a('s_cbranch_scc1 KS_chunk')
    for f in range(11): a(f'ds_write_b32 v{vPB}, v{AC+f} offset:{256*f}')
    for g in range(4): a(f'v_mov_b32 v{G0+g}, 0')
    a(f's_mov_b32 s{sK}, 0')
    a('KS_g0:')
    a(f's_lshl_b32 s{sTmp}, s{sK}, 2')
    a(f's_add_u32 s{sTmp}, s{sTmp}, s{sPB}')
    a(f'v_mov_b32 v{T}, s{sTmp}')
    a(f's_lshl_b32 s{sTmp2}, s{sK}, 7')
    for u in range(8):
        a(f'ds_read_b32 v{AV+u}, v{T} offset:{4*u}')
        a(f'buffer_load_ushort v{AV+8+u}, v{vL2}, s[{sW0}:{sW0+3}], s{sTmp2} offen offset:{128*u}')
    a('s_waitcnt vmcnt(0) lgkmcnt(0)')
    for u in range(8):
        a(f'v_lshlrev_b32 v{AV+8+u}, 16, v{AV+8+u}')
        a(f'v_fmac_f32 v{G0}, v{AV+u}, v{AV+8+u}')
    a(f's_add_u32 s{sK}, s{sK}, 8')
    a(f's_cmp_lt_u32 s{sK}, 128')
    a('s_cbranch_scc1 KS_g0')
    a(f's_mov_b32 s{sK}, 0')
    a('KS_g1:')
    a(f's_lshr_b32 s{sTmp}, s{sK}, 6')
    a(f's_mul_i32 s{sTmp}, s{sTmp}, 768')
    a(f's_and_b32 s{sTmp2}, s{sK}, 63')
    a(f's_lshl_b32 s{sTmp2}, s{sTmp2}, 2')
    a(f's_add_u32 s{sTmp}, s{sTmp}, s{sTmp2}')
    a(f's_add_u32 s{sTmp}, s{sTmp}, s{sPB}')
    a(f'v_mov_b32 v{T}, s{sTmp}')
    a(f's_lshl_b32 s{sTmp2}, s{sK}, 7')
    for u in range(4):
        for j in range(3): a(f'ds_read_b32 v{AV+3*u+j}, v{T} offset:{512 + 256*j + 4*u}')
        a(f'buffer_load_ushort v{AV+12+u}, v{vL2}, s[{sW1}:{sW1+3}], s{sTmp2} offen offset:{128*u}')
    a('s_waitcnt vmcnt(0) lgkmcnt(0)')
    for u in range(4):
        a(f'v_lshlrev_b32 v{AV+12+u}, 16, v{AV+12+u}')
        for j in range(3): a(f'v_fmac_f32 v{G1+j}, v{AV+3*u+j}, v{AV+12+u}')
    a(f's_add_u32 s{sK}, s{sK}, 4')
    a(f's_cmp_lt_u32 s{sK}, 192')
    a('s_cbranch_scc1 KS_g1')
    a(f'v_mul_f32 v{T}, 0xbfb8aa3b, v{G0}')
    a(f'v_exp_f32 v{T}, v{T}')
    a(f'v_add_f32 v{T}, 1.0, v{T}')
    a(f'v_rcp_f32 v{T}, v{T}')
    for j in range(3): a(f'v_mul_f32 v{G1+j}, v{T}, v{G1+j}')
    for g in range(4):
        a(f'v_cvt_pk_bf16_f32 v{G0+g}, v{G0+g}, v{G0+g}')
        a(f'buffer_store_short v{G0+g}, v{vL2}, s[12:15], s{sRow} offen offset:{128*g}')
    a(f's_add_u32 s{sN}, s{sN}, 8')
    a('s_branch KS_node')

def gen_k2(a, opt):
    D = opt.get('D', 3)
    OPT.update(opt)
    a(f'{KN}_kernel:')
    prologue(a, opt)
    a(f's_mov_b32 s{sPfQ}, s{sWave}')
    a(f'v_readlane_b32 s{sPfT}, v{vSBase}, s{sWave}')
    a(f'v_readlane_b32 s{sT}, v{vSteps}, s{sWave}')
    a(f'v_mov_b32 v{vCtr}, {L_CTR}')
    a(f'v_mov_b32 v{vOne}, 1')
    a(f's_add_u32 s{sPfEnd}, s{sPfT}, s{sT}')
    a('s_mov_b64 exec, 1')
    a(f'ds_add_rtn_u32 v{vGrab}, v{vCtr}, v{vOne}')
    a('s_mov_b64 exec, -1')
    a('s_waitcnt lgkmcnt(0)')
    grab_result(a)
    for sg in range(D):
        rec_read(a, sg)
        a('s_waitcnt lgkmcnt(0)')
        grab_result(a)
        issue_loads(a, sg, opt)
    for k in range(44): a(f'v_mov_b32 v{ACC+k}, 0')
    for sg in range(D):
        a(f'K2_s{sg}:')
        step(a, sg, D, opt)
        a(f's_cmp_lt_i32 s{sCur}, 0')
        a(f's_cbranch_scc1 K2_s{(sg+1) % D}')
        flush(a, opt)
        if sg == D - 1: a('s_branch K2_s0')
    a('K2_slow:')
    slow_path(a, opt)
    a('K2_end:')
    if opt.get('ts'):
        stamp(a, opt, 6, 255)
        a('s_waitcnt vmcnt(0)')
        stamp(a, opt, 7, 255)
        a(f'v_writelane_b32 v255, s{sNQ}, 8')
        a(f'v_writelane_b32 v255, s45, 9')
        a('s_getreg_b32 s45, hwreg(HW_REG_XCC_ID)')
        a(f'v_writelane_b32 v255, s45, 10')
        a('s_getreg_b32 s45, hwreg(HW_REG_HW_ID)')
        a(f'v_writelane_b32 v255, s45, 11')
        stamp_out(a, opt, 255, 254, sWave, TS_OFF, 8)
        a('K2_end2:')
    a('s_endpgm')
    return 256, 102
```

```python
from gen import *

ACC = 0; R = 44; RAD = 84; XS = 124
AS = YP = F = TMP = Y = NA = None
def set_map(D):
    global AS, YP, F, TMP, Y, NA
    AS = XS + 16*D; YP = AS + 4*D; F = YP + 4*D; TMP = F + 16; Y = TMP + 8
    NA = 8 if D == 2 else 6
vLaneX = 228; vLaneMask = 229; vRecA = 230; vRecB = 231; vSteps = 232; vEN = 233; vXA0 = 234; vXA1 = 235; vEA = 236
vTa = 237; vTb = 238; vPW = 239; vPR0 = 240; vPR1 = 241; vWR = 242; vOut0 = 243; vOut1 = 244; vOrd = 245
vLane = 246; vTid = 247; vT = 248
vHi = 248; vSBase = 249; vGrab = 250; vCtr = 246; vOne = 247
sWave = 20; sPfT = 21; sPfEnd = 22; sPfQ = 23; sNQ = 24; sCur = 25; s512 = 26; sHi = 27; sOffA = 28; sOffB = 29; sNode = 30; sT = 31
sM1 = 32; sM2 = 34; sM3 = 36; sSave = 38; sMask = 40; sOvf = 82; sU = 84
OPT = {}
POL = ['', ' nt', ' sc1', ' sc0 sc1', ' sc1 nt', ' sc0 sc1 nt', ' sc0']
YSEP = ((220, 222, 224), (226, 248, 250))
sThr = 3
sTag = 40
L_CTR = L_FLAG + 16
L_QI = 1344
COST_STEP = 8; COST_FLUSH = 11

def pr(x): return f'v[{x}:{x+1}]'
def q4(x): return f'v[{x}:{x+3}]'

def lane_consts(a, opt):
    i_, g_ = 208, 209
    a(f'v_and_b32 v{i_}, 15, v{vLane}')
    a(f'v_lshrrev_b32 v{g_}, 4, v{vLane}')
    a(f'v_lshlrev_b32 v{vLaneX}, 3, v{i_}')
    a(f'v_lshrrev_b32 v{210}, 1, v{g_}')
    a(f'v_and_b32 v{211}, 1, v{i_}')
    a(f'v_cmp_eq_u32 vcc, v{210}, v{211}')
    a(f'v_and_b32 v{212}, 1, v{g_}')
    a(f'v_lshlrev_b32 v{212}, 4, v{212}')
    a(f'v_mov_b32 v{213}, 2.0')
    a(f'v_cndmask_b32 v{vLaneMask}, v{213}, v{212}, vcc')
    a(f'v_lshlrev_b32 v{vRecA}, 4, v{g_}')
    a(f'v_add_u32 v{vRecA}, {L_RECA}, v{vRecA}')
    a(f'v_lshrrev_b32 v{vRecB}, 1, v{i_}')
    a(f'v_lshlrev_b32 v{vRecB}, 2, v{vRecB}')
    a(f'v_add_u32 v{vRecB}, {L_RECB}, v{vRecB}')
    a(f's_mul_i32 s{sNode}, s{sWave}, {4*PS}')
    a(f's_add_u32 s{sNode}, s{sNode}, {L_P}')
    a(f'v_mul_u32_u24 v{vPW}, {PS}, v{g_}')
    a(f'v_add3_u32 v{vPW}, v{vPW}, v{vLaneX}, s{sNode}')
    a(f'v_lshrrev_b32 v{210}, 2, v{i_}')
    a(f'v_mul_u32_u24 v{vPR0}, {PS}, v{210}')
    a(f'v_lshlrev_b32 v{211}, 4, v{g_}')
    a(f'v_add3_u32 v{vPR0}, v{vPR0}, v{211}, s{sNode}')
    a(f'v_and_b32 v{211}, 3, v{i_}')
    a(f'v_min_u32 v{212}, 2, v{211}')
    a(f'v_mul_u32_u24 v{212}, {PJS}, v{212}')
    a(f'v_add_u32 v{212}, 256, v{212}')
    a(f'v_add_u32 v{vPR1}, v{vPR0}, v{212}')
    a(f'v_lshlrev_b32 v{vWR}, 4, v{vLane}')
    a(f'v_add_u32 v{vWR}, {L_W}, v{vWR}')
    a(f'v_lshlrev_b32 v{212}, 5, v{g_}')
    a(f'v_lshl_add_u32 v{vOut0}, v{211}, 3, v{212}')
    a(f'v_lshl_add_u32 v{vOut1}, v{211}, 7, v{212}')
    a(f'v_add_u32 v{vOut1}, 128, v{vOut1}')
    a(f'v_cmp_eq_u32 vcc, 3, v{211}')
    a(f'v_cndmask_b32 v{vOut1}, v{vOut1}, v{213}, vcc')
    a(f'v_lshlrev_b32 v{vOrd}, 2, v{210}')
    a(f'v_add_u32 v{vOrd}, {L_SORT}, v{vOrd}')
    a(f's_mov_b32 s{s512}, 512')
    a(f's_mov_b32 s{sHi}, 0xffff0000')
    a(f's_mul_i32 s{sNode}, s2, {NPB*512}')
    for m, pat in ((sM1, 0x22222222), (sM2, 0x44444444), (sM3, 0x88888888)):
        a(f's_mov_b32 s{m}, {pat}'); a(f's_mov_b32 s{m+1}, {pat}')

def prologue(a, opt):
    a(f's_cmp_ge_u32 s2, {NB}')
    a('s_cbranch_scc1 K2_end2' if opt.get('ts') else 's_cbranch_scc1 K2_end')
    if opt.get('xcdmap', 1):
        a('s_and_b32 s3, s2, 7')
        a('s_lshl_b32 s3, s3, 5')
        a('s_lshr_b32 s2, s2, 3')
        a('s_add_u32 s2, s2, s3')
    a('s_load_dwordx2 s[4:5], s[0:1], 0')
    a('s_load_dwordx2 s[8:9], s[0:1], 16')
    a('s_load_dwordx2 s[12:13], s[0:1], 72')
    a('s_load_dwordx2 s[16:17], s[0:1], 88')
    a(f'v_mov_b32 v{vTid}, v0')
    a(f'v_and_b32 v{vLane}, 63, v0')
    a(f'v_lshrrev_b32 v{vT}, 6, v0')
    a(f'v_lshlrev_b32 v{vT+1}, 2, v0')
    a(f'v_readfirstlane_b32 s{sWave}, v{vT}')
    if opt.get('ts'): a('v_mov_b32 v255, 0')
    stamp(a, opt, 0, 255)
    a(f'v_mov_b32 v200, 0')
    a(f'v_cmp_gt_u32 vcc, 336, v{vTid}')
    a(f's_and_saveexec_b64 s[{sSave}:{sSave+1}], vcc')
    a('s_cbranch_execz K2_z')
    a(f'ds_write_b32 v{vT+1}, v200')
    a('K2_z:')
    a(f's_mov_b64 exec, s[{sSave}:{sSave+1}]')
    a('v_mov_b32 v200, 0xffff'); a('v_mov_b32 v201, 0'); a('v_mov_b32 v202, 0xffff'); a('v_mov_b32 v203, 0')
    for k in range(4): a(f'v_mov_b32 v{204+k}, 2.0')
    a(f'v_lshlrev_b32 v{vT+2}, 4, v{vTid}')
    for k in range(4): a(f'ds_write_b128 v{vT+2}, v[200:203] offset:{L_RECA + k*8192}')
    for k in range(2): a(f'ds_write_b128 v{vT+2}, v[204:207] offset:{L_RECB + k*8192}')
    a(f'v_lshrrev_b32 v{vT+3}, 4, v{vTid}')
    a('s_lshl_b32 s3, s2, 2')
    a(f'v_lshl_add_u32 v{vT+4}, v{vT+3}, 10, s3')
    a(f'v_lshlrev_b32 v{vT+5}, 4, v{vLane}')
    a('s_waitcnt lgkmcnt(0)')
    srd(a, 4, 0 if opt.get('nomem') else N * 512); srd(a, 8, 0 if opt.get('nomem') or opt.get('noea') else E * 32); srd(a, 12, N * 512); srd(a, 16, WS_USED)
    TB = 124
    for k in range(7):
        a(f's_mov_b32 s{sU+k}, {TAB_OFF + k*32768}')
    for k in range(7):
        a(f'buffer_load_dword v{TB+k}, v{vT+4}, s[16:19], s{sU+k} offen')
    lane_consts(a, opt)
    vJ = 152; vG = 153; CN = 154; AD = 161
    a(f'v_and_b32 v{vJ}, 15, v{vTid}')
    a(f'v_mul_u32_u24 v{vG}, {CH*12}, v{vT+3}')
    a(f'v_add_u32 v168, 16, v{vJ}')
    a(f'v_add_u32 v169, 32, v{vJ}')
    a(f's_mov_b64 s[{sOvf}:{sOvf+1}], 0')
    for k in range(7): a(f's_mov_b32 s{sU+k}, {REC_OFF + k*32*CH*12}')
    a('s_waitcnt vmcnt(0)')
    stamp(a, opt, 1, 255)
    for k in range(7):
        a(f'v_lshrrev_b32 v{CN+k}, 16, v{TB+k}')
        a(f'v_and_b32 v{AD+k}, 0xffff, v{TB+k}')
        a(f'v_add_u32 v{AD+k}, v{AD+k}, v{vJ}')
        a(f'v_mad_u32_u24 v{AD+k}, v{AD+k}, 12, v{vG}')
        a(f'v_cmp_gt_u32 s[{sMask+2*k}:{sMask+2*k+1}], v{CN+k}, v{vJ}')
        a(f'v_cmp_gt_u32 s[{sMask+14+2*k}:{sMask+14+2*k+1}], v{CN+k}, v168')
        a(f'v_cmp_gt_u32 s[{sMask+28+2*k}:{sMask+28+2*k+1}], v{CN+k}, v169')
        a(f'v_cmp_lt_u32 vcc, 48, v{CN+k}')
        a(f's_or_b64 s[{sOvf}:{sOvf+1}], s[{sOvf}:{sOvf+1}], vcc')
    def rec_loads(beta):
        for k in range(7):
            u = beta*7 + k
            a(f's_mov_b64 exec, s[{sMask+2*u}:{sMask+2*u+1}]')
            a(f'buffer_load_dwordx3 v[{4*u}:{4*u+2}], v{AD+k}, s[16:19], s{sU+k} offen offset:{beta*192}')
        a('s_mov_b64 exec, -1')
    rec_loads(0); rec_loads(1)
    sB2 = sU + 12
    a(f's_mov_b64 s[{sB2}:{sB2+1}], 0')
    for k in range(7):
        a(f's_or_b64 s[{sB2}:{sB2+1}], s[{sB2}:{sB2+1}], s[{sMask+28+2*k}:{sMask+28+2*k+1}]')
    a('s_cbranch_scc0 K2_nb2a')
    rec_loads(2)
    a('K2_nb2a:')
    IMG = 124
    a(f'v_lshlrev_b32 v{vT+5}, 4, v{vLane}')
    for u in range(7):
        a(f's_add_u32 s{sU+u}, s{sWave}, {8*u}')
        if u == 6:
            a(f's_min_u32 s{sU+u}, s{sU+u}, 49')
        a(f's_lshl_b32 s{sU+u}, s{sU+u}, 10')
        a(f's_add_u32 s{sT}, s{sU+u}, {WIMG_OFF}')
        a(f'buffer_load_dwordx4 {q4(IMG+4*u)}, v{vT+5}, s[16:19], s{sT} offen')
    a('s_waitcnt lgkmcnt(0)')
    a('s_barrier')
    a(f's_cmp_eq_u64 s[{sOvf}:{sOvf+1}], 0')
    a('s_cbranch_scc1 K2_novf')
    a(f'v_mov_b32 v{vT}, {L_FLAG}')
    a(f'v_mov_b32 v{vT+1}, 1')
    a(f'ds_write_b32 v{vT}, v{vT+1}')
    a('K2_novf:')
    a(f'v_mov_b32 v170, 1')
    a('s_waitcnt vmcnt(7)')
    stamp(a, opt, 2, 255)
    def hist(beta):
        for k in range(7):
            u = beta*7 + k
            a(f's_mov_b64 exec, s[{sMask+2*u}:{sMask+2*u+1}]')
            a(f'v_lshrrev_b32 v{161+k}, 22, v{4*u+2}')
            a(f'v_and_b32 v{161+k}, 0x3fc, v{161+k}')
            a(f'ds_add_rtn_u32 v{4*u+3}, v{161+k}, v170 offset:{L_CNT}')
        a('s_mov_b64 exec, -1')
    hist(0); hist(1)
    a(f's_cmp_eq_u64 s[{sB2}:{sB2+1}], 0')
    a('s_cbranch_scc1 K2_nb2b')
    hist(2)
    a('K2_nb2b:')
    a('s_waitcnt lgkmcnt(0)')
    a('s_barrier')
    stamp(a, opt, 3, 255)
    a('s_waitcnt vmcnt(0)')
    a(f'v_lshlrev_b32 v{vT+5}, 4, v{vLane}')
    a(f's_mov_b32 s{sU+8}, {L_P}')
    a(f's_mov_b32 s{sU+9}, {L_W - 10240}')
    for u in range(7):
        a(f's_cmp_lt_u32 s{sU+u}, 10240')
        a(f's_cselect_b32 s{sT}, s{sU+8}, s{sU+9}')
        a(f's_add_u32 s{sT}, s{sT}, s{sU+u}')
        a(f'v_add_u32 v{vT+6}, s{sT}, v{vT+5}')
        a(f'ds_write_b128 v{vT+6}, {q4(124+4*u)}')
    a(f'v_mov_b32 v{vT}, {L_FLAG}')
    a(f'ds_read_b32 v{vT+1}, v{vT}')
    a('s_waitcnt lgkmcnt(0)')
    a(f'v_readfirstlane_b32 s{sT}, v{vT+1}')
    a(f's_cmp_lg_u32 s{sT}, 0')
    a('s_cbranch_scc1 K2_slow')
    a(f's_cmp_lg_u32 s{sWave}, 0')
    a('s_cbranch_scc1 K2_p6')
    DG = 152; KY = 156; RK = 160; PO = 164; SO = 168
    a(f'v_lshlrev_b32 v{vT}, 4, v{vLane}')
    a(f'ds_read_b128 {q4(DG)}, v{vT} offset:{L_CNT}')
    a(f'v_cmp_gt_u32 vcc, 49, v{vLane}')
    a(f's_mov_b64 s[{sU}:{sU+1}], vcc')
    a(f'v_lshlrev_b32 v{vT+1}, 2, v{vLane}')
    for k in range(4): a(f'v_mov_b32 v{KY+k}, 0'); a(f'v_mov_b32 v{RK+k}, 0')
    a('s_waitcnt lgkmcnt(0)')
    a(f's_mov_b64 exec, s[{sU}:{sU+1}]')
    for k in range(4):
        a(f'v_min_u32 v{KY+k}, 63, v{DG+k}')
        a(f'v_sub_u32 v{KY+k}, 63, v{KY+k}')
        a(f'v_lshlrev_b32 v{KY+k}, 2, v{KY+k}')
        a(f'ds_add_rtn_u32 v{RK+k}, v{KY+k}, v170 offset:{L_BINS}')
    a('s_mov_b64 exec, -1')
    a(f'ds_read_b32 v{vT+2}, v{vT+1} offset:{L_BINS}')
    a('s_waitcnt lgkmcnt(0)')
    a(f'v_mov_b32 v{vT+3}, v{vT+2}')
    wave_scan(a, vT+3)
    a(f'v_sub_u32 v{vT+3}, v{vT+3}, v{vT+2}')
    for k in range(4): a(f'ds_bpermute_b32 v{PO+k}, v{KY+k}, v{vT+3}')
    a('s_waitcnt lgkmcnt(0)')
    a(f's_mov_b64 exec, s[{sU}:{sU+1}]')
    for k in range(4):
        a(f'v_add_u32 v{PO+k}, v{PO+k}, v{RK+k}')
        a(f'v_add_u32 v{vT+4}, {k}, v{vT+1}')
        a(f'v_lshl_or_b32 v{vT+4}, v{DG+k}, 8, v{vT+4}')
        a(f'v_lshlrev_b32 v{vT+5}, 2, v{PO+k}')
        a(f'ds_write_b32 v{vT+5}, v{vT+4} offset:{L_SORT}')
    a('s_mov_b64 exec, -1')
    a(f'ds_read_b128 {q4(SO)}, v{vT} offset:{L_SORT}')
    a(f'v_cmp_gt_u32 vcc, 49, v{vLane}')
    a('s_waitcnt lgkmcnt(0)')
    a(f'v_max3_u32 v{SO}, v{SO}, v{SO+1}, v{SO+2}')
    a(f'v_max_u32 v{SO}, v{SO}, v{SO+3}')
    a(f'v_lshrrev_b32 v{SO}, 8, v{SO}')
    a(f'v_add_u32 v{SO}, 1, v{SO}')
    a(f'v_lshrrev_b32 v{SO}, 1, v{SO}')
    a(f'v_max_u32 v{SO}, 1, v{SO}')
    a(f'v_cndmask_b32 v{SO}, 0, v{SO}, vcc')
    a(f'v_mov_b32 v{SO+1}, v{SO}')
    wave_scan(a, SO+1)
    a(f'v_sub_u32 v{SO+1}, v{SO+1}, v{SO}')
    a(f'v_min_u32 v{SO+2}, 0xffff, v{SO+1}')
    a(f'v_min_u32 v{SO+3}, 0xffff, v{SO}')
    a(f'v_lshl_or_b32 v{SO+2}, v{SO+3}, 16, v{SO+2}')
    a(f'ds_write_b32 v{vT+1}, v{SO+2} offset:{L_QI}')
    for k in range(4):
        a(f'v_and_b32 v{KY+k}, 0xfc, v{PO+k}')
        a(f'ds_bpermute_b32 v{RK+k}, v{KY+k}, v{SO+1}')
    a('s_waitcnt lgkmcnt(0)')
    for k in range(4):
        a(f'v_and_b32 v{PO+k}, 3, v{PO+k}')
        a(f'v_lshlrev_b32 v{PO+k}, 1, v{PO+k}')
        a(f'v_lshl_add_u32 v{RK+k}, v{RK+k}, 3, v{PO+k}')
    a(f's_mov_b64 exec, s[{sU}:{sU+1}]')
    a(f'ds_write_b128 v{vT}, {q4(RK)} offset:{L_BASE}')
    a('s_mov_b64 exec, -1')
    a('K2_p6:')
    a('s_waitcnt lgkmcnt(0)')
    a('s_barrier')
    stamp(a, opt, 4, 255)
    a(f'v_lshlrev_b32 v{vT+1}, 2, v{vLane}')
    a(f'ds_read_b32 v{vT+2}, v{vT+1} offset:{L_QI}')
    a('s_waitcnt lgkmcnt(0)')
    a(f'v_and_b32 v{vT+3}, 0xffff, v{vT+2}')
    a(f'v_lshrrev_b32 v{vSteps}, 16, v{vT+2}')
    a(f'v_mov_b32 v226, v{vT+3}')
    a(f'v_readlane_b32 s{sT}, v{vT+3}, 63')
    if opt.get('ts'): a(f's_mov_b32 s99, s{sT}'); a('s_mov_b32 s45, s99')
    a(f's_cmp_gt_u32 s{sT}, {NULLSTEP}')
    a('s_cbranch_scc1 K2_slow')
    if opt.get('thr'):
        a(f's_sub_i32 s{sThr}, s{sT}, {opt.get("t0", 401)}')
        a(f's_mul_i32 s{sThr}, s{sThr}, {opt.get("tmul", 4)}')
        a(f's_ashr_i32 s{sThr}, s{sThr}, 4')
        a(f's_cmp_lt_i32 s{sWave}, s{sThr}')
        a(f's_cselect_b32 s{sThr}, 0, 1')
    def scat(beta):
        for k in range(7):
            u = beta*7 + k
            a(f's_mov_b64 exec, s[{sMask+2*u}:{sMask+2*u+1}]')
            a(f'v_lshrrev_b32 v{161+k}, 22, v{4*u+2}')
            a(f'v_and_b32 v{161+k}, 0x3fc, v{161+k}')
            a(f'ds_read_b32 v{176+k}, v{161+k} offset:{L_BASE}')
        for k in range(7):
            u = beta*7 + k
            a(f's_mov_b64 exec, s[{sMask+2*u}:{sMask+2*u+1}]')
            a(f'v_lshrrev_b32 v{vT}, 1, v{4*u+3}')
            a(f'v_and_b32 v{vT+1}, 1, v{4*u+3}')
            a(f'v_and_b32 v{vT+2}, 0xffffff, v{4*u+2}')
            a(f'v_lshlrev_b32 v{vT+2}, 5, v{vT+2}')
            a(f's_waitcnt lgkmcnt({min(15, 6 - k + 2*k)})') if False else None
            if k == 0: a('s_waitcnt lgkmcnt(0)')
            a(f'v_lshl_add_u32 v{vT}, v{vT}, 3, v{176+k}')
            a(f'v_add_u32 v{vT}, v{vT}, v{vT+1}')
            a(f'v_lshlrev_b32 v{vT+3}, 3, v{vT}')
            a(f'v_lshlrev_b32 v{vT+4}, 2, v{vT}')
            a(f'ds_write_b64 v{vT+3}, v[{4*u}:{4*u+1}] offset:{L_RECA}')
            a(f'ds_write_b32 v{vT+4}, v{vT+2} offset:{L_RECB}')
        a('s_mov_b64 exec, -1')
    scat(0); scat(1)
    a(f's_cmp_eq_u64 s[{sB2}:{sB2+1}], 0')
    a('s_cbranch_scc1 K2_nb2c')
    scat(2)
    a('K2_nb2c:')
    a(f'v_lshlrev_b32 v{vT}, 4, v{vLane}')
    a(f'v_add_u32 v{vT}, {L_P}, v{vT}')
    for t in range(10): a(f'ds_read_b128 {q4(RAD+4*t)}, v{vT} offset:{t*1024}')
    a('s_waitcnt lgkmcnt(0)')
    a('s_barrier')
    stamp(a, opt, 5, 255)

_uid = [0]
DEFER = []
def rec_read(a, sg):
    _uid[0] += 1; u = _uid[0]
    a(f's_cmp_lg_u32 s{sPfT}, s{sPfEnd}')
    a(f's_cbranch_scc0 K2_sw{u}')
    a(f'K2_have{u}:')
    a(f's_lshl_b32 s{sOffA}, s{sPfT}, 6')
    a(f's_add_u32 s{sPfT}, s{sPfT}, 1')
    a(f's_cmp_eq_u32 s{sPfT}, s{sPfEnd}')
    a(f's_cselect_b32 s{sTag+sg}, s{sPfQ}, -1')
    a(f'K2_go{u}:')
    a(f's_lshr_b32 s{sOffB}, s{sOffA}, 1')
    a(f'v_add_u32 v{vTa}, s{sOffA}, v{vRecA}')
    a(f'v_add_u32 v{vTb}, s{sOffB}, v{vRecB}')
    a(f'ds_read_b128 {q4(YP+4*sg)}, v{vTa}')
    a(f'ds_read_b32 v{vEN}, v{vTb}')
    def cold(a, u=u, sg=sg):
        a(f'K2_sw{u}:')
        a(f's_cmp_ge_u32 s{sNQ}, 49')
        a(f's_cbranch_scc1 K2_exh{u}')
        a(f's_mov_b32 s{sPfQ}, s{sNQ}')
        a(f'v_readlane_b32 s{sPfT}, v{vSBase}, s{sNQ}')
        a(f'v_readlane_b32 s{sT}, v{vSteps}, s{sNQ}')
        a('s_mov_b64 exec, 1')
        a(f'ds_add_rtn_u32 v{vGrab}, v{vCtr}, v{vOne}')
        a('s_mov_b64 exec, -1')
        a(f's_add_u32 s{sPfEnd}, s{sPfT}, s{sT}')
        a(f's_branch K2_have{u}')
        a(f'K2_exh{u}:')
        a(f's_mov_b32 s{sOffA}, {NULLSTEP*64}')
        a(f's_mov_b32 s{sTag+sg}, -2')
        a(f's_branch K2_go{u}')
    DEFER.append(cold)

def grab_result(a):
    a(f'v_readfirstlane_b32 s{sNQ}, v{vGrab}')
    a(f's_add_u32 s{sNQ}, s{sNQ}, 8')

def issue_loads(a, sg, opt):
    a(f'v_mad_u32_u16 v{vXA0}, v{YP+4*sg}, s{s512}, v{vLaneX}')
    a(f'v_mad_u32_u16 v{vXA1}, v{YP+4*sg+2}, s{s512}, v{vLaneX}')
    a(f'v_or_b32 v{vEA}, v{vEN}, v{vLaneMask}')
    ent = POL[opt.get('eapol', 4)]
    if opt.get('noload'): return
    a(f'buffer_load_dwordx4 {q4(AS+4*sg)}, v{vEA}, s[8:11], 0 offen{ent}')
    for s, va in ((0, vXA0), (1, vXA1)):
        for v in range(4):
            a(f'buffer_load_dwordx2 {pr(XS+16*sg+8*s+2*v)}, v{va}, s[4:7], 0 offen offset:{128*v}{POL[opt.get("xpol", 0)]}')

def Fp(v, h): return F + 8*h + 2*v
def Rp(p, h, s): return R + (2*p + h)*4 + 2*s
def Ap(f, h): return ACC + 4*f + 2*h

def unpack_ops(sg, s):
    ops = []
    for v in range(4):
        for h in range(2):
            src = XS + 16*sg + 8*s + 2*v + h
            ops.append(f'v_lshlrev_b32 v{Fp(v,h)}, 16, v{src}')
            ops.append(f'v_and_b32 v{Fp(v,h)+1}, v{vHi}, v{src}')
    return ops

def compute_slot(a, s):
    Yr = (Y + 3*s, Y + 3*s + 1, Y + 3*s + 2)
    ch = [(h, p) for h in range(2) for p in range(2)]
    Fv = lambda v, c: Fp(v, c[0]) + c[1]
    Rv = lambda p, c: Rp(p, c[0], s) + c[1]
    Av = lambda f, c: Ap(f, c[0]) + c[1]
    dot = lambda c: TMP + 2*c[0] + c[1]
    t = lambda c: TMP + 4 + 2*c[0] + c[1]
    fmac = lambda d, x, y: a(f'v_fmac_f32 v{d}, v{x}, v{y}')
    mul = lambda d, x, y: a(f'v_mul_f32 v{d}, v{x}, v{y}')
    fms = lambda d, x, y: a(f'v_fma_f32 v{d}, -v{x}, v{y}, v{d}')
    seq = [
        lambda c: fmac(Av(0,c), Fv(0,c), Rv(0,c)),
        lambda c: mul(dot(c), Fv(1,c), Yr[0]),
        lambda c: mul(t(c), Fv(0,c), Rv(2,c)),
        lambda c: fmac(dot(c), Fv(2,c), Yr[1]),
        lambda c: fmac(Av(5,c), Fv(1,c), Rv(3,c)),
        lambda c: fmac(dot(c), Fv(3,c), Yr[2]),
        lambda c: fmac(Av(2,c), t(c), Yr[0]),
        lambda c: fmac(Av(6,c), Fv(2,c), Rv(3,c)),
        lambda c: fmac(Av(3,c), t(c), Yr[1]),
        lambda c: fmac(Av(7,c), Fv(3,c), Rv(3,c)),
        lambda c: fmac(Av(4,c), t(c), Yr[2]),
        lambda c: fmac(Av(1,c), dot(c), Rv(1,c)),
        lambda c: mul(Fv(1,c), Fv(1,c), Rv(4,c)),
        lambda c: mul(Fv(2,c), Fv(2,c), Rv(4,c)),
        lambda c: mul(Fv(3,c), Fv(3,c), Rv(4,c)),
        lambda c: fmac(Av(9,c), Fv(1,c), Yr[2]),
        lambda c: fmac(Av(10,c), Fv(2,c), Yr[0]),
        lambda c: fmac(Av(8,c), Fv(3,c), Yr[1]),
        lambda c: fms(Av(10,c), Fv(1,c), Yr[1]),
        lambda c: fms(Av(8,c), Fv(2,c), Yr[2]),
        lambda c: fms(Av(9,c), Fv(3,c), Yr[0]),
    ]
    for op in seq:
        for c in ch: op(c)

def step(a, sg, D, opt):
    a(f's_mov_b32 s{sCur}, s{sTag+sg}')
    a(f's_cmp_eq_u32 s{sCur}, -2')
    a('s_cbranch_scc1 K2_end')
    for s in range(2):
        a(f'v_and_b32 v{Y+3*s}, v{vHi}, v{YP+4*sg+2*s}')
        a(f'v_lshlrev_b32 v{Y+3*s+1}, 16, v{YP+4*sg+2*s+1}')
        a(f'v_and_b32 v{Y+3*s+2}, v{vHi}, v{YP+4*sg+2*s+1}')
    rec_read(a, sg)
    a(f's_waitcnt vmcnt({9*(D-1)})')
    if opt.get('thr'):
        _uid[0] += 1
        a(f's_cmp_eq_u32 s{sThr}, 0')
        a(f's_cbranch_scc1 K2_nt{_uid[0]}')
        a(f's_waitcnt vmcnt({9*(D-2)})')
        a(f'K2_nt{_uid[0]}:')
    fill = unpack_ops(sg, 0)
    mf = []
    for p in (0, 2, 3, 1, 4):
        for h in range(2):
            mf.append(f'v_mfma_f32_16x16x32_bf16 {q4(R+(2*p+h)*4)}, {q4(AS+4*sg)}, {q4(RAD+(2*p+h)*4)}, 0')
    if opt.get('nomfma'): mf = []
    if opt.get('mfb2b', 1):
        for m in mf: a(m)
        for o in fill: a(o)
    else:
        fi = 0
        for k, m in enumerate(mf):
            a(m)
            for _ in range(2):
                if fi < len(fill): a(fill[fi]); fi += 1
        while fi < len(fill): a(fill[fi]); fi += 1
    if not opt.get('nocomp'):
        compute_slot(a, 0)
        for o in unpack_ops(sg, 1): a(o)
        compute_slot(a, 1)
    a('s_waitcnt lgkmcnt(0)')
    grab_result(a)
    issue_loads(a, sg, opt)

def featoff(f):
    if f < 2: return 128*f
    f -= 2; kind, j = f // 3, f % 3
    return 256 + PJS*j + 128*kind

def flush(a, opt):
    if opt.get('noflush'): return
    D0 = R; D1 = R + 16; BR = R + 32; AR = F
    issued = []
    def ds(text):
        issued.append(text); a(text)
    state = {'done': 0}
    def wait_for(idx):
        n = len(issued) - 1 - idx
        if idx >= state['done']:
            a(f's_waitcnt lgkmcnt({min(n, 15)})'); state['done'] = len(issued) - min(n, 15)
    def room():
        if len(issued) - state['done'] >= 15: wait_for(len(issued) - 12)
    a(f's_lshl_b32 s{sT}, s{sCur}, 4')
    a(f'v_add_u32 v{vTa}, s{sT}, v{vOrd}')
    ds(f'ds_read_b32 v{vTb}, v{vTa}')
    for f in range(11):
        t0 = F + 2*(f % 8)
        a(f'v_cvt_pk_bf16_f32 v{t0}, v{ACC+4*f}, v{ACC+4*f+1}')
        a(f'v_cvt_pk_bf16_f32 v{t0+1}, v{ACC+4*f+2}, v{ACC+4*f+3}')
        room()
        ds(f'ds_write_b64 v{vPW}, {pr(t0)} offset:{featoff(f)}')
    groups = [(0, ks) for ks in range(4)] + [(1, ks) for ks in range(6)]
    idxA = {}; idxB = {}
    def loadB(gi):
        c, ks = groups[gi]
        room(); idxB[gi] = len(issued)
        ds(f'ds_read_b128 {q4(BR+4*(gi%2))}, v{vPR1 if c else vPR0} offset:{ks*64}')
    def loadA(u):
        gi, t = divmod(u, 4); c, ks = groups[gi]
        tile = (ks*4 + t) + (16 if c else 0)
        room(); idxA[u] = len(issued)
        ds(f'ds_read_b128 {q4(AR+4*(u%NA))}, v{vWR} offset:{tile*1024}')
    if NA == 8:
        loadB(0)
        for u in range(4): loadA(u)
        loadB(1)
        for u in range(4, 8): loadA(u)
        for k in range(44): a(f'v_mov_b32 v{ACC+k}, 0')
        for gi, (c, ks) in enumerate(groups):
            wait_for(max(idxA[4*gi+3], idxB[gi]))
            for t in range(4):
                u = 4*gi + t
                Dr = (D1 if c else D0) + 4*t
                cop = '0' if ks == 0 else q4(Dr)
                a(f'v_mfma_f32_16x16x32_bf16 {q4(Dr)}, {q4(AR+4*(u%NA))}, {q4(BR+4*(gi%2))}, {cop}')
            if gi + 2 < len(groups):
                loadB(gi + 2)
                for t in range(4): loadA(4*(gi+2) + t)
    else:
        loadB(0)
        for u in range(4): loadA(u)
        loadB(1)
        for u in range(4, NA): loadA(u)
        for k in range(44): a(f'v_mov_b32 v{ACC+k}, 0')
        for u in range(40):
            gi, t = divmod(u, 4); c, ks = groups[gi]
            wait_for(max(idxA[u], idxB[gi]))
            Dr = (D1 if c else D0) + 4*t
            cop = '0' if ks == 0 else q4(Dr)
            a(f'v_mfma_f32_16x16x32_bf16 {q4(Dr)}, {q4(AR+4*(u%NA))}, {q4(BR+4*(gi%2))}, {cop}')
            if t == 3 and gi + 2 < len(groups): loadB(gi + 2)
            if u + NA < 40: loadA(u + NA)
    SEL = F; G = F + 4; O1 = F + 8; O0 = TMP
    a(f'v_and_b32 v{vTb}, 0xff, v{vTb}')
    a(f'v_lshl_add_u32 v{vTb}, v{vTb}, 9, s{sNode}')
    a(f'v_add_u32 v{vTa}, v{vTb}, v{vOut0}')
    a(f'v_add_u32 v{vTb}, v{vTb}, v{vOut1}')
    SEL = D0
    for t, m in ((1, sM1), (2, sM2), (3, sM3)):
        a(f's_mov_b64 exec, s[{m}:{m+1}]')
        for r in range(4): a(f'v_mov_b32 v{SEL+r}, v{D0+4*t+r}')
    a('s_mov_b64 exec, -1')
    for r in range(4): a(f'v_mul_f32 v{G+r}, 0xbfb8aa3b, v{SEL+r}')
    for r in range(4): a(f'v_exp_f32 v{G+r}, v{G+r}')
    for r in range(4): a(f'v_add_f32 v{G+r}, 1.0, v{G+r}')
    for r in range(4): a(f'v_rcp_f32 v{G+r}, v{G+r}')
    a(f'v_cvt_pk_bf16_f32 v{O0}, v{SEL}, v{SEL+1}')
    a(f'v_cvt_pk_bf16_f32 v{O0+1}, v{SEL+2}, v{SEL+3}')
    a(f'buffer_store_dwordx2 {pr(O0)}, v{vTa}, s[12:15], 0 offen{POL[opt.get("stpol", 1)]}')
    for t in range(4):
        for r in range(4):
            a(f'v_mul_f32_dpp v{D1+4*t+r}, v{G+r}, v{D1+4*t+r} quad_perm:[{t},{t},{t},{t}] row_mask:0xf bank_mask:0xf')
    for t in range(4):
        a(f'v_cvt_pk_bf16_f32 v{O1+2*t}, v{D1+4*t}, v{D1+4*t+1}')
        a(f'v_cvt_pk_bf16_f32 v{O1+2*t+1}, v{D1+4*t+2}, v{D1+4*t+3}')
    a(f'buffer_store_dwordx4 {q4(O1)}, v{vTb}, s[12:15], 0 offen{POL[opt.get("stpol", 1)]}')
    a(f'buffer_store_dwordx4 {q4(O1+4)}, v{vTb}, s[12:15], 0 offen offset:16{POL[opt.get("stpol", 1)]}')

def slow_path(a, opt):
    WR = 100; AC = 0; FX = 12; AE = 16; AV = 24; RR = 40; T = 46; TB_ = 52; REC = 56; vL2 = 60; vZ = 61; vPB = 62; vL4 = 63
    G0 = 64; G1 = 65
    sW0 = 52; sW1 = 56; sWR = 48
    sN = 60; sC = 61; sCntS = 62; sStart = 63; sJ = 64; sMask_ = 66; sBit = 68; sD0 = 69; sD1 = 70; sD2 = 71
    sY0 = 72; sY1 = 73; sY2 = 74; sXo = 75; sEo = 76; sK = 77; sRow = 78; sPB = 79; sTmp = 80; sTmp2 = 81; sHiM = 82
    a('s_mov_b64 exec, -1')
    a(f's_load_dwordx2 s[{sWR}:{sWR+1}], s[0:1], 40')
    a(f's_load_dwordx2 s[{sW0}:{sW0+1}], s[0:1], 48')
    a(f's_load_dwordx2 s[{sW1}:{sW1+1}], s[0:1], 56')
    a(f'v_lshlrev_b32 v{vL2}, 1, v{vLane}')
    a(f'v_lshlrev_b32 v{vL4}, 2, v{vLane}')
    a(f'v_mov_b32 v{vZ}, 0')
    a(f's_mov_b32 s{sHiM}, 0xffff0000')
    a(f's_mul_i32 s{sPB}, s{sWave}, {4*PS}')
    a(f's_add_u32 s{sPB}, s{sPB}, {L_P}')
    a(f'v_add_u32 v{vPB}, s{sPB}, v{vL4}')
    a('s_waitcnt lgkmcnt(0)')
    srd(a, sWR, 16*320*2); srd(a, sW0, 128*64*2); srd(a, sW1, 192*64*2)
    for p in range(5):
        for d in range(16):
            off = (d*320 + 64*p)*2
            a(f's_mov_b32 s{sTmp}, {off}')
            a(f'buffer_load_ushort v{WR+16*p+d}, v{vL2}, s[{sWR}:{sWR+3}], s{sTmp} offen')
        a('s_waitcnt vmcnt(0)')
        for d in range(16): a(f'v_lshlrev_b32 v{WR+16*p+d}, 16, v{WR+16*p+d}')
    TBL = 3072
    for k in range(4):
        a(f'v_add_u32 v{T}, {64*k}, v{vLane}')
        a(f'v_cmp_gt_u32 vcc, {NCH}, v{T}')
        a(f'v_lshlrev_b32 v{T+1}, 10, v{T}')
        a(f's_lshl_b32 s{sTmp}, s2, 2')
        a(f's_add_u32 s{sTmp}, s{sTmp}, {TAB_OFF}')
        a(f'buffer_load_dword v{T+2}, v{T+1}, s[16:19], s{sTmp} offen')
        a('s_waitcnt vmcnt(0)')
        a(f'v_cndmask_b32 v{T+2}, 0, v{T+2}, vcc')
        a(f'ds_write_b32 v{vPB}, v{T+2} offset:{TBL + 256*k}')
    a(f's_mov_b32 s{sN}, s{sWave}')
    a('KS_node:')
    a(f's_cmp_ge_u32 s{sN}, {NPB}')
    a('s_cbranch_scc1 K2_end')
    a(f's_mul_i32 s{sRow}, s2, {NPB}')
    a(f's_add_u32 s{sRow}, s{sRow}, s{sN}')
    a(f's_cmp_ge_u32 s{sRow}, {N}')
    a('s_cbranch_scc1 K2_end')
    a(f's_lshl_b32 s{sRow}, s{sRow}, 9')
    for f in range(11): a(f'v_mov_b32 v{AC+f}, 0')
    a(f's_mov_b32 s{sC}, 0')
    a('KS_chunk:')
    a(f's_lshl_b32 s{sTmp}, s{sC}, 2')
    a(f's_add_u32 s{sTmp}, s{sTmp}, s{sPB}')
    a(f'v_mov_b32 v{T}, s{sTmp}')
    a(f'ds_read_b32 v{T+1}, v{T} offset:{TBL}')
    a('s_waitcnt lgkmcnt(0)')
    a(f'v_readfirstlane_b32 s{sTmp}, v{T+1}')
    a(f's_and_b32 s{sStart}, s{sTmp}, 0xffff')
    a(f's_lshr_b32 s{sCntS}, s{sTmp}, 16')
    a(f's_mul_i32 s{sTmp}, s{sC}, {CH}')
    a(f's_add_u32 s{sStart}, s{sStart}, s{sTmp}')
    a(f's_mov_b32 s{sJ}, 0')
    a('KS_batch:')
    a(f's_cmp_ge_u32 s{sJ}, s{sCntS}')
    a('s_cbranch_scc1 KS_chunk_next')
    a(f'v_add_u32 v{T}, s{sJ}, v{vLane}')
    a(f'v_cmp_gt_u32 vcc, s{sCntS}, v{T}')
    a(f'v_add_u32 v{T}, s{sStart}, v{T}')
    a(f'v_mul_u32_u24 v{T}, 12, v{T}')
    a(f'v_mov_b32 v{T+1}, 2.0')
    a(f'v_cndmask_b32 v{T}, v{T+1}, v{T}, vcc')
    a(f's_mov_b64 s[{sMask_}:{sMask_+1}], vcc')
    a(f'buffer_load_dwordx3 v[{REC}:{REC+2}], v{T}, s[16:19], 0 offen')
    a('s_waitcnt vmcnt(0)')
    a(f'v_lshrrev_b32 v{T}, 24, v{REC+2}')
    a(f'v_cmp_eq_u32 vcc, s{sN}, v{T}')
    a(f's_and_b64 s[{sMask_}:{sMask_+1}], s[{sMask_}:{sMask_+1}], vcc')
    a('KS_edge:')
    a(f's_cmp_eq_u64 s[{sMask_}:{sMask_+1}], 0')
    a('s_cbranch_scc1 KS_batch_next')
    a(f's_ff1_i32_b64 s{sBit}, s[{sMask_}:{sMask_+1}]')
    a(f's_bitset0_b64 s[{sMask_}:{sMask_+1}], s{sBit}')
    a(f'v_readlane_b32 s{sD0}, v{REC}, s{sBit}')
    a(f'v_readlane_b32 s{sD1}, v{REC+1}, s{sBit}')
    a(f'v_readlane_b32 s{sD2}, v{REC+2}, s{sBit}')
    a(f's_and_b32 s{sXo}, s{sD0}, 0xffff')
    a(f's_lshl_b32 s{sXo}, s{sXo}, 9')
    a(f's_and_b32 s{sEo}, s{sD2}, 0xffffff')
    a(f's_lshl_b32 s{sEo}, s{sEo}, 5')
    a(f's_and_b32 s{sY0}, s{sD0}, s{sHiM}')
    a(f's_lshl_b32 s{sY1}, s{sD1}, 16')
    a(f's_and_b32 s{sY2}, s{sD1}, s{sHiM}')
    for v in range(4): a(f'buffer_load_ushort v{FX+v}, v{vL2}, s[4:7], s{sXo} offen offset:{128*v}')
    a(f'buffer_load_dwordx4 v[{AE}:{AE+3}], v{vZ}, s[8:11], s{sEo} offen')
    a(f'buffer_load_dwordx4 v[{AE+4}:{AE+7}], v{vZ}, s[8:11], s{sEo} offen offset:16')
    a('s_waitcnt vmcnt(0)')
    for v in range(4): a(f'v_lshlrev_b32 v{FX+v}, 16, v{FX+v}')
    for q in range(8):
        a(f'v_lshlrev_b32 v{AV+2*q}, 16, v{AE+q}')
        a(f'v_and_b32 v{AV+2*q+1}, s{sHiM}, v{AE+q}')
    for p in range(5):
        a(f'v_mul_f32 v{RR+p}, v{AV}, v{WR+16*p}')
        for d in range(1, 16): a(f'v_fmac_f32 v{RR+p}, v{AV+d}, v{WR+16*p+d}')
    f0, f1 = FX, FX + 1
    a(f'v_fmac_f32 v{AC+0}, v{f0}, v{RR+0}')
    a(f'v_mul_f32 v{T}, s{sY0}, v{f1}')
    a(f'v_fmac_f32 v{T}, s{sY1}, v{f1+1}')
    a(f'v_fmac_f32 v{T}, s{sY2}, v{f1+2}')
    a(f'v_fmac_f32 v{AC+1}, v{T}, v{RR+1}')
    a(f'v_mul_f32 v{T}, v{f0}, v{RR+2}')
    for j, y in enumerate((sY0, sY1, sY2)): a(f'v_fmac_f32 v{AC+2+j}, s{y}, v{T}')
    for j in range(3): a(f'v_fmac_f32 v{AC+5+j}, v{f1+j}, v{RR+3}')
    for j in range(3): a(f'v_mul_f32 v{T+1+j}, v{f1+j}, v{RR+4}')
    a(f'v_fmac_f32 v{AC+8}, s{sY1}, v{T+3}')
    a(f'v_fma_f32 v{AC+8}, -s{sY2}, v{T+2}, v{AC+8}')
    a(f'v_fmac_f32 v{AC+9}, s{sY2}, v{T+1}')
    a(f'v_fma_f32 v{AC+9}, -s{sY0}, v{T+3}, v{AC+9}')
    a(f'v_fmac_f32 v{AC+10}, s{sY0}, v{T+2}')
    a(f'v_fma_f32 v{AC+10}, -s{sY1}, v{T+1}, v{AC+10}')
    a('s_branch KS_edge')
    a('KS_batch_next:')
    a(f's_add_u32 s{sJ}, s{sJ}, 64')
    a('s_branch KS_batch')
    a('KS_chunk_next:')
    a(f's_add_u32 s{sC}, s{sC}, 1')
    a(f's_cmp_lt_u32 s{sC}, {NCH}')
    a('s_cbranch_scc1 KS_chunk')
    for f in range(11): a(f'ds_write_b32 v{vPB}, v{AC+f} offset:{256*f}')
    for g in range(4): a(f'v_mov_b32 v{G0+g}, 0')
    a(f's_mov_b32 s{sK}, 0')
    a('KS_g0:')
    a(f's_lshl_b32 s{sTmp}, s{sK}, 2')
    a(f's_add_u32 s{sTmp}, s{sTmp}, s{sPB}')
    a(f'v_mov_b32 v{T}, s{sTmp}')
    a(f's_lshl_b32 s{sTmp2}, s{sK}, 7')
    for u in range(8):
        a(f'ds_read_b32 v{AV+u}, v{T} offset:{4*u}')
        a(f'buffer_load_ushort v{AV+8+u}, v{vL2}, s[{sW0}:{sW0+3}], s{sTmp2} offen offset:{128*u}')
    a('s_waitcnt vmcnt(0) lgkmcnt(0)')
    for u in range(8):
        a(f'v_lshlrev_b32 v{AV+8+u}, 16, v{AV+8+u}')
        a(f'v_fmac_f32 v{G0}, v{AV+u}, v{AV+8+u}')
    a(f's_add_u32 s{sK}, s{sK}, 8')
    a(f's_cmp_lt_u32 s{sK}, 128')
    a('s_cbranch_scc1 KS_g0')
    a(f's_mov_b32 s{sK}, 0')
    a('KS_g1:')
    a(f's_lshr_b32 s{sTmp}, s{sK}, 6')
    a(f's_mul_i32 s{sTmp}, s{sTmp}, 768')
    a(f's_and_b32 s{sTmp2}, s{sK}, 63')
    a(f's_lshl_b32 s{sTmp2}, s{sTmp2}, 2')
    a(f's_add_u32 s{sTmp}, s{sTmp}, s{sTmp2}')
    a(f's_add_u32 s{sTmp}, s{sTmp}, s{sPB}')
    a(f'v_mov_b32 v{T}, s{sTmp}')
    a(f's_lshl_b32 s{sTmp2}, s{sK}, 7')
    for u in range(4):
        for j in range(3): a(f'ds_read_b32 v{AV+3*u+j}, v{T} offset:{512 + 256*j + 4*u}')
        a(f'buffer_load_ushort v{AV+12+u}, v{vL2}, s[{sW1}:{sW1+3}], s{sTmp2} offen offset:{128*u}')
    a('s_waitcnt vmcnt(0) lgkmcnt(0)')
    for u in range(4):
        a(f'v_lshlrev_b32 v{AV+12+u}, 16, v{AV+12+u}')
        for j in range(3): a(f'v_fmac_f32 v{G1+j}, v{AV+3*u+j}, v{AV+12+u}')
    a(f's_add_u32 s{sK}, s{sK}, 4')
    a(f's_cmp_lt_u32 s{sK}, 192')
    a('s_cbranch_scc1 KS_g1')
    a(f'v_mul_f32 v{T}, 0xbfb8aa3b, v{G0}')
    a(f'v_exp_f32 v{T}, v{T}')
    a(f'v_add_f32 v{T}, 1.0, v{T}')
    a(f'v_rcp_f32 v{T}, v{T}')
    for j in range(3): a(f'v_mul_f32 v{G1+j}, v{T}, v{G1+j}')
    for g in range(4):
        a(f'v_cvt_pk_bf16_f32 v{G0+g}, v{G0+g}, v{G0+g}')
        a(f'buffer_store_short v{G0+g}, v{vL2}, s[12:15], s{sRow} offen offset:{128*g}')
    a(f's_add_u32 s{sN}, s{sN}, 8')
    a('s_branch KS_node')

def gen_k2(a, opt):
    D = opt.get('D', 2)
    set_map(D)
    OPT.update(opt)
    a(f'{KN}_kernel:')
    prologue(a, opt)
    a(f'v_mov_b32 v{vSBase}, v226')
    a(f's_mov_b32 s{sPfQ}, s{sWave}')
    a(f'v_readlane_b32 s{sPfT}, v{vSBase}, s{sWave}')
    a(f'v_readlane_b32 s{sT}, v{vSteps}, s{sWave}')
    a(f'v_mov_b32 v{vHi}, 0xffff0000')
    a(f'v_mov_b32 v{vCtr}, {L_CTR}')
    a(f'v_mov_b32 v{vOne}, 1')
    a(f's_add_u32 s{sPfEnd}, s{sPfT}, s{sT}')
    a('s_mov_b64 exec, 1')
    a(f'ds_add_rtn_u32 v{vGrab}, v{vCtr}, v{vOne}')
    a('s_mov_b64 exec, -1')
    a('s_waitcnt lgkmcnt(0)')
    grab_result(a)
    for sg in range(D):
        rec_read(a, sg)
        a('s_waitcnt lgkmcnt(0)')
        grab_result(a)
        issue_loads(a, sg, opt)
    for k in range(44): a(f'v_mov_b32 v{ACC+k}, 0')
    for sg in range(D):
        a(f'K2_s{sg}:')
        step(a, sg, D, opt)
        a(f's_cmp_lt_i32 s{sCur}, 0')
        a(f's_cbranch_scc0 K2_fl{sg}')
        if sg == D - 1: a('s_branch K2_s0')
    for sg in range(D):
        a(f'K2_fl{sg}:')
        flush(a, opt)
        a(f's_branch K2_s{(sg+1) % D}')
    for f in DEFER: f(a)
    a('K2_slow:')
    slow_path(a, opt)
    a('K2_end:')
    if opt.get('ts'):
        stamp(a, opt, 6, 255)
        a('s_waitcnt vmcnt(0)')
        stamp(a, opt, 7, 255)
        a(f'v_writelane_b32 v255, s{sNQ}, 8')
        a(f'v_writelane_b32 v255, s45, 9')
        a('s_getreg_b32 s45, hwreg(HW_REG_XCC_ID)')
        a(f'v_writelane_b32 v255, s45, 10')
        a('s_getreg_b32 s45, hwreg(HW_REG_HW_ID)')
        a(f'v_writelane_b32 v255, s45, 11')
        stamp_out(a, opt, 255, 254, sWave, TS_OFF, 8)
        a('K2_end2:')
    a('s_endpgm')
    return 256, 102
```

```python
import sys
from asmlib import Asm

KN = 'gather_scatter__tensor_product_equiv_equiformer__graph'
N = 50000; E = 800000
NCH = 224; CH = 3584; BLK1 = 896; NPB = 196; NB = 256
NPREP = 15
REC_OFF = 0; TAB_OFF = 0x940000; WIMG_OFF = 0x980000; WS_USED = 0x9A0000
MAGIC = 85599
TS_OFF = 0x1000000
def stamp(a, opt, idx, vreg, sreg=98):
    if not opt.get('ts'): return
    a(f's_memrealtime s[{sreg}:{sreg+1}]')
    a('s_waitcnt lgkmcnt(0)')
    a(f'v_writelane_b32 v{vreg}, s{sreg}, {idx}')
def stamp_out(a, opt, vreg, vtmp, wavesgpr, base, nw, srdreg=16):
    if not opt.get('ts'): return
    a(f's_mul_i32 s98, s2, {nw}')
    a(f's_add_u32 s98, s98, s{wavesgpr}')
    a(f's_lshl_b32 s98, s98, 6')
    a(f's_add_u32 s98, s98, {base}')
    a(f'v_mbcnt_lo_u32_b32 v{vtmp}, -1, 0')
    a(f'v_mbcnt_hi_u32_b32 v{vtmp}, -1, v{vtmp}')
    a(f'v_cmp_gt_u32 vcc, 16, v{vtmp}')
    a(f'v_lshlrev_b32 v{vtmp}, 2, v{vtmp}')
    a(f's_and_saveexec_b64 s[100:101], vcc')
    a(f's_mov_b32 s{srdreg+2}, 0x2000000')
    a(f'buffer_store_dword v{vreg}, v{vtmp}, s[{srdreg}:{srdreg+3}], s98 offen')
    a(f's_mov_b64 exec, s[100:101]')
L_CNT = 0; L_BINS = 1024; L_FLAG = 1280; L_SORT = 2048; L_BASE = 3072
L_RECA = 4096; L_RECB = 36864; L_W = 53248; L_P = 94208
PS = 1440; PJS = 384
LDS2 = L_P + 8 * 4 * PS
NULLSTEP = 511

def srd(a, r, size):
    a(f's_and_b32 s{r+1}, s{r+1}, 0xffff')
    a(f's_mov_b32 s{r+2}, {size}')
    a(f's_mov_b32 s{r+3}, 0x20000')

def wave_scan(a, v):
    for sh in (1, 2, 4, 8):
        a(f'v_add_u32_dpp v{v}, v{v}, v{v} row_shr:{sh} row_mask:0xf bank_mask:0xf bound_ctrl:1')
    a(f'v_add_u32_dpp v{v}, v{v}, v{v} row_bcast:15 row_mask:0xa bank_mask:0xf')
    a(f'v_add_u32_dpp v{v}, v{v}, v{v} row_bcast:31 row_mask:0xc bank_mask:0xf')

def gen_k1(a, opt):
    a(f'k1_sort_kernel:')
    a(f's_cmp_ge_u32 s2, {NCH}')
    a('s_cbranch_scc1 K1_prep')
    if opt.get('ts'):
        a('v_mov_b32 v70, 0'); a('v_lshrrev_b32 v71, 6, v0'); a('s_nop 1'); a('v_readfirstlane_b32 s40, v71')
    stamp(a, opt, 0, 70)
    a('s_load_dwordx2 s[12:13], s[0:1], 8')
    a('s_load_dwordx2 s[8:9], s[0:1], 24')
    a('s_load_dwordx2 s[4:5], s[0:1], 32')
    a('s_load_dwordx2 s[16:17], s[0:1], 88')
    if opt.get('pf'):
        a('s_load_dwordx2 s[40:41], s[0:1], 0')
        a('s_load_dwordx2 s[44:45], s[0:1], 16')
    a('v_lshlrev_b32 v1, 2, v0')
    a('v_mov_b32 v2, 0')
    a('v_cmp_gt_u32 vcc, 256, v0')
    a('s_and_saveexec_b64 s[26:27], vcc')
    a('s_cbranch_execz K1_z')
    a('ds_write_b32 v1, v2')
    a('K1_z:')
    a('s_mov_b64 exec, s[26:27]')
    a(f's_mul_i32 s3, s2, {CH}')
    a('v_add_u32 v3, s3, v1')
    a('v_lshlrev_b32 v4, 2, v3')
    a('v_mul_u32_u24 v5, 6, v3')
    a(f's_mov_b32 s20, {E}')
    a(f's_mov_b32 s21, {MAGIC}')
    a('s_mov_b32 s22, 0xffff0000')
    a('s_waitcnt lgkmcnt(0)')
    srd(a, 4, E * 4); srd(a, 8, E * 4); srd(a, 12, E * 6); srd(a, 16, WS_USED)
    if opt.get('pf'): srd(a, 40, N * 512); srd(a, 44, E * 32)
    a('v_cmp_gt_u32 vcc, s20, v3')
    a('s_and_saveexec_b64 s[26:27], vcc')
    a('s_mov_b64 s[28:29], exec')
    a('s_cbranch_execz K1_a')
    a('buffer_load_dwordx4 v[8:11], v4, s[4:7], 0 offen')
    a('buffer_load_dwordx4 v[12:15], v4, s[8:11], 0 offen')
    a('buffer_load_dwordx4 v[16:19], v5, s[12:15], 0 offen')
    a('buffer_load_dwordx2 v[20:21], v5, s[12:15], 0 offen offset:16')
    a('K1_a:')
    a('s_mov_b64 exec, s[26:27]')
    npf = opt.get('pf', 0)
    if npf:
        a(f's_mul_i32 s36, s2, {BLK1}')
        a('v_add_u32 v68, s36, v0')
        a('v_lshlrev_b32 v68, 7, v68')
        a('buffer_load_dword v69, v68, s[40:43], 0 offen')
        if npf > 1: a('buffer_load_dword v70, v68, s[44:47], 0 offen')
    a('s_waitcnt lgkmcnt(0)')
    a('s_barrier')
    stamp(a, opt, 1, 70)
    a('s_mov_b64 exec, s[28:29]')
    a('s_cbranch_execz K1_b')
    a('v_mov_b32 v6, 1')
    a(f's_waitcnt vmcnt({3 + opt.get("pf", 0)})')
    stamp(a, opt, 2, 70)
    for k in range(4):
        a(f'v_mul_u32_u24 v{24+k}, s21, v{8+k}')
    for k in range(4):
        a(f'v_lshrrev_b32 v{24+k}, 24, v{24+k}')
    for k in range(4):
        a(f'v_mul_u32_u24 v{28+k}, {NPB}, v{24+k}')
        a(f'v_lshlrev_b32 v{24+k}, 2, v{24+k}')
    for k in range(4):
        a(f'ds_add_rtn_u32 v{35+4*k}, v{24+k}, v6')
    for k in range(4):
        a(f'v_sub_u32 v{28+k}, v{8+k}, v{28+k}')
        a(f'v_add_u32 v7, {k}, v3')
        a(f'v_lshl_or_b32 v{34+4*k}, v{28+k}, 24, v7')
    a(f's_waitcnt vmcnt({opt.get("pf", 0)})')
    a('v_lshl_or_b32 v32, v16, 16, v12')
    a('v_alignbit_b32 v33, v17, v16, 16')
    a('v_and_or_b32 v36, v17, s22, v13')
    a('v_mov_b32 v37, v18')
    a('v_lshl_or_b32 v40, v19, 16, v14')
    a('v_alignbit_b32 v41, v20, v19, 16')
    a('v_and_or_b32 v44, v20, s22, v15')
    a('v_mov_b32 v45, v21')
    a('K1_b:')
    a('s_mov_b64 exec, s[26:27]')
    a('s_waitcnt lgkmcnt(0)')
    a('s_barrier')
    stamp(a, opt, 3, 70)
    a('v_and_b32 v48, 63, v0')
    a('v_lshlrev_b32 v48, 4, v48')
    a('ds_read_b128 v[52:55], v48')
    a('s_waitcnt lgkmcnt(0)')
    a('v_add_u32 v56, v52, v53')
    a('v_add_u32 v57, v56, v54')
    a('v_add_u32 v58, v57, v55')
    a('v_mov_b32 v59, v58')
    wave_scan(a, 59)
    a('v_sub_u32 v60, v59, v58')
    a('v_add_u32 v61, v60, v52')
    a('v_add_u32 v62, v60, v56')
    a('v_add_u32 v63, v60, v57')
    a('ds_write_b128 v48, v[60:63] offset:1024')
    a('v_cmp_gt_u32 vcc, 64, v0')
    a('s_and_saveexec_b64 s[30:31], vcc')
    a('s_cbranch_execz K1_t')
    for k in range(4):
        a(f'v_lshl_or_b32 v{64+k}, v{52+k}, 16, v{60+k}')
    a('s_lshl_b32 s23, s2, 10')
    a(f's_add_u32 s23, s23, {TAB_OFF}')
    a('buffer_store_dwordx4 v[64:67], v48, s[16:19], s23 offen')
    a('K1_t:')
    a('s_mov_b64 exec, s[28:29]')
    a('s_cbranch_execz K1_w')
    for k in range(4):
        a(f'ds_read_b32 v{8+k}, v{24+k} offset:1024')
    for k in range(4):
        a(f's_waitcnt lgkmcnt({3-k})') if k == 0 else None
    a('s_waitcnt lgkmcnt(0)')
    for k in range(4):
        a(f'v_add_u32 v{8+k}, v{8+k}, v{35+4*k}')
        a(f'v_lshlrev_b32 v{8+k}, 4, v{8+k}')
        a(f'ds_write_b96 v{8+k}, v[{32+4*k}:{34+4*k}] offset:2048')
    a('K1_w:')
    a('s_mov_b64 exec, -1')
    a('s_waitcnt lgkmcnt(0)')
    a('s_barrier')
    a('v_lshlrev_b32 v8, 4, v0')
    for k in range(4):
        a(f'ds_read_b96 v[{32+4*k}:{34+4*k}], v8 offset:{2048 + k*BLK1*16}')
    a('v_mul_u32_u24 v9, 12, v0')
    for k in range(4):
        a(f's_mul_i32 s{32+k}, s2, {CH*12}')
        if k: a(f's_add_u32 s{32+k}, s{32+k}, {k*BLK1*12}')
    pol = ['', ' nt', ' sc1', ' sc0 sc1', ' sc1 nt', ' sc0 sc1 nt'][opt.get('k1pol', 0)]
    for k in range(4):
        a(f's_waitcnt lgkmcnt({3-k})')
        a(f'buffer_store_dwordx3 v[{32+4*k}:{34+4*k}], v9, s[16:19], s{32+k} offen{pol}')
    a('K1_done:')
    if opt.get('ts'):
        a('s_mov_b64 exec, -1')
        stamp(a, opt, 4, 70)
        a('s_waitcnt vmcnt(0)')
        stamp(a, opt, 5, 70)
        stamp_out(a, opt, 70, 71, 40, TS_OFF + 0x100000, 14)
    a('s_endpgm')
    a('K1_prep:')
    a(f's_sub_u32 s3, s2, {NCH}')
    a(f's_cmp_ge_u32 s3, {NPREP}')
    a('s_cbranch_scc1 K1_done2')
    a('s_load_dwordx2 s[4:5], s[0:1], 40')
    a('s_load_dwordx4 s[20:23], s[0:1], 48')
    a('s_load_dwordx2 s[16:17], s[0:1], 88')
    a(f's_mul_i32 s3, s3, {BLK1}')
    a('v_add_u32 v1, s3, v0')
    a('s_nop 0')
    a('v_readfirstlane_b32 s24, v1')
    a('s_cmp_ge_u32 s24, 12800')
    a('s_cbranch_scc1 K1_done2')
    a('s_lshr_b32 s24, s24, 8')
    a('v_lshrrev_b32 v2, 2, v1')
    a('v_and_b32 v2, 63, v2')
    a('v_and_b32 v3, 3, v1')
    a('v_and_b32 v4, 15, v2')
    a('v_lshrrev_b32 v5, 4, v2')
    a('s_waitcnt lgkmcnt(0)')
    srd(a, 16, WS_USED)
    a('s_cmp_ge_u32 s24, 10')
    a('s_cbranch_scc1 K1_pw')
    srd(a, 4, 16 * 320 * 2)
    a('s_lshr_b32 s25, s24, 1')
    a('s_and_b32 s26, s24, 1')
    a('s_lshl_b32 s25, s25, 6')
    a('s_lshl_b32 s26, s26, 1')
    a('s_add_u32 s25, s25, s26')
    a('v_lshlrev_b32 v6, 2, v4')
    a('v_lshrrev_b32 v7, 1, v5')
    a('v_add3_u32 v6, v6, v7, s25')
    a('v_and_b32 v7, 1, v5')
    a('v_lshlrev_b32 v7, 3, v7')
    a('v_lshl_add_u32 v7, v3, 1, v7')
    a('v_mul_u32_u24 v7, 320, v7')
    a('v_add_lshl_u32 v6, v6, v7, 1')
    a('buffer_load_ushort v8, v6, s[4:7], 0 offen')
    a('buffer_load_ushort v9, v6, s[4:7], 0 offen offset:640')
    a('s_branch K1_pst')
    a('K1_pw:')
    a('s_sub_u32 s25, s24, 10')
    a('s_cmp_ge_u32 s25, 16')
    a('s_cbranch_scc1 K1_pw1')
    a('s_mov_b32 s4, s20')
    a('s_mov_b32 s5, s21')
    srd(a, 4, 128 * 64 * 2)
    a('s_branch K1_pw2')
    a('K1_pw1:')
    a('s_sub_u32 s25, s25, 16')
    a('s_mov_b32 s4, s22')
    a('s_mov_b32 s5, s23')
    srd(a, 4, 192 * 64 * 2)
    a('K1_pw2:')
    a('s_lshr_b32 s26, s25, 2')
    a('s_and_b32 s27, s25, 3')
    a('s_lshl_b32 s26, s26, 5')
    a('s_lshl_b32 s27, s27, 2')
    a('v_lshrrev_b32 v6, 2, v4')
    a('v_lshlrev_b32 v6, 4, v6')
    a('v_and_b32 v7, 3, v4')
    a('v_add3_u32 v6, v6, v7, s27')
    a('v_lshlrev_b32 v7, 3, v5')
    a('v_lshl_add_u32 v7, v3, 1, v7')
    a('v_add_u32 v7, s26, v7')
    a('v_lshlrev_b32 v7, 6, v7')
    a('v_add_lshl_u32 v6, v6, v7, 1')
    a('buffer_load_ushort v8, v6, s[4:7], 0 offen')
    a('buffer_load_ushort v9, v6, s[4:7], 0 offen offset:128')
    a('K1_pst:')
    a('v_lshlrev_b32 v1, 2, v1')
    a(f's_mov_b32 s28, {WIMG_OFF}')
    a('s_waitcnt vmcnt(0)')
    a('v_lshl_or_b32 v8, v9, 16, v8')
    a('buffer_store_dword v8, v1, s[16:19], s28 offen')
    a('K1_done2:')
    a('s_endpgm')

def desc(name, vgpr, sgpr):
    return f'''.amdhsa_kernel {name}
  .amdhsa_next_free_vgpr {vgpr}
  .amdhsa_next_free_sgpr {sgpr}
  .amdhsa_accum_offset {(vgpr + 3) // 4 * 4}
  .amdhsa_group_segment_fixed_size 0
  .amdhsa_kernarg_size 96
  .amdhsa_user_sgpr_count 2
  .amdhsa_user_sgpr_kernarg_segment_ptr 1
  .amdhsa_system_sgpr_workgroup_id_x 1
.end_amdhsa_kernel
'''

def build(opt):
    from gen_k2 import gen_k2
    header = open('cdna_kernels/%s.s.ref' % KN).read().split('; Override launch')[0]
    out = header
    out += f'; Two launches: k1 bins the edges by destination bucket (and lays out the weights), k2 aggregates per node.\n'
    out += f'; @launch kernel=k1_sort_kernel grid=({NCH+NPREP},1,1) block=({BLK1},1,1) lds={2048 + CH*16}\n'
    if not opt.get('k1only'):
        out += f'; @launch kernel={KN}_kernel grid=({NB},1,1) block=(512,1,1) lds={LDS2}\n'
    out += '.amdgcn_target "amdgcn-amd-amdhsa--gfx950"\n.text\n'
    st = {}
    a = Asm(); gen_k1(a, opt)
    out += '.globl k1_sort_kernel\n.p2align 8\n.type k1_sort_kernel,@function\n' + a.finalize(st)
    a = Asm(); nv, ns = gen_k2(a, opt)
    out += f'.globl {KN}_kernel\n.p2align 8\n.type {KN}_kernel,@function\n' + a.finalize(st)
    print('k2 nops inserted', st, file=sys.stderr)
    out += '.section .rodata,"a"\n.p2align 6\n' + desc('k1_sort_kernel', 72, 102 if opt.get('ts') else 48) + '.p2align 6\n' + desc(KN + '_kernel', nv, ns)
    return out

if __name__ == '__main__':
    opt = {}
    outp = None
    for x in sys.argv[1:]:
        if '=' in x:
            k, v = x.split('=', 1); opt[k] = int(v, 0)
        else: outp = x
    s = build(opt)
    open(outp or 'cdna_kernels/%s.s' % KN, 'w').write(s)
```

```python
from gen import *

ACC = 0; R = 44; RAD = 84; XS = 124
AS = YP = F = TMP = Y = NA = None
def set_map(D):
    global AS, YP, F, TMP, Y, NA
    AS = XS + 16*D; YP = AS + 4*D; F = YP + 4*D; TMP = F + 16; Y = TMP + 8
    NA = 8 if D == 2 else 6
vLaneX = 228; vLaneMask = 229; vRecA = 230; vRecB = 231; vSteps = 232; vEN = 233; vXA0 = 234; vXA1 = 235; vEA = 236
vTa = 237; vTb = 238; vPW = 239; vPR0 = 240; vPR1 = 241; vWR = 242; vOut0 = 243; vOut1 = 244; vOrd = 245
vLane = 246; vTid = 247; vT = 248
vHi = 248; vSBase = 249; vGrab = 250; vCtr = 246; vOne = 247
sWave = 20; sPfT = 21; sPfEnd = 22; sPfQ = 23; sNQ = 24; sCur = 25; s512 = 26; sHi = 27; sOffA = 28; sOffB = 29; sNode = 30; sT = 31
sM1 = 32; sM2 = 34; sM3 = 36; sSave = 38; sMask = 40; sOvf = 82; sU = 84
OPT = {}
POL = ['', ' nt', ' sc1', ' sc0 sc1', ' sc1 nt', ' sc0 sc1 nt', ' sc0']
YSEP = ((220, 222, 224), (226, 248, 250))
sThr = 3
sTag = 40
L_CTR = L_FLAG + 16
L_QI = 1344
COST_STEP = 8; COST_FLUSH = 11

def pr(x): return f'v[{x}:{x+1}]'
def q4(x): return f'v[{x}:{x+3}]'

def lane_consts(a, opt):
    i_, g_ = 208, 209
    a(f'v_and_b32 v{i_}, 15, v{vLane}')
    a(f'v_lshrrev_b32 v{g_}, 4, v{vLane}')
    a(f'v_lshlrev_b32 v{vLaneX}, 3, v{i_}')
    a(f'v_lshrrev_b32 v{210}, 1, v{g_}')
    a(f'v_and_b32 v{211}, 1, v{i_}')
    a(f'v_cmp_eq_u32 vcc, v{210}, v{211}')
    a(f'v_and_b32 v{212}, 1, v{g_}')
    a(f'v_lshlrev_b32 v{212}, 4, v{212}')
    a(f'v_mov_b32 v{213}, 2.0')
    a(f'v_cndmask_b32 v{vLaneMask}, v{213}, v{212}, vcc')
    a(f'v_lshlrev_b32 v{vRecA}, 4, v{g_}')
    a(f'v_add_u32 v{vRecA}, {L_RECA}, v{vRecA}')
    a(f'v_lshrrev_b32 v{vRecB}, 1, v{i_}')
    a(f'v_lshlrev_b32 v{vRecB}, 2, v{vRecB}')
    a(f'v_add_u32 v{vRecB}, {L_RECB}, v{vRecB}')
    a(f's_mul_i32 s{sNode}, s{sWave}, {4*PS}')
    a(f's_add_u32 s{sNode}, s{sNode}, {L_P}')
    a(f'v_mul_u32_u24 v{vPW}, {PS}, v{g_}')
    a(f'v_add3_u32 v{vPW}, v{vPW}, v{vLaneX}, s{sNode}')
    a(f'v_lshrrev_b32 v{210}, 2, v{i_}')
    a(f'v_mul_u32_u24 v{vPR0}, {PS}, v{210}')
    a(f'v_lshlrev_b32 v{211}, 4, v{g_}')
    a(f'v_add3_u32 v{vPR0}, v{vPR0}, v{211}, s{sNode}')
    a(f'v_and_b32 v{211}, 3, v{i_}')
    a(f'v_min_u32 v{212}, 2, v{211}')
    a(f'v_mul_u32_u24 v{212}, {PJS}, v{212}')
    a(f'v_add_u32 v{212}, 256, v{212}')
    a(f'v_add_u32 v{vPR1}, v{vPR0}, v{212}')
    a(f'v_lshlrev_b32 v{vWR}, 4, v{vLane}')
    a(f'v_add_u32 v{vWR}, {L_W}, v{vWR}')
    a(f'v_lshlrev_b32 v{212}, 5, v{g_}')
    a(f'v_lshl_add_u32 v{vOut0}, v{211}, 3, v{212}')
    a(f'v_lshl_add_u32 v{vOut1}, v{211}, 7, v{212}')
    a(f'v_add_u32 v{vOut1}, 128, v{vOut1}')
    a(f'v_cmp_eq_u32 vcc, 3, v{211}')
    a(f'v_cndmask_b32 v{vOut1}, v{vOut1}, v{213}, vcc')
    a(f'v_lshlrev_b32 v{vOrd}, 2, v{210}')
    a(f'v_add_u32 v{vOrd}, {L_SORT}, v{vOrd}')
    a(f's_mov_b32 s{s512}, 512')
    a(f's_mov_b32 s{sHi}, 0xffff0000')
    a(f's_mul_i32 s{sNode}, s2, {NPB*512}')
    for m, pat in ((sM1, 0x22222222), (sM2, 0x44444444), (sM3, 0x88888888)):
        a(f's_mov_b32 s{m}, {pat}'); a(f's_mov_b32 s{m+1}, {pat}')

def prologue(a, opt):
    a(f's_cmp_ge_u32 s2, {NB}')
    a('s_cbranch_scc1 K2_end2' if opt.get('ts') else 's_cbranch_scc1 K2_end')
    if opt.get('xcdmap', 1):
        a('s_and_b32 s3, s2, 7')
        a('s_lshl_b32 s3, s3, 5')
        a('s_lshr_b32 s2, s2, 3')
        a('s_add_u32 s2, s2, s3')
    a('s_load_dwordx2 s[4:5], s[0:1], 0')
    a('s_load_dwordx2 s[8:9], s[0:1], 16')
    a('s_load_dwordx2 s[12:13], s[0:1], 72')
    a('s_load_dwordx2 s[16:17], s[0:1], 88')
    a(f'v_mov_b32 v{vTid}, v0')
    a(f'v_and_b32 v{vLane}, 63, v0')
    a(f'v_lshrrev_b32 v{vT}, 6, v0')
    a(f'v_lshlrev_b32 v{vT+1}, 2, v0')
    a(f'v_readfirstlane_b32 s{sWave}, v{vT}')
    if opt.get('ts'): a('v_mov_b32 v255, 0')
    stamp(a, opt, 0, 255)
    a(f'v_mov_b32 v200, 0')
    a(f'v_cmp_gt_u32 vcc, 336, v{vTid}')
    a(f's_and_saveexec_b64 s[{sSave}:{sSave+1}], vcc')
    a('s_cbranch_execz K2_z')
    a(f'ds_write_b32 v{vT+1}, v200')
    a('K2_z:')
    a(f's_mov_b64 exec, s[{sSave}:{sSave+1}]')
    a('v_mov_b32 v200, 0xffff'); a('v_mov_b32 v201, 0'); a('v_mov_b32 v202, 0xffff'); a('v_mov_b32 v203, 0')
    for k in range(4): a(f'v_mov_b32 v{204+k}, 2.0')
    a(f'v_lshlrev_b32 v{vT+2}, 4, v{vTid}')
    for k in range(4): a(f'ds_write_b128 v{vT+2}, v[200:203] offset:{L_RECA + k*8192}')
    for k in range(2): a(f'ds_write_b128 v{vT+2}, v[204:207] offset:{L_RECB + k*8192}')
    a(f'v_lshrrev_b32 v{vT+3}, 4, v{vTid}')
    a('s_lshl_b32 s3, s2, 2')
    a(f'v_lshl_add_u32 v{vT+4}, v{vT+3}, 10, s3')
    a(f'v_lshlrev_b32 v{vT+5}, 4, v{vLane}')
    a('s_waitcnt lgkmcnt(0)')
    srd(a, 4, 0 if opt.get('nomem') else N * 512); srd(a, 8, 0 if opt.get('nomem') or opt.get('noea') else E * 32); srd(a, 12, N * 512); srd(a, 16, WS_USED)
    TB = 124
    for k in range(7):
        a(f's_mov_b32 s{sU+k}, {TAB_OFF + k*32768}')
    for k in range(7):
        a(f'buffer_load_dword v{TB+k}, v{vT+4}, s[16:19], s{sU+k} offen')
    lane_consts(a, opt)
    vJ = 152; vG = 153; CN = 154; AD = 161
    a(f'v_and_b32 v{vJ}, 15, v{vTid}')
    a(f'v_mul_u32_u24 v{vG}, {CH*12}, v{vT+3}')
    a(f'v_add_u32 v168, 16, v{vJ}')
    a(f'v_add_u32 v169, 32, v{vJ}')
    a(f's_mov_b64 s[{sOvf}:{sOvf+1}], 0')
    for k in range(7): a(f's_mov_b32 s{sU+k}, {REC_OFF + k*32*CH*12}')
    a('s_waitcnt vmcnt(0)')
    stamp(a, opt, 1, 255)
    for k in range(7):
        a(f'v_lshrrev_b32 v{CN+k}, 16, v{TB+k}')
        a(f'v_and_b32 v{AD+k}, 0xffff, v{TB+k}')
        a(f'v_add_u32 v{AD+k}, v{AD+k}, v{vJ}')
        a(f'v_mad_u32_u24 v{AD+k}, v{AD+k}, 12, v{vG}')
        a(f'v_cmp_gt_u32 s[{sMask+2*k}:{sMask+2*k+1}], v{CN+k}, v{vJ}')
        a(f'v_cmp_gt_u32 s[{sMask+14+2*k}:{sMask+14+2*k+1}], v{CN+k}, v168')
        a(f'v_cmp_gt_u32 s[{sMask+28+2*k}:{sMask+28+2*k+1}], v{CN+k}, v169')
        a(f'v_cmp_lt_u32 vcc, 48, v{CN+k}')
        a(f's_or_b64 s[{sOvf}:{sOvf+1}], s[{sOvf}:{sOvf+1}], vcc')
    def rec_loads(beta):
        for k in range(7):
            u = beta*7 + k
            a(f's_mov_b64 exec, s[{sMask+2*u}:{sMask+2*u+1}]')
            a(f'buffer_load_dwordx3 v[{4*u}:{4*u+2}], v{AD+k}, s[16:19], s{sU+k} offen offset:{beta*192}')
        a('s_mov_b64 exec, -1')
    rec_loads(0); rec_loads(1)
    sB2 = sU + 12
    a(f's_mov_b64 s[{sB2}:{sB2+1}], 0')
    for k in range(7):
        a(f's_or_b64 s[{sB2}:{sB2+1}], s[{sB2}:{sB2+1}], s[{sMask+28+2*k}:{sMask+28+2*k+1}]')
    a('s_cbranch_scc0 K2_nb2a')
    rec_loads(2)
    a('K2_nb2a:')
    IMG = 124
    a(f'v_lshlrev_b32 v{vT+5}, 4, v{vLane}')
    for u in range(7):
        a(f's_add_u32 s{sU+u}, s{sWave}, {8*u}')
        if u == 6:
            a(f's_min_u32 s{sU+u}, s{sU+u}, 49')
        a(f's_lshl_b32 s{sU+u}, s{sU+u}, 10')
        a(f's_add_u32 s{sT}, s{sU+u}, {WIMG_OFF}')
        a(f'buffer_load_dwordx4 {q4(IMG+4*u)}, v{vT+5}, s[16:19], s{sT} offen')
    if opt.get('tlb'):
        a(f'v_mul_u32_u24 v208, {opt.get("tlbs", 400000)}, v{vLane}')
        a('buffer_load_dword v209, v208, s[4:7], 0 offen')
        a('buffer_load_dword v210, v208, s[8:11], 0 offen')
    a('s_waitcnt lgkmcnt(0)')
    a('s_barrier')
    a(f's_cmp_eq_u64 s[{sOvf}:{sOvf+1}], 0')
    a('s_cbranch_scc1 K2_novf')
    a(f'v_mov_b32 v{vT}, {L_FLAG}')
    a(f'v_mov_b32 v{vT+1}, 1')
    a(f'ds_write_b32 v{vT}, v{vT+1}')
    a('K2_novf:')
    a(f'v_mov_b32 v170, 1')
    a(f's_waitcnt vmcnt({7 + (2 if opt.get("tlb") else 0)})')
    stamp(a, opt, 2, 255)
    def hist(beta):
        for k in range(7):
            u = beta*7 + k
            a(f's_mov_b64 exec, s[{sMask+2*u}:{sMask+2*u+1}]')
            a(f'v_lshrrev_b32 v{161+k}, 22, v{4*u+2}')
            a(f'v_and_b32 v{161+k}, 0x3fc, v{161+k}')
            a(f'ds_add_rtn_u32 v{4*u+3}, v{161+k}, v170 offset:{L_CNT}')
        a('s_mov_b64 exec, -1')
    hist(0); hist(1)
    a(f's_cmp_eq_u64 s[{sB2}:{sB2+1}], 0')
    a('s_cbranch_scc1 K2_nb2b')
    hist(2)
    a('K2_nb2b:')
    a('s_waitcnt lgkmcnt(0)')
    a('s_barrier')
    stamp(a, opt, 3, 255)
    a('s_waitcnt vmcnt(0)')
    a(f'v_lshlrev_b32 v{vT+5}, 4, v{vLane}')
    a(f's_mov_b32 s{sU+8}, {L_P}')
    a(f's_mov_b32 s{sU+9}, {L_W - 10240}')
    for u in range(7):
        a(f's_cmp_lt_u32 s{sU+u}, 10240')
        a(f's_cselect_b32 s{sT}, s{sU+8}, s{sU+9}')
        a(f's_add_u32 s{sT}, s{sT}, s{sU+u}')
        a(f'v_add_u32 v{vT+6}, s{sT}, v{vT+5}')
        a(f'ds_write_b128 v{vT+6}, {q4(124+4*u)}')
    a(f'v_mov_b32 v{vT}, {L_FLAG}')
    a(f'ds_read_b32 v{vT+1}, v{vT}')
    a('s_waitcnt lgkmcnt(0)')
    a(f'v_readfirstlane_b32 s{sT}, v{vT+1}')
    a(f's_cmp_lg_u32 s{sT}, 0')
    a('s_cbranch_scc1 K2_slow')
    a(f's_cmp_lg_u32 s{sWave}, 0')
    a('s_cbranch_scc1 K2_p6')
    DG = 152; KY = 156; RK = 160; PO = 164; SO = 168
    a(f'v_lshlrev_b32 v{vT}, 4, v{vLane}')
    a(f'ds_read_b128 {q4(DG)}, v{vT} offset:{L_CNT}')
    a(f'v_cmp_gt_u32 vcc, 49, v{vLane}')
    a(f's_mov_b64 s[{sU}:{sU+1}], vcc')
    a(f'v_lshlrev_b32 v{vT+1}, 2, v{vLane}')
    for k in range(4): a(f'v_mov_b32 v{KY+k}, 0'); a(f'v_mov_b32 v{RK+k}, 0')
    a('s_waitcnt lgkmcnt(0)')
    a(f's_mov_b64 exec, s[{sU}:{sU+1}]')
    for k in range(4):
        a(f'v_min_u32 v{KY+k}, 63, v{DG+k}')
        a(f'v_sub_u32 v{KY+k}, 63, v{KY+k}')
        a(f'v_lshlrev_b32 v{KY+k}, 2, v{KY+k}')
        a(f'ds_add_rtn_u32 v{RK+k}, v{KY+k}, v170 offset:{L_BINS}')
    a('s_mov_b64 exec, -1')
    a(f'ds_read_b32 v{vT+2}, v{vT+1} offset:{L_BINS}')
    a('s_waitcnt lgkmcnt(0)')
    a(f'v_mov_b32 v{vT+3}, v{vT+2}')
    wave_scan(a, vT+3)
    a(f'v_sub_u32 v{vT+3}, v{vT+3}, v{vT+2}')
    for k in range(4): a(f'ds_bpermute_b32 v{PO+k}, v{KY+k}, v{vT+3}')
    a('s_waitcnt lgkmcnt(0)')
    a(f's_mov_b64 exec, s[{sU}:{sU+1}]')
    for k in range(4):
        a(f'v_add_u32 v{PO+k}, v{PO+k}, v{RK+k}')
        a(f'v_add_u32 v{vT+4}, {k}, v{vT+1}')
        a(f'v_lshl_or_b32 v{vT+4}, v{DG+k}, 8, v{vT+4}')
        a(f'v_lshlrev_b32 v{vT+5}, 2, v{PO+k}')
        a(f'ds_write_b32 v{vT+5}, v{vT+4} offset:{L_SORT}')
    a('s_mov_b64 exec, -1')
    a(f'ds_read_b128 {q4(SO)}, v{vT} offset:{L_SORT}')
    a(f'v_cmp_gt_u32 vcc, 49, v{vLane}')
    a('s_waitcnt lgkmcnt(0)')
    a(f'v_max3_u32 v{SO}, v{SO}, v{SO+1}, v{SO+2}')
    a(f'v_max_u32 v{SO}, v{SO}, v{SO+3}')
    a(f'v_lshrrev_b32 v{SO}, 8, v{SO}')
    a(f'v_add_u32 v{SO}, 1, v{SO}')
    a(f'v_lshrrev_b32 v{SO}, 1, v{SO}')
    a(f'v_max_u32 v{SO}, 1, v{SO}')
    a(f'v_cndmask_b32 v{SO}, 0, v{SO}, vcc')
    a(f'v_mov_b32 v{SO+1}, v{SO}')
    wave_scan(a, SO+1)
    a(f'v_sub_u32 v{SO+1}, v{SO+1}, v{SO}')
    a(f'v_min_u32 v{SO+2}, 0xffff, v{SO+1}')
    a(f'v_min_u32 v{SO+3}, 0xffff, v{SO}')
    a(f'v_lshl_or_b32 v{SO+2}, v{SO+3}, 16, v{SO+2}')
    a(f'ds_write_b32 v{vT+1}, v{SO+2} offset:{L_QI}')
    for k in range(4):
        a(f'v_and_b32 v{KY+k}, 0xfc, v{PO+k}')
        a(f'ds_bpermute_b32 v{RK+k}, v{KY+k}, v{SO+1}')
    a('s_waitcnt lgkmcnt(0)')
    for k in range(4):
        a(f'v_and_b32 v{PO+k}, 3, v{PO+k}')
        a(f'v_lshlrev_b32 v{PO+k}, 1, v{PO+k}')
        a(f'v_lshl_add_u32 v{RK+k}, v{RK+k}, 3, v{PO+k}')
    a(f's_mov_b64 exec, s[{sU}:{sU+1}]')
    a(f'ds_write_b128 v{vT}, {q4(RK)} offset:{L_BASE}')
    a('s_mov_b64 exec, -1')
    a('K2_p6:')
    a('s_waitcnt lgkmcnt(0)')
    a('s_barrier')
    stamp(a, opt, 4, 255)
    a(f'v_lshlrev_b32 v{vT+1}, 2, v{vLane}')
    a(f'ds_read_b32 v{vT+2}, v{vT+1} offset:{L_QI}')
    a('s_waitcnt lgkmcnt(0)')
    a(f'v_and_b32 v{vT+3}, 0xffff, v{vT+2}')
    a(f'v_lshrrev_b32 v{vSteps}, 16, v{vT+2}')
    a(f'v_mov_b32 v226, v{vT+3}')
    a(f'v_readlane_b32 s{sT}, v{vT+3}, 63')
    if opt.get('ts'): a(f's_mov_b32 s99, s{sT}'); a('s_mov_b32 s45, s99')
    a(f's_cmp_gt_u32 s{sT}, {NULLSTEP}')
    a('s_cbranch_scc1 K2_slow')
    if opt.get('thr'):
        a(f's_sub_i32 s{sThr}, s{sT}, {opt.get("t0", 401)}')
        a(f's_mul_i32 s{sThr}, s{sThr}, {opt.get("tmul", 4)}')
        a(f's_ashr_i32 s{sThr}, s{sThr}, 4')
        a(f's_cmp_lt_i32 s{sWave}, s{sThr}')
        a(f's_cselect_b32 s{sThr}, 0, 1')
    def scat(beta):
        for k in range(7):
            u = beta*7 + k
            a(f's_mov_b64 exec, s[{sMask+2*u}:{sMask+2*u+1}]')
            a(f'v_lshrrev_b32 v{161+k}, 22, v{4*u+2}')
            a(f'v_and_b32 v{161+k}, 0x3fc, v{161+k}')
            a(f'ds_read_b32 v{176+k}, v{161+k} offset:{L_BASE}')
        for k in range(7):
            u = beta*7 + k
            a(f's_mov_b64 exec, s[{sMask+2*u}:{sMask+2*u+1}]')
            a(f'v_lshrrev_b32 v{vT}, 1, v{4*u+3}')
            a(f'v_and_b32 v{vT+1}, 1, v{4*u+3}')
            a(f'v_and_b32 v{vT+2}, 0xffffff, v{4*u+2}')
            a(f'v_lshlrev_b32 v{vT+2}, 5, v{vT+2}')
            a(f's_waitcnt lgkmcnt({min(15, 6 - k + 2*k)})') if False else None
            if k == 0: a('s_waitcnt lgkmcnt(0)')
            a(f'v_lshl_add_u32 v{vT}, v{vT}, 3, v{176+k}')
            a(f'v_add_u32 v{vT}, v{vT}, v{vT+1}')
            a(f'v_lshlrev_b32 v{vT+3}, 3, v{vT}')
            a(f'v_lshlrev_b32 v{vT+4}, 2, v{vT}')
            a(f'ds_write_b64 v{vT+3}, v[{4*u}:{4*u+1}] offset:{L_RECA}')
            a(f'ds_write_b32 v{vT+4}, v{vT+2} offset:{L_RECB}')
        a('s_mov_b64 exec, -1')
    scat(0); scat(1)
    a(f's_cmp_eq_u64 s[{sB2}:{sB2+1}], 0')
    a('s_cbranch_scc1 K2_nb2c')
    scat(2)
    a('K2_nb2c:')
    a(f'v_lshlrev_b32 v{vT}, 4, v{vLane}')
    a(f'v_add_u32 v{vT}, {L_P}, v{vT}')
    for t in range(10): a(f'ds_read_b128 {q4(RAD+4*t)}, v{vT} offset:{t*1024}')
    a('s_waitcnt lgkmcnt(0)')
    a('s_barrier')
    stamp(a, opt, 5, 255)

_uid = [0]
DEFER = []
def rec_read(a, sg):
    _uid[0] += 1; u = _uid[0]
    a(f's_cmp_lg_u32 s{sPfT}, s{sPfEnd}')
    a(f's_cbranch_scc0 K2_sw{u}')
    a(f'K2_have{u}:')
    a(f's_lshl_b32 s{sOffA}, s{sPfT}, 6')
    a(f's_add_u32 s{sPfT}, s{sPfT}, 1')
    a(f's_cmp_eq_u32 s{sPfT}, s{sPfEnd}')
    a(f's_cselect_b32 s{sTag+sg}, s{sPfQ}, -1')
    a(f'K2_go{u}:')
    a(f's_lshr_b32 s{sOffB}, s{sOffA}, 1')
    a(f'v_add_u32 v{vTa}, s{sOffA}, v{vRecA}')
    a(f'v_add_u32 v{vTb}, s{sOffB}, v{vRecB}')
    a(f'ds_read_b128 {q4(YP+4*sg)}, v{vTa}')
    a(f'ds_read_b32 v{vEN}, v{vTb}')
    def cold(a, u=u, sg=sg):
        a(f'K2_sw{u}:')
        a(f's_cmp_ge_u32 s{sNQ}, 49')
        a(f's_cbranch_scc1 K2_exh{u}')
        a(f's_mov_b32 s{sPfQ}, s{sNQ}')
        a(f'v_readlane_b32 s{sPfT}, v{vSBase}, s{sNQ}')
        a(f'v_readlane_b32 s{sT}, v{vSteps}, s{sNQ}')
        a('s_mov_b64 exec, 1')
        a(f'ds_add_rtn_u32 v{vGrab}, v{vCtr}, v{vOne}')
        a('s_mov_b64 exec, -1')
        a(f's_add_u32 s{sPfEnd}, s{sPfT}, s{sT}')
        a(f's_branch K2_have{u}')
        a(f'K2_exh{u}:')
        a(f's_mov_b32 s{sOffA}, {NULLSTEP*64}')
        a(f's_mov_b32 s{sTag+sg}, -2')
        a(f's_branch K2_go{u}')
    DEFER.append(cold)

def grab_result(a):
    a(f'v_readfirstlane_b32 s{sNQ}, v{vGrab}')
    a(f's_add_u32 s{sNQ}, s{sNQ}, 8')

def issue_loads(a, sg, opt):
    a(f'v_mad_u32_u16 v{vXA0}, v{YP+4*sg}, s{s512}, v{vLaneX}')
    a(f'v_mad_u32_u16 v{vXA1}, v{YP+4*sg+2}, s{s512}, v{vLaneX}')
    a(f'v_or_b32 v{vEA}, v{vEN}, v{vLaneMask}')
    ent = POL[opt.get('eapol', 4)]
    if opt.get('noload'): return
    a(f'buffer_load_dwordx4 {q4(AS+4*sg)}, v{vEA}, s[8:11], 0 offen{ent}')
    for s, va in ((0, vXA0), (1, vXA1)):
        for v in range(4):
            a(f'buffer_load_dwordx2 {pr(XS+16*sg+8*s+2*v)}, v{va}, s[4:7], 0 offen offset:{128*v}{POL[opt.get("xpol", 0)]}')

def Fp(v, h): return F + 8*h + 2*v
def Rp(p, h, s): return R + (2*p + h)*4 + 2*s
def Ap(f, h): return ACC + 4*f + 2*h

def unpack_ops(sg, s):
    ops = []
    for v in range(4):
        for h in range(2):
            src = XS + 16*sg + 8*s + 2*v + h
            ops.append(f'v_lshlrev_b32 v{Fp(v,h)}, 16, v{src}')
            ops.append(f'v_and_b32 v{Fp(v,h)+1}, v{vHi}, v{src}')
    return ops

def compute_slot(a, s):
    Yr = (Y + 3*s, Y + 3*s + 1, Y + 3*s + 2)
    ch = [(h, p) for h in range(2) for p in range(2)]
    Fv = lambda v, c: Fp(v, c[0]) + c[1]
    Rv = lambda p, c: Rp(p, c[0], s) + c[1]
    Av = lambda f, c: Ap(f, c[0]) + c[1]
    dot = lambda c: TMP + 2*c[0] + c[1]
    t = lambda c: TMP + 4 + 2*c[0] + c[1]
    fmac = lambda d, x, y: a(f'v_fmac_f32 v{d}, v{x}, v{y}')
    mul = lambda d, x, y: a(f'v_mul_f32 v{d}, v{x}, v{y}')
    fms = lambda d, x, y: a(f'v_fma_f32 v{d}, -v{x}, v{y}, v{d}')
    seq = [
        lambda c: fmac(Av(0,c), Fv(0,c), Rv(0,c)),
        lambda c: mul(dot(c), Fv(1,c), Yr[0]),
        lambda c: mul(t(c), Fv(0,c), Rv(2,c)),
        lambda c: fmac(dot(c), Fv(2,c), Yr[1]),
        lambda c: fmac(Av(5,c), Fv(1,c), Rv(3,c)),
        lambda c: fmac(dot(c), Fv(3,c), Yr[2]),
        lambda c: fmac(Av(2,c), t(c), Yr[0]),
        lambda c: fmac(Av(6,c), Fv(2,c), Rv(3,c)),
        lambda c: fmac(Av(3,c), t(c), Yr[1]),
        lambda c: fmac(Av(7,c), Fv(3,c), Rv(3,c)),
        lambda c: fmac(Av(4,c), t(c), Yr[2]),
        lambda c: fmac(Av(1,c), dot(c), Rv(1,c)),
        lambda c: mul(Fv(1,c), Fv(1,c), Rv(4,c)),
        lambda c: mul(Fv(2,c), Fv(2,c), Rv(4,c)),
        lambda c: mul(Fv(3,c), Fv(3,c), Rv(4,c)),
        lambda c: fmac(Av(9,c), Fv(1,c), Yr[2]),
        lambda c: fmac(Av(10,c), Fv(2,c), Yr[0]),
        lambda c: fmac(Av(8,c), Fv(3,c), Yr[1]),
        lambda c: fms(Av(10,c), Fv(1,c), Yr[1]),
        lambda c: fms(Av(8,c), Fv(2,c), Yr[2]),
        lambda c: fms(Av(9,c), Fv(3,c), Yr[0]),
    ]
    for op in seq:
        for c in ch: op(c)

def step(a, sg, D, opt):
    a(f's_mov_b32 s{sCur}, s{sTag+sg}')
    a(f's_cmp_eq_u32 s{sCur}, -2')
    a('s_cbranch_scc1 K2_end')
    for s in range(2):
        a(f'v_and_b32 v{Y+3*s}, v{vHi}, v{YP+4*sg+2*s}')
        a(f'v_lshlrev_b32 v{Y+3*s+1}, 16, v{YP+4*sg+2*s+1}')
        a(f'v_and_b32 v{Y+3*s+2}, v{vHi}, v{YP+4*sg+2*s+1}')
    rec_read(a, sg)
    a(f's_waitcnt vmcnt({9*(D-1)})')
    if opt.get('thr'):
        _uid[0] += 1
        a(f's_cmp_eq_u32 s{sThr}, 0')
        a(f's_cbranch_scc1 K2_nt{_uid[0]}')
        a(f's_waitcnt vmcnt({9*(D-2)})')
        a(f'K2_nt{_uid[0]}:')
    fill = unpack_ops(sg, 0)
    mf = []
    for p in (0, 2, 3, 1, 4):
        for h in range(2):
            mf.append(f'v_mfma_f32_16x16x32_bf16 {q4(R+(2*p+h)*4)}, {q4(AS+4*sg)}, {q4(RAD+(2*p+h)*4)}, 0')
    if opt.get('nomfma'): mf = []
    if opt.get('mfb2b', 1):
        for m in mf: a(m)
        for o in fill: a(o)
    else:
        fi = 0
        for k, m in enumerate(mf):
            a(m)
            for _ in range(2):
                if fi < len(fill): a(fill[fi]); fi += 1
        while fi < len(fill): a(fill[fi]); fi += 1
    if not opt.get('nocomp'):
        compute_slot(a, 0)
        for o in unpack_ops(sg, 1): a(o)
        compute_slot(a, 1)
    a('s_waitcnt lgkmcnt(0)')
    grab_result(a)
    issue_loads(a, sg, opt)

def featoff(f):
    if f < 2: return 128*f
    f -= 2; kind, j = f // 3, f % 3
    return 256 + PJS*j + 128*kind

def flush(a, opt):
    if opt.get('noflush'): return
    D0 = R; D1 = R + 16; BR = R + 32; AR = F
    issued = []
    def ds(text):
        issued.append(text); a(text)
    state = {'done': 0}
    def wait_for(idx):
        n = len(issued) - 1 - idx
        if idx >= state['done']:
            a(f's_waitcnt lgkmcnt({min(n, 15)})'); state['done'] = len(issued) - min(n, 15)
    def room():
        if len(issued) - state['done'] >= 15: wait_for(len(issued) - 12)
    a(f's_lshl_b32 s{sT}, s{sCur}, 4')
    a(f'v_add_u32 v{vTa}, s{sT}, v{vOrd}')
    ds(f'ds_read_b32 v{vTb}, v{vTa}')
    for f in range(11):
        t0 = F + 2*(f % 8)
        a(f'v_cvt_pk_bf16_f32 v{t0}, v{ACC+4*f}, v{ACC+4*f+1}')
        a(f'v_cvt_pk_bf16_f32 v{t0+1}, v{ACC+4*f+2}, v{ACC+4*f+3}')
        room()
        ds(f'ds_write_b64 v{vPW}, {pr(t0)} offset:{featoff(f)}')
    groups = [(0, ks) for ks in range(4)] + [(1, ks) for ks in range(6)]
    idxA = {}; idxB = {}
    def loadB(gi):
        c, ks = groups[gi]
        room(); idxB[gi] = len(issued)
        ds(f'ds_read_b128 {q4(BR+4*(gi%2))}, v{vPR1 if c else vPR0} offset:{ks*64}')
    def loadA(u):
        gi, t = divmod(u, 4); c, ks = groups[gi]
        tile = (ks*4 + t) + (16 if c else 0)
        room(); idxA[u] = len(issued)
        ds(f'ds_read_b128 {q4(AR+4*(u%NA))}, v{vWR} offset:{tile*1024}')
    if NA == 8:
        loadB(0)
        for u in range(4): loadA(u)
        loadB(1)
        for u in range(4, 8): loadA(u)
        for k in range(44): a(f'v_mov_b32 v{ACC+k}, 0')
        for gi, (c, ks) in enumerate(groups):
            wait_for(max(idxA[4*gi+3], idxB[gi]))
            for t in range(4):
                u = 4*gi + t
                Dr = (D1 if c else D0) + 4*t
                cop = '0' if ks == 0 else q4(Dr)
                a(f'v_mfma_f32_16x16x32_bf16 {q4(Dr)}, {q4(AR+4*(u%NA))}, {q4(BR+4*(gi%2))}, {cop}')
            if gi + 2 < len(groups):
                loadB(gi + 2)
                for t in range(4): loadA(4*(gi+2) + t)
    else:
        loadB(0)
        for u in range(4): loadA(u)
        loadB(1)
        for u in range(4, NA): loadA(u)
        for k in range(44): a(f'v_mov_b32 v{ACC+k}, 0')
        for u in range(40):
            gi, t = divmod(u, 4); c, ks = groups[gi]
            wait_for(max(idxA[u], idxB[gi]))
            Dr = (D1 if c else D0) + 4*t
            cop = '0' if ks == 0 else q4(Dr)
            a(f'v_mfma_f32_16x16x32_bf16 {q4(Dr)}, {q4(AR+4*(u%NA))}, {q4(BR+4*(gi%2))}, {cop}')
            if t == 3 and gi + 2 < len(groups): loadB(gi + 2)
            if u + NA < 40: loadA(u + NA)
    SEL = F; G = F + 4; O1 = F + 8; O0 = TMP
    a(f'v_and_b32 v{vTb}, 0xff, v{vTb}')
    a(f'v_lshl_add_u32 v{vTb}, v{vTb}, 9, s{sNode}')
    a(f'v_add_u32 v{vTa}, v{vTb}, v{vOut0}')
    a(f'v_add_u32 v{vTb}, v{vTb}, v{vOut1}')
    SEL = D0
    for t, m in ((1, sM1), (2, sM2), (3, sM3)):
        a(f's_mov_b64 exec, s[{m}:{m+1}]')
        for r in range(4): a(f'v_mov_b32 v{SEL+r}, v{D0+4*t+r}')
    a('s_mov_b64 exec, -1')
    for r in range(4): a(f'v_mul_f32 v{G+r}, 0xbfb8aa3b, v{SEL+r}')
    for r in range(4): a(f'v_exp_f32 v{G+r}, v{G+r}')
    for r in range(4): a(f'v_add_f32 v{G+r}, 1.0, v{G+r}')
    for r in range(4): a(f'v_rcp_f32 v{G+r}, v{G+r}')
    a(f'v_cvt_pk_bf16_f32 v{O0}, v{SEL}, v{SEL+1}')
    a(f'v_cvt_pk_bf16_f32 v{O0+1}, v{SEL+2}, v{SEL+3}')
    a(f'buffer_store_dwordx2 {pr(O0)}, v{vTa}, s[12:15], 0 offen{POL[opt.get("stpol", 1)]}')
    for t in range(4):
        for r in range(4):
            a(f'v_mul_f32_dpp v{D1+4*t+r}, v{G+r}, v{D1+4*t+r} quad_perm:[{t},{t},{t},{t}] row_mask:0xf bank_mask:0xf')
    for t in range(4):
        a(f'v_cvt_pk_bf16_f32 v{O1+2*t}, v{D1+4*t}, v{D1+4*t+1}')
        a(f'v_cvt_pk_bf16_f32 v{O1+2*t+1}, v{D1+4*t+2}, v{D1+4*t+3}')
    a(f'buffer_store_dwordx4 {q4(O1)}, v{vTb}, s[12:15], 0 offen{POL[opt.get("stpol", 1)]}')
    a(f'buffer_store_dwordx4 {q4(O1+4)}, v{vTb}, s[12:15], 0 offen offset:16{POL[opt.get("stpol", 1)]}')

def slow_path(a, opt):
    WR = 100; AC = 0; FX = 12; AE = 16; AV = 24; RR = 40; T = 46; TB_ = 52; REC = 56; vL2 = 60; vZ = 61; vPB = 62; vL4 = 63
    G0 = 64; G1 = 65
    sW0 = 52; sW1 = 56; sWR = 48
    sN = 60; sC = 61; sCntS = 62; sStart = 63; sJ = 64; sMask_ = 66; sBit = 68; sD0 = 69; sD1 = 70; sD2 = 71
    sY0 = 72; sY1 = 73; sY2 = 74; sXo = 75; sEo = 76; sK = 77; sRow = 78; sPB = 79; sTmp = 80; sTmp2 = 81; sHiM = 82
    a('s_mov_b64 exec, -1')
    a(f's_load_dwordx2 s[{sWR}:{sWR+1}], s[0:1], 40')
    a(f's_load_dwordx2 s[{sW0}:{sW0+1}], s[0:1], 48')
    a(f's_load_dwordx2 s[{sW1}:{sW1+1}], s[0:1], 56')
    a(f'v_lshlrev_b32 v{vL2}, 1, v{vLane}')
    a(f'v_lshlrev_b32 v{vL4}, 2, v{vLane}')
    a(f'v_mov_b32 v{vZ}, 0')
    a(f's_mov_b32 s{sHiM}, 0xffff0000')
    a(f's_mul_i32 s{sPB}, s{sWave}, {4*PS}')
    a(f's_add_u32 s{sPB}, s{sPB}, {L_P}')
    a(f'v_add_u32 v{vPB}, s{sPB}, v{vL4}')
    a('s_waitcnt lgkmcnt(0)')
    srd(a, sWR, 16*320*2); srd(a, sW0, 128*64*2); srd(a, sW1, 192*64*2)
    for p in range(5):
        for d in range(16):
            off = (d*320 + 64*p)*2
            a(f's_mov_b32 s{sTmp}, {off}')
            a(f'buffer_load_ushort v{WR+16*p+d}, v{vL2}, s[{sWR}:{sWR+3}], s{sTmp} offen')
        a('s_waitcnt vmcnt(0)')
        for d in range(16): a(f'v_lshlrev_b32 v{WR+16*p+d}, 16, v{WR+16*p+d}')
    TBL = 3072
    for k in range(4):
        a(f'v_add_u32 v{T}, {64*k}, v{vLane}')
        a(f'v_cmp_gt_u32 vcc, {NCH}, v{T}')
        a(f'v_lshlrev_b32 v{T+1}, 10, v{T}')
        a(f's_lshl_b32 s{sTmp}, s2, 2')
        a(f's_add_u32 s{sTmp}, s{sTmp}, {TAB_OFF}')
        a(f'buffer_load_dword v{T+2}, v{T+1}, s[16:19], s{sTmp} offen')
        a('s_waitcnt vmcnt(0)')
        a(f'v_cndmask_b32 v{T+2}, 0, v{T+2}, vcc')
        a(f'ds_write_b32 v{vPB}, v{T+2} offset:{TBL + 256*k}')
    a(f's_mov_b32 s{sN}, s{sWave}')
    a('KS_node:')
    a(f's_cmp_ge_u32 s{sN}, {NPB}')
    a('s_cbranch_scc1 K2_end')
    a(f's_mul_i32 s{sRow}, s2, {NPB}')
    a(f's_add_u32 s{sRow}, s{sRow}, s{sN}')
    a(f's_cmp_ge_u32 s{sRow}, {N}')
    a('s_cbranch_scc1 K2_end')
    a(f's_lshl_b32 s{sRow}, s{sRow}, 9')
    for f in range(11): a(f'v_mov_b32 v{AC+f}, 0')
    a(f's_mov_b32 s{sC}, 0')
    a('KS_chunk:')
    a(f's_lshl_b32 s{sTmp}, s{sC}, 2')
    a(f's_add_u32 s{sTmp}, s{sTmp}, s{sPB}')
    a(f'v_mov_b32 v{T}, s{sTmp}')
    a(f'ds_read_b32 v{T+1}, v{T} offset:{TBL}')
    a('s_waitcnt lgkmcnt(0)')
    a(f'v_readfirstlane_b32 s{sTmp}, v{T+1}')
    a(f's_and_b32 s{sStart}, s{sTmp}, 0xffff')
    a(f's_lshr_b32 s{sCntS}, s{sTmp}, 16')
    a(f's_mul_i32 s{sTmp}, s{sC}, {CH}')
    a(f's_add_u32 s{sStart}, s{sStart}, s{sTmp}')
    a(f's_mov_b32 s{sJ}, 0')
    a('KS_batch:')
    a(f's_cmp_ge_u32 s{sJ}, s{sCntS}')
    a('s_cbranch_scc1 KS_chunk_next')
    a(f'v_add_u32 v{T}, s{sJ}, v{vLane}')
    a(f'v_cmp_gt_u32 vcc, s{sCntS}, v{T}')
    a(f'v_add_u32 v{T}, s{sStart}, v{T}')
    a(f'v_mul_u32_u24 v{T}, 12, v{T}')
    a(f'v_mov_b32 v{T+1}, 2.0')
    a(f'v_cndmask_b32 v{T}, v{T+1}, v{T}, vcc')
    a(f's_mov_b64 s[{sMask_}:{sMask_+1}], vcc')
    a(f'buffer_load_dwordx3 v[{REC}:{REC+2}], v{T}, s[16:19], 0 offen')
    a('s_waitcnt vmcnt(0)')
    a(f'v_lshrrev_b32 v{T}, 24, v{REC+2}')
    a(f'v_cmp_eq_u32 vcc, s{sN}, v{T}')
    a(f's_and_b64 s[{sMask_}:{sMask_+1}], s[{sMask_}:{sMask_+1}], vcc')
    a('KS_edge:')
    a(f's_cmp_eq_u64 s[{sMask_}:{sMask_+1}], 0')
    a('s_cbranch_scc1 KS_batch_next')
    a(f's_ff1_i32_b64 s{sBit}, s[{sMask_}:{sMask_+1}]')
    a(f's_bitset0_b64 s[{sMask_}:{sMask_+1}], s{sBit}')
    a(f'v_readlane_b32 s{sD0}, v{REC}, s{sBit}')
    a(f'v_readlane_b32 s{sD1}, v{REC+1}, s{sBit}')
    a(f'v_readlane_b32 s{sD2}, v{REC+2}, s{sBit}')
    a(f's_and_b32 s{sXo}, s{sD0}, 0xffff')
    a(f's_lshl_b32 s{sXo}, s{sXo}, 9')
    a(f's_and_b32 s{sEo}, s{sD2}, 0xffffff')
    a(f's_lshl_b32 s{sEo}, s{sEo}, 5')
    a(f's_and_b32 s{sY0}, s{sD0}, s{sHiM}')
    a(f's_lshl_b32 s{sY1}, s{sD1}, 16')
    a(f's_and_b32 s{sY2}, s{sD1}, s{sHiM}')
    for v in range(4): a(f'buffer_load_ushort v{FX+v}, v{vL2}, s[4:7], s{sXo} offen offset:{128*v}')
    a(f'buffer_load_dwordx4 v[{AE}:{AE+3}], v{vZ}, s[8:11], s{sEo} offen')
    a(f'buffer_load_dwordx4 v[{AE+4}:{AE+7}], v{vZ}, s[8:11], s{sEo} offen offset:16')
    a('s_waitcnt vmcnt(0)')
    for v in range(4): a(f'v_lshlrev_b32 v{FX+v}, 16, v{FX+v}')
    for q in range(8):
        a(f'v_lshlrev_b32 v{AV+2*q}, 16, v{AE+q}')
        a(f'v_and_b32 v{AV+2*q+1}, s{sHiM}, v{AE+q}')
    for p in range(5):
        a(f'v_mul_f32 v{RR+p}, v{AV}, v{WR+16*p}')
        for d in range(1, 16): a(f'v_fmac_f32 v{RR+p}, v{AV+d}, v{WR+16*p+d}')
    f0, f1 = FX, FX + 1
    a(f'v_fmac_f32 v{AC+0}, v{f0}, v{RR+0}')
    a(f'v_mul_f32 v{T}, s{sY0}, v{f1}')
    a(f'v_fmac_f32 v{T}, s{sY1}, v{f1+1}')
    a(f'v_fmac_f32 v{T}, s{sY2}, v{f1+2}')
    a(f'v_fmac_f32 v{AC+1}, v{T}, v{RR+1}')
    a(f'v_mul_f32 v{T}, v{f0}, v{RR+2}')
    for j, y in enumerate((sY0, sY1, sY2)): a(f'v_fmac_f32 v{AC+2+j}, s{y}, v{T}')
    for j in range(3): a(f'v_fmac_f32 v{AC+5+j}, v{f1+j}, v{RR+3}')
    for j in range(3): a(f'v_mul_f32 v{T+1+j}, v{f1+j}, v{RR+4}')
    a(f'v_fmac_f32 v{AC+8}, s{sY1}, v{T+3}')
    a(f'v_fma_f32 v{AC+8}, -s{sY2}, v{T+2}, v{AC+8}')
    a(f'v_fmac_f32 v{AC+9}, s{sY2}, v{T+1}')
    a(f'v_fma_f32 v{AC+9}, -s{sY0}, v{T+3}, v{AC+9}')
    a(f'v_fmac_f32 v{AC+10}, s{sY0}, v{T+2}')
    a(f'v_fma_f32 v{AC+10}, -s{sY1}, v{T+1}, v{AC+10}')
    a('s_branch KS_edge')
    a('KS_batch_next:')
    a(f's_add_u32 s{sJ}, s{sJ}, 64')
    a('s_branch KS_batch')
    a('KS_chunk_next:')
    a(f's_add_u32 s{sC}, s{sC}, 1')
    a(f's_cmp_lt_u32 s{sC}, {NCH}')
    a('s_cbranch_scc1 KS_chunk')
    for f in range(11): a(f'ds_write_b32 v{vPB}, v{AC+f} offset:{256*f}')
    for g in range(4): a(f'v_mov_b32 v{G0+g}, 0')
    a(f's_mov_b32 s{sK}, 0')
    a('KS_g0:')
    a(f's_lshl_b32 s{sTmp}, s{sK}, 2')
    a(f's_add_u32 s{sTmp}, s{sTmp}, s{sPB}')
    a(f'v_mov_b32 v{T}, s{sTmp}')
    a(f's_lshl_b32 s{sTmp2}, s{sK}, 7')
    for u in range(8):
        a(f'ds_read_b32 v{AV+u}, v{T} offset:{4*u}')
        a(f'buffer_load_ushort v{AV+8+u}, v{vL2}, s[{sW0}:{sW0+3}], s{sTmp2} offen offset:{128*u}')
    a('s_waitcnt vmcnt(0) lgkmcnt(0)')
    for u in range(8):
        a(f'v_lshlrev_b32 v{AV+8+u}, 16, v{AV+8+u}')
        a(f'v_fmac_f32 v{G0}, v{AV+u}, v{AV+8+u}')
    a(f's_add_u32 s{sK}, s{sK}, 8')
    a(f's_cmp_lt_u32 s{sK}, 128')
    a('s_cbranch_scc1 KS_g0')
    a(f's_mov_b32 s{sK}, 0')
    a('KS_g1:')
    a(f's_lshr_b32 s{sTmp}, s{sK}, 6')
    a(f's_mul_i32 s{sTmp}, s{sTmp}, 768')
    a(f's_and_b32 s{sTmp2}, s{sK}, 63')
    a(f's_lshl_b32 s{sTmp2}, s{sTmp2}, 2')
    a(f's_add_u32 s{sTmp}, s{sTmp}, s{sTmp2}')
    a(f's_add_u32 s{sTmp}, s{sTmp}, s{sPB}')
    a(f'v_mov_b32 v{T}, s{sTmp}')
    a(f's_lshl_b32 s{sTmp2}, s{sK}, 7')
    for u in range(4):
        for j in range(3): a(f'ds_read_b32 v{AV+3*u+j}, v{T} offset:{512 + 256*j + 4*u}')
        a(f'buffer_load_ushort v{AV+12+u}, v{vL2}, s[{sW1}:{sW1+3}], s{sTmp2} offen offset:{128*u}')
    a('s_waitcnt vmcnt(0) lgkmcnt(0)')
    for u in range(4):
        a(f'v_lshlrev_b32 v{AV+12+u}, 16, v{AV+12+u}')
        for j in range(3): a(f'v_fmac_f32 v{G1+j}, v{AV+3*u+j}, v{AV+12+u}')
    a(f's_add_u32 s{sK}, s{sK}, 4')
    a(f's_cmp_lt_u32 s{sK}, 192')
    a('s_cbranch_scc1 KS_g1')
    a(f'v_mul_f32 v{T}, 0xbfb8aa3b, v{G0}')
    a(f'v_exp_f32 v{T}, v{T}')
    a(f'v_add_f32 v{T}, 1.0, v{T}')
    a(f'v_rcp_f32 v{T}, v{T}')
    for j in range(3): a(f'v_mul_f32 v{G1+j}, v{T}, v{G1+j}')
    for g in range(4):
        a(f'v_cvt_pk_bf16_f32 v{G0+g}, v{G0+g}, v{G0+g}')
        a(f'buffer_store_short v{G0+g}, v{vL2}, s[12:15], s{sRow} offen offset:{128*g}')
    a(f's_add_u32 s{sN}, s{sN}, 8')
    a('s_branch KS_node')

def gen_k2(a, opt):
    D = opt.get('D', 2)
    set_map(D)
    OPT.update(opt)
    a(f'{KN}_kernel:')
    prologue(a, opt)
    a(f'v_mov_b32 v{vSBase}, v226')
    a(f's_mov_b32 s{sPfQ}, s{sWave}')
    a(f'v_readlane_b32 s{sPfT}, v{vSBase}, s{sWave}')
    a(f'v_readlane_b32 s{sT}, v{vSteps}, s{sWave}')
    a(f'v_mov_b32 v{vHi}, 0xffff0000')
    a(f'v_mov_b32 v{vCtr}, {L_CTR}')
    a(f'v_mov_b32 v{vOne}, 1')
    a(f's_add_u32 s{sPfEnd}, s{sPfT}, s{sT}')
    a('s_mov_b64 exec, 1')
    a(f'ds_add_rtn_u32 v{vGrab}, v{vCtr}, v{vOne}')
    a('s_mov_b64 exec, -1')
    a('s_waitcnt lgkmcnt(0)')
    grab_result(a)
    for sg in range(D):
        rec_read(a, sg)
        a('s_waitcnt lgkmcnt(0)')
        grab_result(a)
        issue_loads(a, sg, opt)
    for k in range(44): a(f'v_mov_b32 v{ACC+k}, 0')
    for sg in range(D):
        a(f'K2_s{sg}:')
        step(a, sg, D, opt)
        a(f's_cmp_lt_i32 s{sCur}, 0')
        a(f's_cbranch_scc0 K2_fl{sg}')
        if sg == D - 1: a('s_branch K2_s0')
    for sg in range(D):
        a(f'K2_fl{sg}:')
        flush(a, opt)
        a(f's_branch K2_s{(sg+1) % D}')
    for f in DEFER: f(a)
    a('K2_slow:')
    slow_path(a, opt)
    a('K2_end:')
    if opt.get('ts'):
        stamp(a, opt, 6, 255)
        a('s_waitcnt vmcnt(0)')
        stamp(a, opt, 7, 255)
        a(f'v_writelane_b32 v255, s{sNQ}, 8')
        a(f'v_writelane_b32 v255, s45, 9')
        a('s_getreg_b32 s45, hwreg(HW_REG_XCC_ID)')
        a(f'v_writelane_b32 v255, s45, 10')
        a('s_getreg_b32 s45, hwreg(HW_REG_HW_ID)')
        a(f'v_writelane_b32 v255, s45, 11')
        stamp_out(a, opt, 255, 254, sWave, TS_OFF, 8)
        a('K2_end2:')
    a('s_endpgm')
    return 256, 102
```

```python
from gen import *

ACC = 0; R = 44; RAD = 84; XS = 124
AS = YP = F = TMP = Y = NA = None
def set_map(D):
    global AS, YP, F, TMP, Y, NA
    AS = XS + 16*D; YP = AS + 4*D; F = YP + 4*D; TMP = F + 16; Y = TMP + 8
    NA = 8 if D == 2 else 6
vLaneX = 228; vLaneMask = 229; vRecA = 230; vRecB = 231; vSteps = 232; vEN = 233; vXA0 = 234; vXA1 = 235; vEA = 236
vTa = 237; vTb = 238; vPW = 239; vPR0 = 240; vPR1 = 241; vWR = 242; vOut0 = 243; vOut1 = 244; vOrd = 245
vLane = 246; vTid = 247; vT = 248
vHi = 248; vSBase = 249; vGrab = 250; vCtr = 246; vOne = 247
sWave = 20; sPfT = 21; sPfEnd = 22; sPfQ = 23; sNQ = 24; sCur = 25; s512 = 26; sHi = 27; sOffA = 28; sOffB = 29; sNode = 30; sT = 31
sM1 = 32; sM2 = 34; sM3 = 36; sSave = 38; sMask = 40; sOvf = 82; sU = 84
OPT = {}
POL = ['', ' nt', ' sc1', ' sc0 sc1', ' sc1 nt', ' sc0 sc1 nt', ' sc0']
YSEP = ((220, 222, 224), (226, 248, 250))
sThr = 3
sTag = 40
L_CTR = L_FLAG + 16
L_QI = 1344
COST_STEP = 8; COST_FLUSH = 11

def pr(x): return f'v[{x}:{x+1}]'
def q4(x): return f'v[{x}:{x+3}]'

def lane_consts(a, opt):
    i_, g_ = 208, 209
    a(f'v_and_b32 v{i_}, 15, v{vLane}')
    a(f'v_lshrrev_b32 v{g_}, 4, v{vLane}')
    a(f'v_lshlrev_b32 v{vLaneX}, 3, v{i_}')
    a(f'v_lshrrev_b32 v{210}, 1, v{g_}')
    a(f'v_and_b32 v{211}, 1, v{i_}')
    a(f'v_cmp_eq_u32 vcc, v{210}, v{211}')
    a(f'v_and_b32 v{212}, 1, v{g_}')
    a(f'v_lshlrev_b32 v{212}, 4, v{212}')
    a(f'v_mov_b32 v{213}, 2.0')
    a(f'v_cndmask_b32 v{vLaneMask}, v{213}, v{212}, vcc')
    a(f'v_lshlrev_b32 v{vRecA}, 4, v{g_}')
    a(f'v_add_u32 v{vRecA}, {L_RECA}, v{vRecA}')
    a(f'v_lshrrev_b32 v{vRecB}, 1, v{i_}')
    a(f'v_lshlrev_b32 v{vRecB}, 2, v{vRecB}')
    a(f'v_add_u32 v{vRecB}, {L_RECB}, v{vRecB}')
    a(f's_mul_i32 s{sNode}, s{sWave}, {4*PS}')
    a(f's_add_u32 s{sNode}, s{sNode}, {L_P}')
    a(f'v_mul_u32_u24 v{vPW}, {PS}, v{g_}')
    a(f'v_add3_u32 v{vPW}, v{vPW}, v{vLaneX}, s{sNode}')
    a(f'v_lshrrev_b32 v{210}, 2, v{i_}')
    a(f'v_mul_u32_u24 v{vPR0}, {PS}, v{210}')
    a(f'v_lshlrev_b32 v{211}, 4, v{g_}')
    a(f'v_add3_u32 v{vPR0}, v{vPR0}, v{211}, s{sNode}')
    a(f'v_and_b32 v{211}, 3, v{i_}')
    a(f'v_min_u32 v{212}, 2, v{211}')
    a(f'v_mul_u32_u24 v{212}, {PJS}, v{212}')
    a(f'v_add_u32 v{212}, 256, v{212}')
    a(f'v_add_u32 v{vPR1}, v{vPR0}, v{212}')
    a(f'v_lshlrev_b32 v{vWR}, 4, v{vLane}')
    a(f'v_add_u32 v{vWR}, {L_W}, v{vWR}')
    a(f'v_lshlrev_b32 v{212}, 5, v{g_}')
    a(f'v_lshl_add_u32 v{vOut0}, v{211}, 3, v{212}')
    a(f'v_lshl_add_u32 v{vOut1}, v{211}, 7, v{212}')
    a(f'v_add_u32 v{vOut1}, 128, v{vOut1}')
    a(f'v_cmp_eq_u32 vcc, 3, v{211}')
    a(f'v_cndmask_b32 v{vOut1}, v{vOut1}, v{213}, vcc')
    a(f'v_lshlrev_b32 v{vOrd}, 2, v{210}')
    a(f'v_add_u32 v{vOrd}, {L_SORT}, v{vOrd}')
    a(f's_mov_b32 s{s512}, 512')
    a(f's_mov_b32 s{sHi}, 0xffff0000')
    a(f's_mul_i32 s{sNode}, s2, {NPB*512}')
    for m, pat in ((sM1, 0x22222222), (sM2, 0x44444444), (sM3, 0x88888888)):
        a(f's_mov_b32 s{m}, {pat}'); a(f's_mov_b32 s{m+1}, {pat}')

def prologue(a, opt):
    a(f's_cmp_ge_u32 s2, {NB}')
    a('s_cbranch_scc1 K2_end2' if opt.get('ts') else 's_cbranch_scc1 K2_end')
    if opt.get('xcdmap', 1):
        a('s_and_b32 s3, s2, 7')
        a('s_lshl_b32 s3, s3, 5')
        a('s_lshr_b32 s2, s2, 3')
        a('s_add_u32 s2, s2, s3')
    a('s_load_dwordx2 s[4:5], s[0:1], 0')
    a('s_load_dwordx2 s[8:9], s[0:1], 16')
    a('s_load_dwordx2 s[12:13], s[0:1], 72')
    a('s_load_dwordx2 s[16:17], s[0:1], 88')
    a(f'v_mov_b32 v{vTid}, v0')
    a(f'v_and_b32 v{vLane}, 63, v0')
    a(f'v_lshrrev_b32 v{vT}, 6, v0')
    a(f'v_lshlrev_b32 v{vT+1}, 2, v0')
    a(f'v_readfirstlane_b32 s{sWave}, v{vT}')
    if opt.get('ts'): a('v_mov_b32 v255, 0')
    stamp(a, opt, 0, 255)
    a(f'v_mov_b32 v200, 0')
    a(f'v_cmp_gt_u32 vcc, 336, v{vTid}')
    a(f's_and_saveexec_b64 s[{sSave}:{sSave+1}], vcc')
    a('s_cbranch_execz K2_z')
    a(f'ds_write_b32 v{vT+1}, v200')
    a('K2_z:')
    a(f's_mov_b64 exec, s[{sSave}:{sSave+1}]')
    a('v_mov_b32 v200, 0xffff'); a('v_mov_b32 v201, 0'); a('v_mov_b32 v202, 0xffff'); a('v_mov_b32 v203, 0')
    for k in range(4): a(f'v_mov_b32 v{204+k}, 2.0')
    a(f'v_lshlrev_b32 v{vT+2}, 4, v{vTid}')
    for k in range(4): a(f'ds_write_b128 v{vT+2}, v[200:203] offset:{L_RECA + k*8192}')
    for k in range(2): a(f'ds_write_b128 v{vT+2}, v[204:207] offset:{L_RECB + k*8192}')
    a(f'v_lshrrev_b32 v{vT+3}, 4, v{vTid}')
    a('s_lshl_b32 s3, s2, 2')
    a(f'v_lshl_add_u32 v{vT+4}, v{vT+3}, 10, s3')
    a(f'v_lshlrev_b32 v{vT+5}, 4, v{vLane}')
    a('s_waitcnt lgkmcnt(0)')
    srd(a, 4, 0 if opt.get('nomem') else N * 512); srd(a, 8, 0 if opt.get('nomem') or opt.get('noea') else E * 32); srd(a, 12, N * 512); srd(a, 16, WS_USED)
    TB = 124
    for k in range(7):
        a(f's_mov_b32 s{sU+k}, {TAB_OFF + k*32768}')
    for k in range(7):
        a(f'buffer_load_dword v{TB+k}, v{vT+4}, s[16:19], s{sU+k} offen')
    lane_consts(a, opt)
    vJ = 152; vG = 153; CN = 154; AD = 161
    a(f'v_and_b32 v{vJ}, 15, v{vTid}')
    a(f'v_mul_u32_u24 v{vG}, {CH*12}, v{vT+3}')
    a(f'v_add_u32 v168, 16, v{vJ}')
    a(f'v_add_u32 v169, 32, v{vJ}')
    a(f's_mov_b64 s[{sOvf}:{sOvf+1}], 0')
    for k in range(7): a(f's_mov_b32 s{sU+k}, {REC_OFF + k*32*CH*12}')
    a('s_waitcnt vmcnt(0)')
    stamp(a, opt, 1, 255)
    for k in range(7):
        a(f'v_lshrrev_b32 v{CN+k}, 16, v{TB+k}')
        a(f'v_and_b32 v{AD+k}, 0xffff, v{TB+k}')
        a(f'v_add_u32 v{AD+k}, v{AD+k}, v{vJ}')
        a(f'v_mad_u32_u24 v{AD+k}, v{AD+k}, 12, v{vG}')
        a(f'v_cmp_gt_u32 s[{sMask+2*k}:{sMask+2*k+1}], v{CN+k}, v{vJ}')
        a(f'v_cmp_gt_u32 s[{sMask+14+2*k}:{sMask+14+2*k+1}], v{CN+k}, v168')
        a(f'v_cmp_gt_u32 s[{sMask+28+2*k}:{sMask+28+2*k+1}], v{CN+k}, v169')
        a(f'v_cmp_lt_u32 vcc, 48, v{CN+k}')
        a(f's_or_b64 s[{sOvf}:{sOvf+1}], s[{sOvf}:{sOvf+1}], vcc')
    def rec_loads(beta):
        for k in range(7):
            u = beta*7 + k
            a(f's_mov_b64 exec, s[{sMask+2*u}:{sMask+2*u+1}]')
            a(f'buffer_load_dwordx3 v[{4*u}:{4*u+2}], v{AD+k}, s[16:19], s{sU+k} offen offset:{beta*192}')
        a('s_mov_b64 exec, -1')
    rec_loads(0); rec_loads(1)
    sB2 = sU + 12
    a(f's_mov_b64 s[{sB2}:{sB2+1}], 0')
    for k in range(7):
        a(f's_or_b64 s[{sB2}:{sB2+1}], s[{sB2}:{sB2+1}], s[{sMask+28+2*k}:{sMask+28+2*k+1}]')
    a('s_cbranch_scc0 K2_nb2a')
    rec_loads(2)
    a('K2_nb2a:')
    IMG = 124
    a(f'v_lshlrev_b32 v{vT+5}, 4, v{vLane}')
    for u in range(7):
        a(f's_add_u32 s{sU+u}, s{sWave}, {8*u}')
        if u == 6:
            a(f's_min_u32 s{sU+u}, s{sU+u}, 49')
        a(f's_lshl_b32 s{sU+u}, s{sU+u}, 10')
        a(f's_add_u32 s{sT}, s{sU+u}, {WIMG_OFF}')
        a(f'buffer_load_dwordx4 {q4(IMG+4*u)}, v{vT+5}, s[16:19], s{sT} offen')
    if opt.get('tlb'):
        a(f'v_mul_u32_u24 v208, {opt.get("tlbs", 400000)}, v{vLane}')
        a('buffer_load_dword v209, v208, s[4:7], 0 offen')
        a('buffer_load_dword v210, v208, s[8:11], 0 offen')
    a('s_waitcnt lgkmcnt(0)')
    a('s_barrier')
    a(f's_cmp_eq_u64 s[{sOvf}:{sOvf+1}], 0')
    a('s_cbranch_scc1 K2_novf')
    a(f'v_mov_b32 v{vT}, {L_FLAG}')
    a(f'v_mov_b32 v{vT+1}, 1')
    a(f'ds_write_b32 v{vT}, v{vT+1}')
    a('K2_novf:')
    a(f'v_mov_b32 v170, 1')
    a(f's_waitcnt vmcnt({7 + (2 if opt.get("tlb") else 0)})')
    stamp(a, opt, 2, 255)
    EAP = 184
    npf = opt.get('eapf', 1)
    if npf:
        a(f's_mov_b64 exec, s[{sMask}:{sMask+1}]')
        a(f'v_and_b32 v183, 0xffffff, v2')
        a(f'v_lshlrev_b32 v183, 5, v183')
        a(f'buffer_load_dwordx4 {q4(EAP)}, v183, s[8:11], 0 offen nt')
        a(f'buffer_load_dwordx4 {q4(EAP+4)}, v183, s[8:11], 0 offen offset:16 nt')
        a('s_mov_b64 exec, -1')
    def hist(beta):
        for k in range(7):
            u = beta*7 + k
            a(f's_mov_b64 exec, s[{sMask+2*u}:{sMask+2*u+1}]')
            a(f'v_lshrrev_b32 v{161+k}, 22, v{4*u+2}')
            a(f'v_and_b32 v{161+k}, 0x3fc, v{161+k}')
            a(f'ds_add_rtn_u32 v{4*u+3}, v{161+k}, v170 offset:{L_CNT}')
        a('s_mov_b64 exec, -1')
    hist(0); hist(1)
    a(f's_cmp_eq_u64 s[{sB2}:{sB2+1}], 0')
    a('s_cbranch_scc1 K2_nb2b')
    hist(2)
    a('K2_nb2b:')
    a('s_waitcnt lgkmcnt(0)')
    a('s_barrier')
    stamp(a, opt, 3, 255)
    a(f's_waitcnt vmcnt({2 if npf else 0})')
    a(f'v_lshlrev_b32 v{vT+5}, 4, v{vLane}')
    a(f's_mov_b32 s{sU+8}, {L_P}')
    a(f's_mov_b32 s{sU+9}, {L_W - 10240}')
    for u in range(7):
        a(f's_cmp_lt_u32 s{sU+u}, 10240')
        a(f's_cselect_b32 s{sT}, s{sU+8}, s{sU+9}')
        a(f's_add_u32 s{sT}, s{sT}, s{sU+u}')
        a(f'v_add_u32 v{vT+6}, s{sT}, v{vT+5}')
        a(f'ds_write_b128 v{vT+6}, {q4(124+4*u)}')
    a(f'v_mov_b32 v{vT}, {L_FLAG}')
    a(f'ds_read_b32 v{vT+1}, v{vT}')
    a('s_waitcnt lgkmcnt(0)')
    a(f'v_readfirstlane_b32 s{sT}, v{vT+1}')
    a(f's_cmp_lg_u32 s{sT}, 0')
    a('s_cbranch_scc1 K2_slow')
    a(f's_cmp_lg_u32 s{sWave}, 0')
    a('s_cbranch_scc1 K2_p6')
    DG = 152; KY = 156; RK = 160; PO = 164; SO = 168
    a(f'v_lshlrev_b32 v{vT}, 4, v{vLane}')
    a(f'ds_read_b128 {q4(DG)}, v{vT} offset:{L_CNT}')
    a(f'v_cmp_gt_u32 vcc, 49, v{vLane}')
    a(f's_mov_b64 s[{sU}:{sU+1}], vcc')
    a(f'v_lshlrev_b32 v{vT+1}, 2, v{vLane}')
    for k in range(4): a(f'v_mov_b32 v{KY+k}, 0'); a(f'v_mov_b32 v{RK+k}, 0')
    a('s_waitcnt lgkmcnt(0)')
    a(f's_mov_b64 exec, s[{sU}:{sU+1}]')
    for k in range(4):
        a(f'v_min_u32 v{KY+k}, 63, v{DG+k}')
        a(f'v_sub_u32 v{KY+k}, 63, v{KY+k}')
        a(f'v_lshlrev_b32 v{KY+k}, 2, v{KY+k}')
        a(f'ds_add_rtn_u32 v{RK+k}, v{KY+k}, v170 offset:{L_BINS}')
    a('s_mov_b64 exec, -1')
    a(f'ds_read_b32 v{vT+2}, v{vT+1} offset:{L_BINS}')
    a('s_waitcnt lgkmcnt(0)')
    a(f'v_mov_b32 v{vT+3}, v{vT+2}')
    wave_scan(a, vT+3)
    a(f'v_sub_u32 v{vT+3}, v{vT+3}, v{vT+2}')
    for k in range(4): a(f'ds_bpermute_b32 v{PO+k}, v{KY+k}, v{vT+3}')
    a('s_waitcnt lgkmcnt(0)')
    a(f's_mov_b64 exec, s[{sU}:{sU+1}]')
    for k in range(4):
        a(f'v_add_u32 v{PO+k}, v{PO+k}, v{RK+k}')
        a(f'v_add_u32 v{vT+4}, {k}, v{vT+1}')
        a(f'v_lshl_or_b32 v{vT+4}, v{DG+k}, 8, v{vT+4}')
        a(f'v_lshlrev_b32 v{vT+5}, 2, v{PO+k}')
        a(f'ds_write_b32 v{vT+5}, v{vT+4} offset:{L_SORT}')
    a('s_mov_b64 exec, -1')
    a(f'ds_read_b128 {q4(SO)}, v{vT} offset:{L_SORT}')
    a(f'v_cmp_gt_u32 vcc, 49, v{vLane}')
    a('s_waitcnt lgkmcnt(0)')
    a(f'v_max3_u32 v{SO}, v{SO}, v{SO+1}, v{SO+2}')
    a(f'v_max_u32 v{SO}, v{SO}, v{SO+3}')
    a(f'v_lshrrev_b32 v{SO}, 8, v{SO}')
    a(f'v_add_u32 v{SO}, 1, v{SO}')
    a(f'v_lshrrev_b32 v{SO}, 1, v{SO}')
    a(f'v_max_u32 v{SO}, 1, v{SO}')
    a(f'v_cndmask_b32 v{SO}, 0, v{SO}, vcc')
    a(f'v_mov_b32 v{SO+1}, v{SO}')
    wave_scan(a, SO+1)
    a(f'v_sub_u32 v{SO+1}, v{SO+1}, v{SO}')
    a(f'v_min_u32 v{SO+2}, 0xffff, v{SO+1}')
    a(f'v_min_u32 v{SO+3}, 0xffff, v{SO}')
    a(f'v_lshl_or_b32 v{SO+2}, v{SO+3}, 16, v{SO+2}')
    a(f'ds_write_b32 v{vT+1}, v{SO+2} offset:{L_QI}')
    for k in range(4):
        a(f'v_and_b32 v{KY+k}, 0xfc, v{PO+k}')
        a(f'ds_bpermute_b32 v{RK+k}, v{KY+k}, v{SO+1}')
    a('s_waitcnt lgkmcnt(0)')
    for k in range(4):
        a(f'v_and_b32 v{PO+k}, 3, v{PO+k}')
        a(f'v_lshlrev_b32 v{PO+k}, 1, v{PO+k}')
        a(f'v_lshl_add_u32 v{RK+k}, v{RK+k}, 3, v{PO+k}')
    a(f's_mov_b64 exec, s[{sU}:{sU+1}]')
    a(f'ds_write_b128 v{vT}, {q4(RK)} offset:{L_BASE}')
    a('s_mov_b64 exec, -1')
    a('K2_p6:')
    a('s_waitcnt lgkmcnt(0)')
    a('s_barrier')
    stamp(a, opt, 4, 255)
    a(f'v_lshlrev_b32 v{vT+1}, 2, v{vLane}')
    a(f'ds_read_b32 v{vT+2}, v{vT+1} offset:{L_QI}')
    a('s_waitcnt lgkmcnt(0)')
    a(f'v_and_b32 v{vT+3}, 0xffff, v{vT+2}')
    a(f'v_lshrrev_b32 v{vSteps}, 16, v{vT+2}')
    a(f'v_mov_b32 v226, v{vT+3}')
    a(f'v_readlane_b32 s{sT}, v{vT+3}, 63')
    if opt.get('ts'): a(f'v_writelane_b32 v255, s{sT}, 9')
    a(f's_cmp_gt_u32 s{sT}, {NULLSTEP}')
    a('s_cbranch_scc1 K2_slow')
    if opt.get('thr'):
        a(f's_sub_i32 s{sThr}, s{sT}, {opt.get("t0", 401)}')
        a(f's_mul_i32 s{sThr}, s{sThr}, {opt.get("tmul", 4)}')
        a(f's_ashr_i32 s{sThr}, s{sThr}, 4')
        a(f's_cmp_lt_i32 s{sWave}, s{sThr}')
        a(f's_cselect_b32 s{sThr}, 0, 1')
    def scat(beta):
        for k in range(7):
            u = beta*7 + k
            a(f's_mov_b64 exec, s[{sMask+2*u}:{sMask+2*u+1}]')
            a(f'v_lshrrev_b32 v{161+k}, 22, v{4*u+2}')
            a(f'v_and_b32 v{161+k}, 0x3fc, v{161+k}')
            a(f'ds_read_b32 v{176+k}, v{161+k} offset:{L_BASE}')
        for k in range(7):
            u = beta*7 + k
            a(f's_mov_b64 exec, s[{sMask+2*u}:{sMask+2*u+1}]')
            a(f'v_lshrrev_b32 v{vT}, 1, v{4*u+3}')
            a(f'v_and_b32 v{vT+1}, 1, v{4*u+3}')
            if u == 0 and npf:
                a(f'v_lshlrev_b32 v{vT+2}, 5, v{vTid}')
                a(f'v_add_u32 v{vT+2}, {0x80000000 + L_EA}, v{vT+2}')
            else:
                a(f'v_and_b32 v{vT+2}, 0xffffff, v{4*u+2}')
                a(f'v_lshlrev_b32 v{vT+2}, 5, v{vT+2}')
            a(f's_waitcnt lgkmcnt({min(15, 6 - k + 2*k)})') if False else None
            if k == 0: a('s_waitcnt lgkmcnt(0)')
            a(f'v_lshl_add_u32 v{vT}, v{vT}, 3, v{176+k}')
            a(f'v_add_u32 v{vT}, v{vT}, v{vT+1}')
            a(f'v_lshlrev_b32 v{vT+3}, 3, v{vT}')
            a(f'v_lshlrev_b32 v{vT+4}, 2, v{vT}')
            a(f'ds_write_b64 v{vT+3}, v[{4*u}:{4*u+1}] offset:{L_RECA}')
            a(f'ds_write_b32 v{vT+4}, v{vT+2} offset:{L_RECB}')
        a('s_mov_b64 exec, -1')
    scat(0); scat(1)
    a(f's_cmp_eq_u64 s[{sB2}:{sB2+1}], 0')
    a('s_cbranch_scc1 K2_nb2c')
    scat(2)
    a('K2_nb2c:')
    a(f'v_lshlrev_b32 v{vT}, 4, v{vLane}')
    a(f'v_add_u32 v{vT}, {L_P}, v{vT}')
    for t in range(10): a(f'ds_read_b128 {q4(RAD+4*t)}, v{vT} offset:{t*1024}')
    if npf:
        a(f'v_lshlrev_b32 v{vT+1}, 5, v{vTid}')
        a(f'v_add_u32 v{vT+1}, {L_EA}, v{vT+1}')
        a('s_waitcnt vmcnt(0)')
        a(f'ds_write_b128 v{vT+1}, {q4(EAP)}')
        a(f'ds_write_b128 v{vT+1}, {q4(EAP+4)} offset:16')
    a('s_waitcnt lgkmcnt(0)')
    a('s_barrier')
    stamp(a, opt, 5, 255)

_uid = [0]
DEFER = []
vNa = 251; vNb = 252; vLow = 253; sAct = 44
def rec_read(a, sg):
    _uid[0] += 1; u = _uid[0]
    a(f's_cmp_lg_u32 s{sPfT}, s{sPfEnd}')
    a(f's_cbranch_scc0 K2_sw{u}')
    a(f'K2_have{u}:')
    a(f's_add_u32 s{sPfT}, s{sPfT}, 1')
    a(f's_cmp_eq_u32 s{sPfT}, s{sPfEnd}')
    a(f's_cselect_b32 s{sTag+sg}, s{sPfQ}, -1')
    a(f'K2_go{u}:')
    a(f'ds_read_b128 {q4(YP+4*sg)}, v{vNa}')
    a(f'ds_read_b32 v{vEN}, v{vNb}')
    a(f'v_add_u32 v{vNa}, 64, v{vNa}')
    a(f'v_add_u32 v{vNb}, 32, v{vNb}')
    def cold(a, u=u, sg=sg):
        a(f'K2_sw{u}:')
        a(f'v_readfirstlane_b32 s{sNQ}, v{vGrab}')
        a(f's_add_u32 s{sNQ}, s{sNQ}, 8')
        a(f's_cmp_ge_u32 s{sNQ}, 49')
        a(f's_cbranch_scc1 K2_exh{u}')
        a(f's_mov_b32 s{sPfQ}, s{sNQ}')
        a(f'v_readlane_b32 s{sPfT}, v{vSBase}, s{sNQ}')
        a(f'v_readlane_b32 s{sT}, v{vSteps}, s{sNQ}')
        a('s_mov_b64 exec, 1')
        a(f'ds_add_rtn_u32 v{vGrab}, v{vCtr}, v{vOne}')
        a('s_mov_b64 exec, -1')
        a(f's_add_u32 s{sPfEnd}, s{sPfT}, s{sT}')
        a(f's_lshl_b32 s{sOffA}, s{sPfT}, 6')
        a(f's_lshr_b32 s{sOffB}, s{sOffA}, 1')
        a(f'v_add_u32 v{vNa}, s{sOffA}, v{vRecA}')
        a(f'v_add_u32 v{vNb}, s{sOffB}, v{vRecB}')
        a(f's_branch K2_have{u}')
        a(f'K2_exh{u}:')
        a(f'v_add_u32 v{vNa}, {NULLSTEP*64}, v{vRecA}')
        a(f'v_add_u32 v{vNb}, {NULLSTEP*32}, v{vRecB}')
        a(f's_mov_b32 s{sTag+sg}, -2')
        a(f's_branch K2_go{u}')
    DEFER.append(cold)

def grab_result(a):
    pass

def issue_loads(a, sg, opt, part=None):
    ent = POL[opt.get('eapol', 4)]
    if opt.get('noload'): return
    xp = POL[opt.get('xpol', 0)]
    if part in (None, 0):
        a(f'v_mad_u32_u16 v{vXA0}, v{YP+4*sg}, s{s512}, v{vLaneX}')
        a(f'v_mad_u32_u16 v{vXA1}, v{YP+4*sg+2}, s{s512}, v{vLaneX}')
        a(f'v_or_b32 v{vEA}, v{vEN}, v{vLaneMask}')
        if opt.get('eapf', 1):
            a(f'v_cmp_gt_i32 vcc, 0, v{vEN}')
            a(f'v_and_b32 v{vTa}, v{vLow}, v{vEA}')
            a(f's_andn2_b64 exec, s[{sAct}:{sAct+1}], vcc')
            a(f'buffer_load_dwordx4 {q4(AS+4*sg)}, v{vEA}, s[8:11], 0 offen{ent}')
            a(f's_and_b64 exec, s[{sAct}:{sAct+1}], vcc')
            a(f'ds_read_b128 {q4(AS+4*sg)}, v{vTa}')
            a('s_mov_b64 exec, -1')
        else:
            a(f'buffer_load_dwordx4 {q4(AS+4*sg)}, v{vEA}, s[8:11], 0 offen{ent}')
    for s, va in ((0, vXA0), (1, vXA1)):
        if part is not None and part != s: continue
        for v in range(4):
            a(f'buffer_load_dwordx2 {pr(XS+16*sg+8*s+2*v)}, v{va}, s[4:7], 0 offen offset:{128*v}{xp}')

def Fp(v, h): return F + 8*h + 2*v
def Rp(p, h, s): return R + (2*p + h)*4 + 2*s
def Ap(f, h): return ACC + 4*f + 2*h

def unpack_ops(sg, s):
    ops = []
    for v in range(4):
        for h in range(2):
            src = XS + 16*sg + 8*s + 2*v + h
            ops.append(f'v_lshlrev_b32 v{Fp(v,h)}, 16, v{src}')
            ops.append(f'v_and_b32 v{Fp(v,h)+1}, v{vHi}, v{src}')
    return ops

def compute_slot(a, s):
    Yr = (Y + 3*s, Y + 3*s + 1, Y + 3*s + 2)
    ch = [(h, p) for h in range(2) for p in range(2)]
    Fv = lambda v, c: Fp(v, c[0]) + c[1]
    Rv = lambda p, c: Rp(p, c[0], s) + c[1]
    Av = lambda f, c: Ap(f, c[0]) + c[1]
    dot = lambda c: TMP + 2*c[0] + c[1]
    t = lambda c: TMP + 4 + 2*c[0] + c[1]
    fmac = lambda d, x, y: a(f'v_fmac_f32 v{d}, v{x}, v{y}')
    mul = lambda d, x, y: a(f'v_mul_f32 v{d}, v{x}, v{y}')
    fms = lambda d, x, y: a(f'v_fma_f32 v{d}, -v{x}, v{y}, v{d}')
    seq = [
        lambda c: fmac(Av(0,c), Fv(0,c), Rv(0,c)),
        lambda c: mul(dot(c), Fv(1,c), Yr[0]),
        lambda c: mul(t(c), Fv(0,c), Rv(2,c)),
        lambda c: fmac(dot(c), Fv(2,c), Yr[1]),
        lambda c: fmac(Av(5,c), Fv(1,c), Rv(3,c)),
        lambda c: fmac(dot(c), Fv(3,c), Yr[2]),
        lambda c: fmac(Av(2,c), t(c), Yr[0]),
        lambda c: fmac(Av(6,c), Fv(2,c), Rv(3,c)),
        lambda c: fmac(Av(3,c), t(c), Yr[1]),
        lambda c: fmac(Av(7,c), Fv(3,c), Rv(3,c)),
        lambda c: fmac(Av(4,c), t(c), Yr[2]),
        lambda c: fmac(Av(1,c), dot(c), Rv(1,c)),
        lambda c: mul(Fv(1,c), Fv(1,c), Rv(4,c)),
        lambda c: mul(Fv(2,c), Fv(2,c), Rv(4,c)),
        lambda c: mul(Fv(3,c), Fv(3,c), Rv(4,c)),
        lambda c: fmac(Av(9,c), Fv(1,c), Yr[2]),
        lambda c: fmac(Av(10,c), Fv(2,c), Yr[0]),
        lambda c: fmac(Av(8,c), Fv(3,c), Yr[1]),
        lambda c: fms(Av(10,c), Fv(1,c), Yr[1]),
        lambda c: fms(Av(8,c), Fv(2,c), Yr[2]),
        lambda c: fms(Av(9,c), Fv(3,c), Yr[0]),
    ]
    for op in seq:
        for c in ch: op(c)

def step(a, sg, D, opt):
    a(f's_mov_b32 s{sCur}, s{sTag+sg}')
    for s in range(2):
        a(f'v_and_b32 v{Y+3*s}, v{vHi}, v{YP+4*sg+2*s}')
        a(f'v_lshlrev_b32 v{Y+3*s+1}, 16, v{YP+4*sg+2*s+1}')
        a(f'v_and_b32 v{Y+3*s+2}, v{vHi}, v{YP+4*sg+2*s+1}')
    rec_read(a, sg)
    a(f's_waitcnt vmcnt({9*(D-1)})')
    if opt.get('thr'):
        _uid[0] += 1
        a(f's_cmp_eq_u32 s{sThr}, 0')
        a(f's_cbranch_scc1 K2_nt{_uid[0]}')
        a(f's_waitcnt vmcnt({9*(D-2)})')
        a(f'K2_nt{_uid[0]}:')
    fill = unpack_ops(sg, 0)
    mf = []
    for p in (0, 2, 3, 1, 4):
        for h in range(2):
            mf.append(f'v_mfma_f32_16x16x32_bf16 {q4(R+(2*p+h)*4)}, {q4(AS+4*sg)}, {q4(RAD+(2*p+h)*4)}, 0')
    if opt.get('nomfma'): mf = []
    if opt.get('mfb2b', 1):
        for m in mf: a(m)
        for o in fill: a(o)
    else:
        fi = 0
        for k, m in enumerate(mf):
            a(m)
            for _ in range(2):
                if fi < len(fill): a(fill[fi]); fi += 1
        while fi < len(fill): a(fill[fi]); fi += 1
    if opt.get('early', 0):
        a('s_waitcnt lgkmcnt(0)')
        if opt.get('prio'): a('s_setprio 1')
        issue_loads(a, sg, opt, 0)
        if opt.get('prio'): a('s_setprio 0')
        if not opt.get('nocomp'): compute_slot(a, 0)
        for o in unpack_ops(sg, 1): a(o)
        if opt.get('prio'): a('s_setprio 1')
        issue_loads(a, sg, opt, 1)
        if opt.get('prio'): a('s_setprio 0')
        if not opt.get('nocomp'): compute_slot(a, 1)
        return
    if not opt.get('nocomp'):
        compute_slot(a, 0)
        for o in unpack_ops(sg, 1): a(o)
        compute_slot(a, 1)
    if opt.get('prio'): a('s_setprio 1')
    a('s_waitcnt lgkmcnt(0)')
    grab_result(a)
    issue_loads(a, sg, opt)
    if opt.get('prio'): a('s_setprio 0')

def featoff(f):
    if f < 2: return 128*f
    f -= 2; kind, j = f // 3, f % 3
    return 256 + PJS*j + 128*kind

def flush(a, opt):
    if opt.get('noflush'): return
    D0 = R; D1 = R + 16; BR = R + 32; AR = F
    issued = ['(A operand read of the step just prefetched)'] if opt.get('eapf', 1) else []
    def ds(text):
        issued.append(text); a(text)
    state = {'done': 0}
    def wait_for(idx):
        n = len(issued) - 1 - idx
        if idx >= state['done']:
            a(f's_waitcnt lgkmcnt({min(n, 15)})'); state['done'] = len(issued) - min(n, 15)
    def room():
        if len(issued) - state['done'] >= 15: wait_for(len(issued) - 12)
    a(f's_lshl_b32 s{sT}, s{sCur}, 4')
    a(f'v_add_u32 v{vTa}, s{sT}, v{vOrd}')
    ds(f'ds_read_b32 v{vTb}, v{vTa}')
    for f in range(11):
        t0 = F + 2*(f % 8)
        a(f'v_cvt_pk_bf16_f32 v{t0}, v{ACC+4*f}, v{ACC+4*f+1}')
        a(f'v_cvt_pk_bf16_f32 v{t0+1}, v{ACC+4*f+2}, v{ACC+4*f+3}')
        room()
        ds(f'ds_write_b64 v{vPW}, {pr(t0)} offset:{featoff(f)}')
    groups = [(0, ks) for ks in range(4)] + [(1, ks) for ks in range(6)]
    idxA = {}; idxB = {}
    def loadB(gi):
        c, ks = groups[gi]
        room(); idxB[gi] = len(issued)
        ds(f'ds_read_b128 {q4(BR+4*(gi%2))}, v{vPR1 if c else vPR0} offset:{ks*64}')
    def loadA(u):
        gi, t = divmod(u, 4); c, ks = groups[gi]
        tile = (ks*4 + t) + (16 if c else 0)
        room(); idxA[u] = len(issued)
        ds(f'ds_read_b128 {q4(AR+4*(u%NA))}, v{vWR} offset:{tile*1024}')
    if NA == 8:
        loadB(0)
        for u in range(4): loadA(u)
        loadB(1)
        for u in range(4, 8): loadA(u)
        for k in range(44): a(f'v_mov_b32 v{ACC+k}, 0')
        for gi, (c, ks) in enumerate(groups):
            wait_for(max(idxA[4*gi+3], idxB[gi]))
            for t in range(4):
                u = 4*gi + t
                Dr = (D1 if c else D0) + 4*t
                cop = '0' if ks == 0 else q4(Dr)
                a(f'v_mfma_f32_16x16x32_bf16 {q4(Dr)}, {q4(AR+4*(u%NA))}, {q4(BR+4*(gi%2))}, {cop}')
            if gi + 2 < len(groups):
                loadB(gi + 2)
                for t in range(4): loadA(4*(gi+2) + t)
    else:
        loadB(0)
        for u in range(4): loadA(u)
        loadB(1)
        for u in range(4, NA): loadA(u)
        for k in range(44): a(f'v_mov_b32 v{ACC+k}, 0')
        for u in range(40):
            gi, t = divmod(u, 4); c, ks = groups[gi]
            wait_for(max(idxA[u], idxB[gi]))
            Dr = (D1 if c else D0) + 4*t
            cop = '0' if ks == 0 else q4(Dr)
            a(f'v_mfma_f32_16x16x32_bf16 {q4(Dr)}, {q4(AR+4*(u%NA))}, {q4(BR+4*(gi%2))}, {cop}')
            if t == 3 and gi + 2 < len(groups): loadB(gi + 2)
            if u + NA < 40: loadA(u + NA)
    SEL = F; G = F + 4; O1 = F + 8; O0 = TMP
    a(f'v_and_b32 v{vTb}, 0xff, v{vTb}')
    a(f'v_lshl_add_u32 v{vTb}, v{vTb}, 9, s{sNode}')
    a(f'v_add_u32 v{vTa}, v{vTb}, v{vOut0}')
    a(f'v_add_u32 v{vTb}, v{vTb}, v{vOut1}')
    SEL = D0
    for t, m in ((1, sM1), (2, sM2), (3, sM3)):
        a(f's_mov_b64 exec, s[{m}:{m+1}]')
        for r in range(4): a(f'v_mov_b32 v{SEL+r}, v{D0+4*t+r}')
    a('s_mov_b64 exec, -1')
    for r in range(4): a(f'v_mul_f32 v{G+r}, 0xbfb8aa3b, v{SEL+r}')
    for r in range(4): a(f'v_exp_f32 v{G+r}, v{G+r}')
    for r in range(4): a(f'v_add_f32 v{G+r}, 1.0, v{G+r}')
    for r in range(4): a(f'v_rcp_f32 v{G+r}, v{G+r}')
    a(f'v_cvt_pk_bf16_f32 v{O0}, v{SEL}, v{SEL+1}')
    a(f'v_cvt_pk_bf16_f32 v{O0+1}, v{SEL+2}, v{SEL+3}')
    a(f'buffer_store_dwordx2 {pr(O0)}, v{vTa}, s[12:15], 0 offen{POL[opt.get("stpol", 1)]}')
    for t in range(4):
        for r in range(4):
            a(f'v_mul_f32_dpp v{D1+4*t+r}, v{G+r}, v{D1+4*t+r} quad_perm:[{t},{t},{t},{t}] row_mask:0xf bank_mask:0xf')
    for t in range(4):
        a(f'v_cvt_pk_bf16_f32 v{O1+2*t}, v{D1+4*t}, v{D1+4*t+1}')
        a(f'v_cvt_pk_bf16_f32 v{O1+2*t+1}, v{D1+4*t+2}, v{D1+4*t+3}')
    a(f'buffer_store_dwordx4 {q4(O1)}, v{vTb}, s[12:15], 0 offen{POL[opt.get("stpol", 1)]}')
    a(f'buffer_store_dwordx4 {q4(O1+4)}, v{vTb}, s[12:15], 0 offen offset:16{POL[opt.get("stpol", 1)]}')

def slow_path(a, opt):
    WR = 100; AC = 0; FX = 12; AE = 16; AV = 24; RR = 40; T = 46; TB_ = 52; REC = 56; vL2 = 60; vZ = 61; vPB = 62; vL4 = 63
    G0 = 64; G1 = 65
    sW0 = 52; sW1 = 56; sWR = 48
    sN = 60; sC = 61; sCntS = 62; sStart = 63; sJ = 64; sMask_ = 66; sBit = 68; sD0 = 69; sD1 = 70; sD2 = 71
    sY0 = 72; sY1 = 73; sY2 = 74; sXo = 75; sEo = 76; sK = 77; sRow = 78; sPB = 79; sTmp = 80; sTmp2 = 81; sHiM = 82
    a('s_mov_b64 exec, -1')
    a(f's_load_dwordx2 s[{sWR}:{sWR+1}], s[0:1], 40')
    a(f's_load_dwordx2 s[{sW0}:{sW0+1}], s[0:1], 48')
    a(f's_load_dwordx2 s[{sW1}:{sW1+1}], s[0:1], 56')
    a(f'v_lshlrev_b32 v{vL2}, 1, v{vLane}')
    a(f'v_lshlrev_b32 v{vL4}, 2, v{vLane}')
    a(f'v_mov_b32 v{vZ}, 0')
    a(f's_mov_b32 s{sHiM}, 0xffff0000')
    a(f's_mul_i32 s{sPB}, s{sWave}, {4*PS}')
    a(f's_add_u32 s{sPB}, s{sPB}, {L_P}')
    a(f'v_add_u32 v{vPB}, s{sPB}, v{vL4}')
    a('s_waitcnt lgkmcnt(0)')
    srd(a, sWR, 16*320*2); srd(a, sW0, 128*64*2); srd(a, sW1, 192*64*2)
    for p in range(5):
        for d in range(16):
            off = (d*320 + 64*p)*2
            a(f's_mov_b32 s{sTmp}, {off}')
            a(f'buffer_load_ushort v{WR+16*p+d}, v{vL2}, s[{sWR}:{sWR+3}], s{sTmp} offen')
        a('s_waitcnt vmcnt(0)')
        for d in range(16): a(f'v_lshlrev_b32 v{WR+16*p+d}, 16, v{WR+16*p+d}')
    TBL = 3072
    for k in range(4):
        a(f'v_add_u32 v{T}, {64*k}, v{vLane}')
        a(f'v_cmp_gt_u32 vcc, {NCH}, v{T}')
        a(f'v_lshlrev_b32 v{T+1}, 10, v{T}')
        a(f's_lshl_b32 s{sTmp}, s2, 2')
        a(f's_add_u32 s{sTmp}, s{sTmp}, {TAB_OFF}')
        a(f'buffer_load_dword v{T+2}, v{T+1}, s[16:19], s{sTmp} offen')
        a('s_waitcnt vmcnt(0)')
        a(f'v_cndmask_b32 v{T+2}, 0, v{T+2}, vcc')
        a(f'ds_write_b32 v{vPB}, v{T+2} offset:{TBL + 256*k}')
    a(f's_mov_b32 s{sN}, s{sWave}')
    a('KS_node:')
    a(f's_cmp_ge_u32 s{sN}, {NPB}')
    a('s_cbranch_scc1 K2_end')
    a(f's_mul_i32 s{sRow}, s2, {NPB}')
    a(f's_add_u32 s{sRow}, s{sRow}, s{sN}')
    a(f's_cmp_ge_u32 s{sRow}, {N}')
    a('s_cbranch_scc1 K2_end')
    a(f's_lshl_b32 s{sRow}, s{sRow}, 9')
    for f in range(11): a(f'v_mov_b32 v{AC+f}, 0')
    a(f's_mov_b32 s{sC}, 0')
    a('KS_chunk:')
    a(f's_lshl_b32 s{sTmp}, s{sC}, 2')
    a(f's_add_u32 s{sTmp}, s{sTmp}, s{sPB}')
    a(f'v_mov_b32 v{T}, s{sTmp}')
    a(f'ds_read_b32 v{T+1}, v{T} offset:{TBL}')
    a('s_waitcnt lgkmcnt(0)')
    a(f'v_readfirstlane_b32 s{sTmp}, v{T+1}')
    a(f's_and_b32 s{sStart}, s{sTmp}, 0xffff')
    a(f's_lshr_b32 s{sCntS}, s{sTmp}, 16')
    a(f's_mul_i32 s{sTmp}, s{sC}, {CH}')
    a(f's_add_u32 s{sStart}, s{sStart}, s{sTmp}')
    a(f's_mov_b32 s{sJ}, 0')
    a('KS_batch:')
    a(f's_cmp_ge_u32 s{sJ}, s{sCntS}')
    a('s_cbranch_scc1 KS_chunk_next')
    a(f'v_add_u32 v{T}, s{sJ}, v{vLane}')
    a(f'v_cmp_gt_u32 vcc, s{sCntS}, v{T}')
    a(f'v_add_u32 v{T}, s{sStart}, v{T}')
    a(f'v_mul_u32_u24 v{T}, 12, v{T}')
    a(f'v_mov_b32 v{T+1}, 2.0')
    a(f'v_cndmask_b32 v{T}, v{T+1}, v{T}, vcc')
    a(f's_mov_b64 s[{sMask_}:{sMask_+1}], vcc')
    a(f'buffer_load_dwordx3 v[{REC}:{REC+2}], v{T}, s[16:19], 0 offen')
    a('s_waitcnt vmcnt(0)')
    a(f'v_lshrrev_b32 v{T}, 24, v{REC+2}')
    a(f'v_cmp_eq_u32 vcc, s{sN}, v{T}')
    a(f's_and_b64 s[{sMask_}:{sMask_+1}], s[{sMask_}:{sMask_+1}], vcc')
    a('KS_edge:')
    a(f's_cmp_eq_u64 s[{sMask_}:{sMask_+1}], 0')
    a('s_cbranch_scc1 KS_batch_next')
    a(f's_ff1_i32_b64 s{sBit}, s[{sMask_}:{sMask_+1}]')
    a(f's_bitset0_b64 s[{sMask_}:{sMask_+1}], s{sBit}')
    a(f'v_readlane_b32 s{sD0}, v{REC}, s{sBit}')
    a(f'v_readlane_b32 s{sD1}, v{REC+1}, s{sBit}')
    a(f'v_readlane_b32 s{sD2}, v{REC+2}, s{sBit}')
    a(f's_and_b32 s{sXo}, s{sD0}, 0xffff')
    a(f's_lshl_b32 s{sXo}, s{sXo}, 9')
    a(f's_and_b32 s{sEo}, s{sD2}, 0xffffff')
    a(f's_lshl_b32 s{sEo}, s{sEo}, 5')
    a(f's_and_b32 s{sY0}, s{sD0}, s{sHiM}')
    a(f's_lshl_b32 s{sY1}, s{sD1}, 16')
    a(f's_and_b32 s{sY2}, s{sD1}, s{sHiM}')
    for v in range(4): a(f'buffer_load_ushort v{FX+v}, v{vL2}, s[4:7], s{sXo} offen offset:{128*v}')
    a(f'buffer_load_dwordx4 v[{AE}:{AE+3}], v{vZ}, s[8:11], s{sEo} offen')
    a(f'buffer_load_dwordx4 v[{AE+4}:{AE+7}], v{vZ}, s[8:11], s{sEo} offen offset:16')
    a('s_waitcnt vmcnt(0)')
    for v in range(4): a(f'v_lshlrev_b32 v{FX+v}, 16, v{FX+v}')
    for q in range(8):
        a(f'v_lshlrev_b32 v{AV+2*q}, 16, v{AE+q}')
        a(f'v_and_b32 v{AV+2*q+1}, s{sHiM}, v{AE+q}')
    for p in range(5):
        a(f'v_mul_f32 v{RR+p}, v{AV}, v{WR+16*p}')
        for d in range(1, 16): a(f'v_fmac_f32 v{RR+p}, v{AV+d}, v{WR+16*p+d}')
    f0, f1 = FX, FX + 1
    a(f'v_fmac_f32 v{AC+0}, v{f0}, v{RR+0}')
    a(f'v_mul_f32 v{T}, s{sY0}, v{f1}')
    a(f'v_fmac_f32 v{T}, s{sY1}, v{f1+1}')
    a(f'v_fmac_f32 v{T}, s{sY2}, v{f1+2}')
    a(f'v_fmac_f32 v{AC+1}, v{T}, v{RR+1}')
    a(f'v_mul_f32 v{T}, v{f0}, v{RR+2}')
    for j, y in enumerate((sY0, sY1, sY2)): a(f'v_fmac_f32 v{AC+2+j}, s{y}, v{T}')
    for j in range(3): a(f'v_fmac_f32 v{AC+5+j}, v{f1+j}, v{RR+3}')
    for j in range(3): a(f'v_mul_f32 v{T+1+j}, v{f1+j}, v{RR+4}')
    a(f'v_fmac_f32 v{AC+8}, s{sY1}, v{T+3}')
    a(f'v_fma_f32 v{AC+8}, -s{sY2}, v{T+2}, v{AC+8}')
    a(f'v_fmac_f32 v{AC+9}, s{sY2}, v{T+1}')
    a(f'v_fma_f32 v{AC+9}, -s{sY0}, v{T+3}, v{AC+9}')
    a(f'v_fmac_f32 v{AC+10}, s{sY0}, v{T+2}')
    a(f'v_fma_f32 v{AC+10}, -s{sY1}, v{T+1}, v{AC+10}')
    a('s_branch KS_edge')
    a('KS_batch_next:')
    a(f's_add_u32 s{sJ}, s{sJ}, 64')
    a('s_branch KS_batch')
    a('KS_chunk_next:')
    a(f's_add_u32 s{sC}, s{sC}, 1')
    a(f's_cmp_lt_u32 s{sC}, {NCH}')
    a('s_cbranch_scc1 KS_chunk')
    for f in range(11): a(f'ds_write_b32 v{vPB}, v{AC+f} offset:{256*f}')
    for g in range(4): a(f'v_mov_b32 v{G0+g}, 0')
    a(f's_mov_b32 s{sK}, 0')
    a('KS_g0:')
    a(f's_lshl_b32 s{sTmp}, s{sK}, 2')
    a(f's_add_u32 s{sTmp}, s{sTmp}, s{sPB}')
    a(f'v_mov_b32 v{T}, s{sTmp}')
    a(f's_lshl_b32 s{sTmp2}, s{sK}, 7')
    for u in range(8):
        a(f'ds_read_b32 v{AV+u}, v{T} offset:{4*u}')
        a(f'buffer_load_ushort v{AV+8+u}, v{vL2}, s[{sW0}:{sW0+3}], s{sTmp2} offen offset:{128*u}')
    a('s_waitcnt vmcnt(0) lgkmcnt(0)')
    for u in range(8):
        a(f'v_lshlrev_b32 v{AV+8+u}, 16, v{AV+8+u}')
        a(f'v_fmac_f32 v{G0}, v{AV+u}, v{AV+8+u}')
    a(f's_add_u32 s{sK}, s{sK}, 8')
    a(f's_cmp_lt_u32 s{sK}, 128')
    a('s_cbranch_scc1 KS_g0')
    a(f's_mov_b32 s{sK}, 0')
    a('KS_g1:')
    a(f's_lshr_b32 s{sTmp}, s{sK}, 6')
    a(f's_mul_i32 s{sTmp}, s{sTmp}, 768')
    a(f's_and_b32 s{sTmp2}, s{sK}, 63')
    a(f's_lshl_b32 s{sTmp2}, s{sTmp2}, 2')
    a(f's_add_u32 s{sTmp}, s{sTmp}, s{sTmp2}')
    a(f's_add_u32 s{sTmp}, s{sTmp}, s{sPB}')
    a(f'v_mov_b32 v{T}, s{sTmp}')
    a(f's_lshl_b32 s{sTmp2}, s{sK}, 7')
    for u in range(4):
        for j in range(3): a(f'ds_read_b32 v{AV+3*u+j}, v{T} offset:{512 + 256*j + 4*u}')
        a(f'buffer_load_ushort v{AV+12+u}, v{vL2}, s[{sW1}:{sW1+3}], s{sTmp2} offen offset:{128*u}')
    a('s_waitcnt vmcnt(0) lgkmcnt(0)')
    for u in range(4):
        a(f'v_lshlrev_b32 v{AV+12+u}, 16, v{AV+12+u}')
        for j in range(3): a(f'v_fmac_f32 v{G1+j}, v{AV+3*u+j}, v{AV+12+u}')
    a(f's_add_u32 s{sK}, s{sK}, 4')
    a(f's_cmp_lt_u32 s{sK}, 192')
    a('s_cbranch_scc1 KS_g1')
    a(f'v_mul_f32 v{T}, 0xbfb8aa3b, v{G0}')
    a(f'v_exp_f32 v{T}, v{T}')
    a(f'v_add_f32 v{T}, 1.0, v{T}')
    a(f'v_rcp_f32 v{T}, v{T}')
    for j in range(3): a(f'v_mul_f32 v{G1+j}, v{T}, v{G1+j}')
    for g in range(4):
        a(f'v_cvt_pk_bf16_f32 v{G0+g}, v{G0+g}, v{G0+g}')
        a(f'buffer_store_short v{G0+g}, v{vL2}, s[12:15], s{sRow} offen offset:{128*g}')
    a(f's_add_u32 s{sN}, s{sN}, 8')
    a('s_branch KS_node')

def gen_k2(a, opt):
    D = opt.get('D', 2)
    set_map(D)
    OPT.update(opt)
    a(f'{KN}_kernel:')
    prologue(a, opt)
    a(f'v_mov_b32 v{vSBase}, v226')
    a(f's_mov_b32 s{sPfQ}, s{sWave}')
    a(f'v_readlane_b32 s{sPfT}, v{vSBase}, s{sWave}')
    a(f'v_readlane_b32 s{sT}, v{vSteps}, s{sWave}')
    a(f'v_mov_b32 v{vHi}, 0xffff0000')
    if opt.get('eapf', 1):
        a(f'v_mov_b32 v{vLow}, 0x7fffffff')
        a(f's_mov_b32 s{sAct}, 0x55555555')
        a(f's_mov_b32 s{sAct+1}, 0xaaaaaaaa')
        for k in range(4*D): a(f'v_mov_b32 v{AS+k}, 0')
    a(f'v_mov_b32 v{vCtr}, {L_CTR}')
    a(f'v_mov_b32 v{vOne}, 1')
    a(f's_add_u32 s{sPfEnd}, s{sPfT}, s{sT}')
    a('s_mov_b64 exec, 1')
    a(f'ds_add_rtn_u32 v{vGrab}, v{vCtr}, v{vOne}')
    a('s_mov_b64 exec, -1')
    a(f's_lshl_b32 s{sOffA}, s{sPfT}, 6')
    a(f's_lshr_b32 s{sOffB}, s{sOffA}, 1')
    a(f'v_add_u32 v{vNa}, s{sOffA}, v{vRecA}')
    a(f'v_add_u32 v{vNb}, s{sOffB}, v{vRecB}')
    a('s_waitcnt lgkmcnt(0)')
    for sg in range(D):
        rec_read(a, sg)
        a('s_waitcnt lgkmcnt(0)')
        grab_result(a)
        issue_loads(a, sg, opt)
    for k in range(44): a(f'v_mov_b32 v{ACC+k}, 0')
    if opt.get('align'): a.raw(f'.p2align {opt["align"]}')
    for _ in range(opt.get('pad', 0)): a('s_nop 0')
    for sg in range(D):
        a(f'K2_s{sg}:')
        step(a, sg, D, opt)
        a(f's_cmp_lt_i32 s{sCur}, 0')
        a(f's_cbranch_scc0 K2_fl{sg}')
        if sg == D - 1: a('s_branch K2_s0')
    for sg in range(D):
        a(f'K2_fl{sg}:')
        flush(a, opt)
        a(f's_cmp_eq_u32 s{sTag + (sg+1) % D}, -2')
        a('s_cbranch_scc1 K2_end')
        a(f's_branch K2_s{(sg+1) % D}')
    for f in DEFER: f(a)
    a('K2_slow:')
    slow_path(a, opt)
    a('K2_end:')
    if opt.get('endwait'): a('s_waitcnt vmcnt(0)')
    if opt.get('ts'):
        stamp(a, opt, 6, 255)
        a('s_waitcnt vmcnt(0)')
        stamp(a, opt, 7, 255)
        a(f'v_writelane_b32 v255, s{sNQ}, 8')
        a('s_getreg_b32 s45, hwreg(HW_REG_XCC_ID)')
        a(f'v_writelane_b32 v255, s45, 10')
        a('s_getreg_b32 s45, hwreg(HW_REG_HW_ID)')
        a(f'v_writelane_b32 v255, s45, 11')
        stamp_out(a, opt, 255, 254, sWave, TS_OFF, 8)
        a('K2_end2:')
    a('s_endpgm')
    return 256, 102
```

```python
import sys
from asmlib import Asm

KN = 'gather_scatter__tensor_product_equiv_equiformer__graph'
N = 50000; E = 800000
NCH = 224; CH = 3584; BLK1 = 896; NPB = 196; NB = 256
NPREP = 15
REC_OFF = 0; TAB_OFF = 0x940000; WIMG_OFF = 0x980000; WS_USED = 0x9A0000
MAGIC = 85599
TS_OFF = 0x1000000
def stamp(a, opt, idx, vreg, sreg=98):
    if not opt.get('ts'): return
    if not (opt.get('tsmask', 0xffff) >> idx) & 1: return
    a(f's_memrealtime s[{sreg}:{sreg+1}]')
    a('s_waitcnt lgkmcnt(0)')
    a(f'v_writelane_b32 v{vreg}, s{sreg}, {idx}')
def stamp_out(a, opt, vreg, vtmp, wavesgpr, base, nw, srdreg=16):
    if not opt.get('ts'): return
    a(f's_mul_i32 s98, s2, {nw}')
    a(f's_add_u32 s98, s98, s{wavesgpr}')
    a(f's_lshl_b32 s98, s98, 6')
    a(f's_add_u32 s98, s98, {base}')
    a(f'v_mbcnt_lo_u32_b32 v{vtmp}, -1, 0')
    a(f'v_mbcnt_hi_u32_b32 v{vtmp}, -1, v{vtmp}')
    a(f'v_cmp_gt_u32 vcc, 16, v{vtmp}')
    a(f'v_lshlrev_b32 v{vtmp}, 2, v{vtmp}')
    a(f's_and_saveexec_b64 s[100:101], vcc')
    a(f's_mov_b32 s{srdreg+2}, 0x2000000')
    a(f'buffer_store_dword v{vreg}, v{vtmp}, s[{srdreg}:{srdreg+3}], s98 offen')
    a(f's_mov_b64 exec, s[100:101]')
L_CNT = 0; L_BINS = 1024; L_FLAG = 1280; L_SORT = 2048; L_BASE = 3072
L_RECA = 4096; L_RECB = 36864; L_W = 53248; L_P = 94208
PS = 1440; PJS = 384
LDS2 = L_P + 8 * 4 * PS
NULLSTEP = 511

def srd(a, r, size):
    a(f's_and_b32 s{r+1}, s{r+1}, 0xffff')
    a(f's_mov_b32 s{r+2}, {size}')
    a(f's_mov_b32 s{r+3}, 0x20000')

def wave_scan(a, v):
    for sh in (1, 2, 4, 8):
        a(f'v_add_u32_dpp v{v}, v{v}, v{v} row_shr:{sh} row_mask:0xf bank_mask:0xf bound_ctrl:1')
    a(f'v_add_u32_dpp v{v}, v{v}, v{v} row_bcast:15 row_mask:0xa bank_mask:0xf')
    a(f'v_add_u32_dpp v{v}, v{v}, v{v} row_bcast:31 row_mask:0xc bank_mask:0xf')

def gen_k1(a, opt):
    a(f'k1_sort_kernel:')
    a(f's_cmp_ge_u32 s2, {NCH}')
    a('s_cbranch_scc1 K1_prep')
    if opt.get('ts'):
        a('v_mov_b32 v70, 0'); a('v_lshrrev_b32 v71, 6, v0'); a('s_nop 1'); a('v_readfirstlane_b32 s40, v71')
    stamp(a, opt, 0, 70)
    a('s_load_dwordx2 s[12:13], s[0:1], 8')
    a('s_load_dwordx2 s[8:9], s[0:1], 24')
    a('s_load_dwordx2 s[4:5], s[0:1], 32')
    a('s_load_dwordx2 s[16:17], s[0:1], 88')
    if opt.get('pf'):
        a('s_load_dwordx2 s[40:41], s[0:1], 0')
        a('s_load_dwordx2 s[44:45], s[0:1], 16')
    a('v_lshlrev_b32 v1, 2, v0')
    a('v_mov_b32 v2, 0')
    a('v_cmp_gt_u32 vcc, 256, v0')
    a('s_and_saveexec_b64 s[26:27], vcc')
    a('s_cbranch_execz K1_z')
    a('ds_write_b32 v1, v2')
    a('K1_z:')
    a('s_mov_b64 exec, s[26:27]')
    a(f's_mul_i32 s3, s2, {CH}')
    a('v_add_u32 v3, s3, v1')
    a('v_lshlrev_b32 v4, 2, v3')
    a('v_mul_u32_u24 v5, 6, v3')
    a(f's_mov_b32 s20, {E}')
    a(f's_mov_b32 s21, {MAGIC}')
    a('s_mov_b32 s22, 0xffff0000')
    a('s_waitcnt lgkmcnt(0)')
    srd(a, 4, E * 4); srd(a, 8, E * 4); srd(a, 12, E * 6); srd(a, 16, WS_USED)
    if opt.get('pf'): srd(a, 40, N * 512); srd(a, 44, E * 32)
    a('v_cmp_gt_u32 vcc, s20, v3')
    a('s_and_saveexec_b64 s[26:27], vcc')
    a('s_mov_b64 s[28:29], exec')
    a('s_cbranch_execz K1_a')
    a('buffer_load_dwordx4 v[8:11], v4, s[4:7], 0 offen')
    a('buffer_load_dwordx4 v[12:15], v4, s[8:11], 0 offen')
    a('buffer_load_dwordx4 v[16:19], v5, s[12:15], 0 offen')
    a('buffer_load_dwordx2 v[20:21], v5, s[12:15], 0 offen offset:16')
    a('K1_a:')
    a('s_mov_b64 exec, s[26:27]')
    npf = opt.get('pf', 0)
    if npf:
        a(f's_mul_i32 s36, s2, {BLK1}')
        a('v_add_u32 v68, s36, v0')
        a('v_lshlrev_b32 v68, 7, v68')
        a('buffer_load_dword v69, v68, s[40:43], 0 offen')
        if npf > 1: a('buffer_load_dword v70, v68, s[44:47], 0 offen')
    a('s_waitcnt lgkmcnt(0)')
    a('s_barrier')
    stamp(a, opt, 1, 70)
    a('s_mov_b64 exec, s[28:29]')
    a('s_cbranch_execz K1_b')
    a('v_mov_b32 v6, 1')
    a(f's_waitcnt vmcnt({3 + opt.get("pf", 0)})')
    stamp(a, opt, 2, 70)
    for k in range(4):
        a(f'v_mul_u32_u24 v{24+k}, s21, v{8+k}')
    for k in range(4):
        a(f'v_lshrrev_b32 v{24+k}, 24, v{24+k}')
    for k in range(4):
        a(f'v_mul_u32_u24 v{28+k}, {NPB}, v{24+k}')
        a(f'v_lshlrev_b32 v{24+k}, 2, v{24+k}')
    for k in range(4):
        a(f'ds_add_rtn_u32 v{35+4*k}, v{24+k}, v6')
    for k in range(4):
        a(f'v_sub_u32 v{28+k}, v{8+k}, v{28+k}')
        a(f'v_add_u32 v7, {k}, v3')
        a(f'v_lshl_or_b32 v{34+4*k}, v{28+k}, 24, v7')
    a(f's_waitcnt vmcnt({opt.get("pf", 0)})')
    a('v_lshl_or_b32 v32, v16, 16, v12')
    a('v_alignbit_b32 v33, v17, v16, 16')
    a('v_and_or_b32 v36, v17, s22, v13')
    a('v_mov_b32 v37, v18')
    a('v_lshl_or_b32 v40, v19, 16, v14')
    a('v_alignbit_b32 v41, v20, v19, 16')
    a('v_and_or_b32 v44, v20, s22, v15')
    a('v_mov_b32 v45, v21')
    a('K1_b:')
    a('s_mov_b64 exec, s[26:27]')
    a('s_waitcnt lgkmcnt(0)')
    a('s_barrier')
    stamp(a, opt, 3, 70)
    a('v_and_b32 v48, 63, v0')
    a('v_lshlrev_b32 v48, 4, v48')
    a('ds_read_b128 v[52:55], v48')
    a('s_waitcnt lgkmcnt(0)')
    a('v_add_u32 v56, v52, v53')
    a('v_add_u32 v57, v56, v54')
    a('v_add_u32 v58, v57, v55')
    a('v_mov_b32 v59, v58')
    wave_scan(a, 59)
    a('v_sub_u32 v60, v59, v58')
    a('v_add_u32 v61, v60, v52')
    a('v_add_u32 v62, v60, v56')
    a('v_add_u32 v63, v60, v57')
    a('ds_write_b128 v48, v[60:63] offset:1024')
    a('v_cmp_gt_u32 vcc, 64, v0')
    a('s_and_saveexec_b64 s[30:31], vcc')
    a('s_cbranch_execz K1_t')
    for k in range(4):
        a(f'v_lshl_or_b32 v{64+k}, v{52+k}, 16, v{60+k}')
    a('s_lshl_b32 s23, s2, 10')
    a(f's_add_u32 s23, s23, {TAB_OFF}')
    a('buffer_store_dwordx4 v[64:67], v48, s[16:19], s23 offen')
    a('K1_t:')
    a('s_mov_b64 exec, s[28:29]')
    a('s_cbranch_execz K1_w')
    for k in range(4):
        a(f'ds_read_b32 v{8+k}, v{24+k} offset:1024')
    for k in range(4):
        a(f's_waitcnt lgkmcnt({3-k})') if k == 0 else None
    a('s_waitcnt lgkmcnt(0)')
    for k in range(4):
        a(f'v_add_u32 v{8+k}, v{8+k}, v{35+4*k}')
        a(f'v_lshlrev_b32 v{8+k}, 4, v{8+k}')
        a(f'ds_write_b96 v{8+k}, v[{32+4*k}:{34+4*k}] offset:2048')
    a('K1_w:')
    a('s_mov_b64 exec, -1')
    a('s_waitcnt lgkmcnt(0)')
    a('s_barrier')
    a('v_lshlrev_b32 v8, 4, v0')
    for k in range(4):
        a(f'ds_read_b96 v[{32+4*k}:{34+4*k}], v8 offset:{2048 + k*BLK1*16}')
    a('v_mul_u32_u24 v9, 12, v0')
    for k in range(4):
        a(f's_mul_i32 s{32+k}, s2, {CH*12}')
        if k: a(f's_add_u32 s{32+k}, s{32+k}, {k*BLK1*12}')
    pol = ['', ' nt', ' sc1', ' sc0 sc1', ' sc1 nt', ' sc0 sc1 nt'][opt.get('k1pol', 0)]
    for k in range(4):
        a(f's_waitcnt lgkmcnt({3-k})')
        a(f'buffer_store_dwordx3 v[{32+4*k}:{34+4*k}], v9, s[16:19], s{32+k} offen{pol}')
    a('K1_done:')
    if opt.get('endwait1'): a('s_waitcnt vmcnt(0)')
    if opt.get('ts'):
        a('s_mov_b64 exec, -1')
        stamp(a, opt, 4, 70)
        a('s_waitcnt vmcnt(0)')
        stamp(a, opt, 5, 70)
        stamp_out(a, opt, 70, 71, 40, TS_OFF + 0x100000, 14)
    a('s_endpgm')
    a('K1_prep:')
    a(f's_sub_u32 s3, s2, {NCH}')
    a(f's_cmp_ge_u32 s3, {NPREP}')
    a('s_cbranch_scc1 K1_done2')
    a('s_load_dwordx2 s[4:5], s[0:1], 40')
    a('s_load_dwordx4 s[20:23], s[0:1], 48')
    a('s_load_dwordx2 s[16:17], s[0:1], 88')
    a(f's_mul_i32 s3, s3, {BLK1}')
    a('v_add_u32 v1, s3, v0')
    a('s_nop 0')
    a('v_readfirstlane_b32 s24, v1')
    a('s_cmp_ge_u32 s24, 12800')
    a('s_cbranch_scc1 K1_done2')
    a('s_lshr_b32 s24, s24, 8')
    a('v_lshrrev_b32 v2, 2, v1')
    a('v_and_b32 v2, 63, v2')
    a('v_and_b32 v3, 3, v1')
    a('v_and_b32 v4, 15, v2')
    a('v_lshrrev_b32 v5, 4, v2')
    a('s_waitcnt lgkmcnt(0)')
    srd(a, 16, WS_USED)
    a('s_cmp_ge_u32 s24, 10')
    a('s_cbranch_scc1 K1_pw')
    srd(a, 4, 16 * 320 * 2)
    a('s_lshr_b32 s25, s24, 1')
    a('s_and_b32 s26, s24, 1')
    a('s_lshl_b32 s25, s25, 6')
    a('s_lshl_b32 s26, s26, 1')
    a('s_add_u32 s25, s25, s26')
    a('v_lshlrev_b32 v6, 2, v4')
    a('v_lshrrev_b32 v7, 1, v5')
    a('v_add3_u32 v6, v6, v7, s25')
    a('v_and_b32 v7, 1, v5')
    a('v_lshlrev_b32 v7, 3, v7')
    a('v_lshl_add_u32 v7, v3, 1, v7')
    a('v_mul_u32_u24 v7, 320, v7')
    a('v_add_lshl_u32 v6, v6, v7, 1')
    a('buffer_load_ushort v8, v6, s[4:7], 0 offen')
    a('buffer_load_ushort v9, v6, s[4:7], 0 offen offset:640')
    a('s_branch K1_pst')
    a('K1_pw:')
    a('s_sub_u32 s25, s24, 10')
    a('s_cmp_ge_u32 s25, 16')
    a('s_cbranch_scc1 K1_pw1')
    a('s_mov_b32 s4, s20')
    a('s_mov_b32 s5, s21')
    srd(a, 4, 128 * 64 * 2)
    a('s_branch K1_pw2')
    a('K1_pw1:')
    a('s_sub_u32 s25, s25, 16')
    a('s_mov_b32 s4, s22')
    a('s_mov_b32 s5, s23')
    srd(a, 4, 192 * 64 * 2)
    a('K1_pw2:')
    a('s_lshr_b32 s26, s25, 2')
    a('s_and_b32 s27, s25, 3')
    a('s_lshl_b32 s26, s26, 5')
    a('s_lshl_b32 s27, s27, 2')
    a('v_lshrrev_b32 v6, 2, v4')
    a('v_lshlrev_b32 v6, 4, v6')
    a('v_and_b32 v7, 3, v4')
    a('v_add3_u32 v6, v6, v7, s27')
    a('v_lshlrev_b32 v7, 3, v5')
    a('v_lshl_add_u32 v7, v3, 1, v7')
    a('v_add_u32 v7, s26, v7')
    a('v_lshlrev_b32 v7, 6, v7')
    a('v_add_lshl_u32 v6, v6, v7, 1')
    a('buffer_load_ushort v8, v6, s[4:7], 0 offen')
    a('buffer_load_ushort v9, v6, s[4:7], 0 offen offset:128')
    a('K1_pst:')
    a('v_lshlrev_b32 v1, 2, v1')
    a(f's_mov_b32 s28, {WIMG_OFF}')
    a('s_waitcnt vmcnt(0)')
    a('v_lshl_or_b32 v8, v9, 16, v8')
    a('buffer_store_dword v8, v1, s[16:19], s28 offen')
    a('K1_done2:')
    a('s_endpgm')

def desc(name, vgpr, sgpr):
    return f'''.amdhsa_kernel {name}
  .amdhsa_next_free_vgpr {vgpr}
  .amdhsa_next_free_sgpr {sgpr}
  .amdhsa_accum_offset {(vgpr + 3) // 4 * 4}
  .amdhsa_group_segment_fixed_size 0
  .amdhsa_kernarg_size 96
  .amdhsa_user_sgpr_count 2
  .amdhsa_user_sgpr_kernarg_segment_ptr 1
  .amdhsa_system_sgpr_workgroup_id_x 1
.end_amdhsa_kernel
'''

def build(opt):
    from gen_k2 import gen_k2
    header = open('cdna_kernels/%s.s.ref' % KN).read().split('; Override launch')[0]
    out = header
    out += f'; Two launches: k1 bins the edges by destination bucket (and lays out the weights), k2 aggregates per node.\n'
    out += f'; @launch kernel=k1_sort_kernel grid=({NCH+NPREP},1,1) block=({BLK1},1,1) lds={2048 + CH*16}\n'
    if not opt.get('k1only'):
        out += f'; @launch kernel={KN}_kernel grid=({NB},1,1) block=(512,1,1) lds={LDS2}\n'
    out += '.amdgcn_target "amdgcn-amd-amdhsa--gfx950"\n.text\n'
    st = {}
    o1 = dict(opt); o2 = dict(opt)
    if 'tsk' in opt:
        o1['ts'] = opt['tsk'] & 1; o2['ts'] = (opt['tsk'] >> 1) & 1
    a = Asm(); gen_k1(a, o1)
    out += '.globl k1_sort_kernel\n.p2align 8\n.type k1_sort_kernel,@function\n' + a.finalize(st)
    a = Asm(); nv, ns = gen_k2(a, o2)
    out += f'.globl {KN}_kernel\n.p2align 8\n.type {KN}_kernel,@function\n' + a.finalize(st)
    print('k2 nops inserted', st, file=sys.stderr)
    out += '.section .rodata,"a"\n.p2align 6\n' + desc('k1_sort_kernel', 72, 102 if (o1.get('ts') or opt.get('k1s102')) else 48) + '.p2align 6\n' + desc(KN + '_kernel', nv, ns)
    return out

if __name__ == '__main__':
    opt = {}
    outp = None
    for x in sys.argv[1:]:
        if '=' in x:
            k, v = x.split('=', 1); opt[k] = int(v, 0)
        else: outp = x
    s = build(opt)
    open(outp or 'cdna_kernels/%s.s' % KN, 'w').write(s)
```

```python
from gen import *

ACC = 0; R = 44; RAD = 84; XS = 124
AS = YP = F = TMP = Y = NA = None
def set_map(D):
    global AS, YP, F, TMP, Y, NA
    AS = XS + 16*D; YP = AS + 4*D; F = YP + 4*D; TMP = F + 16; Y = TMP + 8
    NA = 8 if D == 2 else 6
vLaneX = 228; vLaneMask = 229; vRecA = 230; vRecB = 231; vSteps = 232; vEN = 233; vXA0 = 234; vXA1 = 235; vEA = 236
vTa = 237; vTb = 238; vPW = 239; vPR0 = 240; vPR1 = 241; vWR = 242; vOut0 = 243; vOut1 = 244; vOrd = 245
vLane = 246; vTid = 247; vT = 248
vHi = 248; vSBase = 249; vGrab = 250; vCtr = 246; vOne = 247
sWave = 20; sPfT = 21; sPfEnd = 22; sPfQ = 23; sNQ = 24; sCur = 25; s512 = 26; sHi = 27; sOffA = 28; sOffB = 29; sNode = 30; sT = 31
sM1 = 32; sM2 = 34; sM3 = 36; sSave = 38; sMask = 40; sOvf = 82; sU = 84
OPT = {}
POL = ['', ' nt', ' sc1', ' sc0 sc1', ' sc1 nt', ' sc0 sc1 nt', ' sc0']
YSEP = ((220, 222, 224), (226, 248, 250))
sThr = 3
sTag = 40
L_CTR = L_FLAG + 16
L_QI = 1344
COST_STEP = 8; COST_FLUSH = 11

def pr(x): return f'v[{x}:{x+1}]'
def q4(x): return f'v[{x}:{x+3}]'

def lane_consts(a, opt):
    i_, g_ = 208, 209
    a(f'v_and_b32 v{i_}, 15, v{vLane}')
    a(f'v_lshrrev_b32 v{g_}, 4, v{vLane}')
    a(f'v_lshlrev_b32 v{vLaneX}, 3, v{i_}')
    a(f'v_lshrrev_b32 v{210}, 1, v{g_}')
    a(f'v_and_b32 v{211}, 1, v{i_}')
    a(f'v_cmp_eq_u32 vcc, v{210}, v{211}')
    a(f'v_and_b32 v{212}, 1, v{g_}')
    a(f'v_lshlrev_b32 v{212}, 4, v{212}')
    a(f'v_mov_b32 v{213}, 2.0')
    a(f'v_cndmask_b32 v{vLaneMask}, v{213}, v{212}, vcc')
    a(f'v_lshlrev_b32 v{vRecA}, 4, v{g_}')
    a(f'v_add_u32 v{vRecA}, {L_RECA}, v{vRecA}')
    a(f'v_lshrrev_b32 v{vRecB}, 1, v{i_}')
    a(f'v_lshlrev_b32 v{vRecB}, 2, v{vRecB}')
    a(f'v_add_u32 v{vRecB}, {L_RECB}, v{vRecB}')
    a(f's_mul_i32 s{sNode}, s{sWave}, {4*PS}')
    a(f's_add_u32 s{sNode}, s{sNode}, {L_P}')
    a(f'v_mul_u32_u24 v{vPW}, {PS}, v{g_}')
    a(f'v_add3_u32 v{vPW}, v{vPW}, v{vLaneX}, s{sNode}')
    a(f'v_lshrrev_b32 v{210}, 2, v{i_}')
    a(f'v_mul_u32_u24 v{vPR0}, {PS}, v{210}')
    a(f'v_lshlrev_b32 v{211}, 4, v{g_}')
    a(f'v_add3_u32 v{vPR0}, v{vPR0}, v{211}, s{sNode}')
    a(f'v_and_b32 v{211}, 3, v{i_}')
    a(f'v_min_u32 v{212}, 2, v{211}')
    a(f'v_mul_u32_u24 v{212}, {PJS}, v{212}')
    a(f'v_add_u32 v{212}, 256, v{212}')
    a(f'v_add_u32 v{vPR1}, v{vPR0}, v{212}')
    a(f'v_lshlrev_b32 v{vWR}, 4, v{vLane}')
    a(f'v_add_u32 v{vWR}, {L_W}, v{vWR}')
    a(f'v_lshlrev_b32 v{212}, 5, v{g_}')
    a(f'v_lshl_add_u32 v{vOut0}, v{211}, 3, v{212}')
    a(f'v_lshl_add_u32 v{vOut1}, v{211}, 7, v{212}')
    a(f'v_add_u32 v{vOut1}, 128, v{vOut1}')
    a(f'v_cmp_eq_u32 vcc, 3, v{211}')
    a(f'v_cndmask_b32 v{vOut1}, v{vOut1}, v{213}, vcc')
    a(f'v_lshlrev_b32 v{vOrd}, 2, v{210}')
    a(f'v_add_u32 v{vOrd}, {L_SORT}, v{vOrd}')
    a(f's_mov_b32 s{s512}, 512')
    a(f's_mov_b32 s{sHi}, 0xffff0000')
    a(f's_mul_i32 s{sNode}, s2, {NPB*512}')
    for m, pat in ((sM1, 0x22222222), (sM2, 0x44444444), (sM3, 0x88888888)):
        a(f's_mov_b32 s{m}, {pat}'); a(f's_mov_b32 s{m+1}, {pat}')

def prologue(a, opt):
    a(f's_cmp_ge_u32 s2, {NB}')
    a('s_cbranch_scc1 K2_end2' if opt.get('ts') else 's_cbranch_scc1 K2_end')
    if opt.get('xcdmap', 1):
        a('s_and_b32 s3, s2, 7')
        a('s_lshl_b32 s3, s3, 5')
        a('s_lshr_b32 s2, s2, 3')
        a('s_add_u32 s2, s2, s3')
    a('s_load_dwordx2 s[4:5], s[0:1], 0')
    a('s_load_dwordx2 s[8:9], s[0:1], 16')
    a('s_load_dwordx2 s[12:13], s[0:1], 72')
    a('s_load_dwordx2 s[16:17], s[0:1], 88')
    a(f'v_mov_b32 v{vTid}, v0')
    a(f'v_and_b32 v{vLane}, 63, v0')
    a(f'v_lshrrev_b32 v{vT}, 6, v0')
    a(f'v_lshlrev_b32 v{vT+1}, 2, v0')
    a(f'v_readfirstlane_b32 s{sWave}, v{vT}')
    if opt.get('ts'): a('v_mov_b32 v255, 0')
    stamp(a, opt, 0, 255)
    a(f'v_mov_b32 v200, 0')
    a(f'v_cmp_gt_u32 vcc, 336, v{vTid}')
    a(f's_and_saveexec_b64 s[{sSave}:{sSave+1}], vcc')
    a('s_cbranch_execz K2_z')
    a(f'ds_write_b32 v{vT+1}, v200')
    a('K2_z:')
    a(f's_mov_b64 exec, s[{sSave}:{sSave+1}]')
    a('v_mov_b32 v200, 0xffff'); a('v_mov_b32 v201, 0'); a('v_mov_b32 v202, 0xffff'); a('v_mov_b32 v203, 0')
    for k in range(4): a(f'v_mov_b32 v{204+k}, 2.0')
    a(f'v_lshlrev_b32 v{vT+2}, 4, v{vTid}')
    for k in range(4): a(f'ds_write_b128 v{vT+2}, v[200:203] offset:{L_RECA + k*8192}')
    for k in range(2): a(f'ds_write_b128 v{vT+2}, v[204:207] offset:{L_RECB + k*8192}')
    a(f'v_lshrrev_b32 v{vT+3}, 4, v{vTid}')
    a('s_lshl_b32 s3, s2, 2')
    a(f'v_lshl_add_u32 v{vT+4}, v{vT+3}, 10, s3')
    a(f'v_lshlrev_b32 v{vT+5}, 4, v{vLane}')
    a('s_waitcnt lgkmcnt(0)')
    srd(a, 4, 0 if opt.get('nomem') else N * 512); srd(a, 8, 0 if opt.get('nomem') or opt.get('noea') else E * 32); srd(a, 12, N * 512); srd(a, 16, WS_USED)
    TB = 124
    for k in range(7):
        a(f's_mov_b32 s{sU+k}, {TAB_OFF + k*32768}')
    for k in range(7):
        a(f'buffer_load_dword v{TB+k}, v{vT+4}, s[16:19], s{sU+k} offen')
    lane_consts(a, opt)
    vJ = 152; vG = 153; CN = 154; AD = 161
    a(f'v_and_b32 v{vJ}, 15, v{vTid}')
    a(f'v_mul_u32_u24 v{vG}, {CH*12}, v{vT+3}')
    a(f'v_add_u32 v168, 16, v{vJ}')
    a(f'v_add_u32 v169, 32, v{vJ}')
    a(f's_mov_b64 s[{sOvf}:{sOvf+1}], 0')
    for k in range(7): a(f's_mov_b32 s{sU+k}, {REC_OFF + k*32*CH*12}')
    a('s_waitcnt vmcnt(0)')
    stamp(a, opt, 1, 255)
    for k in range(7):
        a(f'v_lshrrev_b32 v{CN+k}, 16, v{TB+k}')
        a(f'v_and_b32 v{AD+k}, 0xffff, v{TB+k}')
        a(f'v_add_u32 v{AD+k}, v{AD+k}, v{vJ}')
        a(f'v_mad_u32_u24 v{AD+k}, v{AD+k}, 12, v{vG}')
        a(f'v_cmp_gt_u32 s[{sMask+2*k}:{sMask+2*k+1}], v{CN+k}, v{vJ}')
        a(f'v_cmp_gt_u32 s[{sMask+14+2*k}:{sMask+14+2*k+1}], v{CN+k}, v168')
        a(f'v_cmp_gt_u32 s[{sMask+28+2*k}:{sMask+28+2*k+1}], v{CN+k}, v169')
        a(f'v_cmp_lt_u32 vcc, 48, v{CN+k}')
        a(f's_or_b64 s[{sOvf}:{sOvf+1}], s[{sOvf}:{sOvf+1}], vcc')
    def rec_loads(beta):
        for k in range(7):
            u = beta*7 + k
            a(f's_mov_b64 exec, s[{sMask+2*u}:{sMask+2*u+1}]')
            a(f'buffer_load_dwordx3 v[{4*u}:{4*u+2}], v{AD+k}, s[16:19], s{sU+k} offen offset:{beta*192}')
        a('s_mov_b64 exec, -1')
    rec_loads(0); rec_loads(1)
    sB2 = sU + 12
    a(f's_mov_b64 s[{sB2}:{sB2+1}], 0')
    for k in range(7):
        a(f's_or_b64 s[{sB2}:{sB2+1}], s[{sB2}:{sB2+1}], s[{sMask+28+2*k}:{sMask+28+2*k+1}]')
    a('s_cbranch_scc0 K2_nb2a')
    rec_loads(2)
    a('K2_nb2a:')
    IMG = 124
    a(f'v_lshlrev_b32 v{vT+5}, 4, v{vLane}')
    for u in range(7):
        a(f's_add_u32 s{sU+u}, s{sWave}, {8*u}')
        if u == 6:
            a(f's_min_u32 s{sU+u}, s{sU+u}, 49')
        a(f's_lshl_b32 s{sU+u}, s{sU+u}, 10')
        a(f's_add_u32 s{sT}, s{sU+u}, {WIMG_OFF}')
        a(f'buffer_load_dwordx4 {q4(IMG+4*u)}, v{vT+5}, s[16:19], s{sT} offen')
    if opt.get('tlb'):
        a(f'v_mul_u32_u24 v208, {opt.get("tlbs", 400000)}, v{vLane}')
        a('buffer_load_dword v209, v208, s[4:7], 0 offen')
        a('buffer_load_dword v210, v208, s[8:11], 0 offen')
    a('s_waitcnt lgkmcnt(0)')
    a('s_barrier')
    a(f's_cmp_eq_u64 s[{sOvf}:{sOvf+1}], 0')
    a('s_cbranch_scc1 K2_novf')
    a(f'v_mov_b32 v{vT}, {L_FLAG}')
    a(f'v_mov_b32 v{vT+1}, 1')
    a(f'ds_write_b32 v{vT}, v{vT+1}')
    a('K2_novf:')
    a(f'v_mov_b32 v170, 1')
    a(f's_waitcnt vmcnt({7 + (2 if opt.get("tlb") else 0)})')
    stamp(a, opt, 2, 255)
    def hist(beta):
        for k in range(7):
            u = beta*7 + k
            a(f's_mov_b64 exec, s[{sMask+2*u}:{sMask+2*u+1}]')
            a(f'v_lshrrev_b32 v{161+k}, 22, v{4*u+2}')
            a(f'v_and_b32 v{161+k}, 0x3fc, v{161+k}')
            a(f'ds_add_rtn_u32 v{4*u+3}, v{161+k}, v170 offset:{L_CNT}')
        a('s_mov_b64 exec, -1')
    hist(0); hist(1)
    a(f's_cmp_eq_u64 s[{sB2}:{sB2+1}], 0')
    a('s_cbranch_scc1 K2_nb2b')
    hist(2)
    a('K2_nb2b:')
    a('s_waitcnt lgkmcnt(0)')
    a('s_barrier')
    stamp(a, opt, 3, 255)
    a('s_waitcnt vmcnt(0)')
    a(f'v_lshlrev_b32 v{vT+5}, 4, v{vLane}')
    a(f's_mov_b32 s{sU+8}, {L_P}')
    a(f's_mov_b32 s{sU+9}, {L_W - 10240}')
    for u in range(7):
        a(f's_cmp_lt_u32 s{sU+u}, 10240')
        a(f's_cselect_b32 s{sT}, s{sU+8}, s{sU+9}')
        a(f's_add_u32 s{sT}, s{sT}, s{sU+u}')
        a(f'v_add_u32 v{vT+6}, s{sT}, v{vT+5}')
        a(f'ds_write_b128 v{vT+6}, {q4(124+4*u)}')
    a(f'v_mov_b32 v{vT}, {L_FLAG}')
    a(f'ds_read_b32 v{vT+1}, v{vT}')
    a('s_waitcnt lgkmcnt(0)')
    a(f'v_readfirstlane_b32 s{sT}, v{vT+1}')
    a(f's_cmp_lg_u32 s{sT}, 0')
    a('s_cbranch_scc1 K2_slow')
    a(f's_cmp_lg_u32 s{sWave}, 0')
    a('s_cbranch_scc1 K2_p6')
    DG = 152; KY = 156; RK = 160; PO = 164; SO = 168
    a(f'v_lshlrev_b32 v{vT}, 4, v{vLane}')
    a(f'ds_read_b128 {q4(DG)}, v{vT} offset:{L_CNT}')
    a(f'v_cmp_gt_u32 vcc, 49, v{vLane}')
    a(f's_mov_b64 s[{sU}:{sU+1}], vcc')
    a(f'v_lshlrev_b32 v{vT+1}, 2, v{vLane}')
    for k in range(4): a(f'v_mov_b32 v{KY+k}, 0'); a(f'v_mov_b32 v{RK+k}, 0')
    a('s_waitcnt lgkmcnt(0)')
    a(f's_mov_b64 exec, s[{sU}:{sU+1}]')
    for k in range(4):
        a(f'v_min_u32 v{KY+k}, 63, v{DG+k}')
        a(f'v_sub_u32 v{KY+k}, 63, v{KY+k}')
        a(f'v_lshlrev_b32 v{KY+k}, 2, v{KY+k}')
        a(f'ds_add_rtn_u32 v{RK+k}, v{KY+k}, v170 offset:{L_BINS}')
    a('s_mov_b64 exec, -1')
    a(f'ds_read_b32 v{vT+2}, v{vT+1} offset:{L_BINS}')
    a('s_waitcnt lgkmcnt(0)')
    a(f'v_mov_b32 v{vT+3}, v{vT+2}')
    wave_scan(a, vT+3)
    a(f'v_sub_u32 v{vT+3}, v{vT+3}, v{vT+2}')
    for k in range(4): a(f'ds_bpermute_b32 v{PO+k}, v{KY+k}, v{vT+3}')
    a('s_waitcnt lgkmcnt(0)')
    a(f's_mov_b64 exec, s[{sU}:{sU+1}]')
    for k in range(4):
        a(f'v_add_u32 v{PO+k}, v{PO+k}, v{RK+k}')
        a(f'v_add_u32 v{vT+4}, {k}, v{vT+1}')
        a(f'v_lshl_or_b32 v{vT+4}, v{DG+k}, 8, v{vT+4}')
        a(f'v_lshlrev_b32 v{vT+5}, 2, v{PO+k}')
        a(f'ds_write_b32 v{vT+5}, v{vT+4} offset:{L_SORT}')
    a('s_mov_b64 exec, -1')
    a(f'ds_read_b128 {q4(SO)}, v{vT} offset:{L_SORT}')
    a(f'v_cmp_gt_u32 vcc, 49, v{vLane}')
    a('s_waitcnt lgkmcnt(0)')
    a(f'v_max3_u32 v{SO}, v{SO}, v{SO+1}, v{SO+2}')
    a(f'v_max_u32 v{SO}, v{SO}, v{SO+3}')
    a(f'v_lshrrev_b32 v{SO}, 8, v{SO}')
    a(f'v_add_u32 v{SO}, 1, v{SO}')
    a(f'v_lshrrev_b32 v{SO}, 1, v{SO}')
    a(f'v_max_u32 v{SO}, 1, v{SO}')
    a(f'v_cndmask_b32 v{SO}, 0, v{SO}, vcc')
    a(f'v_mov_b32 v{SO+1}, v{SO}')
    wave_scan(a, SO+1)
    a(f'v_sub_u32 v{SO+1}, v{SO+1}, v{SO}')
    a(f'v_min_u32 v{SO+2}, 0xffff, v{SO+1}')
    a(f'v_min_u32 v{SO+3}, 0xffff, v{SO}')
    a(f'v_lshl_or_b32 v{SO+2}, v{SO+3}, 16, v{SO+2}')
    a(f'ds_write_b32 v{vT+1}, v{SO+2} offset:{L_QI}')
    for k in range(4):
        a(f'v_and_b32 v{KY+k}, 0xfc, v{PO+k}')
        a(f'ds_bpermute_b32 v{RK+k}, v{KY+k}, v{SO+1}')
    a('s_waitcnt lgkmcnt(0)')
    for k in range(4):
        a(f'v_and_b32 v{PO+k}, 3, v{PO+k}')
        a(f'v_lshlrev_b32 v{PO+k}, 1, v{PO+k}')
        a(f'v_lshl_add_u32 v{RK+k}, v{RK+k}, 3, v{PO+k}')
    a(f's_mov_b64 exec, s[{sU}:{sU+1}]')
    a(f'ds_write_b128 v{vT}, {q4(RK)} offset:{L_BASE}')
    a('s_mov_b64 exec, -1')
    a('K2_p6:')
    a('s_waitcnt lgkmcnt(0)')
    a('s_barrier')
    stamp(a, opt, 4, 255)
    a(f'v_lshlrev_b32 v{vT+1}, 2, v{vLane}')
    a(f'ds_read_b32 v{vT+2}, v{vT+1} offset:{L_QI}')
    a('s_waitcnt lgkmcnt(0)')
    a(f'v_and_b32 v{vT+3}, 0xffff, v{vT+2}')
    a(f'v_lshrrev_b32 v{vSteps}, 16, v{vT+2}')
    a(f'v_mov_b32 v226, v{vT+3}')
    a(f'v_readlane_b32 s{sT}, v{vT+3}, 63')
    if opt.get('ts'): a(f'v_writelane_b32 v255, s{sT}, 9')
    a(f's_cmp_gt_u32 s{sT}, {NULLSTEP}')
    a('s_cbranch_scc1 K2_slow')
    if opt.get('thr'):
        a(f's_sub_i32 s{sThr}, s{sT}, {opt.get("t0", 401)}')
        a(f's_mul_i32 s{sThr}, s{sThr}, {opt.get("tmul", 4)}')
        a(f's_ashr_i32 s{sThr}, s{sThr}, 4')
        a(f's_cmp_lt_i32 s{sWave}, s{sThr}')
        a(f's_cselect_b32 s{sThr}, 0, 1')
    def scat(beta):
        for k in range(7):
            u = beta*7 + k
            a(f's_mov_b64 exec, s[{sMask+2*u}:{sMask+2*u+1}]')
            a(f'v_lshrrev_b32 v{161+k}, 22, v{4*u+2}')
            a(f'v_and_b32 v{161+k}, 0x3fc, v{161+k}')
            a(f'ds_read_b32 v{176+k}, v{161+k} offset:{L_BASE}')
        for k in range(7):
            u = beta*7 + k
            a(f's_mov_b64 exec, s[{sMask+2*u}:{sMask+2*u+1}]')
            a(f'v_lshrrev_b32 v{vT}, 1, v{4*u+3}')
            a(f'v_and_b32 v{vT+1}, 1, v{4*u+3}')
            a(f'v_and_b32 v{vT+2}, 0xffffff, v{4*u+2}')
            a(f'v_lshlrev_b32 v{vT+2}, 5, v{vT+2}')
            a(f's_waitcnt lgkmcnt({min(15, 6 - k + 2*k)})') if False else None
            if k == 0: a('s_waitcnt lgkmcnt(0)')
            a(f'v_lshl_add_u32 v{vT}, v{vT}, 3, v{176+k}')
            a(f'v_add_u32 v{vT}, v{vT}, v{vT+1}')
            a(f'v_lshlrev_b32 v{vT+3}, 3, v{vT}')
            a(f'v_lshlrev_b32 v{vT+4}, 2, v{vT}')
            a(f'ds_write_b64 v{vT+3}, v[{4*u}:{4*u+1}] offset:{L_RECA}')
            a(f'ds_write_b32 v{vT+4}, v{vT+2} offset:{L_RECB}')
        a('s_mov_b64 exec, -1')
    scat(0); scat(1)
    a(f's_cmp_eq_u64 s[{sB2}:{sB2+1}], 0')
    a('s_cbranch_scc1 K2_nb2c')
    scat(2)
    a('K2_nb2c:')
    a(f'v_lshlrev_b32 v{vT}, 4, v{vLane}')
    a(f'v_add_u32 v{vT}, {L_P}, v{vT}')
    for t in range(10): a(f'ds_read_b128 {q4(RAD+4*t)}, v{vT} offset:{t*1024}')
    a('s_waitcnt lgkmcnt(0)')
    a('s_barrier')
    stamp(a, opt, 5, 255)

_uid = [0]
DEFER = []
vNa = 251; vNb = 252; vC64 = 253; vC32 = 254
def rec_read(a, sg):
    _uid[0] += 1; u = _uid[0]
    a(f's_cmp_lg_u32 s{sPfT}, s{sPfEnd}')
    a(f's_cbranch_scc0 K2_sw{u}')
    a(f'K2_have{u}:')
    a(f's_add_u32 s{sPfT}, s{sPfT}, 1')
    a(f's_cmp_eq_u32 s{sPfT}, s{sPfEnd}')
    a(f's_cselect_b32 s{sTag+sg}, s{sPfQ}, -1')
    a(f'K2_go{u}:')
    a(f'ds_read_b128 {q4(YP+4*sg)}, v{vNa}')
    a(f'ds_read_b32 v{vEN}, v{vNb}')
    a(f'v_add_u32 v{vNa}, 64, v{vNa}')
    a(f'v_add_u32 v{vNb}, 32, v{vNb}')
    def cold(a, u=u, sg=sg):
        a(f'K2_sw{u}:')
        a(f'v_readfirstlane_b32 s{sNQ}, v{vGrab}')
        a(f's_add_u32 s{sNQ}, s{sNQ}, 8')
        a(f's_cmp_ge_u32 s{sNQ}, 49')
        a(f's_cbranch_scc1 K2_exh{u}')
        a(f's_mov_b32 s{sPfQ}, s{sNQ}')
        a(f'v_readlane_b32 s{sPfT}, v{vSBase}, s{sNQ}')
        a(f'v_readlane_b32 s{sT}, v{vSteps}, s{sNQ}')
        a('s_mov_b64 exec, 1')
        a(f'ds_add_rtn_u32 v{vGrab}, v{vCtr}, v{vOne}')
        a('s_mov_b64 exec, -1')
        a(f's_add_u32 s{sPfEnd}, s{sPfT}, s{sT}')
        a(f's_lshl_b32 s{sOffA}, s{sPfT}, 6')
        a(f's_lshr_b32 s{sOffB}, s{sOffA}, 1')
        a(f'v_add_u32 v{vNa}, s{sOffA}, v{vRecA}')
        a(f'v_add_u32 v{vNb}, s{sOffB}, v{vRecB}')
        a(f's_branch K2_have{u}')
        a(f'K2_exh{u}:')
        a(f'v_add_u32 v{vNa}, {NULLSTEP*64}, v{vRecA}')
        a(f'v_add_u32 v{vNb}, {NULLSTEP*32}, v{vRecB}')
        a(f's_mov_b32 s{sTag+sg}, -2')
        a(f's_branch K2_go{u}')
    DEFER.append(cold)

def grab_result(a):
    pass

def issue_loads(a, sg, opt, part=None):
    ent = POL[opt.get('eapol', 4)]
    if opt.get('noload'): return
    xp = POL[opt.get('xpol', 0)]
    if part in (None, 0):
        a(f'v_mad_u32_u16 v{vXA0}, v{YP+4*sg}, s{s512}, v{vLaneX}')
        a(f'v_mad_u32_u16 v{vXA1}, v{YP+4*sg+2}, s{s512}, v{vLaneX}')
        a(f'v_lshl_or_b32 v{vEA}, v{vEN}, 0, v{vLaneMask}') if False else a(f'v_or_b32 v{vEA}, v{vEN}, v{vLaneMask}')
        a(f'buffer_load_dwordx4 {q4(AS+4*sg)}, v{vEA}, s[8:11], 0 offen{ent}')
    for s, va in ((0, vXA0), (1, vXA1)):
        if part is not None and part != s: continue
        for v in range(4):
            a(f'buffer_load_dwordx2 {pr(XS+16*sg+8*s+2*v)}, v{va}, s[4:7], 0 offen offset:{128*v}{xp}')

def Fp(v, h): return F + 8*h + 2*v
def Rp(p, h, s): return R + (2*p + h)*4 + 2*s
def Ap(f, h): return ACC + 4*f + 2*h

def unpack_ops(sg, s):
    ops = []
    for v in range(4):
        for h in range(2):
            src = XS + 16*sg + 8*s + 2*v + h
            ops.append(f'v_lshlrev_b32 v{Fp(v,h)}, 16, v{src}')
            ops.append(f'v_and_b32 v{Fp(v,h)+1}, v{vHi}, v{src}')
    return ops

def compute_slot(a, s):
    Yr = (Y + 3*s, Y + 3*s + 1, Y + 3*s + 2)
    ch = [(h, p) for h in range(2) for p in range(2)]
    Fv = lambda v, c: Fp(v, c[0]) + c[1]
    Rv = lambda p, c: Rp(p, c[0], s) + c[1]
    Av = lambda f, c: Ap(f, c[0]) + c[1]
    dot = lambda c: TMP + 2*c[0] + c[1]
    t = lambda c: TMP + 4 + 2*c[0] + c[1]
    fmac = lambda d, x, y: a(f'v_fmac_f32 v{d}, v{x}, v{y}')
    mul = lambda d, x, y: a(f'v_mul_f32 v{d}, v{x}, v{y}')
    fms = lambda d, x, y: a(f'v_fma_f32 v{d}, -v{x}, v{y}, v{d}')
    seq = [
        lambda c: fmac(Av(0,c), Fv(0,c), Rv(0,c)),
        lambda c: mul(dot(c), Fv(1,c), Yr[0]),
        lambda c: mul(t(c), Fv(0,c), Rv(2,c)),
        lambda c: fmac(dot(c), Fv(2,c), Yr[1]),
        lambda c: fmac(Av(5,c), Fv(1,c), Rv(3,c)),
        lambda c: fmac(dot(c), Fv(3,c), Yr[2]),
        lambda c: fmac(Av(2,c), t(c), Yr[0]),
        lambda c: fmac(Av(6,c), Fv(2,c), Rv(3,c)),
        lambda c: fmac(Av(3,c), t(c), Yr[1]),
        lambda c: fmac(Av(7,c), Fv(3,c), Rv(3,c)),
        lambda c: fmac(Av(4,c), t(c), Yr[2]),
        lambda c: fmac(Av(1,c), dot(c), Rv(1,c)),
        lambda c: mul(Fv(1,c), Fv(1,c), Rv(4,c)),
        lambda c: mul(Fv(2,c), Fv(2,c), Rv(4,c)),
        lambda c: mul(Fv(3,c), Fv(3,c), Rv(4,c)),
        lambda c: fmac(Av(9,c), Fv(1,c), Yr[2]),
        lambda c: fmac(Av(10,c), Fv(2,c), Yr[0]),
        lambda c: fmac(Av(8,c), Fv(3,c), Yr[1]),
        lambda c: fms(Av(10,c), Fv(1,c), Yr[1]),
        lambda c: fms(Av(8,c), Fv(2,c), Yr[2]),
        lambda c: fms(Av(9,c), Fv(3,c), Yr[0]),
    ]
    for op in seq:
        for c in ch: op(c)

def step(a, sg, D, opt):
    a(f's_mov_b32 s{sCur}, s{sTag+sg}')
    for s in range(2):
        a(f'v_and_b32 v{Y+3*s}, v{vHi}, v{YP+4*sg+2*s}')
        a(f'v_lshlrev_b32 v{Y+3*s+1}, 16, v{YP+4*sg+2*s+1}')
        a(f'v_and_b32 v{Y+3*s+2}, v{vHi}, v{YP+4*sg+2*s+1}')
    rec_read(a, sg)
    a(f's_waitcnt vmcnt({9*(D-1)})')
    if opt.get('thr'):
        _uid[0] += 1
        a(f's_cmp_eq_u32 s{sThr}, 0')
        a(f's_cbranch_scc1 K2_nt{_uid[0]}')
        a(f's_waitcnt vmcnt({9*(D-2)})')
        a(f'K2_nt{_uid[0]}:')
    fill = unpack_ops(sg, 0)
    mf = []
    for p in (0, 2, 3, 1, 4):
        for h in range(2):
            mf.append(f'v_mfma_f32_16x16x32_bf16 {q4(R+(2*p+h)*4)}, {q4(AS+4*sg)}, {q4(RAD+(2*p+h)*4)}, 0')
    if opt.get('nomfma'): mf = []
    if opt.get('mfb2b', 1):
        for m in mf: a(m)
        for o in fill: a(o)
    else:
        fi = 0
        for k, m in enumerate(mf):
            a(m)
            for _ in range(2):
                if fi < len(fill): a(fill[fi]); fi += 1
        while fi < len(fill): a(fill[fi]); fi += 1
    if opt.get('early', 0):
        a('s_waitcnt lgkmcnt(0)')
        if opt.get('prio'): a('s_setprio 1')
        issue_loads(a, sg, opt, 0)
        if opt.get('prio'): a('s_setprio 0')
        if not opt.get('nocomp'): compute_slot(a, 0)
        for o in unpack_ops(sg, 1): a(o)
        if opt.get('prio'): a('s_setprio 1')
        issue_loads(a, sg, opt, 1)
        if opt.get('prio'): a('s_setprio 0')
        if not opt.get('nocomp'): compute_slot(a, 1)
        return
    if not opt.get('nocomp'):
        compute_slot(a, 0)
        for o in unpack_ops(sg, 1): a(o)
        compute_slot(a, 1)
    if opt.get('prio'): a('s_setprio 1')
    a('s_waitcnt lgkmcnt(0)')
    grab_result(a)
    issue_loads(a, sg, opt)
    if opt.get('prio'): a('s_setprio 0')

def featoff(f):
    if f < 2: return 128*f
    f -= 2; kind, j = f // 3, f % 3
    return 256 + PJS*j + 128*kind

def flush(a, opt):
    if opt.get('noflush'): return
    D0 = R; D1 = R + 16; BR = R + 32; AR = F
    issued = []
    def ds(text):
        issued.append(text); a(text)
    state = {'done': 0}
    def wait_for(idx):
        n = len(issued) - 1 - idx
        if idx >= state['done']:
            a(f's_waitcnt lgkmcnt({min(n, 15)})'); state['done'] = len(issued) - min(n, 15)
    def room():
        if len(issued) - state['done'] >= 15: wait_for(len(issued) - 12)
    a(f's_lshl_b32 s{sT}, s{sCur}, 4')
    a(f'v_add_u32 v{vTa}, s{sT}, v{vOrd}')
    ds(f'ds_read_b32 v{vTb}, v{vTa}')
    for f in range(11):
        t0 = F + 2*(f % 8)
        a(f'v_cvt_pk_bf16_f32 v{t0}, v{ACC+4*f}, v{ACC+4*f+1}')
        a(f'v_cvt_pk_bf16_f32 v{t0+1}, v{ACC+4*f+2}, v{ACC+4*f+3}')
        room()
        ds(f'ds_write_b64 v{vPW}, {pr(t0)} offset:{featoff(f)}')
    groups = [(0, ks) for ks in range(4)] + [(1, ks) for ks in range(6)]
    idxA = {}; idxB = {}
    def loadB(gi):
        c, ks = groups[gi]
        room(); idxB[gi] = len(issued)
        ds(f'ds_read_b128 {q4(BR+4*(gi%2))}, v{vPR1 if c else vPR0} offset:{ks*64}')
    def loadA(u):
        gi, t = divmod(u, 4); c, ks = groups[gi]
        tile = (ks*4 + t) + (16 if c else 0)
        room(); idxA[u] = len(issued)
        ds(f'ds_read_b128 {q4(AR+4*(u%NA))}, v{vWR} offset:{tile*1024}')
    if NA == 8:
        loadB(0)
        for u in range(4): loadA(u)
        loadB(1)
        for u in range(4, 8): loadA(u)
        for k in range(44): a(f'v_mov_b32 v{ACC+k}, 0')
        for gi, (c, ks) in enumerate(groups):
            wait_for(max(idxA[4*gi+3], idxB[gi]))
            for t in range(4):
                u = 4*gi + t
                Dr = (D1 if c else D0) + 4*t
                cop = '0' if ks == 0 else q4(Dr)
                a(f'v_mfma_f32_16x16x32_bf16 {q4(Dr)}, {q4(AR+4*(u%NA))}, {q4(BR+4*(gi%2))}, {cop}')
            if gi + 2 < len(groups):
                loadB(gi + 2)
                for t in range(4): loadA(4*(gi+2) + t)
    else:
        loadB(0)
        for u in range(4): loadA(u)
        loadB(1)
        for u in range(4, NA): loadA(u)
        for k in range(44): a(f'v_mov_b32 v{ACC+k}, 0')
        for u in range(40):
            gi, t = divmod(u, 4); c, ks = groups[gi]
            wait_for(max(idxA[u], idxB[gi]))
            Dr = (D1 if c else D0) + 4*t
            cop = '0' if ks == 0 else q4(Dr)
            a(f'v_mfma_f32_16x16x32_bf16 {q4(Dr)}, {q4(AR+4*(u%NA))}, {q4(BR+4*(gi%2))}, {cop}')
            if t == 3 and gi + 2 < len(groups): loadB(gi + 2)
            if u + NA < 40: loadA(u + NA)
    SEL = F; G = F + 4; O1 = F + 8; O0 = TMP
    a(f'v_and_b32 v{vTb}, 0xff, v{vTb}')
    a(f'v_lshl_add_u32 v{vTb}, v{vTb}, 9, s{sNode}')
    a(f'v_add_u32 v{vTa}, v{vTb}, v{vOut0}')
    a(f'v_add_u32 v{vTb}, v{vTb}, v{vOut1}')
    SEL = D0
    for t, m in ((1, sM1), (2, sM2), (3, sM3)):
        a(f's_mov_b64 exec, s[{m}:{m+1}]')
        for r in range(4): a(f'v_mov_b32 v{SEL+r}, v{D0+4*t+r}')
    a('s_mov_b64 exec, -1')
    for r in range(4): a(f'v_mul_f32 v{G+r}, 0xbfb8aa3b, v{SEL+r}')
    for r in range(4): a(f'v_exp_f32 v{G+r}, v{G+r}')
    for r in range(4): a(f'v_add_f32 v{G+r}, 1.0, v{G+r}')
    for r in range(4): a(f'v_rcp_f32 v{G+r}, v{G+r}')
    a(f'v_cvt_pk_bf16_f32 v{O0}, v{SEL}, v{SEL+1}')
    a(f'v_cvt_pk_bf16_f32 v{O0+1}, v{SEL+2}, v{SEL+3}')
    a(f'buffer_store_dwordx2 {pr(O0)}, v{vTa}, s[12:15], 0 offen{POL[opt.get("stpol", 1)]}')
    for t in range(4):
        for r in range(4):
            a(f'v_mul_f32_dpp v{D1+4*t+r}, v{G+r}, v{D1+4*t+r} quad_perm:[{t},{t},{t},{t}] row_mask:0xf bank_mask:0xf')
    for t in range(4):
        a(f'v_cvt_pk_bf16_f32 v{O1+2*t}, v{D1+4*t}, v{D1+4*t+1}')
        a(f'v_cvt_pk_bf16_f32 v{O1+2*t+1}, v{D1+4*t+2}, v{D1+4*t+3}')
    a(f'buffer_store_dwordx4 {q4(O1)}, v{vTb}, s[12:15], 0 offen{POL[opt.get("stpol", 1)]}')
    a(f'buffer_store_dwordx4 {q4(O1+4)}, v{vTb}, s[12:15], 0 offen offset:16{POL[opt.get("stpol", 1)]}')

def slow_path(a, opt):
    WR = 100; AC = 0; FX = 12; AE = 16; AV = 24; RR = 40; T = 46; TB_ = 52; REC = 56; vL2 = 60; vZ = 61; vPB = 62; vL4 = 63
    G0 = 64; G1 = 65
    sW0 = 52; sW1 = 56; sWR = 48
    sN = 60; sC = 61; sCntS = 62; sStart = 63; sJ = 64; sMask_ = 66; sBit = 68; sD0 = 69; sD1 = 70; sD2 = 71
    sY0 = 72; sY1 = 73; sY2 = 74; sXo = 75; sEo = 76; sK = 77; sRow = 78; sPB = 79; sTmp = 80; sTmp2 = 81; sHiM = 82
    a('s_mov_b64 exec, -1')
    a(f's_load_dwordx2 s[{sWR}:{sWR+1}], s[0:1], 40')
    a(f's_load_dwordx2 s[{sW0}:{sW0+1}], s[0:1], 48')
    a(f's_load_dwordx2 s[{sW1}:{sW1+1}], s[0:1], 56')
    a(f'v_lshlrev_b32 v{vL2}, 1, v{vLane}')
    a(f'v_lshlrev_b32 v{vL4}, 2, v{vLane}')
    a(f'v_mov_b32 v{vZ}, 0')
    a(f's_mov_b32 s{sHiM}, 0xffff0000')
    a(f's_mul_i32 s{sPB}, s{sWave}, {4*PS}')
    a(f's_add_u32 s{sPB}, s{sPB}, {L_P}')
    a(f'v_add_u32 v{vPB}, s{sPB}, v{vL4}')
    a('s_waitcnt lgkmcnt(0)')
    srd(a, sWR, 16*320*2); srd(a, sW0, 128*64*2); srd(a, sW1, 192*64*2)
    for p in range(5):
        for d in range(16):
            off = (d*320 + 64*p)*2
            a(f's_mov_b32 s{sTmp}, {off}')
            a(f'buffer_load_ushort v{WR+16*p+d}, v{vL2}, s[{sWR}:{sWR+3}], s{sTmp} offen')
        a('s_waitcnt vmcnt(0)')
        for d in range(16): a(f'v_lshlrev_b32 v{WR+16*p+d}, 16, v{WR+16*p+d}')
    TBL = 3072
    for k in range(4):
        a(f'v_add_u32 v{T}, {64*k}, v{vLane}')
        a(f'v_cmp_gt_u32 vcc, {NCH}, v{T}')
        a(f'v_lshlrev_b32 v{T+1}, 10, v{T}')
        a(f's_lshl_b32 s{sTmp}, s2, 2')
        a(f's_add_u32 s{sTmp}, s{sTmp}, {TAB_OFF}')
        a(f'buffer_load_dword v{T+2}, v{T+1}, s[16:19], s{sTmp} offen')
        a('s_waitcnt vmcnt(0)')
        a(f'v_cndmask_b32 v{T+2}, 0, v{T+2}, vcc')
        a(f'ds_write_b32 v{vPB}, v{T+2} offset:{TBL + 256*k}')
    a(f's_mov_b32 s{sN}, s{sWave}')
    a('KS_node:')
    a(f's_cmp_ge_u32 s{sN}, {NPB}')
    a('s_cbranch_scc1 K2_end')
    a(f's_mul_i32 s{sRow}, s2, {NPB}')
    a(f's_add_u32 s{sRow}, s{sRow}, s{sN}')
    a(f's_cmp_ge_u32 s{sRow}, {N}')
    a('s_cbranch_scc1 K2_end')
    a(f's_lshl_b32 s{sRow}, s{sRow}, 9')
    for f in range(11): a(f'v_mov_b32 v{AC+f}, 0')
    a(f's_mov_b32 s{sC}, 0')
    a('KS_chunk:')
    a(f's_lshl_b32 s{sTmp}, s{sC}, 2')
    a(f's_add_u32 s{sTmp}, s{sTmp}, s{sPB}')
    a(f'v_mov_b32 v{T}, s{sTmp}')
    a(f'ds_read_b32 v{T+1}, v{T} offset:{TBL}')
    a('s_waitcnt lgkmcnt(0)')
    a(f'v_readfirstlane_b32 s{sTmp}, v{T+1}')
    a(f's_and_b32 s{sStart}, s{sTmp}, 0xffff')
    a(f's_lshr_b32 s{sCntS}, s{sTmp}, 16')
    a(f's_mul_i32 s{sTmp}, s{sC}, {CH}')
    a(f's_add_u32 s{sStart}, s{sStart}, s{sTmp}')
    a(f's_mov_b32 s{sJ}, 0')
    a('KS_batch:')
    a(f's_cmp_ge_u32 s{sJ}, s{sCntS}')
    a('s_cbranch_scc1 KS_chunk_next')
    a(f'v_add_u32 v{T}, s{sJ}, v{vLane}')
    a(f'v_cmp_gt_u32 vcc, s{sCntS}, v{T}')
    a(f'v_add_u32 v{T}, s{sStart}, v{T}')
    a(f'v_mul_u32_u24 v{T}, 12, v{T}')
    a(f'v_mov_b32 v{T+1}, 2.0')
    a(f'v_cndmask_b32 v{T}, v{T+1}, v{T}, vcc')
    a(f's_mov_b64 s[{sMask_}:{sMask_+1}], vcc')
    a(f'buffer_load_dwordx3 v[{REC}:{REC+2}], v{T}, s[16:19], 0 offen')
    a('s_waitcnt vmcnt(0)')
    a(f'v_lshrrev_b32 v{T}, 24, v{REC+2}')
    a(f'v_cmp_eq_u32 vcc, s{sN}, v{T}')
    a(f's_and_b64 s[{sMask_}:{sMask_+1}], s[{sMask_}:{sMask_+1}], vcc')
    a('KS_edge:')
    a(f's_cmp_eq_u64 s[{sMask_}:{sMask_+1}], 0')
    a('s_cbranch_scc1 KS_batch_next')
    a(f's_ff1_i32_b64 s{sBit}, s[{sMask_}:{sMask_+1}]')
    a(f's_bitset0_b64 s[{sMask_}:{sMask_+1}], s{sBit}')
    a(f'v_readlane_b32 s{sD0}, v{REC}, s{sBit}')
    a(f'v_readlane_b32 s{sD1}, v{REC+1}, s{sBit}')
    a(f'v_readlane_b32 s{sD2}, v{REC+2}, s{sBit}')
    a(f's_and_b32 s{sXo}, s{sD0}, 0xffff')
    a(f's_lshl_b32 s{sXo}, s{sXo}, 9')
    a(f's_and_b32 s{sEo}, s{sD2}, 0xffffff')
    a(f's_lshl_b32 s{sEo}, s{sEo}, 5')
    a(f's_and_b32 s{sY0}, s{sD0}, s{sHiM}')
    a(f's_lshl_b32 s{sY1}, s{sD1}, 16')
    a(f's_and_b32 s{sY2}, s{sD1}, s{sHiM}')
    for v in range(4): a(f'buffer_load_ushort v{FX+v}, v{vL2}, s[4:7], s{sXo} offen offset:{128*v}')
    a(f'buffer_load_dwordx4 v[{AE}:{AE+3}], v{vZ}, s[8:11], s{sEo} offen')
    a(f'buffer_load_dwordx4 v[{AE+4}:{AE+7}], v{vZ}, s[8:11], s{sEo} offen offset:16')
    a('s_waitcnt vmcnt(0)')
    for v in range(4): a(f'v_lshlrev_b32 v{FX+v}, 16, v{FX+v}')
    for q in range(8):
        a(f'v_lshlrev_b32 v{AV+2*q}, 16, v{AE+q}')
        a(f'v_and_b32 v{AV+2*q+1}, s{sHiM}, v{AE+q}')
    for p in range(5):
        a(f'v_mul_f32 v{RR+p}, v{AV}, v{WR+16*p}')
        for d in range(1, 16): a(f'v_fmac_f32 v{RR+p}, v{AV+d}, v{WR+16*p+d}')
    f0, f1 = FX, FX + 1
    a(f'v_fmac_f32 v{AC+0}, v{f0}, v{RR+0}')
    a(f'v_mul_f32 v{T}, s{sY0}, v{f1}')
    a(f'v_fmac_f32 v{T}, s{sY1}, v{f1+1}')
    a(f'v_fmac_f32 v{T}, s{sY2}, v{f1+2}')
    a(f'v_fmac_f32 v{AC+1}, v{T}, v{RR+1}')
    a(f'v_mul_f32 v{T}, v{f0}, v{RR+2}')
    for j, y in enumerate((sY0, sY1, sY2)): a(f'v_fmac_f32 v{AC+2+j}, s{y}, v{T}')
    for j in range(3): a(f'v_fmac_f32 v{AC+5+j}, v{f1+j}, v{RR+3}')
    for j in range(3): a(f'v_mul_f32 v{T+1+j}, v{f1+j}, v{RR+4}')
    a(f'v_fmac_f32 v{AC+8}, s{sY1}, v{T+3}')
    a(f'v_fma_f32 v{AC+8}, -s{sY2}, v{T+2}, v{AC+8}')
    a(f'v_fmac_f32 v{AC+9}, s{sY2}, v{T+1}')
    a(f'v_fma_f32 v{AC+9}, -s{sY0}, v{T+3}, v{AC+9}')
    a(f'v_fmac_f32 v{AC+10}, s{sY0}, v{T+2}')
    a(f'v_fma_f32 v{AC+10}, -s{sY1}, v{T+1}, v{AC+10}')
    a('s_branch KS_edge')
    a('KS_batch_next:')
    a(f's_add_u32 s{sJ}, s{sJ}, 64')
    a('s_branch KS_batch')
    a('KS_chunk_next:')
    a(f's_add_u32 s{sC}, s{sC}, 1')
    a(f's_cmp_lt_u32 s{sC}, {NCH}')
    a('s_cbranch_scc1 KS_chunk')
    for f in range(11): a(f'ds_write_b32 v{vPB}, v{AC+f} offset:{256*f}')
    for g in range(4): a(f'v_mov_b32 v{G0+g}, 0')
    a(f's_mov_b32 s{sK}, 0')
    a('KS_g0:')
    a(f's_lshl_b32 s{sTmp}, s{sK}, 2')
    a(f's_add_u32 s{sTmp}, s{sTmp}, s{sPB}')
    a(f'v_mov_b32 v{T}, s{sTmp}')
    a(f's_lshl_b32 s{sTmp2}, s{sK}, 7')
    for u in range(8):
        a(f'ds_read_b32 v{AV+u}, v{T} offset:{4*u}')
        a(f'buffer_load_ushort v{AV+8+u}, v{vL2}, s[{sW0}:{sW0+3}], s{sTmp2} offen offset:{128*u}')
    a('s_waitcnt vmcnt(0) lgkmcnt(0)')
    for u in range(8):
        a(f'v_lshlrev_b32 v{AV+8+u}, 16, v{AV+8+u}')
        a(f'v_fmac_f32 v{G0}, v{AV+u}, v{AV+8+u}')
    a(f's_add_u32 s{sK}, s{sK}, 8')
    a(f's_cmp_lt_u32 s{sK}, 128')
    a('s_cbranch_scc1 KS_g0')
    a(f's_mov_b32 s{sK}, 0')
    a('KS_g1:')
    a(f's_lshr_b32 s{sTmp}, s{sK}, 6')
    a(f's_mul_i32 s{sTmp}, s{sTmp}, 768')
    a(f's_and_b32 s{sTmp2}, s{sK}, 63')
    a(f's_lshl_b32 s{sTmp2}, s{sTmp2}, 2')
    a(f's_add_u32 s{sTmp}, s{sTmp}, s{sTmp2}')
    a(f's_add_u32 s{sTmp}, s{sTmp}, s{sPB}')
    a(f'v_mov_b32 v{T}, s{sTmp}')
    a(f's_lshl_b32 s{sTmp2}, s{sK}, 7')
    for u in range(4):
        for j in range(3): a(f'ds_read_b32 v{AV+3*u+j}, v{T} offset:{512 + 256*j + 4*u}')
        a(f'buffer_load_ushort v{AV+12+u}, v{vL2}, s[{sW1}:{sW1+3}], s{sTmp2} offen offset:{128*u}')
    a('s_waitcnt vmcnt(0) lgkmcnt(0)')
    for u in range(4):
        a(f'v_lshlrev_b32 v{AV+12+u}, 16, v{AV+12+u}')
        for j in range(3): a(f'v_fmac_f32 v{G1+j}, v{AV+3*u+j}, v{AV+12+u}')
    a(f's_add_u32 s{sK}, s{sK}, 4')
    a(f's_cmp_lt_u32 s{sK}, 192')
    a('s_cbranch_scc1 KS_g1')
    a(f'v_mul_f32 v{T}, 0xbfb8aa3b, v{G0}')
    a(f'v_exp_f32 v{T}, v{T}')
    a(f'v_add_f32 v{T}, 1.0, v{T}')
    a(f'v_rcp_f32 v{T}, v{T}')
    for j in range(3): a(f'v_mul_f32 v{G1+j}, v{T}, v{G1+j}')
    for g in range(4):
        a(f'v_cvt_pk_bf16_f32 v{G0+g}, v{G0+g}, v{G0+g}')
        a(f'buffer_store_short v{G0+g}, v{vL2}, s[12:15], s{sRow} offen offset:{128*g}')
    a(f's_add_u32 s{sN}, s{sN}, 8')
    a('s_branch KS_node')

def gen_k2(a, opt):
    D = opt.get('D', 2)
    set_map(D)
    OPT.update(opt)
    a(f'{KN}_kernel:')
    prologue(a, opt)
    a(f'v_mov_b32 v{vSBase}, v226')
    a(f's_mov_b32 s{sPfQ}, s{sWave}')
    a(f'v_readlane_b32 s{sPfT}, v{vSBase}, s{sWave}')
    a(f'v_readlane_b32 s{sT}, v{vSteps}, s{sWave}')
    a(f'v_mov_b32 v{vHi}, 0xffff0000')
    a(f'v_mov_b32 v{vCtr}, {L_CTR}')
    a(f'v_mov_b32 v{vOne}, 1')
    a(f's_add_u32 s{sPfEnd}, s{sPfT}, s{sT}')
    a('s_mov_b64 exec, 1')
    a(f'ds_add_rtn_u32 v{vGrab}, v{vCtr}, v{vOne}')
    a('s_mov_b64 exec, -1')
    a(f's_lshl_b32 s{sOffA}, s{sPfT}, 6')
    a(f's_lshr_b32 s{sOffB}, s{sOffA}, 1')
    a(f'v_add_u32 v{vNa}, s{sOffA}, v{vRecA}')
    a(f'v_add_u32 v{vNb}, s{sOffB}, v{vRecB}')
    a('s_waitcnt lgkmcnt(0)')
    for sg in range(D):
        rec_read(a, sg)
        a('s_waitcnt lgkmcnt(0)')
        grab_result(a)
        issue_loads(a, sg, opt)
    for k in range(44): a(f'v_mov_b32 v{ACC+k}, 0')
    if opt.get('align'): a.raw(f'.p2align {opt["align"]}')
    for _ in range(opt.get('pad', 0)): a('s_nop 0')
    for sg in range(D):
        a(f'K2_s{sg}:')
        step(a, sg, D, opt)
        a(f's_cmp_lt_i32 s{sCur}, 0')
        a(f's_cbranch_scc0 K2_fl{sg}')
        if sg == D - 1: a('s_branch K2_s0')
    for sg in range(D):
        a(f'K2_fl{sg}:')
        flush(a, opt)
        a(f's_cmp_eq_u32 s{sTag + (sg+1) % D}, -2')
        a('s_cbranch_scc1 K2_end')
        a(f's_branch K2_s{(sg+1) % D}')
    for f in DEFER: f(a)
    a('K2_slow:')
    slow_path(a, opt)
    a('K2_end:')
    if opt.get('endwait'): a('s_waitcnt vmcnt(0)')
    if opt.get('ts'):
        stamp(a, opt, 6, 255)
        a('s_waitcnt vmcnt(0)')
        stamp(a, opt, 7, 255)
        a(f'v_writelane_b32 v255, s{sNQ}, 8')
        a('s_getreg_b32 s45, hwreg(HW_REG_XCC_ID)')
        a(f'v_writelane_b32 v255, s45, 10')
        a('s_getreg_b32 s45, hwreg(HW_REG_HW_ID)')
        a(f'v_writelane_b32 v255, s45, 11')
        stamp_out(a, opt, 255, 254, sWave, TS_OFF, 8)
        a('K2_end2:')
    a('s_endpgm')
    return 256, 102
```

```python
import sys
from asmlib import Asm

KN = 'gather_scatter__tensor_product_equiv_equiformer__graph'
N = 50000; E = 800000
NCH = 224; CH = 3584; BLK1 = 896; NPB = 196; NB = 256
NPREP = 15
REC_OFF = 0; TAB_OFF = 0x940000; WIMG_OFF = 0x980000; WS_USED = 0x9A0000
MAGIC = 85599
TS_OFF = 0x1000000
def stamp(a, opt, idx, vreg, sreg=98):
    if not opt.get('ts'): return
    if not (opt.get('tsmask', 0xffff) >> idx) & 1: return
    a(f's_memrealtime s[{sreg}:{sreg+1}]')
    a('s_waitcnt lgkmcnt(0)')
    a(f'v_writelane_b32 v{vreg}, s{sreg}, {idx}')
def stamp_out(a, opt, vreg, vtmp, wavesgpr, base, nw, srdreg=16):
    if not opt.get('ts'): return
    a(f's_mul_i32 s98, s2, {nw}')
    a(f's_add_u32 s98, s98, s{wavesgpr}')
    a(f's_lshl_b32 s98, s98, 6')
    a(f's_add_u32 s98, s98, {base}')
    a(f'v_mbcnt_lo_u32_b32 v{vtmp}, -1, 0')
    a(f'v_mbcnt_hi_u32_b32 v{vtmp}, -1, v{vtmp}')
    a(f'v_cmp_gt_u32 vcc, 16, v{vtmp}')
    a(f'v_lshlrev_b32 v{vtmp}, 2, v{vtmp}')
    a(f's_and_saveexec_b64 s[100:101], vcc')
    a(f's_mov_b32 s{srdreg+2}, 0x2000000')
    a(f'buffer_store_dword v{vreg}, v{vtmp}, s[{srdreg}:{srdreg+3}], s98 offen')
    a(f's_mov_b64 exec, s[100:101]')
L_CNT = 0; L_BINS = 1024; L_FLAG = 1280; L_SORT = 2048; L_BASE = 3072
L_RECA = 4096; L_RECB = 36864; L_W = 53248; L_P = 94208
PS = 1440; PJS = 384
L_EA = L_P + 8 * 4 * PS
EA2_ROWS = 224
LDS2 = L_EA + 16384
NULLSTEP = 511

def srd(a, r, size):
    a(f's_and_b32 s{r+1}, s{r+1}, 0xffff')
    a(f's_mov_b32 s{r+2}, {size}')
    a(f's_mov_b32 s{r+3}, 0x20000')

def wave_scan(a, v):
    for sh in (1, 2, 4, 8):
        a(f'v_add_u32_dpp v{v}, v{v}, v{v} row_shr:{sh} row_mask:0xf bank_mask:0xf bound_ctrl:1')
    a(f'v_add_u32_dpp v{v}, v{v}, v{v} row_bcast:15 row_mask:0xa bank_mask:0xf')
    a(f'v_add_u32_dpp v{v}, v{v}, v{v} row_bcast:31 row_mask:0xc bank_mask:0xf')

def gen_k1(a, opt):
    a(f'k1_sort_kernel:')
    a(f's_cmp_ge_u32 s2, {NCH}')
    a('s_cbranch_scc1 K1_prep')
    if opt.get('ts'):
        a('v_mov_b32 v70, 0'); a('v_lshrrev_b32 v71, 6, v0'); a('s_nop 1'); a('v_readfirstlane_b32 s40, v71')
    stamp(a, opt, 0, 70)
    a('s_load_dwordx2 s[12:13], s[0:1], 8')
    a('s_load_dwordx2 s[8:9], s[0:1], 24')
    a('s_load_dwordx2 s[4:5], s[0:1], 32')
    a('s_load_dwordx2 s[16:17], s[0:1], 88')
    if opt.get('pf'):
        a('s_load_dwordx2 s[40:41], s[0:1], 0')
        a('s_load_dwordx2 s[44:45], s[0:1], 16')
    a('v_lshlrev_b32 v1, 2, v0')
    a('v_mov_b32 v2, 0')
    a('v_cmp_gt_u32 vcc, 256, v0')
    a('s_and_saveexec_b64 s[26:27], vcc')
    a('s_cbranch_execz K1_z')
    a('ds_write_b32 v1, v2')
    a('K1_z:')
    a('s_mov_b64 exec, s[26:27]')
    a(f's_mul_i32 s3, s2, {CH}')
    a('v_add_u32 v3, s3, v1')
    a('v_lshlrev_b32 v4, 2, v3')
    a('v_mul_u32_u24 v5, 6, v3')
    a(f's_mov_b32 s20, {E}')
    a(f's_mov_b32 s21, {MAGIC}')
    a('s_mov_b32 s22, 0xffff0000')
    a('s_waitcnt lgkmcnt(0)')
    srd(a, 4, E * 4); srd(a, 8, E * 4); srd(a, 12, E * 6); srd(a, 16, WS_USED)
    if opt.get('pf'): srd(a, 40, N * 512); srd(a, 44, E * 32)
    a('v_cmp_gt_u32 vcc, s20, v3')
    a('s_and_saveexec_b64 s[26:27], vcc')
    a('s_mov_b64 s[28:29], exec')
    a('s_cbranch_execz K1_a')
    a('buffer_load_dwordx4 v[8:11], v4, s[4:7], 0 offen')
    a('buffer_load_dwordx4 v[12:15], v4, s[8:11], 0 offen')
    a('buffer_load_dwordx4 v[16:19], v5, s[12:15], 0 offen')
    a('buffer_load_dwordx2 v[20:21], v5, s[12:15], 0 offen offset:16')
    a('K1_a:')
    a('s_mov_b64 exec, s[26:27]')
    npf = opt.get('pf', 0)
    if npf:
        a(f's_mul_i32 s36, s2, {BLK1}')
        a('v_add_u32 v68, s36, v0')
        a('v_lshlrev_b32 v68, 7, v68')
        a('buffer_load_dword v69, v68, s[40:43], 0 offen')
        if npf > 1: a('buffer_load_dword v70, v68, s[44:47], 0 offen')
    a('s_waitcnt lgkmcnt(0)')
    a('s_barrier')
    stamp(a, opt, 1, 70)
    a('s_mov_b64 exec, s[28:29]')
    a('s_cbranch_execz K1_b')
    a('v_mov_b32 v6, 1')
    a(f's_waitcnt vmcnt({3 + opt.get("pf", 0)})')
    stamp(a, opt, 2, 70)
    for k in range(4):
        a(f'v_mul_u32_u24 v{24+k}, s21, v{8+k}')
    for k in range(4):
        a(f'v_lshrrev_b32 v{24+k}, 24, v{24+k}')
    for k in range(4):
        a(f'v_mul_u32_u24 v{28+k}, {NPB}, v{24+k}')
        a(f'v_lshlrev_b32 v{24+k}, 2, v{24+k}')
    for k in range(4):
        a(f'ds_add_rtn_u32 v{35+4*k}, v{24+k}, v6')
    for k in range(4):
        a(f'v_sub_u32 v{28+k}, v{8+k}, v{28+k}')
        a(f'v_add_u32 v7, {k}, v3')
        a(f'v_lshl_or_b32 v{34+4*k}, v{28+k}, 24, v7')
    a(f's_waitcnt vmcnt({opt.get("pf", 0)})')
    a('v_lshl_or_b32 v32, v16, 16, v12')
    a('v_alignbit_b32 v33, v17, v16, 16')
    a('v_and_or_b32 v36, v17, s22, v13')
    a('v_mov_b32 v37, v18')
    a('v_lshl_or_b32 v40, v19, 16, v14')
    a('v_alignbit_b32 v41, v20, v19, 16')
    a('v_and_or_b32 v44, v20, s22, v15')
    a('v_mov_b32 v45, v21')
    a('K1_b:')
    a('s_mov_b64 exec, s[26:27]')
    a('s_waitcnt lgkmcnt(0)')
    a('s_barrier')
    stamp(a, opt, 3, 70)
    a('v_and_b32 v48, 63, v0')
    a('v_lshlrev_b32 v48, 4, v48')
    a('ds_read_b128 v[52:55], v48')
    a('s_waitcnt lgkmcnt(0)')
    a('v_add_u32 v56, v52, v53')
    a('v_add_u32 v57, v56, v54')
    a('v_add_u32 v58, v57, v55')
    a('v_mov_b32 v59, v58')
    wave_scan(a, 59)
    a('v_sub_u32 v60, v59, v58')
    a('v_add_u32 v61, v60, v52')
    a('v_add_u32 v62, v60, v56')
    a('v_add_u32 v63, v60, v57')
    a('ds_write_b128 v48, v[60:63] offset:1024')
    a('v_cmp_gt_u32 vcc, 64, v0')
    a('s_and_saveexec_b64 s[30:31], vcc')
    a('s_cbranch_execz K1_t')
    for k in range(4):
        a(f'v_lshl_or_b32 v{64+k}, v{52+k}, 16, v{60+k}')
    a('s_lshl_b32 s23, s2, 10')
    a(f's_add_u32 s23, s23, {TAB_OFF}')
    a('buffer_store_dwordx4 v[64:67], v48, s[16:19], s23 offen')
    a('K1_t:')
    a('s_mov_b64 exec, s[28:29]')
    a('s_cbranch_execz K1_w')
    for k in range(4):
        a(f'ds_read_b32 v{8+k}, v{24+k} offset:1024')
    for k in range(4):
        a(f's_waitcnt lgkmcnt({3-k})') if k == 0 else None
    a('s_waitcnt lgkmcnt(0)')
    for k in range(4):
        a(f'v_add_u32 v{8+k}, v{8+k}, v{35+4*k}')
        a(f'v_lshlrev_b32 v{8+k}, 4, v{8+k}')
        a(f'ds_write_b96 v{8+k}, v[{32+4*k}:{34+4*k}] offset:2048')
    a('K1_w:')
    a('s_mov_b64 exec, -1')
    a('s_waitcnt lgkmcnt(0)')
    a('s_barrier')
    a('v_lshlrev_b32 v8, 4, v0')
    for k in range(4):
        a(f'ds_read_b96 v[{32+4*k}:{34+4*k}], v8 offset:{2048 + k*BLK1*16}')
    a('v_mul_u32_u24 v9, 12, v0')
    for k in range(4):
        a(f's_mul_i32 s{32+k}, s2, {CH*12}')
        if k: a(f's_add_u32 s{32+k}, s{32+k}, {k*BLK1*12}')
    pol = ['', ' nt', ' sc1', ' sc0 sc1', ' sc1 nt', ' sc0 sc1 nt'][opt.get('k1pol', 0)]
    for k in range(4):
        a(f's_waitcnt lgkmcnt({3-k})')
        a(f'buffer_store_dwordx3 v[{32+4*k}:{34+4*k}], v9, s[16:19], s{32+k} offen{pol}')
    a('K1_done:')
    if opt.get('endwait1'): a('s_waitcnt vmcnt(0)')
    if opt.get('ts'):
        a('s_mov_b64 exec, -1')
        stamp(a, opt, 4, 70)
        a('s_waitcnt vmcnt(0)')
        stamp(a, opt, 5, 70)
        stamp_out(a, opt, 70, 71, 40, TS_OFF + 0x100000, 14)
    a('s_endpgm')
    a('K1_prep:')
    a(f's_sub_u32 s3, s2, {NCH}')
    a(f's_cmp_ge_u32 s3, {NPREP}')
    a('s_cbranch_scc1 K1_done2')
    a('s_load_dwordx2 s[4:5], s[0:1], 40')
    a('s_load_dwordx4 s[20:23], s[0:1], 48')
    a('s_load_dwordx2 s[16:17], s[0:1], 88')
    a(f's_mul_i32 s3, s3, {BLK1}')
    a('v_add_u32 v1, s3, v0')
    a('s_nop 0')
    a('v_readfirstlane_b32 s24, v1')
    a('s_cmp_ge_u32 s24, 12800')
    a('s_cbranch_scc1 K1_done2')
    a('s_lshr_b32 s24, s24, 8')
    a('v_lshrrev_b32 v2, 2, v1')
    a('v_and_b32 v2, 63, v2')
    a('v_and_b32 v3, 3, v1')
    a('v_and_b32 v4, 15, v2')
    a('v_lshrrev_b32 v5, 4, v2')
    a('s_waitcnt lgkmcnt(0)')
    srd(a, 16, WS_USED)
    a('s_cmp_ge_u32 s24, 10')
    a('s_cbranch_scc1 K1_pw')
    srd(a, 4, 16 * 320 * 2)
    a('s_lshr_b32 s25, s24, 1')
    a('s_and_b32 s26, s24, 1')
    a('s_lshl_b32 s25, s25, 6')
    a('s_lshl_b32 s26, s26, 1')
    a('s_add_u32 s25, s25, s26')
    a('v_lshlrev_b32 v6, 2, v4')
    a('v_lshrrev_b32 v7, 1, v5')
    a('v_add3_u32 v6, v6, v7, s25')
    a('v_and_b32 v7, 1, v5')
    a('v_lshlrev_b32 v7, 3, v7')
    a('v_lshl_add_u32 v7, v3, 1, v7')
    a('v_mul_u32_u24 v7, 320, v7')
    a('v_add_lshl_u32 v6, v6, v7, 1')
    a('buffer_load_ushort v8, v6, s[4:7], 0 offen')
    a('buffer_load_ushort v9, v6, s[4:7], 0 offen offset:640')
    a('s_branch K1_pst')
    a('K1_pw:')
    a('s_sub_u32 s25, s24, 10')
    a('s_cmp_ge_u32 s25, 16')
    a('s_cbranch_scc1 K1_pw1')
    a('s_mov_b32 s4, s20')
    a('s_mov_b32 s5, s21')
    srd(a, 4, 128 * 64 * 2)
    a('s_branch K1_pw2')
    a('K1_pw1:')
    a('s_sub_u32 s25, s25, 16')
    a('s_mov_b32 s4, s22')
    a('s_mov_b32 s5, s23')
    srd(a, 4, 192 * 64 * 2)
    a('K1_pw2:')
    a('s_lshr_b32 s26, s25, 2')
    a('s_and_b32 s27, s25, 3')
    a('s_lshl_b32 s26, s26, 5')
    a('s_lshl_b32 s27, s27, 2')
    a('v_lshrrev_b32 v6, 2, v4')
    a('v_lshlrev_b32 v6, 4, v6')
    a('v_and_b32 v7, 3, v4')
    a('v_add3_u32 v6, v6, v7, s27')
    a('v_lshlrev_b32 v7, 3, v5')
    a('v_lshl_add_u32 v7, v3, 1, v7')
    a('v_add_u32 v7, s26, v7')
    a('v_lshlrev_b32 v7, 6, v7')
    a('v_add_lshl_u32 v6, v6, v7, 1')
    a('buffer_load_ushort v8, v6, s[4:7], 0 offen')
    a('buffer_load_ushort v9, v6, s[4:7], 0 offen offset:128')
    a('K1_pst:')
    a('v_lshlrev_b32 v1, 2, v1')
    a(f's_mov_b32 s28, {WIMG_OFF}')
    a('s_waitcnt vmcnt(0)')
    a('v_lshl_or_b32 v8, v9, 16, v8')
    a('buffer_store_dword v8, v1, s[16:19], s28 offen')
    a('K1_done2:')
    a('s_endpgm')

def desc(name, vgpr, sgpr):
    return f'''.amdhsa_kernel {name}
  .amdhsa_next_free_vgpr {vgpr}
  .amdhsa_next_free_sgpr {sgpr}
  .amdhsa_accum_offset {(vgpr + 3) // 4 * 4}
  .amdhsa_group_segment_fixed_size 0
  .amdhsa_kernarg_size 96
  .amdhsa_user_sgpr_count 2
  .amdhsa_user_sgpr_kernarg_segment_ptr 1
  .amdhsa_system_sgpr_workgroup_id_x 1
.end_amdhsa_kernel
'''

def build(opt):
    from gen_k2 import gen_k2
    header = open('cdna_kernels/%s.s.ref' % KN).read().split('; Override launch')[0]
    out = header
    out += f'; Two launches: k1 bins the edges by destination bucket (and lays out the weights), k2 aggregates per node.\n'
    out += f'; @launch kernel=k1_sort_kernel grid=({NCH+NPREP},1,1) block=({BLK1},1,1) lds={2048 + CH*16}\n'
    if not opt.get('k1only'):
        out += f'; @launch kernel={KN}_kernel grid=({NB},1,1) block=(512,1,1) lds={LDS2}\n'
    out += '.amdgcn_target "amdgcn-amd-amdhsa--gfx950"\n.text\n'
    st = {}
    o1 = dict(opt); o2 = dict(opt)
    if 'tsk' in opt:
        o1['ts'] = opt['tsk'] & 1; o2['ts'] = (opt['tsk'] >> 1) & 1
    a = Asm(); gen_k1(a, o1)
    out += '.globl k1_sort_kernel\n.p2align 8\n.type k1_sort_kernel,@function\n' + a.finalize(st)
    a = Asm(); nv, ns = gen_k2(a, o2)
    out += f'.globl {KN}_kernel\n.p2align 8\n.type {KN}_kernel,@function\n' + a.finalize(st)
    print('k2 nops inserted', st, file=sys.stderr)
    out += '.section .rodata,"a"\n.p2align 6\n' + desc('k1_sort_kernel', 72, 102 if (o1.get('ts') or opt.get('k1s102')) else 48) + '.p2align 6\n' + desc(KN + '_kernel', nv, ns)
    return out

if __name__ == '__main__':
    opt = {}
    outp = None
    for x in sys.argv[1:]:
        if '=' in x:
            k, v = x.split('=', 1); opt[k] = int(v, 0)
        else: outp = x
    s = build(opt)
    open(outp or 'cdna_kernels/%s.s' % KN, 'w').write(s)
```

```python
from gen import *

ACC = 0; R = 44; RAD = 84; XS = 124
AS = YP = F = TMP = Y = NA = None
def set_map(D):
    global AS, YP, F, TMP, Y, NA
    AS = XS + 16*D; YP = AS + 4*D; F = YP + 4*D; TMP = F + 16; Y = TMP + 8
    NA = 8 if D == 2 else 6
vLaneX = 228; vLaneMask = 229; vRecA = 230; vRecB = 231; vSteps = 232; vEN = 233; vXA0 = 234; vXA1 = 235; vEA = 236
vTa = 237; vTb = 238; vPW = 239; vPR0 = 240; vPR1 = 241; vWR = 242; vOut0 = 243; vOut1 = 244; vOrd = 245
vLane = 246; vTid = 247; vT = 248
vHi = 248; vSBase = 249; vGrab = 250; vCtr = 246; vOne = 247
sWave = 20; sPfT = 21; sPfEnd = 22; sPfQ = 23; sNQ = 24; sCur = 25; s512 = 26; sHi = 27; sOffA = 28; sOffB = 29; sNode = 30; sT = 31
sM1 = 32; sM2 = 34; sM3 = 36; sSave = 38; sMask = 40; sOvf = 82; sU = 84
OPT = {}
POL = ['', ' nt', ' sc1', ' sc0 sc1', ' sc1 nt', ' sc0 sc1 nt', ' sc0']
YSEP = ((220, 222, 224), (226, 248, 250))
sThr = 3
sTag = 40
L_CTR = L_FLAG + 16
L_QI = 1344
COST_STEP = 8; COST_FLUSH = 11

def pr(x): return f'v[{x}:{x+1}]'
def q4(x): return f'v[{x}:{x+3}]'

def lane_consts(a, opt):
    i_, g_ = 208, 209
    a(f'v_and_b32 v{i_}, 15, v{vLane}')
    a(f'v_lshrrev_b32 v{g_}, 4, v{vLane}')
    a(f'v_lshlrev_b32 v{vLaneX}, 3, v{i_}')
    a(f'v_lshrrev_b32 v{210}, 1, v{g_}')
    a(f'v_and_b32 v{211}, 1, v{i_}')
    a(f'v_cmp_eq_u32 vcc, v{210}, v{211}')
    a(f'v_and_b32 v{212}, 1, v{g_}')
    a(f'v_lshlrev_b32 v{212}, 4, v{212}')
    a(f'v_mov_b32 v{213}, 2.0')
    a(f'v_cndmask_b32 v{vLaneMask}, v{213}, v{212}, vcc')
    a(f'v_lshlrev_b32 v{vRecA}, 4, v{g_}')
    a(f'v_add_u32 v{vRecA}, {L_RECA}, v{vRecA}')
    a(f'v_lshrrev_b32 v{vRecB}, 1, v{i_}')
    a(f'v_lshlrev_b32 v{vRecB}, 2, v{vRecB}')
    a(f'v_add_u32 v{vRecB}, {L_RECB}, v{vRecB}')
    a(f's_mul_i32 s{sNode}, s{sWave}, {4*PS}')
    a(f's_add_u32 s{sNode}, s{sNode}, {L_P}')
    a(f'v_mul_u32_u24 v{vPW}, {PS}, v{g_}')
    a(f'v_add3_u32 v{vPW}, v{vPW}, v{vLaneX}, s{sNode}')
    a(f'v_lshrrev_b32 v{210}, 2, v{i_}')
    a(f'v_mul_u32_u24 v{vPR0}, {PS}, v{210}')
    a(f'v_lshlrev_b32 v{211}, 4, v{g_}')
    a(f'v_add3_u32 v{vPR0}, v{vPR0}, v{211}, s{sNode}')
    a(f'v_and_b32 v{211}, 3, v{i_}')
    a(f'v_min_u32 v{212}, 2, v{211}')
    a(f'v_mul_u32_u24 v{212}, {PJS}, v{212}')
    a(f'v_add_u32 v{212}, 256, v{212}')
    a(f'v_add_u32 v{vPR1}, v{vPR0}, v{212}')
    a(f'v_lshlrev_b32 v{vWR}, 4, v{vLane}')
    a(f'v_add_u32 v{vWR}, {L_W}, v{vWR}')
    a(f'v_lshlrev_b32 v{212}, 5, v{g_}')
    a(f'v_lshl_add_u32 v{vOut0}, v{211}, 3, v{212}')
    a(f'v_lshl_add_u32 v{vOut1}, v{211}, 7, v{212}')
    a(f'v_add_u32 v{vOut1}, 128, v{vOut1}')
    a(f'v_cmp_eq_u32 vcc, 3, v{211}')
    a(f'v_cndmask_b32 v{vOut1}, v{vOut1}, v{213}, vcc')
    a(f'v_lshlrev_b32 v{vOrd}, 2, v{210}')
    a(f'v_add_u32 v{vOrd}, {L_SORT}, v{vOrd}')
    a(f's_mov_b32 s{s512}, 512')
    a(f's_mov_b32 s{sHi}, 0xffff0000')
    a(f's_mul_i32 s{sNode}, s2, {NPB*512}')
    for m, pat in ((sM1, 0x22222222), (sM2, 0x44444444), (sM3, 0x88888888)):
        a(f's_mov_b32 s{m}, {pat}'); a(f's_mov_b32 s{m+1}, {pat}')

def prologue(a, opt):
    a(f's_cmp_ge_u32 s2, {NB}')
    a('s_cbranch_scc1 K2_end2' if opt.get('ts') else 's_cbranch_scc1 K2_end')
    if opt.get('xcdmap', 1):
        a('s_and_b32 s3, s2, 7')
        a('s_lshl_b32 s3, s3, 5')
        a('s_lshr_b32 s2, s2, 3')
        a('s_add_u32 s2, s2, s3')
    a('s_load_dwordx2 s[4:5], s[0:1], 0')
    a('s_load_dwordx2 s[8:9], s[0:1], 16')
    a('s_load_dwordx2 s[12:13], s[0:1], 72')
    a('s_load_dwordx2 s[16:17], s[0:1], 88')
    a(f'v_mov_b32 v{vTid}, v0')
    a(f'v_and_b32 v{vLane}, 63, v0')
    a(f'v_lshrrev_b32 v{vT}, 6, v0')
    a(f'v_lshlrev_b32 v{vT+1}, 2, v0')
    a(f'v_readfirstlane_b32 s{sWave}, v{vT}')
    if opt.get('ts'): a('v_mov_b32 v255, 0')
    stamp(a, opt, 0, 255)
    a(f'v_mov_b32 v200, 0')
    a(f'v_cmp_gt_u32 vcc, 336, v{vTid}')
    a(f's_and_saveexec_b64 s[{sSave}:{sSave+1}], vcc')
    a('s_cbranch_execz K2_z')
    a(f'ds_write_b32 v{vT+1}, v200')
    a('K2_z:')
    a(f's_mov_b64 exec, s[{sSave}:{sSave+1}]')
    a('v_mov_b32 v200, 0xffff'); a('v_mov_b32 v201, 0'); a('v_mov_b32 v202, 0xffff'); a('v_mov_b32 v203, 0')
    for k in range(4): a(f'v_mov_b32 v{204+k}, 2.0')
    a(f'v_lshlrev_b32 v{vT+2}, 4, v{vTid}')
    for k in range(4): a(f'ds_write_b128 v{vT+2}, v[200:203] offset:{L_RECA + k*8192}')
    for k in range(2): a(f'ds_write_b128 v{vT+2}, v[204:207] offset:{L_RECB + k*8192}')
    a(f'v_lshrrev_b32 v{vT+3}, 4, v{vTid}')
    a('s_lshl_b32 s3, s2, 2')
    a(f'v_lshl_add_u32 v{vT+4}, v{vT+3}, 10, s3')
    a(f'v_lshlrev_b32 v{vT+5}, 4, v{vLane}')
    a('s_waitcnt lgkmcnt(0)')
    srd(a, 4, 0 if opt.get('nomem') else N * 512); srd(a, 8, 0 if opt.get('nomem') or opt.get('noea') else E * 32); srd(a, 12, N * 512); srd(a, 16, WS_USED)
    TB = 124
    for k in range(7):
        a(f's_mov_b32 s{sU+k}, {TAB_OFF + k*32768}')
    for k in range(7):
        a(f'buffer_load_dword v{TB+k}, v{vT+4}, s[16:19], s{sU+k} offen')
    lane_consts(a, opt)
    vJ = 152; vG = 153; CN = 154; AD = 161
    a(f'v_and_b32 v{vJ}, 15, v{vTid}')
    a(f'v_mul_u32_u24 v{vG}, {CH*12}, v{vT+3}')
    a(f'v_add_u32 v168, 16, v{vJ}')
    a(f'v_add_u32 v169, 32, v{vJ}')
    a(f's_mov_b64 s[{sOvf}:{sOvf+1}], 0')
    for k in range(7): a(f's_mov_b32 s{sU+k}, {REC_OFF + k*32*CH*12}')
    a('s_waitcnt vmcnt(0)')
    stamp(a, opt, 1, 255)
    for k in range(7):
        a(f'v_lshrrev_b32 v{CN+k}, 16, v{TB+k}')
        a(f'v_and_b32 v{AD+k}, 0xffff, v{TB+k}')
        a(f'v_add_u32 v{AD+k}, v{AD+k}, v{vJ}')
        a(f'v_mad_u32_u24 v{AD+k}, v{AD+k}, 12, v{vG}')
        a(f'v_cmp_gt_u32 s[{sMask+2*k}:{sMask+2*k+1}], v{CN+k}, v{vJ}')
        a(f'v_cmp_gt_u32 s[{sMask+14+2*k}:{sMask+14+2*k+1}], v{CN+k}, v168')
        a(f'v_cmp_gt_u32 s[{sMask+28+2*k}:{sMask+28+2*k+1}], v{CN+k}, v169')
        a(f'v_cmp_lt_u32 vcc, 48, v{CN+k}')
        a(f's_or_b64 s[{sOvf}:{sOvf+1}], s[{sOvf}:{sOvf+1}], vcc')
    def rec_loads(beta):
        for k in range(7):
            u = beta*7 + k
            a(f's_mov_b64 exec, s[{sMask+2*u}:{sMask+2*u+1}]')
            a(f'buffer_load_dwordx3 v[{4*u}:{4*u+2}], v{AD+k}, s[16:19], s{sU+k} offen offset:{beta*192}')
        a('s_mov_b64 exec, -1')
    rec_loads(0); rec_loads(1)
    sB2 = sU + 12
    a(f's_mov_b64 s[{sB2}:{sB2+1}], 0')
    for k in range(7):
        a(f's_or_b64 s[{sB2}:{sB2+1}], s[{sB2}:{sB2+1}], s[{sMask+28+2*k}:{sMask+28+2*k+1}]')
    a('s_cbranch_scc0 K2_nb2a')
    rec_loads(2)
    a('K2_nb2a:')
    IMG = 124
    a(f'v_lshlrev_b32 v{vT+5}, 4, v{vLane}')
    for u in range(7):
        a(f's_add_u32 s{sU+u}, s{sWave}, {8*u}')
        if u == 6:
            a(f's_min_u32 s{sU+u}, s{sU+u}, 49')
        a(f's_lshl_b32 s{sU+u}, s{sU+u}, 10')
        a(f's_add_u32 s{sT}, s{sU+u}, {WIMG_OFF}')
        a(f'buffer_load_dwordx4 {q4(IMG+4*u)}, v{vT+5}, s[16:19], s{sT} offen')
    if opt.get('tlb'):
        a(f'v_mul_u32_u24 v208, {opt.get("tlbs", 400000)}, v{vLane}')
        a('buffer_load_dword v209, v208, s[4:7], 0 offen')
        a('buffer_load_dword v210, v208, s[8:11], 0 offen')
    a('s_waitcnt lgkmcnt(0)')
    a('s_barrier')
    a(f's_cmp_eq_u64 s[{sOvf}:{sOvf+1}], 0')
    a('s_cbranch_scc1 K2_novf')
    a(f'v_mov_b32 v{vT}, {L_FLAG}')
    a(f'v_mov_b32 v{vT+1}, 1')
    a(f'ds_write_b32 v{vT}, v{vT+1}')
    a('K2_novf:')
    a(f'v_mov_b32 v170, 1')
    a(f's_waitcnt vmcnt({7 + (2 if opt.get("tlb") else 0)})')
    stamp(a, opt, 2, 255)
    EAP = 184
    npf = opt.get('eapf', 1)
    if npf:
        a(f's_mov_b64 exec, s[{sMask}:{sMask+1}]')
        a(f'v_and_b32 v183, 0xffffff, v2')
        a(f'v_lshlrev_b32 v183, 5, v183')
        a(f'buffer_load_dwordx4 {q4(EAP)}, v183, s[8:11], 0 offen nt')
        a(f'buffer_load_dwordx4 {q4(EAP+4)}, v183, s[8:11], 0 offen offset:16 nt')
        a('s_mov_b64 exec, -1')
    def hist(beta):
        for k in range(7):
            u = beta*7 + k
            a(f's_mov_b64 exec, s[{sMask+2*u}:{sMask+2*u+1}]')
            a(f'v_lshrrev_b32 v{161+k}, 22, v{4*u+2}')
            a(f'v_and_b32 v{161+k}, 0x3fc, v{161+k}')
            a(f'ds_add_rtn_u32 v{4*u+3}, v{161+k}, v170 offset:{L_CNT}')
        a('s_mov_b64 exec, -1')
    hist(0); hist(1)
    a(f's_cmp_eq_u64 s[{sB2}:{sB2+1}], 0')
    a('s_cbranch_scc1 K2_nb2b')
    hist(2)
    a('K2_nb2b:')
    a('s_waitcnt lgkmcnt(0)')
    a('s_barrier')
    stamp(a, opt, 3, 255)
    a(f's_waitcnt vmcnt({2 if npf else 0})')
    a(f'v_lshlrev_b32 v{vT+5}, 4, v{vLane}')
    a(f's_mov_b32 s{sU+8}, {L_P}')
    a(f's_mov_b32 s{sU+9}, {L_W - 10240}')
    for u in range(7):
        a(f's_cmp_lt_u32 s{sU+u}, 10240')
        a(f's_cselect_b32 s{sT}, s{sU+8}, s{sU+9}')
        a(f's_add_u32 s{sT}, s{sT}, s{sU+u}')
        a(f'v_add_u32 v{vT+6}, s{sT}, v{vT+5}')
        a(f'ds_write_b128 v{vT+6}, {q4(124+4*u)}')
    a(f'v_mov_b32 v{vT}, {L_FLAG}')
    a(f'ds_read_b32 v{vT+1}, v{vT}')
    a('s_waitcnt lgkmcnt(0)')
    a(f'v_readfirstlane_b32 s{sT}, v{vT+1}')
    a(f's_cmp_lg_u32 s{sT}, 0')
    a('s_cbranch_scc1 K2_slow')
    a(f's_cmp_lg_u32 s{sWave}, 0')
    a('s_cbranch_scc1 K2_p6')
    DG = 152; KY = 156; RK = 160; PO = 164; SO = 168
    a(f'v_lshlrev_b32 v{vT}, 4, v{vLane}')
    a(f'ds_read_b128 {q4(DG)}, v{vT} offset:{L_CNT}')
    a(f'v_cmp_gt_u32 vcc, 49, v{vLane}')
    a(f's_mov_b64 s[{sU}:{sU+1}], vcc')
    a(f'v_lshlrev_b32 v{vT+1}, 2, v{vLane}')
    for k in range(4): a(f'v_mov_b32 v{KY+k}, 0'); a(f'v_mov_b32 v{RK+k}, 0')
    a('s_waitcnt lgkmcnt(0)')
    a(f's_mov_b64 exec, s[{sU}:{sU+1}]')
    for k in range(4):
        a(f'v_min_u32 v{KY+k}, 63, v{DG+k}')
        a(f'v_sub_u32 v{KY+k}, 63, v{KY+k}')
        a(f'v_lshlrev_b32 v{KY+k}, 2, v{KY+k}')
        a(f'ds_add_rtn_u32 v{RK+k}, v{KY+k}, v170 offset:{L_BINS}')
    a('s_mov_b64 exec, -1')
    a(f'ds_read_b32 v{vT+2}, v{vT+1} offset:{L_BINS}')
    a('s_waitcnt lgkmcnt(0)')
    a(f'v_mov_b32 v{vT+3}, v{vT+2}')
    wave_scan(a, vT+3)
    a(f'v_sub_u32 v{vT+3}, v{vT+3}, v{vT+2}')
    for k in range(4): a(f'ds_bpermute_b32 v{PO+k}, v{KY+k}, v{vT+3}')
    a('s_waitcnt lgkmcnt(0)')
    a(f's_mov_b64 exec, s[{sU}:{sU+1}]')
    for k in range(4):
        a(f'v_add_u32 v{PO+k}, v{PO+k}, v{RK+k}')
        a(f'v_add_u32 v{vT+4}, {k}, v{vT+1}')
        a(f'v_lshl_or_b32 v{vT+4}, v{DG+k}, 8, v{vT+4}')
        a(f'v_lshlrev_b32 v{vT+5}, 2, v{PO+k}')
        a(f'ds_write_b32 v{vT+5}, v{vT+4} offset:{L_SORT}')
    a('s_mov_b64 exec, -1')
    a(f'ds_read_b128 {q4(SO)}, v{vT} offset:{L_SORT}')
    a(f'v_cmp_gt_u32 vcc, 49, v{vLane}')
    a('s_waitcnt lgkmcnt(0)')
    a(f'v_max3_u32 v{SO}, v{SO}, v{SO+1}, v{SO+2}')
    a(f'v_max_u32 v{SO}, v{SO}, v{SO+3}')
    a(f'v_lshrrev_b32 v{SO}, 8, v{SO}')
    a(f'v_add_u32 v{SO}, 1, v{SO}')
    a(f'v_lshrrev_b32 v{SO}, 1, v{SO}')
    a(f'v_max_u32 v{SO}, 1, v{SO}')
    a(f'v_cndmask_b32 v{SO}, 0, v{SO}, vcc')
    a(f'v_mov_b32 v{SO+1}, v{SO}')
    wave_scan(a, SO+1)
    a(f'v_sub_u32 v{SO+1}, v{SO+1}, v{SO}')
    a(f'v_min_u32 v{SO+2}, 0xffff, v{SO+1}')
    a(f'v_min_u32 v{SO+3}, 0xffff, v{SO}')
    a(f'v_lshl_or_b32 v{SO+2}, v{SO+3}, 16, v{SO+2}')
    a(f'ds_write_b32 v{vT+1}, v{SO+2} offset:{L_QI}')
    for k in range(4):
        a(f'v_and_b32 v{KY+k}, 0xfc, v{PO+k}')
        a(f'ds_bpermute_b32 v{RK+k}, v{KY+k}, v{SO+1}')
    a('s_waitcnt lgkmcnt(0)')
    for k in range(4):
        a(f'v_and_b32 v{PO+k}, 3, v{PO+k}')
        a(f'v_lshlrev_b32 v{PO+k}, 1, v{PO+k}')
        a(f'v_lshl_add_u32 v{RK+k}, v{RK+k}, 3, v{PO+k}')
    a(f's_mov_b64 exec, s[{sU}:{sU+1}]')
    a(f'ds_write_b128 v{vT}, {q4(RK)} offset:{L_BASE}')
    a('s_mov_b64 exec, -1')
    a('K2_p6:')
    a('s_waitcnt lgkmcnt(0)')
    a('s_barrier')
    stamp(a, opt, 4, 255)
    a(f'v_lshlrev_b32 v{vT+1}, 2, v{vLane}')
    a(f'ds_read_b32 v{vT+2}, v{vT+1} offset:{L_QI}')
    a('s_waitcnt lgkmcnt(0)')
    a(f'v_and_b32 v{vT+3}, 0xffff, v{vT+2}')
    a(f'v_lshrrev_b32 v{vSteps}, 16, v{vT+2}')
    a(f'v_mov_b32 v226, v{vT+3}')
    a(f'v_readlane_b32 s{sT}, v{vT+3}, 63')
    if opt.get('ts'): a(f'v_writelane_b32 v255, s{sT}, 9')
    a(f's_cmp_gt_u32 s{sT}, {NULLSTEP}')
    a('s_cbranch_scc1 K2_slow')
    if opt.get('thr'):
        a(f's_sub_i32 s{sThr}, s{sT}, {opt.get("t0", 401)}')
        a(f's_mul_i32 s{sThr}, s{sThr}, {opt.get("tmul", 4)}')
        a(f's_ashr_i32 s{sThr}, s{sThr}, 4')
        a(f's_cmp_lt_i32 s{sWave}, s{sThr}')
        a(f's_cselect_b32 s{sThr}, 0, 1')
    def scat(beta):
        for k in range(7):
            u = beta*7 + k
            a(f's_mov_b64 exec, s[{sMask+2*u}:{sMask+2*u+1}]')
            a(f'v_lshrrev_b32 v{161+k}, 22, v{4*u+2}')
            a(f'v_and_b32 v{161+k}, 0x3fc, v{161+k}')
            a(f'ds_read_b32 v{176+k}, v{161+k} offset:{L_BASE}')
        for k in range(7):
            u = beta*7 + k
            a(f's_mov_b64 exec, s[{sMask+2*u}:{sMask+2*u+1}]')
            a(f'v_lshrrev_b32 v{vT}, 1, v{4*u+3}')
            a(f'v_and_b32 v{vT+1}, 1, v{4*u+3}')
            if u == 0 and npf:
                a(f'v_lshlrev_b32 v{vT+2}, 5, v{vTid}')
                a(f'v_add_u32 v{vT+2}, {0x80000000 + L_EA}, v{vT+2}')
            else:
                a(f'v_and_b32 v{vT+2}, 0xffffff, v{4*u+2}')
                a(f'v_lshlrev_b32 v{vT+2}, 5, v{vT+2}')
            a(f's_waitcnt lgkmcnt({min(15, 6 - k + 2*k)})') if False else None
            if k == 0: a('s_waitcnt lgkmcnt(0)')
            a(f'v_lshl_add_u32 v{vT}, v{vT}, 3, v{176+k}')
            a(f'v_add_u32 v{vT}, v{vT}, v{vT+1}')
            a(f'v_lshlrev_b32 v{vT+3}, 3, v{vT}')
            a(f'v_lshlrev_b32 v{vT+4}, 2, v{vT}')
            a(f'ds_write_b64 v{vT+3}, v[{4*u}:{4*u+1}] offset:{L_RECA}')
            a(f'ds_write_b32 v{vT+4}, v{vT+2} offset:{L_RECB}')
        a('s_mov_b64 exec, -1')
    scat(0); scat(1)
    a(f's_cmp_eq_u64 s[{sB2}:{sB2+1}], 0')
    a('s_cbranch_scc1 K2_nb2c')
    scat(2)
    a('K2_nb2c:')
    a(f'v_lshlrev_b32 v{vT}, 4, v{vLane}')
    a(f'v_add_u32 v{vT}, {L_P}, v{vT}')
    for t in range(10): a(f'ds_read_b128 {q4(RAD+4*t)}, v{vT} offset:{t*1024}')
    if npf:
        a(f'v_lshlrev_b32 v{vT+1}, 5, v{vTid}')
        a(f'v_add_u32 v{vT+1}, {L_EA}, v{vT+1}')
        a('s_waitcnt vmcnt(0)')
        a(f'ds_write_b128 v{vT+1}, {q4(EAP)}')
        a(f'ds_write_b128 v{vT+1}, {q4(EAP+4)} offset:16')
    a('s_waitcnt lgkmcnt(0)')
    a('s_barrier')
    stamp(a, opt, 5, 255)
    if opt.get('ts'):
        a('s_memtime s[98:99]'); a('s_waitcnt lgkmcnt(0)'); a('v_writelane_b32 v255, s98, 12')

_uid = [0]
DEFER = []
vNa = 251; vNb = 252; vLow = 253; sAct = 44
def rec_read(a, sg):
    _uid[0] += 1; u = _uid[0]
    a(f's_cmp_lg_u32 s{sPfT}, s{sPfEnd}')
    a(f's_cbranch_scc0 K2_sw{u}')
    a(f'K2_have{u}:')
    a(f's_add_u32 s{sPfT}, s{sPfT}, 1')
    a(f's_cmp_eq_u32 s{sPfT}, s{sPfEnd}')
    a(f's_cselect_b32 s{sTag+sg}, s{sPfQ}, -1')
    a(f'K2_go{u}:')
    a(f'ds_read_b128 {q4(YP+4*sg)}, v{vNa}')
    a(f'ds_read_b32 v{vEN}, v{vNb}')
    a(f'v_add_u32 v{vNa}, 64, v{vNa}')
    a(f'v_add_u32 v{vNb}, 32, v{vNb}')
    def cold(a, u=u, sg=sg):
        a(f'K2_sw{u}:')
        a(f'v_readfirstlane_b32 s{sNQ}, v{vGrab}')
        a(f's_add_u32 s{sNQ}, s{sNQ}, 8')
        a(f's_cmp_ge_u32 s{sNQ}, 49')
        a(f's_cbranch_scc1 K2_exh{u}')
        a(f's_mov_b32 s{sPfQ}, s{sNQ}')
        a(f'v_readlane_b32 s{sPfT}, v{vSBase}, s{sNQ}')
        a(f'v_readlane_b32 s{sT}, v{vSteps}, s{sNQ}')
        a('s_mov_b64 exec, 1')
        a(f'ds_add_rtn_u32 v{vGrab}, v{vCtr}, v{vOne}')
        a('s_mov_b64 exec, -1')
        a(f's_add_u32 s{sPfEnd}, s{sPfT}, s{sT}')
        a(f's_lshl_b32 s{sOffA}, s{sPfT}, 6')
        a(f's_lshr_b32 s{sOffB}, s{sOffA}, 1')
        a(f'v_add_u32 v{vNa}, s{sOffA}, v{vRecA}')
        a(f'v_add_u32 v{vNb}, s{sOffB}, v{vRecB}')
        a(f's_branch K2_have{u}')
        a(f'K2_exh{u}:')
        a(f'v_add_u32 v{vNa}, {NULLSTEP*64}, v{vRecA}')
        a(f'v_add_u32 v{vNb}, {NULLSTEP*32}, v{vRecB}')
        a(f's_mov_b32 s{sTag+sg}, -2')
        a(f's_branch K2_go{u}')
    DEFER.append(cold)

def grab_result(a):
    pass

def issue_loads(a, sg, opt, part=None):
    ent = POL[opt.get('eapol', 4)]
    if opt.get('noload'): return
    xp = POL[opt.get('xpol', 0)]
    if part in (None, 0):
        a(f'v_mad_u32_u16 v{vXA0}, v{YP+4*sg}, s{s512}, v{vLaneX}')
        a(f'v_mad_u32_u16 v{vXA1}, v{YP+4*sg+2}, s{s512}, v{vLaneX}')
        a(f'v_or_b32 v{vEA}, v{vEN}, v{vLaneMask}')
        if opt.get('eapf', 1):
            a(f'v_cmp_gt_i32 vcc, 0, v{vEN}')
            a(f'v_and_b32 v{vTa}, v{vLow}, v{vEA}')
            a(f's_andn2_b64 exec, s[{sAct}:{sAct+1}], vcc')
            a(f'buffer_load_dwordx4 {q4(AS+4*sg)}, v{vEA}, s[8:11], 0 offen{ent}')
            a(f's_and_b64 exec, s[{sAct}:{sAct+1}], vcc')
            a(f'ds_read_b128 {q4(AS+4*sg)}, v{vTa}')
            a('s_mov_b64 exec, -1')
        else:
            a(f'buffer_load_dwordx4 {q4(AS+4*sg)}, v{vEA}, s[8:11], 0 offen{ent}')
    for s, va in ((0, vXA0), (1, vXA1)):
        if part is not None and part != s: continue
        for v in range(4):
            a(f'buffer_load_dwordx2 {pr(XS+16*sg+8*s+2*v)}, v{va}, s[4:7], 0 offen offset:{128*v}{xp}')

def Fp(v, h): return F + 8*h + 2*v
def Rp(p, h, s): return R + (2*p + h)*4 + 2*s
def Ap(f, h): return ACC + 4*f + 2*h

def unpack_ops(sg, s):
    ops = []
    for v in range(4):
        for h in range(2):
            src = XS + 16*sg + 8*s + 2*v + h
            ops.append(f'v_lshlrev_b32 v{Fp(v,h)}, 16, v{src}')
            ops.append(f'v_and_b32 v{Fp(v,h)+1}, v{vHi}, v{src}')
    return ops

def Yreg(s, j):
    return (Y + 2*(3*s + j)) if OPT.get('pk') else (Y + 3*s + j)

def compute_slot_pk(a, s):
    def fma(d, x, y): a(f'v_pk_fma_f32 {pr(d)}, {pr(x)}, {pr(y)}, {pr(d)}')
    def mul(d, x, y): a(f'v_pk_mul_f32 {pr(d)}, {pr(x)}, {pr(y)}')
    def fmaY(d, x, j, neg=False):
        n = ' neg_lo:[0,1,0] neg_hi:[0,1,0]' if neg else ''
        a(f'v_pk_fma_f32 {pr(d)}, {pr(x)}, {pr(Yreg(s, j))}, {pr(d)} op_sel:[0,0,0] op_sel_hi:[1,0,1]{n}')
    def mulY(d, x, j): a(f'v_pk_mul_f32 {pr(d)}, {pr(x)}, {pr(Yreg(s, j))} op_sel:[0,0] op_sel_hi:[1,0]')
    dot = lambda h: TMP + 2*h
    t = lambda h: TMP + 4 + 2*h
    seq = [
        lambda h: fma(Ap(0,h), Fp(0,h), Rp(0,h,s)),
        lambda h: mulY(dot(h), Fp(1,h), 0),
        lambda h: mul(t(h), Fp(0,h), Rp(2,h,s)),
        lambda h: fmaY(dot(h), Fp(2,h), 1),
        lambda h: fma(Ap(5,h), Fp(1,h), Rp(3,h,s)),
        lambda h: fmaY(dot(h), Fp(3,h), 2),
        lambda h: fmaY(Ap(2,h), t(h), 0),
        lambda h: fma(Ap(6,h), Fp(2,h), Rp(3,h,s)),
        lambda h: fmaY(Ap(3,h), t(h), 1),
        lambda h: fma(Ap(7,h), Fp(3,h), Rp(3,h,s)),
        lambda h: fmaY(Ap(4,h), t(h), 2),
        lambda h: fma(Ap(1,h), dot(h), Rp(1,h,s)),
        lambda h: mul(Fp(1,h), Fp(1,h), Rp(4,h,s)),
        lambda h: mul(Fp(2,h), Fp(2,h), Rp(4,h,s)),
        lambda h: mul(Fp(3,h), Fp(3,h), Rp(4,h,s)),
        lambda h: fmaY(Ap(9,h), Fp(1,h), 2),
        lambda h: fmaY(Ap(10,h), Fp(2,h), 0),
        lambda h: fmaY(Ap(8,h), Fp(3,h), 1),
        lambda h: fmaY(Ap(10,h), Fp(1,h), 1, True),
        lambda h: fmaY(Ap(8,h), Fp(2,h), 2, True),
        lambda h: fmaY(Ap(9,h), Fp(3,h), 0, True),
    ]
    for op in seq:
        op(0); op(1)

def compute_slot(a, s):
    if OPT.get('pk'): return compute_slot_pk(a, s)
    Yr = (Y + 3*s, Y + 3*s + 1, Y + 3*s + 2)
    ch = [(h, p) for h in range(2) for p in range(2)]
    Fv = lambda v, c: Fp(v, c[0]) + c[1]
    Rv = lambda p, c: Rp(p, c[0], s) + c[1]
    Av = lambda f, c: Ap(f, c[0]) + c[1]
    dot = lambda c: TMP + 2*c[0] + c[1]
    t = lambda c: TMP + 4 + 2*c[0] + c[1]
    fmac = lambda d, x, y: a(f'v_fmac_f32 v{d}, v{x}, v{y}')
    mul = lambda d, x, y: a(f'v_mul_f32 v{d}, v{x}, v{y}')
    fms = lambda d, x, y: a(f'v_fma_f32 v{d}, -v{x}, v{y}, v{d}')
    seq = [
        lambda c: fmac(Av(0,c), Fv(0,c), Rv(0,c)),
        lambda c: mul(dot(c), Fv(1,c), Yr[0]),
        lambda c: mul(t(c), Fv(0,c), Rv(2,c)),
        lambda c: fmac(dot(c), Fv(2,c), Yr[1]),
        lambda c: fmac(Av(5,c), Fv(1,c), Rv(3,c)),
        lambda c: fmac(dot(c), Fv(3,c), Yr[2]),
        lambda c: fmac(Av(2,c), t(c), Yr[0]),
        lambda c: fmac(Av(6,c), Fv(2,c), Rv(3,c)),
        lambda c: fmac(Av(3,c), t(c), Yr[1]),
        lambda c: fmac(Av(7,c), Fv(3,c), Rv(3,c)),
        lambda c: fmac(Av(4,c), t(c), Yr[2]),
        lambda c: fmac(Av(1,c), dot(c), Rv(1,c)),
        lambda c: mul(Fv(1,c), Fv(1,c), Rv(4,c)),
        lambda c: mul(Fv(2,c), Fv(2,c), Rv(4,c)),
        lambda c: mul(Fv(3,c), Fv(3,c), Rv(4,c)),
        lambda c: fmac(Av(9,c), Fv(1,c), Yr[2]),
        lambda c: fmac(Av(10,c), Fv(2,c), Yr[0]),
        lambda c: fmac(Av(8,c), Fv(3,c), Yr[1]),
        lambda c: fms(Av(10,c), Fv(1,c), Yr[1]),
        lambda c: fms(Av(8,c), Fv(2,c), Yr[2]),
        lambda c: fms(Av(9,c), Fv(3,c), Yr[0]),
    ]
    for op in seq:
        for c in ch: op(c)

def step(a, sg, D, opt):
    a(f's_mov_b32 s{sCur}, s{sTag+sg}')
    for s in range(2):
        a(f'v_and_b32 v{Yreg(s,0)}, v{vHi}, v{YP+4*sg+2*s}')
        a(f'v_lshlrev_b32 v{Yreg(s,1)}, 16, v{YP+4*sg+2*s+1}')
        a(f'v_and_b32 v{Yreg(s,2)}, v{vHi}, v{YP+4*sg+2*s+1}')
    rec_read(a, sg)
    a(f's_waitcnt vmcnt({9*(D-1)})')
    if opt.get('thr'):
        _uid[0] += 1
        a(f's_cmp_eq_u32 s{sThr}, 0')
        a(f's_cbranch_scc1 K2_nt{_uid[0]}')
        a(f's_waitcnt vmcnt({9*(D-2)})')
        a(f'K2_nt{_uid[0]}:')
    fill = unpack_ops(sg, 0)
    mf = []
    for p in (0, 2, 3, 1, 4):
        for h in range(2):
            mf.append(f'v_mfma_f32_16x16x32_bf16 {q4(R+(2*p+h)*4)}, {q4(AS+4*sg)}, {q4(RAD+(2*p+h)*4)}, 0')
    if opt.get('nomfma'): mf = []
    if opt.get('mfb2b', 1):
        for m in mf: a(m)
        for o in fill: a(o)
    else:
        fi = 0
        for k, m in enumerate(mf):
            a(m)
            for _ in range(2):
                if fi < len(fill): a(fill[fi]); fi += 1
        while fi < len(fill): a(fill[fi]); fi += 1
    if opt.get('early', 0):
        a('s_waitcnt lgkmcnt(0)')
        if opt.get('prio'): a('s_setprio 1')
        issue_loads(a, sg, opt, 0)
        if opt.get('prio'): a('s_setprio 0')
        if not opt.get('nocomp'): compute_slot(a, 0)
        for o in unpack_ops(sg, 1): a(o)
        if opt.get('prio'): a('s_setprio 1')
        issue_loads(a, sg, opt, 1)
        if opt.get('prio'): a('s_setprio 0')
        if not opt.get('nocomp'): compute_slot(a, 1)
        return
    if not opt.get('nocomp'):
        compute_slot(a, 0)
        for o in unpack_ops(sg, 1): a(o)
        compute_slot(a, 1)
    if opt.get('prio'): a('s_setprio 1')
    a('s_waitcnt lgkmcnt(0)')
    grab_result(a)
    issue_loads(a, sg, opt)
    if opt.get('prio'): a('s_setprio 0')

def featoff(f):
    if f < 2: return 128*f
    f -= 2; kind, j = f // 3, f % 3
    return 256 + PJS*j + 128*kind

def flush(a, opt):
    if opt.get('noflush'): return
    D0 = R; D1 = R + 16; BR = R + 32; AR = F
    issued = ['(A operand read of the step just prefetched)'] if opt.get('eapf', 1) else []
    def ds(text):
        issued.append(text); a(text)
    state = {'done': 0}
    def wait_for(idx):
        n = len(issued) - 1 - idx
        if idx >= state['done']:
            a(f's_waitcnt lgkmcnt({min(n, 15)})'); state['done'] = len(issued) - min(n, 15)
    def room():
        if len(issued) - state['done'] >= 15: wait_for(len(issued) - 12)
    a(f's_lshl_b32 s{sT}, s{sCur}, 4')
    a(f'v_add_u32 v{vTa}, s{sT}, v{vOrd}')
    ds(f'ds_read_b32 v{vTb}, v{vTa}')
    for f in range(11):
        t0 = F + 2*(f % 8)
        a(f'v_cvt_pk_bf16_f32 v{t0}, v{ACC+4*f}, v{ACC+4*f+1}')
        a(f'v_cvt_pk_bf16_f32 v{t0+1}, v{ACC+4*f+2}, v{ACC+4*f+3}')
        room()
        ds(f'ds_write_b64 v{vPW}, {pr(t0)} offset:{featoff(f)}')
    groups = [(0, ks) for ks in range(4)] + [(1, ks) for ks in range(6)]
    idxA = {}; idxB = {}
    def loadB(gi):
        c, ks = groups[gi]
        room(); idxB[gi] = len(issued)
        ds(f'ds_read_b128 {q4(BR+4*(gi%2))}, v{vPR1 if c else vPR0} offset:{ks*64}')
    def loadA(u):
        gi, t = divmod(u, 4); c, ks = groups[gi]
        tile = (ks*4 + t) + (16 if c else 0)
        room(); idxA[u] = len(issued)
        ds(f'ds_read_b128 {q4(AR+4*(u%NA))}, v{vWR} offset:{tile*1024}')
    if NA == 8:
        loadB(0)
        for u in range(4): loadA(u)
        loadB(1)
        for u in range(4, 8): loadA(u)
        for k in range(44): a(f'v_mov_b32 v{ACC+k}, 0')
        for gi, (c, ks) in enumerate(groups):
            wait_for(max(idxA[4*gi+3], idxB[gi]))
            for t in range(4):
                u = 4*gi + t
                Dr = (D1 if c else D0) + 4*t
                cop = '0' if ks == 0 else q4(Dr)
                a(f'v_mfma_f32_16x16x32_bf16 {q4(Dr)}, {q4(AR+4*(u%NA))}, {q4(BR+4*(gi%2))}, {cop}')
            if gi + 2 < len(groups):
                loadB(gi + 2)
                for t in range(4): loadA(4*(gi+2) + t)
    else:
        loadB(0)
        for u in range(4): loadA(u)
        loadB(1)
        for u in range(4, NA): loadA(u)
        for k in range(44): a(f'v_mov_b32 v{ACC+k}, 0')
        for u in range(40):
            gi, t = divmod(u, 4); c, ks = groups[gi]
            wait_for(max(idxA[u], idxB[gi]))
            Dr = (D1 if c else D0) + 4*t
            cop = '0' if ks == 0 else q4(Dr)
            a(f'v_mfma_f32_16x16x32_bf16 {q4(Dr)}, {q4(AR+4*(u%NA))}, {q4(BR+4*(gi%2))}, {cop}')
            if t == 3 and gi + 2 < len(groups): loadB(gi + 2)
            if u + NA < 40: loadA(u + NA)
    SEL = F; G = F + 4; O1 = F + 8; O0 = TMP
    a(f'v_and_b32 v{vTb}, 0xff, v{vTb}')
    a(f'v_lshl_add_u32 v{vTb}, v{vTb}, 9, s{sNode}')
    a(f'v_add_u32 v{vTa}, v{vTb}, v{vOut0}')
    a(f'v_add_u32 v{vTb}, v{vTb}, v{vOut1}')
    SEL = D0
    for t, m in ((1, sM1), (2, sM2), (3, sM3)):
        a(f's_mov_b64 exec, s[{m}:{m+1}]')
        for r in range(4): a(f'v_mov_b32 v{SEL+r}, v{D0+4*t+r}')
    a('s_mov_b64 exec, -1')
    for r in range(4): a(f'v_mul_f32 v{G+r}, 0xbfb8aa3b, v{SEL+r}')
    for r in range(4): a(f'v_exp_f32 v{G+r}, v{G+r}')
    for r in range(4): a(f'v_add_f32 v{G+r}, 1.0, v{G+r}')
    for r in range(4): a(f'v_rcp_f32 v{G+r}, v{G+r}')
    a(f'v_cvt_pk_bf16_f32 v{O0}, v{SEL}, v{SEL+1}')
    a(f'v_cvt_pk_bf16_f32 v{O0+1}, v{SEL+2}, v{SEL+3}')
    a(f'buffer_store_dwordx2 {pr(O0)}, v{vTa}, s[12:15], 0 offen{POL[opt.get("stpol", 1)]}')
    for t in range(4):
        for r in range(4):
            a(f'v_mul_f32_dpp v{D1+4*t+r}, v{G+r}, v{D1+4*t+r} quad_perm:[{t},{t},{t},{t}] row_mask:0xf bank_mask:0xf')
    for t in range(4):
        a(f'v_cvt_pk_bf16_f32 v{O1+2*t}, v{D1+4*t}, v{D1+4*t+1}')
        a(f'v_cvt_pk_bf16_f32 v{O1+2*t+1}, v{D1+4*t+2}, v{D1+4*t+3}')
    a(f'buffer_store_dwordx4 {q4(O1)}, v{vTb}, s[12:15], 0 offen{POL[opt.get("stpol", 1)]}')
    a(f'buffer_store_dwordx4 {q4(O1+4)}, v{vTb}, s[12:15], 0 offen offset:16{POL[opt.get("stpol", 1)]}')

def slow_path(a, opt):
    WR = 100; AC = 0; FX = 12; AE = 16; AV = 24; RR = 40; T = 46; TB_ = 52; REC = 56; vL2 = 60; vZ = 61; vPB = 62; vL4 = 63
    G0 = 64; G1 = 65
    sW0 = 52; sW1 = 56; sWR = 48
    sN = 60; sC = 61; sCntS = 62; sStart = 63; sJ = 64; sMask_ = 66; sBit = 68; sD0 = 69; sD1 = 70; sD2 = 71
    sY0 = 72; sY1 = 73; sY2 = 74; sXo = 75; sEo = 76; sK = 77; sRow = 78; sPB = 79; sTmp = 80; sTmp2 = 81; sHiM = 82
    a('s_mov_b64 exec, -1')
    a(f's_load_dwordx2 s[{sWR}:{sWR+1}], s[0:1], 40')
    a(f's_load_dwordx2 s[{sW0}:{sW0+1}], s[0:1], 48')
    a(f's_load_dwordx2 s[{sW1}:{sW1+1}], s[0:1], 56')
    a(f'v_lshlrev_b32 v{vL2}, 1, v{vLane}')
    a(f'v_lshlrev_b32 v{vL4}, 2, v{vLane}')
    a(f'v_mov_b32 v{vZ}, 0')
    a(f's_mov_b32 s{sHiM}, 0xffff0000')
    a(f's_mul_i32 s{sPB}, s{sWave}, {4*PS}')
    a(f's_add_u32 s{sPB}, s{sPB}, {L_P}')
    a(f'v_add_u32 v{vPB}, s{sPB}, v{vL4}')
    a('s_waitcnt lgkmcnt(0)')
    srd(a, sWR, 16*320*2); srd(a, sW0, 128*64*2); srd(a, sW1, 192*64*2)
    for p in range(5):
        for d in range(16):
            off = (d*320 + 64*p)*2
            a(f's_mov_b32 s{sTmp}, {off}')
            a(f'buffer_load_ushort v{WR+16*p+d}, v{vL2}, s[{sWR}:{sWR+3}], s{sTmp} offen')
        a('s_waitcnt vmcnt(0)')
        for d in range(16): a(f'v_lshlrev_b32 v{WR+16*p+d}, 16, v{WR+16*p+d}')
    TBL = 3072
    for k in range(4):
        a(f'v_add_u32 v{T}, {64*k}, v{vLane}')
        a(f'v_cmp_gt_u32 vcc, {NCH}, v{T}')
        a(f'v_lshlrev_b32 v{T+1}, 10, v{T}')
        a(f's_lshl_b32 s{sTmp}, s2, 2')
        a(f's_add_u32 s{sTmp}, s{sTmp}, {TAB_OFF}')
        a(f'buffer_load_dword v{T+2}, v{T+1}, s[16:19], s{sTmp} offen')
        a('s_waitcnt vmcnt(0)')
        a(f'v_cndmask_b32 v{T+2}, 0, v{T+2}, vcc')
        a(f'ds_write_b32 v{vPB}, v{T+2} offset:{TBL + 256*k}')
    a(f's_mov_b32 s{sN}, s{sWave}')
    a('KS_node:')
    a(f's_cmp_ge_u32 s{sN}, {NPB}')
    a('s_cbranch_scc1 K2_end')
    a(f's_mul_i32 s{sRow}, s2, {NPB}')
    a(f's_add_u32 s{sRow}, s{sRow}, s{sN}')
    a(f's_cmp_ge_u32 s{sRow}, {N}')
    a('s_cbranch_scc1 K2_end')
    a(f's_lshl_b32 s{sRow}, s{sRow}, 9')
    for f in range(11): a(f'v_mov_b32 v{AC+f}, 0')
    a(f's_mov_b32 s{sC}, 0')
    a('KS_chunk:')
    a(f's_lshl_b32 s{sTmp}, s{sC}, 2')
    a(f's_add_u32 s{sTmp}, s{sTmp}, s{sPB}')
    a(f'v_mov_b32 v{T}, s{sTmp}')
    a(f'ds_read_b32 v{T+1}, v{T} offset:{TBL}')
    a('s_waitcnt lgkmcnt(0)')
    a(f'v_readfirstlane_b32 s{sTmp}, v{T+1}')
    a(f's_and_b32 s{sStart}, s{sTmp}, 0xffff')
    a(f's_lshr_b32 s{sCntS}, s{sTmp}, 16')
    a(f's_mul_i32 s{sTmp}, s{sC}, {CH}')
    a(f's_add_u32 s{sStart}, s{sStart}, s{sTmp}')
    a(f's_mov_b32 s{sJ}, 0')
    a('KS_batch:')
    a(f's_cmp_ge_u32 s{sJ}, s{sCntS}')
    a('s_cbranch_scc1 KS_chunk_next')
    a(f'v_add_u32 v{T}, s{sJ}, v{vLane}')
    a(f'v_cmp_gt_u32 vcc, s{sCntS}, v{T}')
    a(f'v_add_u32 v{T}, s{sStart}, v{T}')
    a(f'v_mul_u32_u24 v{T}, 12, v{T}')
    a(f'v_mov_b32 v{T+1}, 2.0')
    a(f'v_cndmask_b32 v{T}, v{T+1}, v{T}, vcc')
    a(f's_mov_b64 s[{sMask_}:{sMask_+1}], vcc')
    a(f'buffer_load_dwordx3 v[{REC}:{REC+2}], v{T}, s[16:19], 0 offen')
    a('s_waitcnt vmcnt(0)')
    a(f'v_lshrrev_b32 v{T}, 24, v{REC+2}')
    a(f'v_cmp_eq_u32 vcc, s{sN}, v{T}')
    a(f's_and_b64 s[{sMask_}:{sMask_+1}], s[{sMask_}:{sMask_+1}], vcc')
    a('KS_edge:')
    a(f's_cmp_eq_u64 s[{sMask_}:{sMask_+1}], 0')
    a('s_cbranch_scc1 KS_batch_next')
    a(f's_ff1_i32_b64 s{sBit}, s[{sMask_}:{sMask_+1}]')
    a(f's_bitset0_b64 s[{sMask_}:{sMask_+1}], s{sBit}')
    a(f'v_readlane_b32 s{sD0}, v{REC}, s{sBit}')
    a(f'v_readlane_b32 s{sD1}, v{REC+1}, s{sBit}')
    a(f'v_readlane_b32 s{sD2}, v{REC+2}, s{sBit}')
    a(f's_and_b32 s{sXo}, s{sD0}, 0xffff')
    a(f's_lshl_b32 s{sXo}, s{sXo}, 9')
    a(f's_and_b32 s{sEo}, s{sD2}, 0xffffff')
    a(f's_lshl_b32 s{sEo}, s{sEo}, 5')
    a(f's_and_b32 s{sY0}, s{sD0}, s{sHiM}')
    a(f's_lshl_b32 s{sY1}, s{sD1}, 16')
    a(f's_and_b32 s{sY2}, s{sD1}, s{sHiM}')
    for v in range(4): a(f'buffer_load_ushort v{FX+v}, v{vL2}, s[4:7], s{sXo} offen offset:{128*v}')
    a(f'buffer_load_dwordx4 v[{AE}:{AE+3}], v{vZ}, s[8:11], s{sEo} offen')
    a(f'buffer_load_dwordx4 v[{AE+4}:{AE+7}], v{vZ}, s[8:11], s{sEo} offen offset:16')
    a('s_waitcnt vmcnt(0)')
    for v in range(4): a(f'v_lshlrev_b32 v{FX+v}, 16, v{FX+v}')
    for q in range(8):
        a(f'v_lshlrev_b32 v{AV+2*q}, 16, v{AE+q}')
        a(f'v_and_b32 v{AV+2*q+1}, s{sHiM}, v{AE+q}')
    for p in range(5):
        a(f'v_mul_f32 v{RR+p}, v{AV}, v{WR+16*p}')
        for d in range(1, 16): a(f'v_fmac_f32 v{RR+p}, v{AV+d}, v{WR+16*p+d}')
    f0, f1 = FX, FX + 1
    a(f'v_fmac_f32 v{AC+0}, v{f0}, v{RR+0}')
    a(f'v_mul_f32 v{T}, s{sY0}, v{f1}')
    a(f'v_fmac_f32 v{T}, s{sY1}, v{f1+1}')
    a(f'v_fmac_f32 v{T}, s{sY2}, v{f1+2}')
    a(f'v_fmac_f32 v{AC+1}, v{T}, v{RR+1}')
    a(f'v_mul_f32 v{T}, v{f0}, v{RR+2}')
    for j, y in enumerate((sY0, sY1, sY2)): a(f'v_fmac_f32 v{AC+2+j}, s{y}, v{T}')
    for j in range(3): a(f'v_fmac_f32 v{AC+5+j}, v{f1+j}, v{RR+3}')
    for j in range(3): a(f'v_mul_f32 v{T+1+j}, v{f1+j}, v{RR+4}')
    a(f'v_fmac_f32 v{AC+8}, s{sY1}, v{T+3}')
    a(f'v_fma_f32 v{AC+8}, -s{sY2}, v{T+2}, v{AC+8}')
    a(f'v_fmac_f32 v{AC+9}, s{sY2}, v{T+1}')
    a(f'v_fma_f32 v{AC+9}, -s{sY0}, v{T+3}, v{AC+9}')
    a(f'v_fmac_f32 v{AC+10}, s{sY0}, v{T+2}')
    a(f'v_fma_f32 v{AC+10}, -s{sY1}, v{T+1}, v{AC+10}')
    a('s_branch KS_edge')
    a('KS_batch_next:')
    a(f's_add_u32 s{sJ}, s{sJ}, 64')
    a('s_branch KS_batch')
    a('KS_chunk_next:')
    a(f's_add_u32 s{sC}, s{sC}, 1')
    a(f's_cmp_lt_u32 s{sC}, {NCH}')
    a('s_cbranch_scc1 KS_chunk')
    for f in range(11): a(f'ds_write_b32 v{vPB}, v{AC+f} offset:{256*f}')
    for g in range(4): a(f'v_mov_b32 v{G0+g}, 0')
    a(f's_mov_b32 s{sK}, 0')
    a('KS_g0:')
    a(f's_lshl_b32 s{sTmp}, s{sK}, 2')
    a(f's_add_u32 s{sTmp}, s{sTmp}, s{sPB}')
    a(f'v_mov_b32 v{T}, s{sTmp}')
    a(f's_lshl_b32 s{sTmp2}, s{sK}, 7')
    for u in range(8):
        a(f'ds_read_b32 v{AV+u}, v{T} offset:{4*u}')
        a(f'buffer_load_ushort v{AV+8+u}, v{vL2}, s[{sW0}:{sW0+3}], s{sTmp2} offen offset:{128*u}')
    a('s_waitcnt vmcnt(0) lgkmcnt(0)')
    for u in range(8):
        a(f'v_lshlrev_b32 v{AV+8+u}, 16, v{AV+8+u}')
        a(f'v_fmac_f32 v{G0}, v{AV+u}, v{AV+8+u}')
    a(f's_add_u32 s{sK}, s{sK}, 8')
    a(f's_cmp_lt_u32 s{sK}, 128')
    a('s_cbranch_scc1 KS_g0')
    a(f's_mov_b32 s{sK}, 0')
    a('KS_g1:')
    a(f's_lshr_b32 s{sTmp}, s{sK}, 6')
    a(f's_mul_i32 s{sTmp}, s{sTmp}, 768')
    a(f's_and_b32 s{sTmp2}, s{sK}, 63')
    a(f's_lshl_b32 s{sTmp2}, s{sTmp2}, 2')
    a(f's_add_u32 s{sTmp}, s{sTmp}, s{sTmp2}')
    a(f's_add_u32 s{sTmp}, s{sTmp}, s{sPB}')
    a(f'v_mov_b32 v{T}, s{sTmp}')
    a(f's_lshl_b32 s{sTmp2}, s{sK}, 7')
    for u in range(4):
        for j in range(3): a(f'ds_read_b32 v{AV+3*u+j}, v{T} offset:{512 + 256*j + 4*u}')
        a(f'buffer_load_ushort v{AV+12+u}, v{vL2}, s[{sW1}:{sW1+3}], s{sTmp2} offen offset:{128*u}')
    a('s_waitcnt vmcnt(0) lgkmcnt(0)')
    for u in range(4):
        a(f'v_lshlrev_b32 v{AV+12+u}, 16, v{AV+12+u}')
        for j in range(3): a(f'v_fmac_f32 v{G1+j}, v{AV+3*u+j}, v{AV+12+u}')
    a(f's_add_u32 s{sK}, s{sK}, 4')
    a(f's_cmp_lt_u32 s{sK}, 192')
    a('s_cbranch_scc1 KS_g1')
    a(f'v_mul_f32 v{T}, 0xbfb8aa3b, v{G0}')
    a(f'v_exp_f32 v{T}, v{T}')
    a(f'v_add_f32 v{T}, 1.0, v{T}')
    a(f'v_rcp_f32 v{T}, v{T}')
    for j in range(3): a(f'v_mul_f32 v{G1+j}, v{T}, v{G1+j}')
    for g in range(4):
        a(f'v_cvt_pk_bf16_f32 v{G0+g}, v{G0+g}, v{G0+g}')
        a(f'buffer_store_short v{G0+g}, v{vL2}, s[12:15], s{sRow} offen offset:{128*g}')
    a(f's_add_u32 s{sN}, s{sN}, 8')
    a('s_branch KS_node')

def gen_k2(a, opt):
    D = opt.get('D', 2)
    set_map(D)
    OPT.update(opt)
    a(f'{KN}_kernel:')
    prologue(a, opt)
    a(f'v_mov_b32 v{vSBase}, v226')
    a(f's_mov_b32 s{sPfQ}, s{sWave}')
    a(f'v_readlane_b32 s{sPfT}, v{vSBase}, s{sWave}')
    a(f'v_readlane_b32 s{sT}, v{vSteps}, s{sWave}')
    a(f'v_mov_b32 v{vHi}, 0xffff0000')
    if opt.get('eapf', 1):
        a(f'v_mov_b32 v{vLow}, 0x7fffffff')
        a(f's_mov_b32 s{sAct}, 0x55555555')
        a(f's_mov_b32 s{sAct+1}, 0xaaaaaaaa')
        for k in range(4*D): a(f'v_mov_b32 v{AS+k}, 0')
    a(f'v_mov_b32 v{vCtr}, {L_CTR}')
    a(f'v_mov_b32 v{vOne}, 1')
    a(f's_add_u32 s{sPfEnd}, s{sPfT}, s{sT}')
    a('s_mov_b64 exec, 1')
    a(f'ds_add_rtn_u32 v{vGrab}, v{vCtr}, v{vOne}')
    a('s_mov_b64 exec, -1')
    a(f's_lshl_b32 s{sOffA}, s{sPfT}, 6')
    a(f's_lshr_b32 s{sOffB}, s{sOffA}, 1')
    a(f'v_add_u32 v{vNa}, s{sOffA}, v{vRecA}')
    a(f'v_add_u32 v{vNb}, s{sOffB}, v{vRecB}')
    a('s_waitcnt lgkmcnt(0)')
    for sg in range(D):
        rec_read(a, sg)
        a('s_waitcnt lgkmcnt(0)')
        grab_result(a)
        issue_loads(a, sg, opt)
    for k in range(44): a(f'v_mov_b32 v{ACC+k}, 0')
    if opt.get('align'): a.raw(f'.p2align {opt["align"]}')
    for _ in range(opt.get('pad', 0)): a('s_nop 0')
    for sg in range(D):
        a(f'K2_s{sg}:')
        step(a, sg, D, opt)
        a(f's_cmp_lt_i32 s{sCur}, 0')
        a(f's_cbranch_scc0 K2_fl{sg}')
        if sg == D - 1: a('s_branch K2_s0')
    for sg in range(D):
        a(f'K2_fl{sg}:')
        flush(a, opt)
        a(f's_cmp_eq_u32 s{sTag + (sg+1) % D}, -2')
        a('s_cbranch_scc1 K2_end')
        a(f's_branch K2_s{(sg+1) % D}')
    for f in DEFER: f(a)
    a('K2_slow:')
    slow_path(a, opt)
    a('K2_end:')
    if opt.get('endwait'): a('s_waitcnt vmcnt(0)')
    if opt.get('ts'):
        stamp(a, opt, 6, 255)
        a('s_memtime s[98:99]'); a('s_waitcnt lgkmcnt(0)'); a('v_writelane_b32 v255, s98, 13')
        a('s_waitcnt vmcnt(0)')
        stamp(a, opt, 7, 255)
        a(f'v_writelane_b32 v255, s{sNQ}, 8')
        a('s_getreg_b32 s45, hwreg(HW_REG_XCC_ID)')
        a(f'v_writelane_b32 v255, s45, 10')
        a('s_getreg_b32 s45, hwreg(HW_REG_HW_ID)')
        a(f'v_writelane_b32 v255, s45, 11')
        stamp_out(a, opt, 255, 254, sWave, TS_OFF, 8)
        a('K2_end2:')
    a('s_endpgm')
    return 256, 102
```

```python
from gen import *

ACC = 0; R = 44; RAD = 84; XS = 124
AS = YP = F = TMP = Y = NA = None
def set_map(D):
    global AS, YP, F, TMP, Y, NA
    AS = XS + 16*D; YP = AS + 4*D; F = YP + 4*D; TMP = F + 16; Y = TMP + 8
    NA = 8 if D == 2 else 6
vLaneX = 228; vLaneMask = 229; vRecA = 230; vRecB = 231; vSteps = 232; vEN = 233; vXA0 = 234; vXA1 = 235; vEA = 236
vTa = 237; vTb = 238; vPW = 239; vPR0 = 240; vPR1 = 241; vWR = 242; vOut0 = 243; vOut1 = 244; vOrd = 245
vLane = 246; vTid = 247; vT = 248
vHi = 248; vSBase = 249; vGrab = 250; vCtr = 246; vOne = 247
sWave = 20; sPfT = 21; sPfEnd = 22; sPfQ = 23; sNQ = 24; sCur = 25; s512 = 26; sHi = 27; sOffA = 28; sOffB = 29; sNode = 30; sT = 31
sM1 = 32; sM2 = 34; sM3 = 36; sSave = 38; sMask = 40; sOvf = 82; sU = 84
OPT = {}
POL = ['', ' nt', ' sc1', ' sc0 sc1', ' sc1 nt', ' sc0 sc1 nt', ' sc0']
YSEP = ((220, 222, 224), (226, 248, 250))
sThr = 3
sEa2 = 94
sTag = 40
L_CTR = L_FLAG + 16
L_QI = 1344
COST_STEP = 8; COST_FLUSH = 11

def pr(x): return f'v[{x}:{x+1}]'
def q4(x): return f'v[{x}:{x+3}]'

def lane_consts(a, opt):
    i_, g_ = 208, 209
    a(f'v_and_b32 v{i_}, 15, v{vLane}')
    a(f'v_lshrrev_b32 v{g_}, 4, v{vLane}')
    a(f'v_lshlrev_b32 v{vLaneX}, 3, v{i_}')
    a(f'v_lshrrev_b32 v{210}, 1, v{g_}')
    a(f'v_and_b32 v{211}, 1, v{i_}')
    a(f'v_cmp_eq_u32 vcc, v{210}, v{211}')
    a(f'v_and_b32 v{212}, 1, v{g_}')
    a(f'v_lshlrev_b32 v{212}, 4, v{212}')
    a(f'v_mov_b32 v{213}, 2.0')
    a(f'v_cndmask_b32 v{vLaneMask}, v{213}, v{212}, vcc')
    a(f'v_lshlrev_b32 v{vRecA}, 4, v{g_}')
    a(f'v_add_u32 v{vRecA}, {L_RECA}, v{vRecA}')
    a(f'v_lshrrev_b32 v{vRecB}, 1, v{i_}')
    a(f'v_lshlrev_b32 v{vRecB}, 2, v{vRecB}')
    a(f'v_add_u32 v{vRecB}, {L_RECB}, v{vRecB}')
    a(f's_mul_i32 s{sNode}, s{sWave}, {4*PS}')
    a(f's_add_u32 s{sNode}, s{sNode}, {L_P}')
    a(f'v_mul_u32_u24 v{vPW}, {PS}, v{g_}')
    a(f'v_add3_u32 v{vPW}, v{vPW}, v{vLaneX}, s{sNode}')
    a(f'v_lshrrev_b32 v{210}, 2, v{i_}')
    a(f'v_mul_u32_u24 v{vPR0}, {PS}, v{210}')
    a(f'v_lshlrev_b32 v{211}, 4, v{g_}')
    a(f'v_add3_u32 v{vPR0}, v{vPR0}, v{211}, s{sNode}')
    a(f'v_and_b32 v{211}, 3, v{i_}')
    a(f'v_min_u32 v{212}, 2, v{211}')
    a(f'v_mul_u32_u24 v{212}, {PJS}, v{212}')
    a(f'v_add_u32 v{212}, 256, v{212}')
    a(f'v_add_u32 v{vPR1}, v{vPR0}, v{212}')
    a(f'v_lshlrev_b32 v{vWR}, 4, v{vLane}')
    a(f'v_add_u32 v{vWR}, {L_W}, v{vWR}')
    a(f'v_lshlrev_b32 v{212}, 5, v{g_}')
    a(f'v_lshl_add_u32 v{vOut0}, v{211}, 3, v{212}')
    a(f'v_lshl_add_u32 v{vOut1}, v{211}, 7, v{212}')
    a(f'v_add_u32 v{vOut1}, 128, v{vOut1}')
    a(f'v_cmp_eq_u32 vcc, 3, v{211}')
    a(f'v_cndmask_b32 v{vOut1}, v{vOut1}, v{213}, vcc')
    a(f'v_lshlrev_b32 v{vOrd}, 2, v{210}')
    a(f'v_add_u32 v{vOrd}, {L_SORT}, v{vOrd}')
    a(f's_mov_b32 s{s512}, 512')
    a(f's_mov_b32 s{sHi}, 0xffff0000')
    a(f's_mul_i32 s{sNode}, s2, {NPB*512}')
    for m, pat in ((sM1, 0x22222222), (sM2, 0x44444444), (sM3, 0x88888888)):
        a(f's_mov_b32 s{m}, {pat}'); a(f's_mov_b32 s{m+1}, {pat}')

def prologue(a, opt):
    a(f's_cmp_ge_u32 s2, {NB}')
    a('s_cbranch_scc1 K2_end2' if opt.get('ts') else 's_cbranch_scc1 K2_end')
    if opt.get('xcdmap', 1):
        a('s_and_b32 s3, s2, 7')
        a('s_lshl_b32 s3, s3, 5')
        a('s_lshr_b32 s2, s2, 3')
        a('s_add_u32 s2, s2, s3')
    a('s_load_dwordx2 s[4:5], s[0:1], 0')
    a('s_load_dwordx2 s[8:9], s[0:1], 16')
    a('s_load_dwordx2 s[12:13], s[0:1], 72')
    a('s_load_dwordx2 s[16:17], s[0:1], 88')
    a(f'v_mov_b32 v{vTid}, v0')
    a(f'v_and_b32 v{vLane}, 63, v0')
    a(f'v_lshrrev_b32 v{vT}, 6, v0')
    a(f'v_lshlrev_b32 v{vT+1}, 2, v0')
    a(f'v_readfirstlane_b32 s{sWave}, v{vT}')
    if opt.get('ts'): a('v_mov_b32 v255, 0')
    stamp(a, opt, 0, 255)
    a(f'v_mov_b32 v200, 0')
    a(f'v_cmp_gt_u32 vcc, 336, v{vTid}')
    a(f's_and_saveexec_b64 s[{sSave}:{sSave+1}], vcc')
    a('s_cbranch_execz K2_z')
    a(f'ds_write_b32 v{vT+1}, v200')
    a('K2_z:')
    a(f's_mov_b64 exec, s[{sSave}:{sSave+1}]')
    a('v_mov_b32 v200, 0xffff'); a('v_mov_b32 v201, 0'); a('v_mov_b32 v202, 0xffff'); a('v_mov_b32 v203, 0')
    for k in range(4): a(f'v_mov_b32 v{204+k}, 2.0')
    a(f'v_lshlrev_b32 v{vT+2}, 4, v{vTid}')
    for k in range(4): a(f'ds_write_b128 v{vT+2}, v[200:203] offset:{L_RECA + k*8192}')
    for k in range(2): a(f'ds_write_b128 v{vT+2}, v[204:207] offset:{L_RECB + k*8192}')
    a(f'v_lshrrev_b32 v{vT+3}, 4, v{vTid}')
    a('s_lshl_b32 s3, s2, 2')
    a(f'v_lshl_add_u32 v{vT+4}, v{vT+3}, 10, s3')
    a(f'v_lshlrev_b32 v{vT+5}, 4, v{vLane}')
    a('s_waitcnt lgkmcnt(0)')
    srd(a, 4, 0 if opt.get('nomem') else N * 512); srd(a, 8, 0 if opt.get('nomem') or opt.get('noea') else E * 32); srd(a, 12, N * 512); srd(a, 16, WS_USED)
    TB = 124
    for k in range(7):
        a(f's_mov_b32 s{sU+k}, {TAB_OFF + k*32768}')
    for k in range(7):
        a(f'buffer_load_dword v{TB+k}, v{vT+4}, s[16:19], s{sU+k} offen')
    lane_consts(a, opt)
    vJ = 152; vG = 153; CN = 154; AD = 161
    a(f'v_and_b32 v{vJ}, 15, v{vTid}')
    a(f'v_mul_u32_u24 v{vG}, {CH*12}, v{vT+3}')
    a(f'v_add_u32 v168, 16, v{vJ}')
    a(f'v_add_u32 v169, 32, v{vJ}')
    a(f's_mov_b64 s[{sOvf}:{sOvf+1}], 0')
    for k in range(7): a(f's_mov_b32 s{sU+k}, {REC_OFF + k*32*CH*12}')
    a('s_waitcnt vmcnt(0)')
    stamp(a, opt, 1, 255)
    for k in range(7):
        a(f'v_lshrrev_b32 v{CN+k}, 16, v{TB+k}')
        a(f'v_and_b32 v{AD+k}, 0xffff, v{TB+k}')
        a(f'v_add_u32 v{AD+k}, v{AD+k}, v{vJ}')
        a(f'v_mad_u32_u24 v{AD+k}, v{AD+k}, 12, v{vG}')
        a(f'v_cmp_gt_u32 s[{sMask+2*k}:{sMask+2*k+1}], v{CN+k}, v{vJ}')
        a(f'v_cmp_gt_u32 s[{sMask+14+2*k}:{sMask+14+2*k+1}], v{CN+k}, v168')
        a(f'v_cmp_gt_u32 s[{sMask+28+2*k}:{sMask+28+2*k+1}], v{CN+k}, v169')
        a(f'v_cmp_lt_u32 vcc, 48, v{CN+k}')
        a(f's_or_b64 s[{sOvf}:{sOvf+1}], s[{sOvf}:{sOvf+1}], vcc')
    def rec_loads(beta):
        for k in range(7):
            u = beta*7 + k
            a(f's_mov_b64 exec, s[{sMask+2*u}:{sMask+2*u+1}]')
            a(f'buffer_load_dwordx3 v[{4*u}:{4*u+2}], v{AD+k}, s[16:19], s{sU+k} offen offset:{beta*192}')
        a('s_mov_b64 exec, -1')
    rec_loads(0); rec_loads(1)
    sB2 = sU + 12
    a(f's_mov_b64 s[{sB2}:{sB2+1}], 0')
    for k in range(7):
        a(f's_or_b64 s[{sB2}:{sB2+1}], s[{sB2}:{sB2+1}], s[{sMask+28+2*k}:{sMask+28+2*k+1}]')
    a('s_cbranch_scc0 K2_nb2a')
    rec_loads(2)
    a('K2_nb2a:')
    IMG = 124
    a(f'v_lshlrev_b32 v{vT+5}, 4, v{vLane}')
    for u in range(7):
        a(f's_add_u32 s{sU+u}, s{sWave}, {8*u}')
        if u == 6:
            a(f's_min_u32 s{sU+u}, s{sU+u}, 49')
        a(f's_lshl_b32 s{sU+u}, s{sU+u}, 10')
        a(f's_add_u32 s{sT}, s{sU+u}, {WIMG_OFF}')
        a(f'buffer_load_dwordx4 {q4(IMG+4*u)}, v{vT+5}, s[16:19], s{sT} offen')
    if opt.get('tlb'):
        a(f'v_mul_u32_u24 v208, {opt.get("tlbs", 400000)}, v{vLane}')
        a('buffer_load_dword v209, v208, s[4:7], 0 offen')
        a('buffer_load_dword v210, v208, s[8:11], 0 offen')
    a('s_waitcnt lgkmcnt(0)')
    a('s_barrier')
    a(f's_cmp_eq_u64 s[{sOvf}:{sOvf+1}], 0')
    a('s_cbranch_scc1 K2_novf')
    a(f'v_mov_b32 v{vT}, {L_FLAG}')
    a(f'v_mov_b32 v{vT+1}, 1')
    a(f'ds_write_b32 v{vT}, v{vT+1}')
    a('K2_novf:')
    a(f'v_mov_b32 v170, 1')
    a(f's_waitcnt vmcnt({7 + (2 if opt.get("tlb") else 0)})')
    stamp(a, opt, 2, 255)
    EAP = 184
    npf = opt.get('eapf', 1)
    if npf:
        a(f'v_cmp_gt_u32 vcc, {opt.get("earows", 512)}, v{vTid}')
        a(f's_and_b64 exec, vcc, s[{sMask}:{sMask+1}]')
        a(f'v_and_b32 v183, 0xffffff, v2')
        a(f'v_lshlrev_b32 v183, 5, v183')
        a(f'buffer_load_dwordx4 {q4(EAP)}, v183, s[8:11], 0 offen nt')
        a(f'buffer_load_dwordx4 {q4(EAP+4)}, v183, s[8:11], 0 offen offset:16 nt')
        a('s_mov_b64 exec, -1')
        if npf > 1:
            a(f'v_cmp_gt_u32 vcc, {EA2_ROWS}, v{vTid}')
            a(f's_and_b64 s[{sEa2}:{sEa2+1}], vcc, s[{sMask+2}:{sMask+3}]')
            a(f's_mov_b64 exec, s[{sEa2}:{sEa2+1}]')
            a(f'v_and_b32 v182, 0xffffff, v6')
            a(f'v_lshlrev_b32 v182, 5, v182')
            a(f'buffer_load_dwordx4 {q4(EAP+8)}, v182, s[8:11], 0 offen nt')
            a(f'buffer_load_dwordx4 {q4(EAP+12)}, v182, s[8:11], 0 offen offset:16 nt')
            a('s_mov_b64 exec, -1')
    def hist(beta):
        for k in range(7):
            u = beta*7 + k
            a(f's_mov_b64 exec, s[{sMask+2*u}:{sMask+2*u+1}]')
            a(f'v_lshrrev_b32 v{161+k}, 22, v{4*u+2}')
            a(f'v_and_b32 v{161+k}, 0x3fc, v{161+k}')
            a(f'ds_add_rtn_u32 v{4*u+3}, v{161+k}, v170 offset:{L_CNT}')
        a('s_mov_b64 exec, -1')
    hist(0); hist(1)
    a(f's_cmp_eq_u64 s[{sB2}:{sB2+1}], 0')
    a('s_cbranch_scc1 K2_nb2b')
    hist(2)
    a('K2_nb2b:')
    a('s_waitcnt lgkmcnt(0)')
    a('s_barrier')
    stamp(a, opt, 3, 255)
    a(f's_waitcnt vmcnt({2*npf})')
    a(f'v_lshlrev_b32 v{vT+5}, 4, v{vLane}')
    a(f's_mov_b32 s{sU+8}, {L_P}')
    a(f's_mov_b32 s{sU+9}, {L_W - 10240}')
    for u in range(7):
        a(f's_cmp_lt_u32 s{sU+u}, 10240')
        a(f's_cselect_b32 s{sT}, s{sU+8}, s{sU+9}')
        a(f's_add_u32 s{sT}, s{sT}, s{sU+u}')
        a(f'v_add_u32 v{vT+6}, s{sT}, v{vT+5}')
        a(f'ds_write_b128 v{vT+6}, {q4(124+4*u)}')
    a(f'v_mov_b32 v{vT}, {L_FLAG}')
    a(f'ds_read_b32 v{vT+1}, v{vT}')
    a('s_waitcnt lgkmcnt(0)')
    a(f'v_readfirstlane_b32 s{sT}, v{vT+1}')
    a(f's_cmp_lg_u32 s{sT}, 0')
    a('s_cbranch_scc1 K2_slow')
    a(f's_cmp_lg_u32 s{sWave}, 0')
    a('s_cbranch_scc1 K2_p6')
    DG = 152; KY = 156; RK = 160; PO = 164; SO = 168
    a(f'v_lshlrev_b32 v{vT}, 4, v{vLane}')
    a(f'ds_read_b128 {q4(DG)}, v{vT} offset:{L_CNT}')
    a(f'v_cmp_gt_u32 vcc, 49, v{vLane}')
    a(f's_mov_b64 s[{sU}:{sU+1}], vcc')
    a(f'v_lshlrev_b32 v{vT+1}, 2, v{vLane}')
    for k in range(4): a(f'v_mov_b32 v{KY+k}, 0'); a(f'v_mov_b32 v{RK+k}, 0')
    a('s_waitcnt lgkmcnt(0)')
    a(f's_mov_b64 exec, s[{sU}:{sU+1}]')
    for k in range(4):
        a(f'v_min_u32 v{KY+k}, 63, v{DG+k}')
        a(f'v_sub_u32 v{KY+k}, 63, v{KY+k}')
        a(f'v_lshlrev_b32 v{KY+k}, 2, v{KY+k}')
        a(f'ds_add_rtn_u32 v{RK+k}, v{KY+k}, v170 offset:{L_BINS}')
    a('s_mov_b64 exec, -1')
    a(f'ds_read_b32 v{vT+2}, v{vT+1} offset:{L_BINS}')
    a('s_waitcnt lgkmcnt(0)')
    a(f'v_mov_b32 v{vT+3}, v{vT+2}')
    wave_scan(a, vT+3)
    a(f'v_sub_u32 v{vT+3}, v{vT+3}, v{vT+2}')
    for k in range(4): a(f'ds_bpermute_b32 v{PO+k}, v{KY+k}, v{vT+3}')
    a('s_waitcnt lgkmcnt(0)')
    a(f's_mov_b64 exec, s[{sU}:{sU+1}]')
    for k in range(4):
        a(f'v_add_u32 v{PO+k}, v{PO+k}, v{RK+k}')
        a(f'v_add_u32 v{vT+4}, {k}, v{vT+1}')
        a(f'v_lshl_or_b32 v{vT+4}, v{DG+k}, 8, v{vT+4}')
        a(f'v_lshlrev_b32 v{vT+5}, 2, v{PO+k}')
        a(f'ds_write_b32 v{vT+5}, v{vT+4} offset:{L_SORT}')
    a('s_mov_b64 exec, -1')
    a(f'ds_read_b128 {q4(SO)}, v{vT} offset:{L_SORT}')
    a(f'v_cmp_gt_u32 vcc, 49, v{vLane}')
    a('s_waitcnt lgkmcnt(0)')
    a(f'v_max3_u32 v{SO}, v{SO}, v{SO+1}, v{SO+2}')
    a(f'v_max_u32 v{SO}, v{SO}, v{SO+3}')
    a(f'v_lshrrev_b32 v{SO}, 8, v{SO}')
    a(f'v_add_u32 v{SO}, 1, v{SO}')
    a(f'v_lshrrev_b32 v{SO}, 1, v{SO}')
    a(f'v_max_u32 v{SO}, 1, v{SO}')
    a(f'v_cndmask_b32 v{SO}, 0, v{SO}, vcc')
    a(f'v_mov_b32 v{SO+1}, v{SO}')
    wave_scan(a, SO+1)
    a(f'v_sub_u32 v{SO+1}, v{SO+1}, v{SO}')
    a(f'v_min_u32 v{SO+2}, 0xffff, v{SO+1}')
    a(f'v_min_u32 v{SO+3}, 0xffff, v{SO}')
    a(f'v_lshl_or_b32 v{SO+2}, v{SO+3}, 16, v{SO+2}')
    a(f'ds_write_b32 v{vT+1}, v{SO+2} offset:{L_QI}')
    for k in range(4):
        a(f'v_and_b32 v{KY+k}, 0xfc, v{PO+k}')
        a(f'ds_bpermute_b32 v{RK+k}, v{KY+k}, v{SO+1}')
    a('s_waitcnt lgkmcnt(0)')
    for k in range(4):
        a(f'v_and_b32 v{PO+k}, 3, v{PO+k}')
        a(f'v_lshlrev_b32 v{PO+k}, 1, v{PO+k}')
        a(f'v_lshl_add_u32 v{RK+k}, v{RK+k}, 3, v{PO+k}')
    a(f's_mov_b64 exec, s[{sU}:{sU+1}]')
    a(f'ds_write_b128 v{vT}, {q4(RK)} offset:{L_BASE}')
    a('s_mov_b64 exec, -1')
    a('K2_p6:')
    a('s_waitcnt lgkmcnt(0)')
    a('s_barrier')
    stamp(a, opt, 4, 255)
    a(f'v_lshlrev_b32 v{vT+1}, 2, v{vLane}')
    a(f'ds_read_b32 v{vT+2}, v{vT+1} offset:{L_QI}')
    a('s_waitcnt lgkmcnt(0)')
    a(f'v_and_b32 v{vT+3}, 0xffff, v{vT+2}')
    a(f'v_lshrrev_b32 v{vSteps}, 16, v{vT+2}')
    a(f'v_mov_b32 v226, v{vT+3}')
    a(f'v_readlane_b32 s{sT}, v{vT+3}, 63')
    if opt.get('ts'): a(f'v_writelane_b32 v255, s{sT}, 9')
    a(f's_cmp_gt_u32 s{sT}, {NULLSTEP}')
    a('s_cbranch_scc1 K2_slow')
    if opt.get('thr'):
        a(f's_sub_i32 s{sThr}, s{sT}, {opt.get("t0", 401)}')
        a(f's_mul_i32 s{sThr}, s{sThr}, {opt.get("tmul", 4)}')
        a(f's_ashr_i32 s{sThr}, s{sThr}, 4')
        a(f's_cmp_lt_i32 s{sWave}, s{sThr}')
        a(f's_cselect_b32 s{sThr}, 0, 1')
    def scat(beta):
        for k in range(7):
            u = beta*7 + k
            a(f's_mov_b64 exec, s[{sMask+2*u}:{sMask+2*u+1}]')
            a(f'v_lshrrev_b32 v{161+k}, 22, v{4*u+2}')
            a(f'v_and_b32 v{161+k}, 0x3fc, v{161+k}')
            a(f'ds_read_b32 v{176+k}, v{161+k} offset:{L_BASE}')
        for k in range(7):
            u = beta*7 + k
            a(f's_mov_b64 exec, s[{sMask+2*u}:{sMask+2*u+1}]')
            a(f'v_lshrrev_b32 v{vT}, 1, v{4*u+3}')
            a(f'v_and_b32 v{vT+1}, 1, v{4*u+3}')
            if u == 0 and npf and opt.get('earows', 512) >= 512:
                a(f'v_lshlrev_b32 v{vT+2}, 5, v{vTid}')
                a(f'v_add_u32 v{vT+2}, {0x80000000 + L_EA}, v{vT+2}')
            elif u == 0 and npf:
                a(f'v_and_b32 v{vT+2}, 0xffffff, v{4*u+2}')
                a(f'v_lshlrev_b32 v{vT+2}, 5, v{vT+2}')
                a(f'v_lshlrev_b32 v{vT+5}, 5, v{vTid}')
                a(f'v_add_u32 v{vT+5}, {0x80000000 + L_EA}, v{vT+5}')
                a(f'v_cmp_gt_u32 vcc, {opt["earows"]}, v{vTid}')
                a(f'v_cndmask_b32 v{vT+2}, v{vT+2}, v{vT+5}, vcc')
            else:
                a(f'v_and_b32 v{vT+2}, 0xffffff, v{4*u+2}')
                a(f'v_lshlrev_b32 v{vT+2}, 5, v{vT+2}')
                if u == 1 and npf > 1:
                    a(f'v_lshlrev_b32 v{vT+5}, 5, v{vTid}')
                    a(f'v_add_u32 v{vT+5}, {0x80000000 + L_EA + 16384}, v{vT+5}')
                    a(f'v_cmp_gt_u32 vcc, {EA2_ROWS}, v{vTid}')
                    a(f'v_cndmask_b32 v{vT+2}, v{vT+2}, v{vT+5}, vcc')
            a(f's_waitcnt lgkmcnt({min(15, 6 - k + 2*k)})') if False else None
            if k == 0: a('s_waitcnt lgkmcnt(0)')
            a(f'v_lshl_add_u32 v{vT}, v{vT}, 3, v{176+k}')
            a(f'v_add_u32 v{vT}, v{vT}, v{vT+1}')
            a(f'v_lshlrev_b32 v{vT+3}, 3, v{vT}')
            a(f'v_lshlrev_b32 v{vT+4}, 2, v{vT}')
            a(f'ds_write_b64 v{vT+3}, v[{4*u}:{4*u+1}] offset:{L_RECA}')
            a(f'ds_write_b32 v{vT+4}, v{vT+2} offset:{L_RECB}')
        a('s_mov_b64 exec, -1')
    scat(0); scat(1)
    a(f's_cmp_eq_u64 s[{sB2}:{sB2+1}], 0')
    a('s_cbranch_scc1 K2_nb2c')
    scat(2)
    a('K2_nb2c:')
    a(f'v_lshlrev_b32 v{vT}, 4, v{vLane}')
    a(f'v_add_u32 v{vT}, {L_P}, v{vT}')
    for t in range(10): a(f'ds_read_b128 {q4(RAD+4*t)}, v{vT} offset:{t*1024}')
    if npf:
        a(f'v_lshlrev_b32 v{vT+1}, 5, v{vTid}')
        a(f'v_add_u32 v{vT+1}, {L_EA}, v{vT+1}')
        a('s_waitcnt vmcnt(0)')
        a(f'ds_write_b128 v{vT+1}, {q4(EAP)}')
        a(f'ds_write_b128 v{vT+1}, {q4(EAP+4)} offset:16')
        if npf > 1:
            a(f's_mov_b64 exec, s[{sEa2}:{sEa2+1}]')
            a(f'ds_write_b128 v{vT+1}, {q4(EAP+8)} offset:16384')
            a(f'ds_write_b128 v{vT+1}, {q4(EAP+12)} offset:16400')
            a('s_mov_b64 exec, -1')
    a('s_waitcnt lgkmcnt(0)')
    a('s_barrier')
    stamp(a, opt, 5, 255)
    if opt.get('ts'):
        a('s_memtime s[98:99]'); a('s_waitcnt lgkmcnt(0)'); a('v_writelane_b32 v255, s98, 12')

_uid = [0]
DEFER = []
vNa = 251; vNb = 252; vLow = 253; sAct = 44
def rec_read(a, sg):
    _uid[0] += 1; u = _uid[0]
    a(f's_cmp_lg_u32 s{sPfT}, s{sPfEnd}')
    a(f's_cbranch_scc0 K2_sw{u}')
    a(f'K2_have{u}:')
    a(f's_add_u32 s{sPfT}, s{sPfT}, 1')
    a(f's_cmp_eq_u32 s{sPfT}, s{sPfEnd}')
    a(f's_cselect_b32 s{sTag+sg}, s{sPfQ}, -1')
    a(f'K2_go{u}:')
    a(f'ds_read_b128 {q4(YP+4*sg)}, v{vNa}')
    a(f'ds_read_b32 v{vEN}, v{vNb}')
    a(f'v_add_u32 v{vNa}, 64, v{vNa}')
    a(f'v_add_u32 v{vNb}, 32, v{vNb}')
    def cold(a, u=u, sg=sg):
        a(f'K2_sw{u}:')
        a(f'v_readfirstlane_b32 s{sNQ}, v{vGrab}')
        a(f's_add_u32 s{sNQ}, s{sNQ}, 8')
        a(f's_cmp_ge_u32 s{sNQ}, 49')
        a(f's_cbranch_scc1 K2_exh{u}')
        a(f's_mov_b32 s{sPfQ}, s{sNQ}')
        a(f'v_readlane_b32 s{sPfT}, v{vSBase}, s{sNQ}')
        a(f'v_readlane_b32 s{sT}, v{vSteps}, s{sNQ}')
        a('s_mov_b64 exec, 1')
        a(f'ds_add_rtn_u32 v{vGrab}, v{vCtr}, v{vOne}')
        a('s_mov_b64 exec, -1')
        a(f's_add_u32 s{sPfEnd}, s{sPfT}, s{sT}')
        a(f's_lshl_b32 s{sOffA}, s{sPfT}, 6')
        a(f's_lshr_b32 s{sOffB}, s{sOffA}, 1')
        a(f'v_add_u32 v{vNa}, s{sOffA}, v{vRecA}')
        a(f'v_add_u32 v{vNb}, s{sOffB}, v{vRecB}')
        a(f's_branch K2_have{u}')
        a(f'K2_exh{u}:')
        a(f'v_add_u32 v{vNa}, {NULLSTEP*64}, v{vRecA}')
        a(f'v_add_u32 v{vNb}, {NULLSTEP*32}, v{vRecB}')
        a(f's_mov_b32 s{sTag+sg}, -2')
        a(f's_branch K2_go{u}')
    DEFER.append(cold)

def grab_result(a):
    pass

def issue_loads(a, sg, opt, part=None):
    ent = POL[opt.get('eapol', 4)]
    if opt.get('noload'): return
    xp = POL[opt.get('xpol', 0)]
    if part in (None, 0):
        a(f'v_mad_u32_u16 v{vXA0}, v{YP+4*sg}, s{s512}, v{vLaneX}')
        a(f'v_mad_u32_u16 v{vXA1}, v{YP+4*sg+2}, s{s512}, v{vLaneX}')
        a(f'v_or_b32 v{vEA}, v{vEN}, v{vLaneMask}')
        if opt.get('eapf', 1):
            a(f'v_cmp_gt_i32 vcc, 0, v{vEN}')
            a(f'v_and_b32 v{vTa}, v{vLow}, v{vEA}')
            a(f's_andn2_b64 exec, s[{sAct}:{sAct+1}], vcc')
            a(f'buffer_load_dwordx4 {q4(AS+4*sg)}, v{vEA}, s[8:11], 0 offen{ent}')
            a(f's_and_b64 exec, s[{sAct}:{sAct+1}], vcc')
            a(f'ds_read_b128 {q4(AS+4*sg)}, v{vTa}')
            a('s_mov_b64 exec, -1')
        else:
            a(f'buffer_load_dwordx4 {q4(AS+4*sg)}, v{vEA}, s[8:11], 0 offen{ent}')
    for s, va in ((0, vXA0), (1, vXA1)):
        if part is not None and part != s: continue
        for v in range(4):
            a(f'buffer_load_dwordx2 {pr(XS+16*sg+8*s+2*v)}, v{va}, s[4:7], 0 offen offset:{128*v}{xp}')

def Fp(v, h): return F + 8*h + 2*v
def Rp(p, h, s): return R + (2*p + h)*4 + 2*s
def Ap(f, h): return ACC + 4*f + 2*h

def unpack_ops(sg, s):
    ops = []
    for v in range(4):
        for h in range(2):
            src = XS + 16*sg + 8*s + 2*v + h
            ops.append(f'v_lshlrev_b32 v{Fp(v,h)}, 16, v{src}')
            ops.append(f'v_and_b32 v{Fp(v,h)+1}, v{vHi}, v{src}')
    return ops

def Yreg(s, j):
    return (Y + 2*(3*s + j)) if OPT.get('pk', 1) else (Y + 3*s + j)

def compute_slot_pk(a, s):
    def fma(d, x, y): a(f'v_pk_fma_f32 {pr(d)}, {pr(x)}, {pr(y)}, {pr(d)}')
    def mul(d, x, y): a(f'v_pk_mul_f32 {pr(d)}, {pr(x)}, {pr(y)}')
    def fmaY(d, x, j, neg=False):
        n = ' neg_lo:[0,1,0] neg_hi:[0,1,0]' if neg else ''
        a(f'v_pk_fma_f32 {pr(d)}, {pr(x)}, {pr(Yreg(s, j))}, {pr(d)} op_sel:[0,0,0] op_sel_hi:[1,0,1]{n}')
    def mulY(d, x, j): a(f'v_pk_mul_f32 {pr(d)}, {pr(x)}, {pr(Yreg(s, j))} op_sel:[0,0] op_sel_hi:[1,0]')
    dot = lambda h: TMP + 2*h
    t = lambda h: TMP + 4 + 2*h
    seq = [
        lambda h: fma(Ap(0,h), Fp(0,h), Rp(0,h,s)),
        lambda h: mulY(dot(h), Fp(1,h), 0),
        lambda h: mul(t(h), Fp(0,h), Rp(2,h,s)),
        lambda h: fmaY(dot(h), Fp(2,h), 1),
        lambda h: fma(Ap(5,h), Fp(1,h), Rp(3,h,s)),
        lambda h: fmaY(dot(h), Fp(3,h), 2),
        lambda h: fmaY(Ap(2,h), t(h), 0),
        lambda h: fma(Ap(6,h), Fp(2,h), Rp(3,h,s)),
        lambda h: fmaY(Ap(3,h), t(h), 1),
        lambda h: fma(Ap(7,h), Fp(3,h), Rp(3,h,s)),
        lambda h: fmaY(Ap(4,h), t(h), 2),
        lambda h: fma(Ap(1,h), dot(h), Rp(1,h,s)),
        lambda h: mul(Fp(1,h), Fp(1,h), Rp(4,h,s)),
        lambda h: mul(Fp(2,h), Fp(2,h), Rp(4,h,s)),
        lambda h: mul(Fp(3,h), Fp(3,h), Rp(4,h,s)),
        lambda h: fmaY(Ap(9,h), Fp(1,h), 2),
        lambda h: fmaY(Ap(10,h), Fp(2,h), 0),
        lambda h: fmaY(Ap(8,h), Fp(3,h), 1),
        lambda h: fmaY(Ap(10,h), Fp(1,h), 1, True),
        lambda h: fmaY(Ap(8,h), Fp(2,h), 2, True),
        lambda h: fmaY(Ap(9,h), Fp(3,h), 0, True),
    ]
    for op in seq:
        op(0); op(1)

def compute_slot(a, s):
    if OPT.get('pk', 1): return compute_slot_pk(a, s)
    Yr = (Y + 3*s, Y + 3*s + 1, Y + 3*s + 2)
    ch = [(h, p) for h in range(2) for p in range(2)]
    Fv = lambda v, c: Fp(v, c[0]) + c[1]
    Rv = lambda p, c: Rp(p, c[0], s) + c[1]
    Av = lambda f, c: Ap(f, c[0]) + c[1]
    dot = lambda c: TMP + 2*c[0] + c[1]
    t = lambda c: TMP + 4 + 2*c[0] + c[1]
    fmac = lambda d, x, y: a(f'v_fmac_f32 v{d}, v{x}, v{y}')
    mul = lambda d, x, y: a(f'v_mul_f32 v{d}, v{x}, v{y}')
    fms = lambda d, x, y: a(f'v_fma_f32 v{d}, -v{x}, v{y}, v{d}')
    seq = [
        lambda c: fmac(Av(0,c), Fv(0,c), Rv(0,c)),
        lambda c: mul(dot(c), Fv(1,c), Yr[0]),
        lambda c: mul(t(c), Fv(0,c), Rv(2,c)),
        lambda c: fmac(dot(c), Fv(2,c), Yr[1]),
        lambda c: fmac(Av(5,c), Fv(1,c), Rv(3,c)),
        lambda c: fmac(dot(c), Fv(3,c), Yr[2]),
        lambda c: fmac(Av(2,c), t(c), Yr[0]),
        lambda c: fmac(Av(6,c), Fv(2,c), Rv(3,c)),
        lambda c: fmac(Av(3,c), t(c), Yr[1]),
        lambda c: fmac(Av(7,c), Fv(3,c), Rv(3,c)),
        lambda c: fmac(Av(4,c), t(c), Yr[2]),
        lambda c: fmac(Av(1,c), dot(c), Rv(1,c)),
        lambda c: mul(Fv(1,c), Fv(1,c), Rv(4,c)),
        lambda c: mul(Fv(2,c), Fv(2,c), Rv(4,c)),
        lambda c: mul(Fv(3,c), Fv(3,c), Rv(4,c)),
        lambda c: fmac(Av(9,c), Fv(1,c), Yr[2]),
        lambda c: fmac(Av(10,c), Fv(2,c), Yr[0]),
        lambda c: fmac(Av(8,c), Fv(3,c), Yr[1]),
        lambda c: fms(Av(10,c), Fv(1,c), Yr[1]),
        lambda c: fms(Av(8,c), Fv(2,c), Yr[2]),
        lambda c: fms(Av(9,c), Fv(3,c), Yr[0]),
    ]
    for op in seq:
        for c in ch: op(c)

def step(a, sg, D, opt):
    a(f's_mov_b32 s{sCur}, s{sTag+sg}')
    for s in range(2):
        a(f'v_and_b32 v{Yreg(s,0)}, v{vHi}, v{YP+4*sg+2*s}')
        a(f'v_lshlrev_b32 v{Yreg(s,1)}, 16, v{YP+4*sg+2*s+1}')
        a(f'v_and_b32 v{Yreg(s,2)}, v{vHi}, v{YP+4*sg+2*s+1}')
    rec_read(a, sg)
    a(f's_waitcnt vmcnt({9*(D-1)})')
    if opt.get('thr'):
        _uid[0] += 1
        a(f's_cmp_eq_u32 s{sThr}, 0')
        a(f's_cbranch_scc1 K2_nt{_uid[0]}')
        a(f's_waitcnt vmcnt({9*(D-2)})')
        a(f'K2_nt{_uid[0]}:')
    fill = unpack_ops(sg, 0)
    mf = []
    for p in (0, 2, 3, 1, 4):
        for h in range(2):
            mf.append(f'v_mfma_f32_16x16x32_bf16 {q4(R+(2*p+h)*4)}, {q4(AS+4*sg)}, {q4(RAD+(2*p+h)*4)}, 0')
    if opt.get('nomfma'): mf = []
    if opt.get('mfb2b', 1):
        for m in mf: a(m)
        for o in fill: a(o)
    else:
        fi = 0
        for k, m in enumerate(mf):
            a(m)
            for _ in range(2):
                if fi < len(fill): a(fill[fi]); fi += 1
        while fi < len(fill): a(fill[fi]); fi += 1
    if opt.get('early', 0):
        a('s_waitcnt lgkmcnt(0)')
        if opt.get('prio', 1): a('s_setprio 1')
        issue_loads(a, sg, opt, 0)
        if opt.get('prio', 1): a('s_setprio 0')
        if not opt.get('nocomp'): compute_slot(a, 0)
        for o in unpack_ops(sg, 1): a(o)
        if opt.get('prio', 1): a('s_setprio 1')
        issue_loads(a, sg, opt, 1)
        if opt.get('prio', 1): a('s_setprio 0')
        if not opt.get('nocomp'): compute_slot(a, 1)
        return
    if not opt.get('nocomp'):
        compute_slot(a, 0)
        for o in unpack_ops(sg, 1): a(o)
        compute_slot(a, 1)
    if opt.get('prio', 1): a('s_setprio 1')
    a('s_waitcnt lgkmcnt(0)')
    grab_result(a)
    issue_loads(a, sg, opt)
    if opt.get('prio', 1): a('s_setprio 0')

def featoff(f):
    if f < 2: return 128*f
    f -= 2; kind, j = f // 3, f % 3
    return 256 + PJS*j + 128*kind

def flush(a, opt):
    if opt.get('noflush'): return
    D0 = R; D1 = R + 16; BR = R + 32; AR = F
    issued = ['(A operand read of the step just prefetched)'] if opt.get('eapf', 1) else []
    def ds(text):
        issued.append(text); a(text)
    state = {'done': 0}
    def wait_for(idx):
        n = len(issued) - 1 - idx
        if idx >= state['done']:
            a(f's_waitcnt lgkmcnt({min(n, 15)})'); state['done'] = len(issued) - min(n, 15)
    def room():
        if len(issued) - state['done'] >= 15: wait_for(len(issued) - 12)
    a(f's_lshl_b32 s{sT}, s{sCur}, 4')
    a(f'v_add_u32 v{vTa}, s{sT}, v{vOrd}')
    ds(f'ds_read_b32 v{vTb}, v{vTa}')
    for f in range(11):
        t0 = F + 2*(f % 8)
        a(f'v_cvt_pk_bf16_f32 v{t0}, v{ACC+4*f}, v{ACC+4*f+1}')
        a(f'v_cvt_pk_bf16_f32 v{t0+1}, v{ACC+4*f+2}, v{ACC+4*f+3}')
        room()
        ds(f'ds_write_b64 v{vPW}, {pr(t0)} offset:{featoff(f)}')
    groups = [(0, ks) for ks in range(4)] + [(1, ks) for ks in range(6)]
    idxA = {}; idxB = {}
    def loadB(gi):
        c, ks = groups[gi]
        room(); idxB[gi] = len(issued)
        ds(f'ds_read_b128 {q4(BR+4*(gi%2))}, v{vPR1 if c else vPR0} offset:{ks*64}')
    def loadA(u):
        gi, t = divmod(u, 4); c, ks = groups[gi]
        tile = (ks*4 + t) + (16 if c else 0)
        room(); idxA[u] = len(issued)
        ds(f'ds_read_b128 {q4(AR+4*(u%NA))}, v{vWR} offset:{tile*1024}')
    if NA == 8:
        loadB(0)
        for u in range(4): loadA(u)
        loadB(1)
        for u in range(4, 8): loadA(u)
        for k in range(44): a(f'v_mov_b32 v{ACC+k}, 0')
        for gi, (c, ks) in enumerate(groups):
            wait_for(max(idxA[4*gi+3], idxB[gi]))
            for t in range(4):
                u = 4*gi + t
                Dr = (D1 if c else D0) + 4*t
                cop = '0' if ks == 0 else q4(Dr)
                a(f'v_mfma_f32_16x16x32_bf16 {q4(Dr)}, {q4(AR+4*(u%NA))}, {q4(BR+4*(gi%2))}, {cop}')
            if gi + 2 < len(groups):
                loadB(gi + 2)
                for t in range(4): loadA(4*(gi+2) + t)
    else:
        loadB(0)
        for u in range(4): loadA(u)
        loadB(1)
        for u in range(4, NA): loadA(u)
        for k in range(44): a(f'v_mov_b32 v{ACC+k}, 0')
        for u in range(40):
            gi, t = divmod(u, 4); c, ks = groups[gi]
            wait_for(max(idxA[u], idxB[gi]))
            Dr = (D1 if c else D0) + 4*t
            cop = '0' if ks == 0 else q4(Dr)
            a(f'v_mfma_f32_16x16x32_bf16 {q4(Dr)}, {q4(AR+4*(u%NA))}, {q4(BR+4*(gi%2))}, {cop}')
            if t == 3 and gi + 2 < len(groups): loadB(gi + 2)
            if u + NA < 40: loadA(u + NA)
    SEL = F; G = F + 4; O1 = F + 8; O0 = TMP
    a(f'v_and_b32 v{vTb}, 0xff, v{vTb}')
    a(f'v_lshl_add_u32 v{vTb}, v{vTb}, 9, s{sNode}')
    a(f'v_add_u32 v{vTa}, v{vTb}, v{vOut0}')
    a(f'v_add_u32 v{vTb}, v{vTb}, v{vOut1}')
    SEL = D0
    for t, m in ((1, sM1), (2, sM2), (3, sM3)):
        a(f's_mov_b64 exec, s[{m}:{m+1}]')
        for r in range(4): a(f'v_mov_b32 v{SEL+r}, v{D0+4*t+r}')
    a('s_mov_b64 exec, -1')
    for r in range(4): a(f'v_mul_f32 v{G+r}, 0xbfb8aa3b, v{SEL+r}')
    for r in range(4): a(f'v_exp_f32 v{G+r}, v{G+r}')
    for r in range(4): a(f'v_add_f32 v{G+r}, 1.0, v{G+r}')
    for r in range(4): a(f'v_rcp_f32 v{G+r}, v{G+r}')
    a(f'v_cvt_pk_bf16_f32 v{O0}, v{SEL}, v{SEL+1}')
    a(f'v_cvt_pk_bf16_f32 v{O0+1}, v{SEL+2}, v{SEL+3}')
    a(f'buffer_store_dwordx2 {pr(O0)}, v{vTa}, s[12:15], 0 offen{POL[opt.get("stpol", 1)]}')
    for t in range(4):
        for r in range(4):
            a(f'v_mul_f32_dpp v{D1+4*t+r}, v{G+r}, v{D1+4*t+r} quad_perm:[{t},{t},{t},{t}] row_mask:0xf bank_mask:0xf')
    for t in range(4):
        a(f'v_cvt_pk_bf16_f32 v{O1+2*t}, v{D1+4*t}, v{D1+4*t+1}')
        a(f'v_cvt_pk_bf16_f32 v{O1+2*t+1}, v{D1+4*t+2}, v{D1+4*t+3}')
    a(f'buffer_store_dwordx4 {q4(O1)}, v{vTb}, s[12:15], 0 offen{POL[opt.get("stpol", 1)]}')
    a(f'buffer_store_dwordx4 {q4(O1+4)}, v{vTb}, s[12:15], 0 offen offset:16{POL[opt.get("stpol", 1)]}')

def slow_path(a, opt):
    WR = 100; AC = 0; FX = 12; AE = 16; AV = 24; RR = 40; T = 46; TB_ = 52; REC = 56; vL2 = 60; vZ = 61; vPB = 62; vL4 = 63
    G0 = 64; G1 = 65
    sW0 = 52; sW1 = 56; sWR = 48
    sN = 60; sC = 61; sCntS = 62; sStart = 63; sJ = 64; sMask_ = 66; sBit = 68; sD0 = 69; sD1 = 70; sD2 = 71
    sY0 = 72; sY1 = 73; sY2 = 74; sXo = 75; sEo = 76; sK = 77; sRow = 78; sPB = 79; sTmp = 80; sTmp2 = 81; sHiM = 82
    a('s_mov_b64 exec, -1')
    a(f's_load_dwordx2 s[{sWR}:{sWR+1}], s[0:1], 40')
    a(f's_load_dwordx2 s[{sW0}:{sW0+1}], s[0:1], 48')
    a(f's_load_dwordx2 s[{sW1}:{sW1+1}], s[0:1], 56')
    a(f'v_lshlrev_b32 v{vL2}, 1, v{vLane}')
    a(f'v_lshlrev_b32 v{vL4}, 2, v{vLane}')
    a(f'v_mov_b32 v{vZ}, 0')
    a(f's_mov_b32 s{sHiM}, 0xffff0000')
    a(f's_mul_i32 s{sPB}, s{sWave}, {4*PS}')
    a(f's_add_u32 s{sPB}, s{sPB}, {L_P}')
    a(f'v_add_u32 v{vPB}, s{sPB}, v{vL4}')
    a('s_waitcnt lgkmcnt(0)')
    srd(a, sWR, 16*320*2); srd(a, sW0, 128*64*2); srd(a, sW1, 192*64*2)
    for p in range(5):
        for d in range(16):
            off = (d*320 + 64*p)*2
            a(f's_mov_b32 s{sTmp}, {off}')
            a(f'buffer_load_ushort v{WR+16*p+d}, v{vL2}, s[{sWR}:{sWR+3}], s{sTmp} offen')
        a('s_waitcnt vmcnt(0)')
        for d in range(16): a(f'v_lshlrev_b32 v{WR+16*p+d}, 16, v{WR+16*p+d}')
    TBL = 3072
    for k in range(4):
        a(f'v_add_u32 v{T}, {64*k}, v{vLane}')
        a(f'v_cmp_gt_u32 vcc, {NCH}, v{T}')
        a(f'v_lshlrev_b32 v{T+1}, 10, v{T}')
        a(f's_lshl_b32 s{sTmp}, s2, 2')
        a(f's_add_u32 s{sTmp}, s{sTmp}, {TAB_OFF}')
        a(f'buffer_load_dword v{T+2}, v{T+1}, s[16:19], s{sTmp} offen')
        a('s_waitcnt vmcnt(0)')
        a(f'v_cndmask_b32 v{T+2}, 0, v{T+2}, vcc')
        a(f'ds_write_b32 v{vPB}, v{T+2} offset:{TBL + 256*k}')
    a(f's_mov_b32 s{sN}, s{sWave}')
    a('KS_node:')
    a(f's_cmp_ge_u32 s{sN}, {NPB}')
    a('s_cbranch_scc1 K2_end')
    a(f's_mul_i32 s{sRow}, s2, {NPB}')
    a(f's_add_u32 s{sRow}, s{sRow}, s{sN}')
    a(f's_cmp_ge_u32 s{sRow}, {N}')
    a('s_cbranch_scc1 K2_end')
    a(f's_lshl_b32 s{sRow}, s{sRow}, 9')
    for f in range(11): a(f'v_mov_b32 v{AC+f}, 0')
    a(f's_mov_b32 s{sC}, 0')
    a('KS_chunk:')
    a(f's_lshl_b32 s{sTmp}, s{sC}, 2')
    a(f's_add_u32 s{sTmp}, s{sTmp}, s{sPB}')
    a(f'v_mov_b32 v{T}, s{sTmp}')
    a(f'ds_read_b32 v{T+1}, v{T} offset:{TBL}')
    a('s_waitcnt lgkmcnt(0)')
    a(f'v_readfirstlane_b32 s{sTmp}, v{T+1}')
    a(f's_and_b32 s{sStart}, s{sTmp}, 0xffff')
    a(f's_lshr_b32 s{sCntS}, s{sTmp}, 16')
    a(f's_mul_i32 s{sTmp}, s{sC}, {CH}')
    a(f's_add_u32 s{sStart}, s{sStart}, s{sTmp}')
    a(f's_mov_b32 s{sJ}, 0')
    a('KS_batch:')
    a(f's_cmp_ge_u32 s{sJ}, s{sCntS}')
    a('s_cbranch_scc1 KS_chunk_next')
    a(f'v_add_u32 v{T}, s{sJ}, v{vLane}')
    a(f'v_cmp_gt_u32 vcc, s{sCntS}, v{T}')
    a(f'v_add_u32 v{T}, s{sStart}, v{T}')
    a(f'v_mul_u32_u24 v{T}, 12, v{T}')
    a(f'v_mov_b32 v{T+1}, 2.0')
    a(f'v_cndmask_b32 v{T}, v{T+1}, v{T}, vcc')
    a(f's_mov_b64 s[{sMask_}:{sMask_+1}], vcc')
    a(f'buffer_load_dwordx3 v[{REC}:{REC+2}], v{T}, s[16:19], 0 offen')
    a('s_waitcnt vmcnt(0)')
    a(f'v_lshrrev_b32 v{T}, 24, v{REC+2}')
    a(f'v_cmp_eq_u32 vcc, s{sN}, v{T}')
    a(f's_and_b64 s[{sMask_}:{sMask_+1}], s[{sMask_}:{sMask_+1}], vcc')
    a('KS_edge:')
    a(f's_cmp_eq_u64 s[{sMask_}:{sMask_+1}], 0')
    a('s_cbranch_scc1 KS_batch_next')
    a(f's_ff1_i32_b64 s{sBit}, s[{sMask_}:{sMask_+1}]')
    a(f's_bitset0_b64 s[{sMask_}:{sMask_+1}], s{sBit}')
    a(f'v_readlane_b32 s{sD0}, v{REC}, s{sBit}')
    a(f'v_readlane_b32 s{sD1}, v{REC+1}, s{sBit}')
    a(f'v_readlane_b32 s{sD2}, v{REC+2}, s{sBit}')
    a(f's_and_b32 s{sXo}, s{sD0}, 0xffff')
    a(f's_lshl_b32 s{sXo}, s{sXo}, 9')
    a(f's_and_b32 s{sEo}, s{sD2}, 0xffffff')
    a(f's_lshl_b32 s{sEo}, s{sEo}, 5')
    a(f's_and_b32 s{sY0}, s{sD0}, s{sHiM}')
    a(f's_lshl_b32 s{sY1}, s{sD1}, 16')
    a(f's_and_b32 s{sY2}, s{sD1}, s{sHiM}')
    for v in range(4): a(f'buffer_load_ushort v{FX+v}, v{vL2}, s[4:7], s{sXo} offen offset:{128*v}')
    a(f'buffer_load_dwordx4 v[{AE}:{AE+3}], v{vZ}, s[8:11], s{sEo} offen')
    a(f'buffer_load_dwordx4 v[{AE+4}:{AE+7}], v{vZ}, s[8:11], s{sEo} offen offset:16')
    a('s_waitcnt vmcnt(0)')
    for v in range(4): a(f'v_lshlrev_b32 v{FX+v}, 16, v{FX+v}')
    for q in range(8):
        a(f'v_lshlrev_b32 v{AV+2*q}, 16, v{AE+q}')
        a(f'v_and_b32 v{AV+2*q+1}, s{sHiM}, v{AE+q}')
    for p in range(5):
        a(f'v_mul_f32 v{RR+p}, v{AV}, v{WR+16*p}')
        for d in range(1, 16): a(f'v_fmac_f32 v{RR+p}, v{AV+d}, v{WR+16*p+d}')
    f0, f1 = FX, FX + 1
    a(f'v_fmac_f32 v{AC+0}, v{f0}, v{RR+0}')
    a(f'v_mul_f32 v{T}, s{sY0}, v{f1}')
    a(f'v_fmac_f32 v{T}, s{sY1}, v{f1+1}')
    a(f'v_fmac_f32 v{T}, s{sY2}, v{f1+2}')
    a(f'v_fmac_f32 v{AC+1}, v{T}, v{RR+1}')
    a(f'v_mul_f32 v{T}, v{f0}, v{RR+2}')
    for j, y in enumerate((sY0, sY1, sY2)): a(f'v_fmac_f32 v{AC+2+j}, s{y}, v{T}')
    for j in range(3): a(f'v_fmac_f32 v{AC+5+j}, v{f1+j}, v{RR+3}')
    for j in range(3): a(f'v_mul_f32 v{T+1+j}, v{f1+j}, v{RR+4}')
    a(f'v_fmac_f32 v{AC+8}, s{sY1}, v{T+3}')
    a(f'v_fma_f32 v{AC+8}, -s{sY2}, v{T+2}, v{AC+8}')
    a(f'v_fmac_f32 v{AC+9}, s{sY2}, v{T+1}')
    a(f'v_fma_f32 v{AC+9}, -s{sY0}, v{T+3}, v{AC+9}')
    a(f'v_fmac_f32 v{AC+10}, s{sY0}, v{T+2}')
    a(f'v_fma_f32 v{AC+10}, -s{sY1}, v{T+1}, v{AC+10}')
    a('s_branch KS_edge')
    a('KS_batch_next:')
    a(f's_add_u32 s{sJ}, s{sJ}, 64')
    a('s_branch KS_batch')
    a('KS_chunk_next:')
    a(f's_add_u32 s{sC}, s{sC}, 1')
    a(f's_cmp_lt_u32 s{sC}, {NCH}')
    a('s_cbranch_scc1 KS_chunk')
    for f in range(11): a(f'ds_write_b32 v{vPB}, v{AC+f} offset:{256*f}')
    for g in range(4): a(f'v_mov_b32 v{G0+g}, 0')
    a(f's_mov_b32 s{sK}, 0')
    a('KS_g0:')
    a(f's_lshl_b32 s{sTmp}, s{sK}, 2')
    a(f's_add_u32 s{sTmp}, s{sTmp}, s{sPB}')
    a(f'v_mov_b32 v{T}, s{sTmp}')
    a(f's_lshl_b32 s{sTmp2}, s{sK}, 7')
    for u in range(8):
        a(f'ds_read_b32 v{AV+u}, v{T} offset:{4*u}')
        a(f'buffer_load_ushort v{AV+8+u}, v{vL2}, s[{sW0}:{sW0+3}], s{sTmp2} offen offset:{128*u}')
    a('s_waitcnt vmcnt(0) lgkmcnt(0)')
    for u in range(8):
        a(f'v_lshlrev_b32 v{AV+8+u}, 16, v{AV+8+u}')
        a(f'v_fmac_f32 v{G0}, v{AV+u}, v{AV+8+u}')
    a(f's_add_u32 s{sK}, s{sK}, 8')
    a(f's_cmp_lt_u32 s{sK}, 128')
    a('s_cbranch_scc1 KS_g0')
    a(f's_mov_b32 s{sK}, 0')
    a('KS_g1:')
    a(f's_lshr_b32 s{sTmp}, s{sK}, 6')
    a(f's_mul_i32 s{sTmp}, s{sTmp}, 768')
    a(f's_and_b32 s{sTmp2}, s{sK}, 63')
    a(f's_lshl_b32 s{sTmp2}, s{sTmp2}, 2')
    a(f's_add_u32 s{sTmp}, s{sTmp}, s{sTmp2}')
    a(f's_add_u32 s{sTmp}, s{sTmp}, s{sPB}')
    a(f'v_mov_b32 v{T}, s{sTmp}')
    a(f's_lshl_b32 s{sTmp2}, s{sK}, 7')
    for u in range(4):
        for j in range(3): a(f'ds_read_b32 v{AV+3*u+j}, v{T} offset:{512 + 256*j + 4*u}')
        a(f'buffer_load_ushort v{AV+12+u}, v{vL2}, s[{sW1}:{sW1+3}], s{sTmp2} offen offset:{128*u}')
    a('s_waitcnt vmcnt(0) lgkmcnt(0)')
    for u in range(4):
        a(f'v_lshlrev_b32 v{AV+12+u}, 16, v{AV+12+u}')
        for j in range(3): a(f'v_fmac_f32 v{G1+j}, v{AV+3*u+j}, v{AV+12+u}')
    a(f's_add_u32 s{sK}, s{sK}, 4')
    a(f's_cmp_lt_u32 s{sK}, 192')
    a('s_cbranch_scc1 KS_g1')
    a(f'v_mul_f32 v{T}, 0xbfb8aa3b, v{G0}')
    a(f'v_exp_f32 v{T}, v{T}')
    a(f'v_add_f32 v{T}, 1.0, v{T}')
    a(f'v_rcp_f32 v{T}, v{T}')
    for j in range(3): a(f'v_mul_f32 v{G1+j}, v{T}, v{G1+j}')
    for g in range(4):
        a(f'v_cvt_pk_bf16_f32 v{G0+g}, v{G0+g}, v{G0+g}')
        a(f'buffer_store_short v{G0+g}, v{vL2}, s[12:15], s{sRow} offen offset:{128*g}')
    a(f's_add_u32 s{sN}, s{sN}, 8')
    a('s_branch KS_node')

def gen_k2(a, opt):
    D = opt.get('D', 2)
    set_map(D)
    OPT.update(opt)
    a(f'{KN}_kernel:')
    prologue(a, opt)
    a(f'v_mov_b32 v{vSBase}, v226')
    a(f's_mov_b32 s{sPfQ}, s{sWave}')
    a(f'v_readlane_b32 s{sPfT}, v{vSBase}, s{sWave}')
    a(f'v_readlane_b32 s{sT}, v{vSteps}, s{sWave}')
    a(f'v_mov_b32 v{vHi}, 0xffff0000')
    if opt.get('eapf', 1):
        a(f'v_mov_b32 v{vLow}, 0x7fffffff')
        a(f's_mov_b32 s{sAct}, 0x55555555')
        a(f's_mov_b32 s{sAct+1}, 0xaaaaaaaa')
        for k in range(4*D): a(f'v_mov_b32 v{AS+k}, 0')
    a(f'v_mov_b32 v{vCtr}, {L_CTR}')
    a(f'v_mov_b32 v{vOne}, 1')
    a(f's_add_u32 s{sPfEnd}, s{sPfT}, s{sT}')
    a('s_mov_b64 exec, 1')
    a(f'ds_add_rtn_u32 v{vGrab}, v{vCtr}, v{vOne}')
    a('s_mov_b64 exec, -1')
    a(f's_lshl_b32 s{sOffA}, s{sPfT}, 6')
    a(f's_lshr_b32 s{sOffB}, s{sOffA}, 1')
    a(f'v_add_u32 v{vNa}, s{sOffA}, v{vRecA}')
    a(f'v_add_u32 v{vNb}, s{sOffB}, v{vRecB}')
    a('s_waitcnt lgkmcnt(0)')
    for sg in range(D):
        rec_read(a, sg)
        a('s_waitcnt lgkmcnt(0)')
        grab_result(a)
        issue_loads(a, sg, opt)
    for k in range(44): a(f'v_mov_b32 v{ACC+k}, 0')
    if opt.get('align'): a.raw(f'.p2align {opt["align"]}')
    for _ in range(opt.get('pad', 0)): a('s_nop 0')
    for sg in range(D):
        a(f'K2_s{sg}:')
        step(a, sg, D, opt)
        a(f's_cmp_lt_i32 s{sCur}, 0')
        a(f's_cbranch_scc0 K2_fl{sg}')
        if sg == D - 1: a('s_branch K2_s0')
    for sg in range(D):
        a(f'K2_fl{sg}:')
        flush(a, opt)
        a(f's_cmp_eq_u32 s{sTag + (sg+1) % D}, -2')
        a('s_cbranch_scc1 K2_end')
        a(f's_branch K2_s{(sg+1) % D}')
    for f in DEFER: f(a)
    a('K2_slow:')
    slow_path(a, opt)
    a('K2_end:')
    if opt.get('endwait'): a('s_waitcnt vmcnt(0)')
    if opt.get('ts'):
        stamp(a, opt, 6, 255)
        a('s_memtime s[98:99]'); a('s_waitcnt lgkmcnt(0)'); a('v_writelane_b32 v255, s98, 13')
        a('s_waitcnt vmcnt(0)')
        stamp(a, opt, 7, 255)
        a(f'v_writelane_b32 v255, s{sNQ}, 8')
        a('s_getreg_b32 s45, hwreg(HW_REG_XCC_ID)')
        a(f'v_writelane_b32 v255, s45, 10')
        a('s_getreg_b32 s45, hwreg(HW_REG_HW_ID)')
        a(f'v_writelane_b32 v255, s45, 11')
        stamp_out(a, opt, 255, 254, sWave, TS_OFF, 8)
        a('K2_end2:')
    a('s_endpgm')
    return 256, 102
```

```python
import sys
from asmlib import Asm

KN = 'gather_scatter__tensor_product_equiv_equiformer__graph'
N = 50000; E = 800000
NCH = 224; CH = 3584; BLK1 = 896; NPB = 196; NB = 256
NPREP = 15
REC_OFF = 0; TAB_OFF = 0x940000; WIMG_OFF = 0x980000; WS_USED = 0x9A0000
MAGIC = 85599
TS_OFF = 0x1000000
def stamp(a, opt, idx, vreg, sreg=98):
    if not opt.get('ts'): return
    if not (opt.get('tsmask', 0xffff) >> idx) & 1: return
    a(f's_memrealtime s[{sreg}:{sreg+1}]')
    a('s_waitcnt lgkmcnt(0)')
    a(f'v_writelane_b32 v{vreg}, s{sreg}, {idx}')
def stamp_out(a, opt, vreg, vtmp, wavesgpr, base, nw, srdreg=16):
    if not opt.get('ts'): return
    a(f's_mul_i32 s98, s2, {nw}')
    a(f's_add_u32 s98, s98, s{wavesgpr}')
    a(f's_lshl_b32 s98, s98, 6')
    a(f's_add_u32 s98, s98, {base}')
    a(f'v_mbcnt_lo_u32_b32 v{vtmp}, -1, 0')
    a(f'v_mbcnt_hi_u32_b32 v{vtmp}, -1, v{vtmp}')
    a(f'v_cmp_gt_u32 vcc, 16, v{vtmp}')
    a(f'v_lshlrev_b32 v{vtmp}, 2, v{vtmp}')
    a(f's_and_saveexec_b64 s[100:101], vcc')
    a(f's_mov_b32 s{srdreg+2}, 0x2000000')
    a(f'buffer_store_dword v{vreg}, v{vtmp}, s[{srdreg}:{srdreg+3}], s98 offen')
    a(f's_mov_b64 exec, s[100:101]')
L_CNT = 0; L_BINS = 1024; L_FLAG = 1280; L_SORT = 2048; L_BASE = 3072
L_RECA = 4096; L_RECB = 36864; L_W = 53248; L_P = 94208
PS = 1440; PJS = 384
L_EA = L_P + 8 * 4 * PS
EA2_ROWS = 224
LDS2 = L_EA + 16384
NULLSTEP = 511

def srd(a, r, size):
    a(f's_and_b32 s{r+1}, s{r+1}, 0xffff')
    a(f's_mov_b32 s{r+2}, {size}')
    a(f's_mov_b32 s{r+3}, 0x20000')

def wave_scan(a, v):
    for sh in (1, 2, 4, 8):
        a(f'v_add_u32_dpp v{v}, v{v}, v{v} row_shr:{sh} row_mask:0xf bank_mask:0xf bound_ctrl:1')
    a(f'v_add_u32_dpp v{v}, v{v}, v{v} row_bcast:15 row_mask:0xa bank_mask:0xf')
    a(f'v_add_u32_dpp v{v}, v{v}, v{v} row_bcast:31 row_mask:0xc bank_mask:0xf')

def gen_k1(a, opt):
    a(f'k1_sort_kernel:')
    a(f's_cmp_ge_u32 s2, {NCH}')
    a('s_cbranch_scc1 K1_prep')
    if opt.get('ts'):
        a('v_mov_b32 v70, 0'); a('v_lshrrev_b32 v71, 6, v0'); a('s_nop 1'); a('v_readfirstlane_b32 s40, v71')
    stamp(a, opt, 0, 70)
    a('s_load_dwordx2 s[12:13], s[0:1], 8')
    a('s_load_dwordx2 s[8:9], s[0:1], 24')
    a('s_load_dwordx2 s[4:5], s[0:1], 32')
    a('s_load_dwordx2 s[16:17], s[0:1], 88')
    if opt.get('pf') or opt.get('psprobe'):
        a('s_load_dwordx2 s[40:41], s[0:1], 0')
        a('s_load_dwordx2 s[44:45], s[0:1], 16')
    a('v_lshlrev_b32 v1, 2, v0')
    a('v_mov_b32 v2, 0')
    a('v_cmp_gt_u32 vcc, 256, v0')
    a('s_and_saveexec_b64 s[26:27], vcc')
    a('s_cbranch_execz K1_z')
    a('ds_write_b32 v1, v2')
    a('K1_z:')
    a('s_mov_b64 exec, s[26:27]')
    a(f's_mul_i32 s3, s2, {CH}')
    a('v_add_u32 v3, s3, v1')
    a('v_lshlrev_b32 v4, 2, v3')
    a('v_mul_u32_u24 v5, 6, v3')
    a(f's_mov_b32 s20, {E}')
    a(f's_mov_b32 s21, {MAGIC}')
    a('s_mov_b32 s22, 0xffff0000')
    a('s_waitcnt lgkmcnt(0)')
    srd(a, 4, E * 4); srd(a, 8, E * 4); srd(a, 12, E * 6); srd(a, 16, WS_USED)
    if opt.get('pf') or opt.get('psprobe'): srd(a, 40, N * 512); srd(a, 44, E * 32)
    a('v_cmp_gt_u32 vcc, s20, v3')
    a('s_and_saveexec_b64 s[26:27], vcc')
    a('s_mov_b64 s[28:29], exec')
    a('s_cbranch_execz K1_a')
    a('buffer_load_dwordx4 v[8:11], v4, s[4:7], 0 offen')
    a('buffer_load_dwordx4 v[12:15], v4, s[8:11], 0 offen')
    a('buffer_load_dwordx4 v[16:19], v5, s[12:15], 0 offen')
    a('buffer_load_dwordx2 v[20:21], v5, s[12:15], 0 offen offset:16')
    a('K1_a:')
    a('s_mov_b64 exec, s[26:27]')
    nps = opt.get('psprobe', 0)
    if nps:
        a(f's_mul_i32 s36, s2, {CH*32}')
        a('v_lshlrev_b32 v68, 4, v0')
        for u in range(nps):
            a(f's_add_u32 s37, s36, {u*BLK1*16}')
            a(f'buffer_load_dwordx4 v[{72+4*u}:{75+4*u}], v68, s[44:47], s37 offen nt')
    npf = opt.get('pf', 0)
    if npf:
        a(f's_mul_i32 s36, s2, {BLK1}')
        a('v_add_u32 v68, s36, v0')
        a('v_lshlrev_b32 v68, 7, v68')
        a('buffer_load_dword v69, v68, s[40:43], 0 offen')
        if npf > 1: a('buffer_load_dword v70, v68, s[44:47], 0 offen')
    a('s_waitcnt lgkmcnt(0)')
    a('s_barrier')
    stamp(a, opt, 1, 70)
    a('s_mov_b64 exec, s[28:29]')
    a('s_cbranch_execz K1_b')
    a('v_mov_b32 v6, 1')
    a(f's_waitcnt vmcnt({3 + opt.get("pf", 0) + opt.get("psprobe", 0)})')
    stamp(a, opt, 2, 70)
    for k in range(4):
        a(f'v_mul_u32_u24 v{24+k}, s21, v{8+k}')
    for k in range(4):
        a(f'v_lshrrev_b32 v{24+k}, 24, v{24+k}')
    for k in range(4):
        a(f'v_mul_u32_u24 v{28+k}, {NPB}, v{24+k}')
        a(f'v_lshlrev_b32 v{24+k}, 2, v{24+k}')
    for k in range(4):
        a(f'ds_add_rtn_u32 v{35+4*k}, v{24+k}, v6')
    for k in range(4):
        a(f'v_sub_u32 v{28+k}, v{8+k}, v{28+k}')
        a(f'v_add_u32 v7, {k}, v3')
        a(f'v_lshl_or_b32 v{34+4*k}, v{28+k}, 24, v7')
    a(f's_waitcnt vmcnt({opt.get("pf", 0) + opt.get("psprobe", 0)})')
    a('v_lshl_or_b32 v32, v16, 16, v12')
    a('v_alignbit_b32 v33, v17, v16, 16')
    a('v_and_or_b32 v36, v17, s22, v13')
    a('v_mov_b32 v37, v18')
    a('v_lshl_or_b32 v40, v19, 16, v14')
    a('v_alignbit_b32 v41, v20, v19, 16')
    a('v_and_or_b32 v44, v20, s22, v15')
    a('v_mov_b32 v45, v21')
    a('K1_b:')
    a('s_mov_b64 exec, s[26:27]')
    a('s_waitcnt lgkmcnt(0)')
    a('s_barrier')
    stamp(a, opt, 3, 70)
    a('v_and_b32 v48, 63, v0')
    a('v_lshlrev_b32 v48, 4, v48')
    a('ds_read_b128 v[52:55], v48')
    a('s_waitcnt lgkmcnt(0)')
    a('v_add_u32 v56, v52, v53')
    a('v_add_u32 v57, v56, v54')
    a('v_add_u32 v58, v57, v55')
    a('v_mov_b32 v59, v58')
    wave_scan(a, 59)
    a('v_sub_u32 v60, v59, v58')
    a('v_add_u32 v61, v60, v52')
    a('v_add_u32 v62, v60, v56')
    a('v_add_u32 v63, v60, v57')
    a('ds_write_b128 v48, v[60:63] offset:1024')
    a('v_cmp_gt_u32 vcc, 64, v0')
    a('s_and_saveexec_b64 s[30:31], vcc')
    a('s_cbranch_execz K1_t')
    for k in range(4):
        a(f'v_lshl_or_b32 v{64+k}, v{52+k}, 16, v{60+k}')
    a('s_lshl_b32 s23, s2, 10')
    a(f's_add_u32 s23, s23, {TAB_OFF}')
    a('buffer_store_dwordx4 v[64:67], v48, s[16:19], s23 offen')
    a('K1_t:')
    a('s_mov_b64 exec, s[28:29]')
    a('s_cbranch_execz K1_w')
    for k in range(4):
        a(f'ds_read_b32 v{8+k}, v{24+k} offset:1024')
    for k in range(4):
        a(f's_waitcnt lgkmcnt({3-k})') if k == 0 else None
    a('s_waitcnt lgkmcnt(0)')
    for k in range(4):
        a(f'v_add_u32 v{8+k}, v{8+k}, v{35+4*k}')
        a(f'v_lshlrev_b32 v{8+k}, 4, v{8+k}')
        a(f'ds_write_b96 v{8+k}, v[{32+4*k}:{34+4*k}] offset:2048')
    a('K1_w:')
    a('s_mov_b64 exec, -1')
    if opt.get('psprobe'):
        a('s_waitcnt vmcnt(0)')
        a('v_lshlrev_b32 v68, 4, v0')
        a(f'v_add_u32 v68, {2048 + CH*16}, v68')
        for u in range(opt['psprobe']):
            a(f'ds_write_b128 v68, v[{72+4*u}:{75+4*u}] offset:{u*BLK1*16}')
    a('s_waitcnt lgkmcnt(0)')
    a('s_barrier')
    a('v_lshlrev_b32 v8, 4, v0')
    for k in range(4):
        a(f'ds_read_b96 v[{32+4*k}:{34+4*k}], v8 offset:{2048 + k*BLK1*16}')
    a('v_mul_u32_u24 v9, 12, v0')
    for k in range(4):
        a(f's_mul_i32 s{32+k}, s2, {CH*12}')
        if k: a(f's_add_u32 s{32+k}, s{32+k}, {k*BLK1*12}')
    pol = ['', ' nt', ' sc1', ' sc0 sc1', ' sc1 nt', ' sc0 sc1 nt'][opt.get('k1pol', 0)]
    for k in range(4):
        a(f's_waitcnt lgkmcnt({3-k})')
        a(f'buffer_store_dwordx3 v[{32+4*k}:{34+4*k}], v9, s[16:19], s{32+k} offen{pol}')
    if opt.get('psprobe'):
        for u in range(opt['psprobe']):
            a(f'ds_read_b128 v[{72+4*u}:{75+4*u}], v68 offset:{u*BLK1*16}')
        a('v_lshlrev_b32 v69, 4, v0')
        a(f's_mul_i32 s36, s2, {CH*32}')
        a(f's_add_u32 s36, s36, 0x2000000')
        a('s_mov_b32 s18, 0x4000000')
        for u in range(opt['psprobe']):
            a(f's_waitcnt lgkmcnt({opt["psprobe"]-1-u})')
            a(f's_add_u32 s37, s36, {u*BLK1*16}')
            a(f'buffer_store_dwordx4 v[{72+4*u}:{75+4*u}], v69, s[16:19], s37 offen')
    a('K1_done:')
    if opt.get('endwait1'): a('s_waitcnt vmcnt(0)')
    if opt.get('ts'):
        a('s_mov_b64 exec, -1')
        stamp(a, opt, 4, 70)
        a('s_waitcnt vmcnt(0)')
        stamp(a, opt, 5, 70)
        stamp_out(a, opt, 70, 71, 40, TS_OFF + 0x100000, 14)
    a('s_endpgm')
    a('K1_prep:')
    a(f's_sub_u32 s3, s2, {NCH}')
    a(f's_cmp_ge_u32 s3, {NPREP}')
    a('s_cbranch_scc1 K1_done2')
    a('s_load_dwordx2 s[4:5], s[0:1], 40')
    a('s_load_dwordx4 s[20:23], s[0:1], 48')
    a('s_load_dwordx2 s[16:17], s[0:1], 88')
    a(f's_mul_i32 s3, s3, {BLK1}')
    a('v_add_u32 v1, s3, v0')
    a('s_nop 0')
    a('v_readfirstlane_b32 s24, v1')
    a('s_cmp_ge_u32 s24, 12800')
    a('s_cbranch_scc1 K1_done2')
    a('s_lshr_b32 s24, s24, 8')
    a('v_lshrrev_b32 v2, 2, v1')
    a('v_and_b32 v2, 63, v2')
    a('v_and_b32 v3, 3, v1')
    a('v_and_b32 v4, 15, v2')
    a('v_lshrrev_b32 v5, 4, v2')
    a('s_waitcnt lgkmcnt(0)')
    srd(a, 16, WS_USED)
    a('s_cmp_ge_u32 s24, 10')
    a('s_cbranch_scc1 K1_pw')
    srd(a, 4, 16 * 320 * 2)
    a('s_lshr_b32 s25, s24, 1')
    a('s_and_b32 s26, s24, 1')
    a('s_lshl_b32 s25, s25, 6')
    a('s_lshl_b32 s26, s26, 1')
    a('s_add_u32 s25, s25, s26')
    a('v_lshlrev_b32 v6, 2, v4')
    a('v_lshrrev_b32 v7, 1, v5')
    a('v_add3_u32 v6, v6, v7, s25')
    a('v_and_b32 v7, 1, v5')
    a('v_lshlrev_b32 v7, 3, v7')
    a('v_lshl_add_u32 v7, v3, 1, v7')
    a('v_mul_u32_u24 v7, 320, v7')
    a('v_add_lshl_u32 v6, v6, v7, 1')
    a('buffer_load_ushort v8, v6, s[4:7], 0 offen')
    a('buffer_load_ushort v9, v6, s[4:7], 0 offen offset:640')
    a('s_branch K1_pst')
    a('K1_pw:')
    a('s_sub_u32 s25, s24, 10')
    a('s_cmp_ge_u32 s25, 16')
    a('s_cbranch_scc1 K1_pw1')
    a('s_mov_b32 s4, s20')
    a('s_mov_b32 s5, s21')
    srd(a, 4, 128 * 64 * 2)
    a('s_branch K1_pw2')
    a('K1_pw1:')
    a('s_sub_u32 s25, s25, 16')
    a('s_mov_b32 s4, s22')
    a('s_mov_b32 s5, s23')
    srd(a, 4, 192 * 64 * 2)
    a('K1_pw2:')
    a('s_lshr_b32 s26, s25, 2')
    a('s_and_b32 s27, s25, 3')
    a('s_lshl_b32 s26, s26, 5')
    a('s_lshl_b32 s27, s27, 2')
    a('v_lshrrev_b32 v6, 2, v4')
    a('v_lshlrev_b32 v6, 4, v6')
    a('v_and_b32 v7, 3, v4')
    a('v_add3_u32 v6, v6, v7, s27')
    a('v_lshlrev_b32 v7, 3, v5')
    a('v_lshl_add_u32 v7, v3, 1, v7')
    a('v_add_u32 v7, s26, v7')
    a('v_lshlrev_b32 v7, 6, v7')
    a('v_add_lshl_u32 v6, v6, v7, 1')
    a('buffer_load_ushort v8, v6, s[4:7], 0 offen')
    a('buffer_load_ushort v9, v6, s[4:7], 0 offen offset:128')
    a('K1_pst:')
    a('v_lshlrev_b32 v1, 2, v1')
    a(f's_mov_b32 s28, {WIMG_OFF}')
    a('s_waitcnt vmcnt(0)')
    a('v_lshl_or_b32 v8, v9, 16, v8')
    a('buffer_store_dword v8, v1, s[16:19], s28 offen')
    a('K1_done2:')
    a('s_endpgm')

def desc(name, vgpr, sgpr):
    return f'''.amdhsa_kernel {name}
  .amdhsa_next_free_vgpr {vgpr}
  .amdhsa_next_free_sgpr {sgpr}
  .amdhsa_accum_offset {(vgpr + 3) // 4 * 4}
  .amdhsa_group_segment_fixed_size 0
  .amdhsa_kernarg_size 96
  .amdhsa_user_sgpr_count 2
  .amdhsa_user_sgpr_kernarg_segment_ptr 1
  .amdhsa_system_sgpr_workgroup_id_x 1
.end_amdhsa_kernel
'''

def build(opt):
    from gen_k2 import gen_k2
    header = open('cdna_kernels/%s.s.ref' % KN).read().split('; Override launch')[0]
    out = header
    out += f'; Two launches: k1 bins the edges by destination bucket (and lays out the weights), k2 aggregates per node.\n'
    out += f'; @launch kernel=k1_sort_kernel grid=({NCH+NPREP},1,1) block=({BLK1},1,1) lds={2048 + CH*16 + opt.get("psprobe", 0)*BLK1*16}\n'
    if not opt.get('k1only'):
        out += f'; @launch kernel={KN}_kernel grid=({NB},1,1) block=(512,1,1) lds={LDS2}\n'
    out += '.amdgcn_target "amdgcn-amd-amdhsa--gfx950"\n.text\n'
    st = {}
    o1 = dict(opt); o2 = dict(opt)
    if 'tsk' in opt:
        o1['ts'] = opt['tsk'] & 1; o2['ts'] = (opt['tsk'] >> 1) & 1
    a = Asm(); gen_k1(a, o1)
    out += '.globl k1_sort_kernel\n.p2align 8\n.type k1_sort_kernel,@function\n' + a.finalize(st)
    a = Asm(); nv, ns = gen_k2(a, o2)
    out += f'.globl {KN}_kernel\n.p2align 8\n.type {KN}_kernel,@function\n' + a.finalize(st)
    print('k2 nops inserted', st, file=sys.stderr)
    out += '.section .rodata,"a"\n.p2align 6\n' + desc('k1_sort_kernel', 72 + 4*opt.get('psprobe', 0), 102 if (o1.get('ts') or opt.get('k1s102')) else 48) + '.p2align 6\n' + desc(KN + '_kernel', nv, ns)
    return out

if __name__ == '__main__':
    opt = {}
    outp = None
    for x in sys.argv[1:]:
        if '=' in x:
            k, v = x.split('=', 1); opt[k] = int(v, 0)
        else: outp = x
    s = build(opt)
    open(outp or 'cdna_kernels/%s.s' % KN, 'w').write(s)
```

```python
import sys
from asmlib import Asm

KN = 'gather_scatter__tensor_product_equiv_equiformer__graph'
N = 50000; E = 800000
NCH = 224; CH = 3584; BLK1 = 896; NPB = 196; NB = 256
NPREP = 15
REC_OFF = 0; TAB_OFF = 0x940000; WIMG_OFF = 0x980000; WS_USED = 0x9A0000
MAGIC = 85599
TS_OFF = 0x1000000
def stamp(a, opt, idx, vreg, sreg=98):
    if not opt.get('ts'): return
    if not (opt.get('tsmask', 0xffff) >> idx) & 1: return
    a(f's_memrealtime s[{sreg}:{sreg+1}]')
    a('s_waitcnt lgkmcnt(0)')
    a(f'v_writelane_b32 v{vreg}, s{sreg}, {idx}')
def stamp_out(a, opt, vreg, vtmp, wavesgpr, base, nw, srdreg=16):
    if not opt.get('ts'): return
    a(f's_mul_i32 s98, s2, {nw}')
    a(f's_add_u32 s98, s98, s{wavesgpr}')
    a(f's_lshl_b32 s98, s98, 6')
    a(f's_add_u32 s98, s98, {base}')
    a(f'v_mbcnt_lo_u32_b32 v{vtmp}, -1, 0')
    a(f'v_mbcnt_hi_u32_b32 v{vtmp}, -1, v{vtmp}')
    a(f'v_cmp_gt_u32 vcc, 16, v{vtmp}')
    a(f'v_lshlrev_b32 v{vtmp}, 2, v{vtmp}')
    a(f's_and_saveexec_b64 s[100:101], vcc')
    a(f's_mov_b32 s{srdreg+2}, 0x2000000')
    a(f'buffer_store_dword v{vreg}, v{vtmp}, s[{srdreg}:{srdreg+3}], s98 offen')
    a(f's_mov_b64 exec, s[100:101]')
L_CNT = 0; L_BINS = 1024; L_FLAG = 1280; L_SORT = 2048; L_BASE = 3072
L_RECA = 4096; L_RECB = 36864; L_W = 53248; L_P = 94208
PS = 1440; PJS = 384
L_EA = L_P + 8 * 4 * PS
EA2_ROWS = 224
LDS2 = L_EA + 16384
NULLSTEP = 511

def srd(a, r, size):
    a(f's_and_b32 s{r+1}, s{r+1}, 0xffff')
    a(f's_mov_b32 s{r+2}, {size}')
    a(f's_mov_b32 s{r+3}, 0x20000')

def wave_scan(a, v):
    for sh in (1, 2, 4, 8):
        a(f'v_add_u32_dpp v{v}, v{v}, v{v} row_shr:{sh} row_mask:0xf bank_mask:0xf bound_ctrl:1')
    a(f'v_add_u32_dpp v{v}, v{v}, v{v} row_bcast:15 row_mask:0xa bank_mask:0xf')
    a(f'v_add_u32_dpp v{v}, v{v}, v{v} row_bcast:31 row_mask:0xc bank_mask:0xf')

def gen_k1(a, opt):
    a(f'k1_sort_kernel:')
    a(f's_cmp_ge_u32 s2, {NCH}')
    a('s_cbranch_scc1 K1_prep')
    if opt.get('ts'):
        a('v_mov_b32 v70, 0'); a('v_lshrrev_b32 v71, 6, v0'); a('s_nop 1'); a('v_readfirstlane_b32 s40, v71')
    stamp(a, opt, 0, 70)
    a('s_load_dwordx2 s[12:13], s[0:1], 8')
    a('s_load_dwordx2 s[8:9], s[0:1], 24')
    a('s_load_dwordx2 s[4:5], s[0:1], 32')
    a('s_load_dwordx2 s[16:17], s[0:1], 88')
    if opt.get('pf') or opt.get('psprobe'):
        a('s_load_dwordx2 s[40:41], s[0:1], 0')
        a('s_load_dwordx2 s[44:45], s[0:1], 16')
    a('v_lshlrev_b32 v1, 2, v0')
    a('v_mov_b32 v2, 0')
    a('v_cmp_gt_u32 vcc, 256, v0')
    a('s_and_saveexec_b64 s[26:27], vcc')
    a('s_cbranch_execz K1_z')
    a('ds_write_b32 v1, v2')
    a('K1_z:')
    a('s_mov_b64 exec, s[26:27]')
    a(f's_mul_i32 s3, s2, {CH}')
    a('v_add_u32 v3, s3, v1')
    a('v_lshlrev_b32 v4, 2, v3')
    a('v_mul_u32_u24 v5, 6, v3')
    a(f's_mov_b32 s20, {E}')
    a(f's_mov_b32 s21, {MAGIC}')
    a('s_mov_b32 s22, 0xffff0000')
    a('s_waitcnt lgkmcnt(0)')
    srd(a, 4, E * 4); srd(a, 8, E * 4); srd(a, 12, E * 6); srd(a, 16, WS_USED)
    if opt.get('pf') or opt.get('psprobe'): srd(a, 40, N * 512); srd(a, 44, E * 32)
    a('v_cmp_gt_u32 vcc, s20, v3')
    a('s_and_saveexec_b64 s[26:27], vcc')
    a('s_mov_b64 s[28:29], exec')
    a('s_cbranch_execz K1_a')
    a('buffer_load_dwordx4 v[8:11], v4, s[4:7], 0 offen')
    a('buffer_load_dwordx4 v[12:15], v4, s[8:11], 0 offen')
    a('buffer_load_dwordx4 v[16:19], v5, s[12:15], 0 offen')
    a('buffer_load_dwordx2 v[20:21], v5, s[12:15], 0 offen offset:16')
    a('K1_a:')
    a('s_mov_b64 exec, s[26:27]')
    nps = opt.get('psprobe', 0)
    if nps:
        a(f's_mul_i32 s36, s2, {CH*32}')
        a('v_lshlrev_b32 v68, 4, v0')
        for u in range(nps):
            a(f's_add_u32 s37, s36, {u*BLK1*16}')
            a(f'buffer_load_dwordx4 v[{72+4*u}:{75+4*u}], v68, s[44:47], s37 offen nt')
    npf = opt.get('pf', 0)
    if npf:
        a(f's_mul_i32 s36, s2, {BLK1}')
        a('v_add_u32 v68, s36, v0')
        a('v_lshlrev_b32 v68, 7, v68')
        a('buffer_load_dword v69, v68, s[40:43], 0 offen')
        if npf > 1: a('buffer_load_dword v70, v68, s[44:47], 0 offen')
    a('s_waitcnt lgkmcnt(0)')
    a('s_barrier')
    stamp(a, opt, 1, 70)
    a('s_mov_b64 exec, s[28:29]')
    a('s_cbranch_execz K1_b')
    a('v_mov_b32 v6, 1')
    a(f's_waitcnt vmcnt({3 + opt.get("pf", 0) + opt.get("psprobe", 0)})')
    stamp(a, opt, 2, 70)
    for k in range(4):
        a(f'v_mul_u32_u24 v{24+k}, s21, v{8+k}')
    for k in range(4):
        a(f'v_lshrrev_b32 v{24+k}, 24, v{24+k}')
    for k in range(4):
        a(f'v_mul_u32_u24 v{28+k}, {NPB}, v{24+k}')
        a(f'v_lshlrev_b32 v{24+k}, 2, v{24+k}')
    for k in range(4):
        a(f'ds_add_rtn_u32 v{35+4*k}, v{24+k}, v6')
    for k in range(4):
        a(f'v_sub_u32 v{28+k}, v{8+k}, v{28+k}')
        a(f'v_add_u32 v7, {k}, v3')
        a(f'v_lshl_or_b32 v{34+4*k}, v{28+k}, 24, v7')
    if not opt.get('k1late', 1):
        a(f's_waitcnt vmcnt({opt.get("pf", 0) + opt.get("psprobe", 0)})')
        a('v_lshl_or_b32 v32, v16, 16, v12')
        a('v_alignbit_b32 v33, v17, v16, 16')
        a('v_and_or_b32 v36, v17, s22, v13')
        a('v_mov_b32 v37, v18')
        a('v_lshl_or_b32 v40, v19, 16, v14')
        a('v_alignbit_b32 v41, v20, v19, 16')
        a('v_and_or_b32 v44, v20, s22, v15')
        a('v_mov_b32 v45, v21')
    a('K1_b:')
    a('s_mov_b64 exec, s[26:27]')
    a('s_waitcnt lgkmcnt(0)')
    a('s_barrier')
    stamp(a, opt, 3, 70)
    a('v_and_b32 v48, 63, v0')
    a('v_lshlrev_b32 v48, 4, v48')
    a('ds_read_b128 v[52:55], v48')
    a('s_waitcnt lgkmcnt(0)')
    a('v_add_u32 v56, v52, v53')
    a('v_add_u32 v57, v56, v54')
    a('v_add_u32 v58, v57, v55')
    a('v_mov_b32 v59, v58')
    wave_scan(a, 59)
    a('v_sub_u32 v60, v59, v58')
    a('v_add_u32 v61, v60, v52')
    a('v_add_u32 v62, v60, v56')
    a('v_add_u32 v63, v60, v57')
    a('ds_write_b128 v48, v[60:63] offset:1024')
    a('v_cmp_gt_u32 vcc, 64, v0')
    a('s_and_saveexec_b64 s[30:31], vcc')
    a('s_cbranch_execz K1_t')
    for k in range(4):
        a(f'v_lshl_or_b32 v{64+k}, v{52+k}, 16, v{60+k}')
    a('s_lshl_b32 s23, s2, 10')
    a(f's_add_u32 s23, s23, {TAB_OFF}')
    a('buffer_store_dwordx4 v[64:67], v48, s[16:19], s23 offen')
    a('K1_t:')
    a('s_mov_b64 exec, s[28:29]')
    a('s_cbranch_execz K1_w')
    for k in range(4):
        a(f'ds_read_b32 v{8+k}, v{24+k} offset:1024')
    if opt.get('k1late', 1):
        a(f's_waitcnt vmcnt({opt.get("pf", 0) + opt.get("psprobe", 0)})')
        a('v_lshl_or_b32 v32, v16, 16, v12')
        a('v_alignbit_b32 v33, v17, v16, 16')
        a('v_and_or_b32 v36, v17, s22, v13')
        a('v_mov_b32 v37, v18')
        a('v_lshl_or_b32 v40, v19, 16, v14')
        a('v_alignbit_b32 v41, v20, v19, 16')
        a('v_and_or_b32 v44, v20, s22, v15')
        a('v_mov_b32 v45, v21')
    for k in range(4):
        a(f's_waitcnt lgkmcnt({3-k})') if k == 0 else None
    a('s_waitcnt lgkmcnt(0)')
    for k in range(4):
        a(f'v_add_u32 v{8+k}, v{8+k}, v{35+4*k}')
        a(f'v_lshlrev_b32 v{8+k}, 4, v{8+k}')
        a(f'ds_write_b96 v{8+k}, v[{32+4*k}:{34+4*k}] offset:2048')
    a('K1_w:')
    a('s_mov_b64 exec, -1')
    if opt.get('psprobe'):
        a('s_waitcnt vmcnt(0)')
        a('v_lshlrev_b32 v68, 4, v0')
        a(f'v_add_u32 v68, {2048 + CH*16}, v68')
        for u in range(opt['psprobe']):
            a(f'ds_write_b128 v68, v[{72+4*u}:{75+4*u}] offset:{u*BLK1*16}')
    a('s_waitcnt lgkmcnt(0)')
    a('s_barrier')
    a('v_lshlrev_b32 v8, 4, v0')
    for k in range(4):
        a(f'ds_read_b96 v[{32+4*k}:{34+4*k}], v8 offset:{2048 + k*BLK1*16}')
    a('v_mul_u32_u24 v9, 12, v0')
    for k in range(4):
        a(f's_mul_i32 s{32+k}, s2, {CH*12}')
        if k: a(f's_add_u32 s{32+k}, s{32+k}, {k*BLK1*12}')
    pol = ['', ' nt', ' sc1', ' sc0 sc1', ' sc1 nt', ' sc0 sc1 nt'][opt.get('k1pol', 0)]
    for k in range(4):
        a(f's_waitcnt lgkmcnt({3-k})')
        a(f'buffer_store_dwordx3 v[{32+4*k}:{34+4*k}], v9, s[16:19], s{32+k} offen{pol}')
    if opt.get('psprobe'):
        for u in range(opt['psprobe']):
            a(f'ds_read_b128 v[{72+4*u}:{75+4*u}], v68 offset:{u*BLK1*16}')
        a('v_lshlrev_b32 v69, 4, v0')
        a(f's_mul_i32 s36, s2, {CH*32}')
        a(f's_add_u32 s36, s36, 0x2000000')
        a('s_mov_b32 s18, 0x4000000')
        for u in range(opt['psprobe']):
            a(f's_waitcnt lgkmcnt({opt["psprobe"]-1-u})')
            a(f's_add_u32 s37, s36, {u*BLK1*16}')
            a(f'buffer_store_dwordx4 v[{72+4*u}:{75+4*u}], v69, s[16:19], s37 offen')
    a('K1_done:')
    if opt.get('endwait1'): a('s_waitcnt vmcnt(0)')
    if opt.get('ts'):
        a('s_mov_b64 exec, -1')
        stamp(a, opt, 4, 70)
        a('s_waitcnt vmcnt(0)')
        stamp(a, opt, 5, 70)
        stamp_out(a, opt, 70, 71, 40, TS_OFF + 0x100000, 14)
    a('s_endpgm')
    a('K1_prep:')
    a(f's_sub_u32 s3, s2, {NCH}')
    a(f's_cmp_ge_u32 s3, {NPREP}')
    a('s_cbranch_scc1 K1_done2')
    a('s_load_dwordx2 s[4:5], s[0:1], 40')
    a('s_load_dwordx4 s[20:23], s[0:1], 48')
    a('s_load_dwordx2 s[16:17], s[0:1], 88')
    a(f's_mul_i32 s3, s3, {BLK1}')
    a('v_add_u32 v1, s3, v0')
    a('s_nop 0')
    a('v_readfirstlane_b32 s24, v1')
    a('s_cmp_ge_u32 s24, 12800')
    a('s_cbranch_scc1 K1_done2')
    a('s_lshr_b32 s24, s24, 8')
    a('v_lshrrev_b32 v2, 2, v1')
    a('v_and_b32 v2, 63, v2')
    a('v_and_b32 v3, 3, v1')
    a('v_and_b32 v4, 15, v2')
    a('v_lshrrev_b32 v5, 4, v2')
    a('s_waitcnt lgkmcnt(0)')
    srd(a, 16, WS_USED)
    a('s_cmp_ge_u32 s24, 10')
    a('s_cbranch_scc1 K1_pw')
    srd(a, 4, 16 * 320 * 2)
    a('s_lshr_b32 s25, s24, 1')
    a('s_and_b32 s26, s24, 1')
    a('s_lshl_b32 s25, s25, 6')
    a('s_lshl_b32 s26, s26, 1')
    a('s_add_u32 s25, s25, s26')
    a('v_lshlrev_b32 v6, 2, v4')
    a('v_lshrrev_b32 v7, 1, v5')
    a('v_add3_u32 v6, v6, v7, s25')
    a('v_and_b32 v7, 1, v5')
    a('v_lshlrev_b32 v7, 3, v7')
    a('v_lshl_add_u32 v7, v3, 1, v7')
    a('v_mul_u32_u24 v7, 320, v7')
    a('v_add_lshl_u32 v6, v6, v7, 1')
    a('buffer_load_ushort v8, v6, s[4:7], 0 offen')
    a('buffer_load_ushort v9, v6, s[4:7], 0 offen offset:640')
    a('s_branch K1_pst')
    a('K1_pw:')
    a('s_sub_u32 s25, s24, 10')
    a('s_cmp_ge_u32 s25, 16')
    a('s_cbranch_scc1 K1_pw1')
    a('s_mov_b32 s4, s20')
    a('s_mov_b32 s5, s21')
    srd(a, 4, 128 * 64 * 2)
    a('s_branch K1_pw2')
    a('K1_pw1:')
    a('s_sub_u32 s25, s25, 16')
    a('s_mov_b32 s4, s22')
    a('s_mov_b32 s5, s23')
    srd(a, 4, 192 * 64 * 2)
    a('K1_pw2:')
    a('s_lshr_b32 s26, s25, 2')
    a('s_and_b32 s27, s25, 3')
    a('s_lshl_b32 s26, s26, 5')
    a('s_lshl_b32 s27, s27, 2')
    a('v_lshrrev_b32 v6, 2, v4')
    a('v_lshlrev_b32 v6, 4, v6')
    a('v_and_b32 v7, 3, v4')
    a('v_add3_u32 v6, v6, v7, s27')
    a('v_lshlrev_b32 v7, 3, v5')
    a('v_lshl_add_u32 v7, v3, 1, v7')
    a('v_add_u32 v7, s26, v7')
    a('v_lshlrev_b32 v7, 6, v7')
    a('v_add_lshl_u32 v6, v6, v7, 1')
    a('buffer_load_ushort v8, v6, s[4:7], 0 offen')
    a('buffer_load_ushort v9, v6, s[4:7], 0 offen offset:128')
    a('K1_pst:')
    a('v_lshlrev_b32 v1, 2, v1')
    a(f's_mov_b32 s28, {WIMG_OFF}')
    a('s_waitcnt vmcnt(0)')
    a('v_lshl_or_b32 v8, v9, 16, v8')
    a('buffer_store_dword v8, v1, s[16:19], s28 offen')
    a('K1_done2:')
    a('s_endpgm')

def desc(name, vgpr, sgpr):
    return f'''.amdhsa_kernel {name}
  .amdhsa_next_free_vgpr {vgpr}
  .amdhsa_next_free_sgpr {sgpr}
  .amdhsa_accum_offset {(vgpr + 3) // 4 * 4}
  .amdhsa_group_segment_fixed_size 0
  .amdhsa_kernarg_size 96
  .amdhsa_user_sgpr_count 2
  .amdhsa_user_sgpr_kernarg_segment_ptr 1
  .amdhsa_system_sgpr_workgroup_id_x 1
.end_amdhsa_kernel
'''

def build(opt):
    from gen_k2 import gen_k2
    header = open('cdna_kernels/%s.s.ref' % KN).read().split('; Override launch')[0]
    out = header
    out += f'; Two launches: k1 bins the edges by destination bucket (and lays out the weights), k2 aggregates per node.\n'
    out += f'; @launch kernel=k1_sort_kernel grid=({NCH+NPREP},1,1) block=({BLK1},1,1) lds={2048 + CH*16 + opt.get("psprobe", 0)*BLK1*16}\n'
    if not opt.get('k1only'):
        out += f'; @launch kernel={KN}_kernel grid=({NB},1,1) block=(512,1,1) lds={LDS2}\n'
    out += '.amdgcn_target "amdgcn-amd-amdhsa--gfx950"\n.text\n'
    st = {}
    o1 = dict(opt); o2 = dict(opt)
    if 'tsk' in opt:
        o1['ts'] = opt['tsk'] & 1; o2['ts'] = (opt['tsk'] >> 1) & 1
    a = Asm(); gen_k1(a, o1)
    out += '.globl k1_sort_kernel\n.p2align 8\n.type k1_sort_kernel,@function\n' + a.finalize(st)
    a = Asm(); nv, ns = gen_k2(a, o2)
    out += f'.globl {KN}_kernel\n.p2align 8\n.type {KN}_kernel,@function\n' + a.finalize(st)
    print('k2 nops inserted', st, file=sys.stderr)
    out += '.section .rodata,"a"\n.p2align 6\n' + desc('k1_sort_kernel', 72 + 4*opt.get('psprobe', 0), 102 if (o1.get('ts') or opt.get('k1s102')) else 48) + '.p2align 6\n' + desc(KN + '_kernel', nv, ns)
    return out

if __name__ == '__main__':
    opt = {}
    outp = None
    for x in sys.argv[1:]:
        if '=' in x:
            k, v = x.split('=', 1); opt[k] = int(v, 0)
        else: outp = x
    s = build(opt)
    open(outp or 'cdna_kernels/%s.s' % KN, 'w').write(s)
```

```python
import sys
from asmlib import Asm

KN = 'gather_scatter__tensor_product_equiv_equiformer__graph'
N = 50000; E = 800000
NCH = 224; CH = 3584; BLK1 = 896; NPB = 196; NB = 256
NPREP = 15
REC_OFF = 0; TAB_OFF = 0x940000; WIMG_OFF = 0x980000; WS_USED = 0x9A0000
MAGIC = 85599
TS_OFF = 0x1000000
def stamp(a, opt, idx, vreg, sreg=98):
    if not opt.get('ts'): return
    if not (opt.get('tsmask', 0xffff) >> idx) & 1: return
    a(f's_memrealtime s[{sreg}:{sreg+1}]')
    a('s_waitcnt lgkmcnt(0)')
    a(f'v_writelane_b32 v{vreg}, s{sreg}, {idx}')
def stamp_out(a, opt, vreg, vtmp, wavesgpr, base, nw, srdreg=16):
    if not opt.get('ts'): return
    a(f's_mul_i32 s98, s2, {nw}')
    a(f's_add_u32 s98, s98, s{wavesgpr}')
    a(f's_lshl_b32 s98, s98, 6')
    a(f's_add_u32 s98, s98, {base}')
    a(f'v_mbcnt_lo_u32_b32 v{vtmp}, -1, 0')
    a(f'v_mbcnt_hi_u32_b32 v{vtmp}, -1, v{vtmp}')
    a(f'v_cmp_gt_u32 vcc, 16, v{vtmp}')
    a(f'v_lshlrev_b32 v{vtmp}, 2, v{vtmp}')
    a(f's_and_saveexec_b64 s[100:101], vcc')
    a(f's_mov_b32 s{srdreg+2}, 0x2000000')
    a(f'buffer_store_dword v{vreg}, v{vtmp}, s[{srdreg}:{srdreg+3}], s98 offen')
    a(f's_mov_b64 exec, s[100:101]')
L_CNT = 0; L_BINS = 1024; L_FLAG = 1280; L_SORT = 2048; L_BASE = 3072
L_RECA = 4096; L_RECB = 36864; L_W = 53248; L_P = 94208
PS = 1440; PJS = 384
L_EA = L_P + 8 * 4 * PS
EA2_ROWS = 224
LDS2 = L_EA + 16384
NULLSTEP = 511

def srd(a, r, size):
    a(f's_and_b32 s{r+1}, s{r+1}, 0xffff')
    a(f's_mov_b32 s{r+2}, {size}')
    a(f's_mov_b32 s{r+3}, 0x20000')

def wave_scan(a, v):
    for sh in (1, 2, 4, 8):
        a(f'v_add_u32_dpp v{v}, v{v}, v{v} row_shr:{sh} row_mask:0xf bank_mask:0xf bound_ctrl:1')
    a(f'v_add_u32_dpp v{v}, v{v}, v{v} row_bcast:15 row_mask:0xa bank_mask:0xf')
    a(f'v_add_u32_dpp v{v}, v{v}, v{v} row_bcast:31 row_mask:0xc bank_mask:0xf')

def gen_k1(a, opt):
    a(f'k1_sort_kernel:')
    a(f's_cmp_ge_u32 s2, {NCH}')
    a('s_cbranch_scc1 K1_prep')
    if opt.get('ts'):
        a('v_mov_b32 v70, 0'); a('v_lshrrev_b32 v71, 6, v0'); a('s_nop 1'); a('v_readfirstlane_b32 s40, v71')
    stamp(a, opt, 0, 70)
    a('s_load_dwordx2 s[12:13], s[0:1], 8')
    a('s_load_dwordx2 s[8:9], s[0:1], 24')
    a('s_load_dwordx2 s[4:5], s[0:1], 32')
    a('s_load_dwordx2 s[16:17], s[0:1], 88')
    if opt.get('pf') or opt.get('psprobe'):
        a('s_load_dwordx2 s[40:41], s[0:1], 0')
        a('s_load_dwordx2 s[44:45], s[0:1], 16')
    a('v_lshlrev_b32 v1, 2, v0')
    a('v_mov_b32 v2, 0')
    a('v_cmp_gt_u32 vcc, 256, v0')
    a('s_and_saveexec_b64 s[26:27], vcc')
    a('s_cbranch_execz K1_z')
    a('ds_write_b32 v1, v2')
    a('K1_z:')
    a('s_mov_b64 exec, s[26:27]')
    a(f's_mul_i32 s3, s2, {CH}')
    a('v_add_u32 v3, s3, v1')
    a('v_lshlrev_b32 v4, 2, v3')
    a('v_mul_u32_u24 v5, 6, v3')
    a(f's_mov_b32 s20, {E}')
    a(f's_mov_b32 s21, {MAGIC}')
    a('s_mov_b32 s22, 0xffff0000')
    a('s_waitcnt lgkmcnt(0)')
    srd(a, 4, E * 4); srd(a, 8, E * 4); srd(a, 12, E * 6); srd(a, 16, WS_USED)
    if opt.get('pf') or opt.get('psprobe'): srd(a, 40, N * 512); srd(a, 44, E * 32)
    a('v_cmp_gt_u32 vcc, s20, v3')
    a('s_and_saveexec_b64 s[26:27], vcc')
    a('s_mov_b64 s[28:29], exec')
    a('s_cbranch_execz K1_a')
    a('buffer_load_dwordx4 v[8:11], v4, s[4:7], 0 offen')
    a('buffer_load_dwordx4 v[12:15], v4, s[8:11], 0 offen')
    a('buffer_load_dwordx4 v[16:19], v5, s[12:15], 0 offen')
    a('buffer_load_dwordx2 v[20:21], v5, s[12:15], 0 offen offset:16')
    a('K1_a:')
    a('s_mov_b64 exec, s[26:27]')
    if opt.get('codepf'):
        a('s_getpc_b64 s[36:37]')
        a('K1_pc:')
        a(f's_add_u32 s36, s36, {KN}_kernel-K1_pc')
        a('s_addc_u32 s37, s37, 0')
        a('v_and_b32 v68, 63, v0')
        a('v_lshlrev_b32 v68, 7, v68')
        a('v_mov_b32 v71, s37')
        a('v_add_co_u32 v70, vcc, s36, v68')
        a('v_addc_co_u32 v71, vcc, 0, v71, vcc')
        a('v_lshrrev_b32 v69, 6, v0')
        a('v_cmp_eq_u32 vcc, 13, v69')
        a('s_and_saveexec_b64 s[38:39], vcc')
        a('s_cbranch_execz K1_cp')
        a('global_load_dword v69, v[70:71], off')
        a('v_add_co_u32 v70, vcc, 0x2000, v70')
        a('v_addc_co_u32 v71, vcc, 0, v71, vcc')
        a('s_mov_b32 exec_hi, 0')
        a('global_load_dword v68, v[70:71], off')
        a('K1_cp:')
        a('s_mov_b64 exec, s[38:39]')
    nps = opt.get('psprobe', 0)
    if nps:
        a(f's_mul_i32 s36, s2, {CH*32}')
        a('v_lshlrev_b32 v68, 4, v0')
        for u in range(nps):
            a(f's_add_u32 s37, s36, {u*BLK1*16}')
            a(f'buffer_load_dwordx4 v[{72+4*u}:{75+4*u}], v68, s[44:47], s37 offen nt')
    npf = opt.get('pf', 0)
    if npf:
        a(f's_mul_i32 s36, s2, {BLK1}')
        a('v_add_u32 v68, s36, v0')
        a('v_lshlrev_b32 v68, 7, v68')
        a('buffer_load_dword v69, v68, s[40:43], 0 offen')
        if npf > 1: a('buffer_load_dword v70, v68, s[44:47], 0 offen')
    a('s_waitcnt lgkmcnt(0)')
    a('s_barrier')
    stamp(a, opt, 1, 70)
    a('s_mov_b64 exec, s[28:29]')
    a('s_cbranch_execz K1_b')
    a('v_mov_b32 v6, 1')
    a(f's_waitcnt vmcnt({3 + opt.get("pf", 0) + opt.get("psprobe", 0)})')
    stamp(a, opt, 2, 70)
    for k in range(4):
        a(f'v_mul_u32_u24 v{24+k}, s21, v{8+k}')
    for k in range(4):
        a(f'v_lshrrev_b32 v{24+k}, 24, v{24+k}')
    for k in range(4):
        a(f'v_mul_u32_u24 v{28+k}, {NPB}, v{24+k}')
        a(f'v_lshlrev_b32 v{24+k}, 2, v{24+k}')
    for k in range(4):
        a(f'ds_add_rtn_u32 v{35+4*k}, v{24+k}, v6')
    for k in range(4):
        a(f'v_sub_u32 v{28+k}, v{8+k}, v{28+k}')
        a(f'v_add_u32 v7, {k}, v3')
        a(f'v_lshl_or_b32 v{34+4*k}, v{28+k}, 24, v7')
    if not opt.get('k1late', 1):
        a(f's_waitcnt vmcnt({opt.get("pf", 0) + opt.get("psprobe", 0)})')
        a('v_lshl_or_b32 v32, v16, 16, v12')
        a('v_alignbit_b32 v33, v17, v16, 16')
        a('v_and_or_b32 v36, v17, s22, v13')
        a('v_mov_b32 v37, v18')
        a('v_lshl_or_b32 v40, v19, 16, v14')
        a('v_alignbit_b32 v41, v20, v19, 16')
        a('v_and_or_b32 v44, v20, s22, v15')
        a('v_mov_b32 v45, v21')
    a('K1_b:')
    a('s_mov_b64 exec, s[26:27]')
    a('s_waitcnt lgkmcnt(0)')
    a('s_barrier')
    stamp(a, opt, 3, 70)
    a('v_and_b32 v48, 63, v0')
    a('v_lshlrev_b32 v48, 4, v48')
    a('ds_read_b128 v[52:55], v48')
    a('s_waitcnt lgkmcnt(0)')
    a('v_add_u32 v56, v52, v53')
    a('v_add_u32 v57, v56, v54')
    a('v_add_u32 v58, v57, v55')
    a('v_mov_b32 v59, v58')
    wave_scan(a, 59)
    a('v_sub_u32 v60, v59, v58')
    a('v_add_u32 v61, v60, v52')
    a('v_add_u32 v62, v60, v56')
    a('v_add_u32 v63, v60, v57')
    a('ds_write_b128 v48, v[60:63] offset:1024')
    a('v_cmp_gt_u32 vcc, 64, v0')
    a('s_and_saveexec_b64 s[30:31], vcc')
    a('s_cbranch_execz K1_t')
    for k in range(4):
        a(f'v_lshl_or_b32 v{64+k}, v{52+k}, 16, v{60+k}')
    a('s_lshl_b32 s23, s2, 10')
    a(f's_add_u32 s23, s23, {TAB_OFF}')
    a('buffer_store_dwordx4 v[64:67], v48, s[16:19], s23 offen' + (' sc0 sc1' if opt.get('tabpol', 1) else ''))
    a('K1_t:')
    a('s_mov_b64 exec, s[28:29]')
    a('s_cbranch_execz K1_w')
    for k in range(4):
        a(f'ds_read_b32 v{8+k}, v{24+k} offset:1024')
    if opt.get('k1late', 1):
        a(f's_waitcnt vmcnt({opt.get("pf", 0) + opt.get("psprobe", 0)})')
        a('v_lshl_or_b32 v32, v16, 16, v12')
        a('v_alignbit_b32 v33, v17, v16, 16')
        a('v_and_or_b32 v36, v17, s22, v13')
        a('v_mov_b32 v37, v18')
        a('v_lshl_or_b32 v40, v19, 16, v14')
        a('v_alignbit_b32 v41, v20, v19, 16')
        a('v_and_or_b32 v44, v20, s22, v15')
        a('v_mov_b32 v45, v21')
    for k in range(4):
        a(f's_waitcnt lgkmcnt({3-k})') if k == 0 else None
    a('s_waitcnt lgkmcnt(0)')
    for k in range(4):
        a(f'v_add_u32 v{8+k}, v{8+k}, v{35+4*k}')
        a(f'v_lshlrev_b32 v{8+k}, 4, v{8+k}')
        a(f'ds_write_b96 v{8+k}, v[{32+4*k}:{34+4*k}] offset:2048')
    a('K1_w:')
    a('s_mov_b64 exec, -1')
    if opt.get('psprobe'):
        a('s_waitcnt vmcnt(0)')
        a('v_lshlrev_b32 v68, 4, v0')
        a(f'v_add_u32 v68, {2048 + CH*16}, v68')
        for u in range(opt['psprobe']):
            a(f'ds_write_b128 v68, v[{72+4*u}:{75+4*u}] offset:{u*BLK1*16}')
    a('s_waitcnt lgkmcnt(0)')
    a('s_barrier')
    a('v_lshlrev_b32 v8, 4, v0')
    for k in range(4):
        a(f'ds_read_b96 v[{32+4*k}:{34+4*k}], v8 offset:{2048 + k*BLK1*16}')
    a('v_mul_u32_u24 v9, 12, v0')
    for k in range(4):
        a(f's_mul_i32 s{32+k}, s2, {CH*12}')
        if k: a(f's_add_u32 s{32+k}, s{32+k}, {k*BLK1*12}')
    pol = ['', ' nt', ' sc1', ' sc0 sc1', ' sc1 nt', ' sc0 sc1 nt'][opt.get('k1pol', 3)]
    for k in range(4):
        a(f's_waitcnt lgkmcnt({3-k})')
        a(f'buffer_store_dwordx3 v[{32+4*k}:{34+4*k}], v9, s[16:19], s{32+k} offen{pol}')
    if opt.get('psprobe'):
        for u in range(opt['psprobe']):
            a(f'ds_read_b128 v[{72+4*u}:{75+4*u}], v68 offset:{u*BLK1*16}')
        a('v_lshlrev_b32 v69, 4, v0')
        a(f's_mul_i32 s36, s2, {CH*32}')
        a(f's_add_u32 s36, s36, 0x2000000')
        a('s_mov_b32 s18, 0x4000000')
        for u in range(opt['psprobe']):
            a(f's_waitcnt lgkmcnt({opt["psprobe"]-1-u})')
            a(f's_add_u32 s37, s36, {u*BLK1*16}')
            a(f'buffer_store_dwordx4 v[{72+4*u}:{75+4*u}], v69, s[16:19], s37 offen')
    a('K1_done:')
    if opt.get('endwait1'): a('s_waitcnt vmcnt(0)')
    if opt.get('ts'):
        a('s_mov_b64 exec, -1')
        stamp(a, opt, 4, 70)
        a('s_waitcnt vmcnt(0)')
        stamp(a, opt, 5, 70)
        stamp_out(a, opt, 70, 71, 40, TS_OFF + 0x100000, 14)
    a('s_endpgm')
    a('K1_prep:')
    a(f's_sub_u32 s3, s2, {NCH}')
    a(f's_cmp_ge_u32 s3, {NPREP}')
    a('s_cbranch_scc1 K1_done2')
    a('s_load_dwordx2 s[4:5], s[0:1], 40')
    a('s_load_dwordx4 s[20:23], s[0:1], 48')
    a('s_load_dwordx2 s[16:17], s[0:1], 88')
    a(f's_mul_i32 s3, s3, {BLK1}')
    a('v_add_u32 v1, s3, v0')
    a('s_nop 0')
    a('v_readfirstlane_b32 s24, v1')
    a('s_cmp_ge_u32 s24, 12800')
    a('s_cbranch_scc1 K1_done2')
    a('s_lshr_b32 s24, s24, 8')
    a('v_lshrrev_b32 v2, 2, v1')
    a('v_and_b32 v2, 63, v2')
    a('v_and_b32 v3, 3, v1')
    a('v_and_b32 v4, 15, v2')
    a('v_lshrrev_b32 v5, 4, v2')
    a('s_waitcnt lgkmcnt(0)')
    srd(a, 16, WS_USED)
    a('s_cmp_ge_u32 s24, 10')
    a('s_cbranch_scc1 K1_pw')
    srd(a, 4, 16 * 320 * 2)
    a('s_lshr_b32 s25, s24, 1')
    a('s_and_b32 s26, s24, 1')
    a('s_lshl_b32 s25, s25, 6')
    a('s_lshl_b32 s26, s26, 1')
    a('s_add_u32 s25, s25, s26')
    a('v_lshlrev_b32 v6, 2, v4')
    a('v_lshrrev_b32 v7, 1, v5')
    a('v_add3_u32 v6, v6, v7, s25')
    a('v_and_b32 v7, 1, v5')
    a('v_lshlrev_b32 v7, 3, v7')
    a('v_lshl_add_u32 v7, v3, 1, v7')
    a('v_mul_u32_u24 v7, 320, v7')
    a('v_add_lshl_u32 v6, v6, v7, 1')
    a('buffer_load_ushort v8, v6, s[4:7], 0 offen')
    a('buffer_load_ushort v9, v6, s[4:7], 0 offen offset:640')
    a('s_branch K1_pst')
    a('K1_pw:')
    a('s_sub_u32 s25, s24, 10')
    a('s_cmp_ge_u32 s25, 16')
    a('s_cbranch_scc1 K1_pw1')
    a('s_mov_b32 s4, s20')
    a('s_mov_b32 s5, s21')
    srd(a, 4, 128 * 64 * 2)
    a('s_branch K1_pw2')
    a('K1_pw1:')
    a('s_sub_u32 s25, s25, 16')
    a('s_mov_b32 s4, s22')
    a('s_mov_b32 s5, s23')
    srd(a, 4, 192 * 64 * 2)
    a('K1_pw2:')
    a('s_lshr_b32 s26, s25, 2')
    a('s_and_b32 s27, s25, 3')
    a('s_lshl_b32 s26, s26, 5')
    a('s_lshl_b32 s27, s27, 2')
    a('v_lshrrev_b32 v6, 2, v4')
    a('v_lshlrev_b32 v6, 4, v6')
    a('v_and_b32 v7, 3, v4')
    a('v_add3_u32 v6, v6, v7, s27')
    a('v_lshlrev_b32 v7, 3, v5')
    a('v_lshl_add_u32 v7, v3, 1, v7')
    a('v_add_u32 v7, s26, v7')
    a('v_lshlrev_b32 v7, 6, v7')
    a('v_add_lshl_u32 v6, v6, v7, 1')
    a('buffer_load_ushort v8, v6, s[4:7], 0 offen')
    a('buffer_load_ushort v9, v6, s[4:7], 0 offen offset:128')
    a('K1_pst:')
    a('v_lshlrev_b32 v1, 2, v1')
    a(f's_mov_b32 s28, {WIMG_OFF}')
    a('s_waitcnt vmcnt(0)')
    a('v_lshl_or_b32 v8, v9, 16, v8')
    a('buffer_store_dword v8, v1, s[16:19], s28 offen')
    a('K1_done2:')
    a('s_endpgm')

def desc(name, vgpr, sgpr):
    return f'''.amdhsa_kernel {name}
  .amdhsa_next_free_vgpr {vgpr}
  .amdhsa_next_free_sgpr {sgpr}
  .amdhsa_accum_offset {(vgpr + 3) // 4 * 4}
  .amdhsa_group_segment_fixed_size 0
  .amdhsa_kernarg_size 96
  .amdhsa_user_sgpr_count 2
  .amdhsa_user_sgpr_kernarg_segment_ptr 1
  .amdhsa_system_sgpr_workgroup_id_x 1
.end_amdhsa_kernel
'''

def build(opt):
    from gen_k2 import gen_k2
    header = open('cdna_kernels/%s.s.ref' % KN).read().split('; Override launch')[0]
    out = header
    out += f'; Two launches: k1 bins the edges by destination bucket (and lays out the weights), k2 aggregates per node.\n'
    out += f'; @launch kernel=k1_sort_kernel grid=({NCH+NPREP},1,1) block=({BLK1},1,1) lds={2048 + CH*16 + opt.get("psprobe", 0)*BLK1*16}\n'
    if not opt.get('k1only'):
        out += f'; @launch kernel={KN}_kernel grid=({NB},1,1) block=(512,1,1) lds={LDS2}\n'
    out += '.amdgcn_target "amdgcn-amd-amdhsa--gfx950"\n.text\n'
    st = {}
    o1 = dict(opt); o2 = dict(opt)
    if 'tsk' in opt:
        o1['ts'] = opt['tsk'] & 1; o2['ts'] = (opt['tsk'] >> 1) & 1
    a = Asm(); gen_k1(a, o1)
    out += '.globl k1_sort_kernel\n.p2align 8\n.type k1_sort_kernel,@function\n' + a.finalize(st)
    a = Asm(); nv, ns = gen_k2(a, o2)
    out += f'.globl {KN}_kernel\n.p2align 8\n.type {KN}_kernel,@function\n' + a.finalize(st)
    print('k2 nops inserted', st, file=sys.stderr)
    out += '.section .rodata,"a"\n.p2align 6\n' + desc('k1_sort_kernel', 72 + 4*opt.get('psprobe', 0), 102 if (o1.get('ts') or opt.get('k1s102')) else 48) + '.p2align 6\n' + desc(KN + '_kernel', nv, ns)
    return out

if __name__ == '__main__':
    opt = {}
    outp = None
    for x in sys.argv[1:]:
        if '=' in x:
            k, v = x.split('=', 1); opt[k] = int(v, 0)
        else: outp = x
    s = build(opt)
    open(outp or 'cdna_kernels/%s.s' % KN, 'w').write(s)
```

```python
from gen import *

ACC = 0; R = 44; RAD = 84; XS = 124
AS = YP = F = TMP = Y = NA = None
def set_map(D):
    global AS, YP, F, TMP, Y, NA
    AS = XS + 16*D; YP = AS + 4*D; F = YP + 4*D; TMP = F + 16; Y = TMP + 8
    NA = 8 if D == 2 else 6
vLaneX = 228; vLaneMask = 229; vRecA = 230; vRecB = 231; vSteps = 232; vEN = 233; vXA0 = 234; vXA1 = 235; vEA = 236
vTa = 237; vTb = 238; vPW = 239; vPR0 = 240; vPR1 = 241; vWR = 242; vOut0 = 243; vOut1 = 244; vOrd = 245
vLane = 246; vTid = 247; vT = 248
vHi = 248; vSBase = 249; vGrab = 250; vCtr = 246; vOne = 247
sWave = 20; sPfT = 21; sPfEnd = 22; sPfQ = 23; sNQ = 24; sCur = 25; s512 = 26; sHi = 27; sOffA = 28; sOffB = 29; sNode = 30; sT = 31
sM1 = 32; sM2 = 34; sM3 = 36; sSave = 38; sMask = 40; sOvf = 82; sU = 84
OPT = {}
POL = ['', ' nt', ' sc1', ' sc0 sc1', ' sc1 nt', ' sc0 sc1 nt', ' sc0']
YSEP = ((220, 222, 224), (226, 248, 250))
sThr = 3
sEa2 = 94
sTag = 40
L_CTR = L_FLAG + 16
L_QI = 1344
COST_STEP = 8; COST_FLUSH = 11

def pr(x): return f'v[{x}:{x+1}]'
def q4(x): return f'v[{x}:{x+3}]'

def lane_consts(a, opt):
    i_, g_ = 208, 209
    a(f'v_and_b32 v{i_}, 15, v{vLane}')
    a(f'v_lshrrev_b32 v{g_}, 4, v{vLane}')
    a(f'v_lshlrev_b32 v{vLaneX}, 3, v{i_}')
    a(f'v_lshrrev_b32 v{210}, 1, v{g_}')
    a(f'v_and_b32 v{211}, 1, v{i_}')
    a(f'v_cmp_eq_u32 vcc, v{210}, v{211}')
    a(f'v_and_b32 v{212}, 1, v{g_}')
    a(f'v_lshlrev_b32 v{212}, 4, v{212}')
    a(f'v_mov_b32 v{213}, 2.0')
    a(f'v_cndmask_b32 v{vLaneMask}, v{213}, v{212}, vcc')
    a(f'v_lshlrev_b32 v{vRecA}, 4, v{g_}')
    a(f'v_add_u32 v{vRecA}, {L_RECA}, v{vRecA}')
    a(f'v_lshrrev_b32 v{vRecB}, 1, v{i_}')
    a(f'v_lshlrev_b32 v{vRecB}, 2, v{vRecB}')
    a(f'v_add_u32 v{vRecB}, {L_RECB}, v{vRecB}')
    a(f's_mul_i32 s{sNode}, s{sWave}, {4*PS}')
    a(f's_add_u32 s{sNode}, s{sNode}, {L_P}')
    a(f'v_mul_u32_u24 v{vPW}, {PS}, v{g_}')
    a(f'v_add3_u32 v{vPW}, v{vPW}, v{vLaneX}, s{sNode}')
    a(f'v_lshrrev_b32 v{210}, 2, v{i_}')
    a(f'v_mul_u32_u24 v{vPR0}, {PS}, v{210}')
    a(f'v_lshlrev_b32 v{211}, 4, v{g_}')
    a(f'v_add3_u32 v{vPR0}, v{vPR0}, v{211}, s{sNode}')
    a(f'v_and_b32 v{211}, 3, v{i_}')
    a(f'v_min_u32 v{212}, 2, v{211}')
    a(f'v_mul_u32_u24 v{212}, {PJS}, v{212}')
    a(f'v_add_u32 v{212}, 256, v{212}')
    a(f'v_add_u32 v{vPR1}, v{vPR0}, v{212}')
    a(f'v_lshlrev_b32 v{vWR}, 4, v{vLane}')
    a(f'v_add_u32 v{vWR}, {L_W}, v{vWR}')
    a(f'v_lshlrev_b32 v{212}, 5, v{g_}')
    a(f'v_lshl_add_u32 v{vOut0}, v{211}, 3, v{212}')
    a(f'v_lshl_add_u32 v{vOut1}, v{211}, 7, v{212}')
    a(f'v_add_u32 v{vOut1}, 128, v{vOut1}')
    a(f'v_cmp_eq_u32 vcc, 3, v{211}')
    a(f'v_cndmask_b32 v{vOut1}, v{vOut1}, v{213}, vcc')
    a(f'v_lshlrev_b32 v{vOrd}, 2, v{210}')
    a(f'v_add_u32 v{vOrd}, {L_SORT}, v{vOrd}')
    a(f's_mov_b32 s{s512}, 512')
    a(f's_mov_b32 s{sHi}, 0xffff0000')
    a(f's_mul_i32 s{sNode}, s2, {NPB*512}')
    for m, pat in ((sM1, 0x22222222), (sM2, 0x44444444), (sM3, 0x88888888)):
        a(f's_mov_b32 s{m}, {pat}'); a(f's_mov_b32 s{m+1}, {pat}')

def prologue(a, opt):
    a(f's_cmp_ge_u32 s2, {NB}')
    a('s_cbranch_scc1 K2_end2' if opt.get('ts') else 's_cbranch_scc1 K2_end')
    if opt.get('xcdmap', 1):
        a('s_and_b32 s3, s2, 7')
        a('s_lshl_b32 s3, s3, 5')
        a('s_lshr_b32 s2, s2, 3')
        a('s_add_u32 s2, s2, s3')
    a('s_load_dwordx2 s[4:5], s[0:1], 0')
    a('s_load_dwordx2 s[8:9], s[0:1], 16')
    a('s_load_dwordx2 s[12:13], s[0:1], 72')
    a('s_load_dwordx2 s[16:17], s[0:1], 88')
    a(f'v_mov_b32 v{vTid}, v0')
    a(f'v_and_b32 v{vLane}, 63, v0')
    a(f'v_lshrrev_b32 v{vT}, 6, v0')
    a(f'v_lshlrev_b32 v{vT+1}, 2, v0')
    a(f'v_readfirstlane_b32 s{sWave}, v{vT}')
    if opt.get('ts'): a('v_mov_b32 v255, 0')
    stamp(a, opt, 0, 255)
    a(f'v_mov_b32 v200, 0')
    a(f'v_cmp_gt_u32 vcc, 336, v{vTid}')
    a(f's_and_saveexec_b64 s[{sSave}:{sSave+1}], vcc')
    a('s_cbranch_execz K2_z')
    a(f'ds_write_b32 v{vT+1}, v200')
    a('K2_z:')
    a(f's_mov_b64 exec, s[{sSave}:{sSave+1}]')
    a('v_mov_b32 v200, 0xffff'); a('v_mov_b32 v201, 0'); a('v_mov_b32 v202, 0xffff'); a('v_mov_b32 v203, 0')
    for k in range(4): a(f'v_mov_b32 v{204+k}, 2.0')
    a(f'v_lshlrev_b32 v{vT+2}, 4, v{vTid}')
    for k in range(4): a(f'ds_write_b128 v{vT+2}, v[200:203] offset:{L_RECA + k*8192}')
    for k in range(2): a(f'ds_write_b128 v{vT+2}, v[204:207] offset:{L_RECB + k*8192}')
    a(f'v_lshrrev_b32 v{vT+3}, 4, v{vTid}')
    a('s_lshl_b32 s3, s2, 2')
    a(f'v_lshl_add_u32 v{vT+4}, v{vT+3}, 10, s3')
    a(f'v_lshlrev_b32 v{vT+5}, 4, v{vLane}')
    a('s_waitcnt lgkmcnt(0)')
    srd(a, 4, 0 if opt.get('nomem') else N * 512); srd(a, 8, 0 if opt.get('nomem') or opt.get('noea') else E * 32); srd(a, 12, N * 512); srd(a, 16, WS_USED)
    TB = 124
    for k in range(7):
        a(f's_mov_b32 s{sU+k}, {TAB_OFF + k*32768}')
    for k in range(7):
        a(f'buffer_load_dword v{TB+k}, v{vT+4}, s[16:19], s{sU+k} offen')
    lane_consts(a, opt)
    vJ = 152; vG = 153; CN = 154; AD = 161
    a(f'v_and_b32 v{vJ}, 15, v{vTid}')
    a(f'v_mul_u32_u24 v{vG}, {CH*12}, v{vT+3}')
    a(f'v_add_u32 v168, 16, v{vJ}')
    a(f'v_add_u32 v169, 32, v{vJ}')
    a(f's_mov_b64 s[{sOvf}:{sOvf+1}], 0')
    for k in range(7): a(f's_mov_b32 s{sU+k}, {REC_OFF + k*32*CH*12}')
    a('s_waitcnt vmcnt(0)')
    stamp(a, opt, 1, 255)
    for k in range(7):
        a(f'v_lshrrev_b32 v{CN+k}, 16, v{TB+k}')
        a(f'v_and_b32 v{AD+k}, 0xffff, v{TB+k}')
        a(f'v_add_u32 v{AD+k}, v{AD+k}, v{vJ}')
        a(f'v_mad_u32_u24 v{AD+k}, v{AD+k}, 12, v{vG}')
        a(f'v_cmp_gt_u32 s[{sMask+2*k}:{sMask+2*k+1}], v{CN+k}, v{vJ}')
        a(f'v_cmp_gt_u32 s[{sMask+14+2*k}:{sMask+14+2*k+1}], v{CN+k}, v168')
        a(f'v_cmp_gt_u32 s[{sMask+28+2*k}:{sMask+28+2*k+1}], v{CN+k}, v169')
        a(f'v_cmp_lt_u32 vcc, 48, v{CN+k}')
        a(f's_or_b64 s[{sOvf}:{sOvf+1}], s[{sOvf}:{sOvf+1}], vcc')
    def rec_loads(beta):
        for k in range(7):
            u = beta*7 + k
            a(f's_mov_b64 exec, s[{sMask+2*u}:{sMask+2*u+1}]')
            a(f'buffer_load_dwordx3 v[{4*u}:{4*u+2}], v{AD+k}, s[16:19], s{sU+k} offen offset:{beta*192}')
        a('s_mov_b64 exec, -1')
    rec_loads(0); rec_loads(1)
    sB2 = sU + 12
    a(f's_mov_b64 s[{sB2}:{sB2+1}], 0')
    for k in range(7):
        a(f's_or_b64 s[{sB2}:{sB2+1}], s[{sB2}:{sB2+1}], s[{sMask+28+2*k}:{sMask+28+2*k+1}]')
    pipe = opt.get('pipe', 0)
    if pipe:
        pass
    else:
        a('s_cbranch_scc0 K2_nb2a')
        rec_loads(2)
        a('K2_nb2a:')
    IMG = 124
    a(f'v_lshlrev_b32 v{vT+5}, 4, v{vLane}')
    for u in range(7):
        a(f's_add_u32 s{sU+u}, s{sWave}, {8*u}')
        if u == 6:
            a(f's_min_u32 s{sU+u}, s{sU+u}, 49')
        a(f's_lshl_b32 s{sU+u}, s{sU+u}, 10')
        a(f's_add_u32 s{sT}, s{sU+u}, {WIMG_OFF}')
        a(f'buffer_load_dwordx4 {q4(IMG+4*u)}, v{vT+5}, s[16:19], s{sT} offen')
    if opt.get('tlb'):
        a(f'v_mul_u32_u24 v208, {opt.get("tlbs", 400000)}, v{vLane}')
        a('buffer_load_dword v209, v208, s[4:7], 0 offen')
        a('buffer_load_dword v210, v208, s[8:11], 0 offen')
    a('s_waitcnt lgkmcnt(0)')
    a('s_barrier')
    a(f's_cmp_eq_u64 s[{sOvf}:{sOvf+1}], 0')
    a('s_cbranch_scc1 K2_novf')
    a(f'v_mov_b32 v{vT}, {L_FLAG}')
    a(f'v_mov_b32 v{vT+1}, 1')
    a(f'ds_write_b32 v{vT}, v{vT+1}')
    a('K2_novf:')
    a(f'v_mov_b32 v170, 1')
    a(f's_waitcnt vmcnt({20 if pipe else 7})')
    stamp(a, opt, 2, 255)
    EAP = 184
    npf = opt.get('eapf', 1)
    if npf:
        a(f'v_cmp_gt_u32 vcc, {opt.get("earows", 512)}, v{vTid}')
        a(f's_and_b64 exec, vcc, s[{sMask}:{sMask+1}]')
        a(f'v_and_b32 v183, 0xffffff, v2')
        a(f'v_lshlrev_b32 v183, 5, v183')
        a(f'buffer_load_dwordx4 {q4(EAP)}, v183, s[8:11], 0 offen nt')
        a(f'buffer_load_dwordx4 {q4(EAP+4)}, v183, s[8:11], 0 offen offset:16 nt')
        a('s_mov_b64 exec, -1')
        if npf > 1:
            a(f'v_cmp_gt_u32 vcc, {EA2_ROWS}, v{vTid}')
            a(f's_and_b64 s[{sEa2}:{sEa2+1}], vcc, s[{sMask+2}:{sMask+3}]')
            a(f's_mov_b64 exec, s[{sEa2}:{sEa2+1}]')
            a(f'v_and_b32 v182, 0xffffff, v6')
            a(f'v_lshlrev_b32 v182, 5, v182')
            a(f'buffer_load_dwordx4 {q4(EAP+8)}, v182, s[8:11], 0 offen nt')
            a(f'buffer_load_dwordx4 {q4(EAP+12)}, v182, s[8:11], 0 offen offset:16 nt')
            a('s_mov_b64 exec, -1')
    def hist(beta):
        for k in range(7):
            u = beta*7 + k
            if pipe and 0 < u < 14: a(f's_waitcnt vmcnt({13 - u + 7 + 2*npf})')
            a(f's_mov_b64 exec, s[{sMask+2*u}:{sMask+2*u+1}]')
            a(f'v_lshrrev_b32 v{200+k}, 22, v{4*u+2}')
            a(f'v_and_b32 v{200+k}, 0x3fc, v{200+k}')
            a(f'ds_add_rtn_u32 v{4*u+3}, v{200+k}, v170 offset:{L_CNT}')
        a('s_mov_b64 exec, -1')
    hist(0); hist(1)
    a(f's_cmp_eq_u64 s[{sB2}:{sB2+1}], 0')
    a('s_cbranch_scc1 K2_nb2b')
    if pipe:
        for k in range(7):
            u = 14 + k
            a(f'v_add_u32 v{208+k}, {REC_OFF + k*32*CH*12}, v{AD+k}')
            a(f's_mov_b64 exec, s[{sMask+2*u}:{sMask+2*u+1}]')
            a(f'buffer_load_dwordx3 v[{4*u}:{4*u+2}], v{208+k}, s[16:19], 0 offen offset:384')
            a('s_mov_b64 exec, -1')
        a('s_waitcnt vmcnt(0)')
    hist(2)
    a('K2_nb2b:')
    a('s_waitcnt lgkmcnt(0)')
    a('s_barrier')
    stamp(a, opt, 3, 255)
    a(f's_waitcnt vmcnt({2*npf})')
    a(f'v_lshlrev_b32 v{vT+5}, 4, v{vLane}')
    a(f's_mov_b32 s{sU+8}, {L_P}')
    a(f's_mov_b32 s{sU+9}, {L_W - 10240}')
    for u in range(7):
        a(f's_cmp_lt_u32 s{sU+u}, 10240')
        a(f's_cselect_b32 s{sT}, s{sU+8}, s{sU+9}')
        a(f's_add_u32 s{sT}, s{sT}, s{sU+u}')
        a(f'v_add_u32 v{vT+6}, s{sT}, v{vT+5}')
        a(f'ds_write_b128 v{vT+6}, {q4(124+4*u)}')
    a(f'v_mov_b32 v{vT}, {L_FLAG}')
    a(f'ds_read_b32 v{vT+1}, v{vT}')
    a('s_waitcnt lgkmcnt(0)')
    a(f'v_readfirstlane_b32 s{sT}, v{vT+1}')
    a(f's_cmp_lg_u32 s{sT}, 0')
    a('s_cbranch_scc1 K2_slow')
    a(f's_cmp_lg_u32 s{sWave}, 0')
    a('s_cbranch_scc1 K2_p6')
    DG = 152; KY = 156; RK = 160; PO = 164; SO = 168
    a(f'v_lshlrev_b32 v{vT}, 4, v{vLane}')
    a(f'ds_read_b128 {q4(DG)}, v{vT} offset:{L_CNT}')
    a(f'v_cmp_gt_u32 vcc, 49, v{vLane}')
    a(f's_mov_b64 s[{sU}:{sU+1}], vcc')
    a(f'v_lshlrev_b32 v{vT+1}, 2, v{vLane}')
    for k in range(4): a(f'v_mov_b32 v{KY+k}, 0'); a(f'v_mov_b32 v{RK+k}, 0')
    a('s_waitcnt lgkmcnt(0)')
    a(f's_mov_b64 exec, s[{sU}:{sU+1}]')
    for k in range(4):
        a(f'v_min_u32 v{KY+k}, 63, v{DG+k}')
        a(f'v_sub_u32 v{KY+k}, 63, v{KY+k}')
        a(f'v_lshlrev_b32 v{KY+k}, 2, v{KY+k}')
        a(f'ds_add_rtn_u32 v{RK+k}, v{KY+k}, v170 offset:{L_BINS}')
    a('s_mov_b64 exec, -1')
    a(f'ds_read_b32 v{vT+2}, v{vT+1} offset:{L_BINS}')
    a('s_waitcnt lgkmcnt(0)')
    a(f'v_mov_b32 v{vT+3}, v{vT+2}')
    wave_scan(a, vT+3)
    a(f'v_sub_u32 v{vT+3}, v{vT+3}, v{vT+2}')
    for k in range(4): a(f'ds_bpermute_b32 v{PO+k}, v{KY+k}, v{vT+3}')
    a('s_waitcnt lgkmcnt(0)')
    a(f's_mov_b64 exec, s[{sU}:{sU+1}]')
    for k in range(4):
        a(f'v_add_u32 v{PO+k}, v{PO+k}, v{RK+k}')
        a(f'v_add_u32 v{vT+4}, {k}, v{vT+1}')
        a(f'v_lshl_or_b32 v{vT+4}, v{DG+k}, 8, v{vT+4}')
        a(f'v_lshlrev_b32 v{vT+5}, 2, v{PO+k}')
        a(f'ds_write_b32 v{vT+5}, v{vT+4} offset:{L_SORT}')
    a('s_mov_b64 exec, -1')
    a(f'ds_read_b128 {q4(SO)}, v{vT} offset:{L_SORT}')
    a(f'v_cmp_gt_u32 vcc, 49, v{vLane}')
    a('s_waitcnt lgkmcnt(0)')
    a(f'v_max3_u32 v{SO}, v{SO}, v{SO+1}, v{SO+2}')
    a(f'v_max_u32 v{SO}, v{SO}, v{SO+3}')
    a(f'v_lshrrev_b32 v{SO}, 8, v{SO}')
    a(f'v_add_u32 v{SO}, 1, v{SO}')
    a(f'v_lshrrev_b32 v{SO}, 1, v{SO}')
    a(f'v_max_u32 v{SO}, 1, v{SO}')
    a(f'v_cndmask_b32 v{SO}, 0, v{SO}, vcc')
    a(f'v_mov_b32 v{SO+1}, v{SO}')
    wave_scan(a, SO+1)
    a(f'v_sub_u32 v{SO+1}, v{SO+1}, v{SO}')
    a(f'v_min_u32 v{SO+2}, 0xffff, v{SO+1}')
    a(f'v_min_u32 v{SO+3}, 0xffff, v{SO}')
    a(f'v_lshl_or_b32 v{SO+2}, v{SO+3}, 16, v{SO+2}')
    a(f'ds_write_b32 v{vT+1}, v{SO+2} offset:{L_QI}')
    for k in range(4):
        a(f'v_and_b32 v{KY+k}, 0xfc, v{PO+k}')
        a(f'ds_bpermute_b32 v{RK+k}, v{KY+k}, v{SO+1}')
    a('s_waitcnt lgkmcnt(0)')
    for k in range(4):
        a(f'v_and_b32 v{PO+k}, 3, v{PO+k}')
        a(f'v_lshlrev_b32 v{PO+k}, 1, v{PO+k}')
        a(f'v_lshl_add_u32 v{RK+k}, v{RK+k}, 3, v{PO+k}')
    a(f's_mov_b64 exec, s[{sU}:{sU+1}]')
    a(f'ds_write_b128 v{vT}, {q4(RK)} offset:{L_BASE}')
    a('s_mov_b64 exec, -1')
    a('K2_p6:')
    a('s_waitcnt lgkmcnt(0)')
    a('s_barrier')
    stamp(a, opt, 4, 255)
    a(f'v_lshlrev_b32 v{vT+1}, 2, v{vLane}')
    a(f'ds_read_b32 v{vT+2}, v{vT+1} offset:{L_QI}')
    a('s_waitcnt lgkmcnt(0)')
    a(f'v_and_b32 v{vT+3}, 0xffff, v{vT+2}')
    a(f'v_lshrrev_b32 v{vSteps}, 16, v{vT+2}')
    a(f'v_mov_b32 v226, v{vT+3}')
    a(f'v_readlane_b32 s{sT}, v{vT+3}, 63')
    if opt.get('ts'): a(f'v_writelane_b32 v255, s{sT}, 9')
    a(f's_cmp_gt_u32 s{sT}, {NULLSTEP}')
    a('s_cbranch_scc1 K2_slow')
    if opt.get('thr'):
        a(f's_sub_i32 s{sThr}, s{sT}, {opt.get("t0", 401)}')
        a(f's_mul_i32 s{sThr}, s{sThr}, {opt.get("tmul", 4)}')
        a(f's_ashr_i32 s{sThr}, s{sThr}, 4')
        a(f's_cmp_lt_i32 s{sWave}, s{sThr}')
        a(f's_cselect_b32 s{sThr}, 0, 1')
    def scat(beta):
        for k in range(7):
            u = beta*7 + k
            a(f's_mov_b64 exec, s[{sMask+2*u}:{sMask+2*u+1}]')
            a(f'v_lshrrev_b32 v{161+k}, 22, v{4*u+2}')
            a(f'v_and_b32 v{161+k}, 0x3fc, v{161+k}')
            a(f'ds_read_b32 v{176+k}, v{161+k} offset:{L_BASE}')
        for k in range(7):
            u = beta*7 + k
            a(f's_mov_b64 exec, s[{sMask+2*u}:{sMask+2*u+1}]')
            a(f'v_lshrrev_b32 v{vT}, 1, v{4*u+3}')
            a(f'v_and_b32 v{vT+1}, 1, v{4*u+3}')
            if u == 0 and npf and opt.get('earows', 512) >= 512:
                a(f'v_lshlrev_b32 v{vT+2}, 5, v{vTid}')
                a(f'v_add_u32 v{vT+2}, {0x80000000 + L_EA}, v{vT+2}')
            elif u == 0 and npf:
                a(f'v_and_b32 v{vT+2}, 0xffffff, v{4*u+2}')
                a(f'v_lshlrev_b32 v{vT+2}, 5, v{vT+2}')
                a(f'v_lshlrev_b32 v{vT+5}, 5, v{vTid}')
                a(f'v_add_u32 v{vT+5}, {0x80000000 + L_EA}, v{vT+5}')
                a(f'v_cmp_gt_u32 vcc, {opt["earows"]}, v{vTid}')
                a(f'v_cndmask_b32 v{vT+2}, v{vT+2}, v{vT+5}, vcc')
            else:
                a(f'v_and_b32 v{vT+2}, 0xffffff, v{4*u+2}')
                a(f'v_lshlrev_b32 v{vT+2}, 5, v{vT+2}')
                if u == 1 and npf > 1:
                    a(f'v_lshlrev_b32 v{vT+5}, 5, v{vTid}')
                    a(f'v_add_u32 v{vT+5}, {0x80000000 + L_EA + 16384}, v{vT+5}')
                    a(f'v_cmp_gt_u32 vcc, {EA2_ROWS}, v{vTid}')
                    a(f'v_cndmask_b32 v{vT+2}, v{vT+2}, v{vT+5}, vcc')
            a(f's_waitcnt lgkmcnt({min(15, 6 - k + 2*k)})') if False else None
            if k == 0: a('s_waitcnt lgkmcnt(0)')
            a(f'v_lshl_add_u32 v{vT}, v{vT}, 3, v{176+k}')
            a(f'v_add_u32 v{vT}, v{vT}, v{vT+1}')
            a(f'v_lshlrev_b32 v{vT+3}, 3, v{vT}')
            a(f'v_lshlrev_b32 v{vT+4}, 2, v{vT}')
            a(f'ds_write_b64 v{vT+3}, v[{4*u}:{4*u+1}] offset:{L_RECA}')
            a(f'ds_write_b32 v{vT+4}, v{vT+2} offset:{L_RECB}')
        a('s_mov_b64 exec, -1')
    scat(0); scat(1)
    a(f's_cmp_eq_u64 s[{sB2}:{sB2+1}], 0')
    a('s_cbranch_scc1 K2_nb2c')
    scat(2)
    a('K2_nb2c:')
    a(f'v_lshlrev_b32 v{vT}, 4, v{vLane}')
    a(f'v_add_u32 v{vT}, {L_P}, v{vT}')
    for t in range(10): a(f'ds_read_b128 {q4(RAD+4*t)}, v{vT} offset:{t*1024}')
    if npf:
        a(f'v_lshlrev_b32 v{vT+1}, 5, v{vTid}')
        a(f'v_add_u32 v{vT+1}, {L_EA}, v{vT+1}')
        a('s_waitcnt vmcnt(0)')
        a(f'ds_write_b128 v{vT+1}, {q4(EAP)}')
        a(f'ds_write_b128 v{vT+1}, {q4(EAP+4)} offset:16')
        if npf > 1:
            a(f's_mov_b64 exec, s[{sEa2}:{sEa2+1}]')
            a(f'ds_write_b128 v{vT+1}, {q4(EAP+8)} offset:16384')
            a(f'ds_write_b128 v{vT+1}, {q4(EAP+12)} offset:16400')
            a('s_mov_b64 exec, -1')
    a('s_waitcnt lgkmcnt(0)')
    a('s_barrier')
    stamp(a, opt, 5, 255)
    if opt.get('ts'):
        a('s_memtime s[98:99]'); a('s_waitcnt lgkmcnt(0)'); a('v_writelane_b32 v255, s98, 12')

_uid = [0]
DEFER = []
vNa = 251; vNb = 252; vLow = 253; sAct = 44
def rec_read(a, sg):
    _uid[0] += 1; u = _uid[0]
    a(f's_cmp_lg_u32 s{sPfT}, s{sPfEnd}')
    a(f's_cbranch_scc0 K2_sw{u}')
    a(f'K2_have{u}:')
    a(f's_add_u32 s{sPfT}, s{sPfT}, 1')
    a(f's_cmp_eq_u32 s{sPfT}, s{sPfEnd}')
    a(f's_cselect_b32 s{sTag+sg}, s{sPfQ}, -1')
    a(f'K2_go{u}:')
    a(f'ds_read_b128 {q4(YP+4*sg)}, v{vNa}')
    a(f'ds_read_b32 v{vEN}, v{vNb}')
    a(f'v_add_u32 v{vNa}, 64, v{vNa}')
    a(f'v_add_u32 v{vNb}, 32, v{vNb}')
    def cold(a, u=u, sg=sg):
        a(f'K2_sw{u}:')
        a(f'v_readfirstlane_b32 s{sNQ}, v{vGrab}')
        a(f's_add_u32 s{sNQ}, s{sNQ}, 8')
        a(f's_cmp_ge_u32 s{sNQ}, 49')
        a(f's_cbranch_scc1 K2_exh{u}')
        a(f's_mov_b32 s{sPfQ}, s{sNQ}')
        a(f'v_readlane_b32 s{sPfT}, v{vSBase}, s{sNQ}')
        a(f'v_readlane_b32 s{sT}, v{vSteps}, s{sNQ}')
        a('s_mov_b64 exec, 1')
        a(f'ds_add_rtn_u32 v{vGrab}, v{vCtr}, v{vOne}')
        a('s_mov_b64 exec, -1')
        a(f's_add_u32 s{sPfEnd}, s{sPfT}, s{sT}')
        a(f's_lshl_b32 s{sOffA}, s{sPfT}, 6')
        a(f's_lshr_b32 s{sOffB}, s{sOffA}, 1')
        a(f'v_add_u32 v{vNa}, s{sOffA}, v{vRecA}')
        a(f'v_add_u32 v{vNb}, s{sOffB}, v{vRecB}')
        a(f's_branch K2_have{u}')
        a(f'K2_exh{u}:')
        a(f'v_add_u32 v{vNa}, {NULLSTEP*64}, v{vRecA}')
        a(f'v_add_u32 v{vNb}, {NULLSTEP*32}, v{vRecB}')
        a(f's_mov_b32 s{sTag+sg}, -2')
        a(f's_branch K2_go{u}')
    DEFER.append(cold)

def grab_result(a):
    pass

def issue_loads(a, sg, opt, part=None):
    ent = POL[opt.get('eapol', 4)]
    if opt.get('noload'): return
    xp = POL[opt.get('xpol', 0)]
    if part in (None, 0):
        a(f'v_mad_u32_u16 v{vXA0}, v{YP+4*sg}, s{s512}, v{vLaneX}')
        a(f'v_mad_u32_u16 v{vXA1}, v{YP+4*sg+2}, s{s512}, v{vLaneX}')
        a(f'v_or_b32 v{vEA}, v{vEN}, v{vLaneMask}')
        if opt.get('eapf', 1):
            a(f'v_cmp_gt_i32 vcc, 0, v{vEN}')
            a(f'v_and_b32 v{vTa}, v{vLow}, v{vEA}')
            a(f's_andn2_b64 exec, s[{sAct}:{sAct+1}], vcc')
            a(f'buffer_load_dwordx4 {q4(AS+4*sg)}, v{vEA}, s[8:11], 0 offen{ent}')
            a(f's_and_b64 exec, s[{sAct}:{sAct+1}], vcc')
            a(f'ds_read_b128 {q4(AS+4*sg)}, v{vTa}')
            a('s_mov_b64 exec, -1')
        else:
            a(f'buffer_load_dwordx4 {q4(AS+4*sg)}, v{vEA}, s[8:11], 0 offen{ent}')
    for s, va in ((0, vXA0), (1, vXA1)):
        if part is not None and part != s: continue
        for v in range(4):
            a(f'buffer_load_dwordx2 {pr(XS+16*sg+8*s+2*v)}, v{va}, s[4:7], 0 offen offset:{128*v}{xp}')

def Fp(v, h): return F + 8*h + 2*v
def Rp(p, h, s): return R + (2*p + h)*4 + 2*s
def Ap(f, h): return ACC + 4*f + 2*h

def unpack_ops(sg, s):
    ops = []
    for v in range(4):
        for h in range(2):
            src = XS + 16*sg + 8*s + 2*v + h
            ops.append(f'v_lshlrev_b32 v{Fp(v,h)}, 16, v{src}')
            ops.append(f'v_and_b32 v{Fp(v,h)+1}, v{vHi}, v{src}')
    return ops

def Yreg(s, j):
    return (Y + 2*(3*s + j)) if OPT.get('pk', 1) else (Y + 3*s + j)

def compute_slot_pk(a, s):
    def fma(d, x, y): a(f'v_pk_fma_f32 {pr(d)}, {pr(x)}, {pr(y)}, {pr(d)}')
    def mul(d, x, y): a(f'v_pk_mul_f32 {pr(d)}, {pr(x)}, {pr(y)}')
    def fmaY(d, x, j, neg=False):
        n = ' neg_lo:[0,1,0] neg_hi:[0,1,0]' if neg else ''
        a(f'v_pk_fma_f32 {pr(d)}, {pr(x)}, {pr(Yreg(s, j))}, {pr(d)} op_sel:[0,0,0] op_sel_hi:[1,0,1]{n}')
    def mulY(d, x, j): a(f'v_pk_mul_f32 {pr(d)}, {pr(x)}, {pr(Yreg(s, j))} op_sel:[0,0] op_sel_hi:[1,0]')
    dot = lambda h: TMP + 2*h
    t = lambda h: TMP + 4 + 2*h
    seq = [
        lambda h: fma(Ap(0,h), Fp(0,h), Rp(0,h,s)),
        lambda h: mulY(dot(h), Fp(1,h), 0),
        lambda h: mul(t(h), Fp(0,h), Rp(2,h,s)),
        lambda h: fmaY(dot(h), Fp(2,h), 1),
        lambda h: fma(Ap(5,h), Fp(1,h), Rp(3,h,s)),
        lambda h: fmaY(dot(h), Fp(3,h), 2),
        lambda h: fmaY(Ap(2,h), t(h), 0),
        lambda h: fma(Ap(6,h), Fp(2,h), Rp(3,h,s)),
        lambda h: fmaY(Ap(3,h), t(h), 1),
        lambda h: fma(Ap(7,h), Fp(3,h), Rp(3,h,s)),
        lambda h: fmaY(Ap(4,h), t(h), 2),
        lambda h: fma(Ap(1,h), dot(h), Rp(1,h,s)),
        lambda h: mul(Fp(1,h), Fp(1,h), Rp(4,h,s)),
        lambda h: mul(Fp(2,h), Fp(2,h), Rp(4,h,s)),
        lambda h: mul(Fp(3,h), Fp(3,h), Rp(4,h,s)),
        lambda h: fmaY(Ap(9,h), Fp(1,h), 2),
        lambda h: fmaY(Ap(10,h), Fp(2,h), 0),
        lambda h: fmaY(Ap(8,h), Fp(3,h), 1),
        lambda h: fmaY(Ap(10,h), Fp(1,h), 1, True),
        lambda h: fmaY(Ap(8,h), Fp(2,h), 2, True),
        lambda h: fmaY(Ap(9,h), Fp(3,h), 0, True),
    ]
    for op in seq:
        op(0); op(1)

def compute_slot(a, s):
    if OPT.get('pk', 1): return compute_slot_pk(a, s)
    Yr = (Y + 3*s, Y + 3*s + 1, Y + 3*s + 2)
    ch = [(h, p) for h in range(2) for p in range(2)]
    Fv = lambda v, c: Fp(v, c[0]) + c[1]
    Rv = lambda p, c: Rp(p, c[0], s) + c[1]
    Av = lambda f, c: Ap(f, c[0]) + c[1]
    dot = lambda c: TMP + 2*c[0] + c[1]
    t = lambda c: TMP + 4 + 2*c[0] + c[1]
    fmac = lambda d, x, y: a(f'v_fmac_f32 v{d}, v{x}, v{y}')
    mul = lambda d, x, y: a(f'v_mul_f32 v{d}, v{x}, v{y}')
    fms = lambda d, x, y: a(f'v_fma_f32 v{d}, -v{x}, v{y}, v{d}')
    seq = [
        lambda c: fmac(Av(0,c), Fv(0,c), Rv(0,c)),
        lambda c: mul(dot(c), Fv(1,c), Yr[0]),
        lambda c: mul(t(c), Fv(0,c), Rv(2,c)),
        lambda c: fmac(dot(c), Fv(2,c), Yr[1]),
        lambda c: fmac(Av(5,c), Fv(1,c), Rv(3,c)),
        lambda c: fmac(dot(c), Fv(3,c), Yr[2]),
        lambda c: fmac(Av(2,c), t(c), Yr[0]),
        lambda c: fmac(Av(6,c), Fv(2,c), Rv(3,c)),
        lambda c: fmac(Av(3,c), t(c), Yr[1]),
        lambda c: fmac(Av(7,c), Fv(3,c), Rv(3,c)),
        lambda c: fmac(Av(4,c), t(c), Yr[2]),
        lambda c: fmac(Av(1,c), dot(c), Rv(1,c)),
        lambda c: mul(Fv(1,c), Fv(1,c), Rv(4,c)),
        lambda c: mul(Fv(2,c), Fv(2,c), Rv(4,c)),
        lambda c: mul(Fv(3,c), Fv(3,c), Rv(4,c)),
        lambda c: fmac(Av(9,c), Fv(1,c), Yr[2]),
        lambda c: fmac(Av(10,c), Fv(2,c), Yr[0]),
        lambda c: fmac(Av(8,c), Fv(3,c), Yr[1]),
        lambda c: fms(Av(10,c), Fv(1,c), Yr[1]),
        lambda c: fms(Av(8,c), Fv(2,c), Yr[2]),
        lambda c: fms(Av(9,c), Fv(3,c), Yr[0]),
    ]
    for op in seq:
        for c in ch: op(c)

def step(a, sg, D, opt):
    a(f's_mov_b32 s{sCur}, s{sTag+sg}')
    for s in range(2):
        a(f'v_and_b32 v{Yreg(s,0)}, v{vHi}, v{YP+4*sg+2*s}')
        a(f'v_lshlrev_b32 v{Yreg(s,1)}, 16, v{YP+4*sg+2*s+1}')
        a(f'v_and_b32 v{Yreg(s,2)}, v{vHi}, v{YP+4*sg+2*s+1}')
    rec_read(a, sg)
    a(f's_waitcnt vmcnt({9*(D-1)})')
    if opt.get('thr'):
        _uid[0] += 1
        a(f's_cmp_eq_u32 s{sThr}, 0')
        a(f's_cbranch_scc1 K2_nt{_uid[0]}')
        a(f's_waitcnt vmcnt({9*(D-2)})')
        a(f'K2_nt{_uid[0]}:')
    fill = unpack_ops(sg, 0)
    mf = []
    for p in (0, 2, 3, 1, 4):
        for h in range(2):
            mf.append(f'v_mfma_f32_16x16x32_bf16 {q4(R+(2*p+h)*4)}, {q4(AS+4*sg)}, {q4(RAD+(2*p+h)*4)}, 0')
    if opt.get('nomfma'): mf = []
    if opt.get('mfb2b', 1):
        for m in mf: a(m)
        for o in fill: a(o)
    else:
        fi = 0
        for k, m in enumerate(mf):
            a(m)
            for _ in range(2):
                if fi < len(fill): a(fill[fi]); fi += 1
        while fi < len(fill): a(fill[fi]); fi += 1
    if opt.get('early', 0):
        a('s_waitcnt lgkmcnt(0)')
        if opt.get('prio', 1): a('s_setprio 1')
        issue_loads(a, sg, opt, 0)
        if opt.get('prio', 1): a('s_setprio 0')
        if not opt.get('nocomp'): compute_slot(a, 0)
        for o in unpack_ops(sg, 1): a(o)
        if opt.get('prio', 1): a('s_setprio 1')
        issue_loads(a, sg, opt, 1)
        if opt.get('prio', 1): a('s_setprio 0')
        if not opt.get('nocomp'): compute_slot(a, 1)
        return
    if not opt.get('nocomp'):
        compute_slot(a, 0)
        for o in unpack_ops(sg, 1): a(o)
        compute_slot(a, 1)
    if opt.get('prio', 1): a('s_setprio 1')
    a('s_waitcnt lgkmcnt(0)')
    grab_result(a)
    issue_loads(a, sg, opt)
    if opt.get('prio', 1): a('s_setprio 0')

def featoff(f):
    if f < 2: return 128*f
    f -= 2; kind, j = f // 3, f % 3
    return 256 + PJS*j + 128*kind

def flush(a, opt):
    if opt.get('noflush'): return
    D0 = R; D1 = R + 16; BR = R + 32; AR = F
    issued = ['(A operand read of the step just prefetched)'] if opt.get('eapf', 1) else []
    def ds(text):
        issued.append(text); a(text)
    state = {'done': 0}
    def wait_for(idx):
        n = len(issued) - 1 - idx
        if idx >= state['done']:
            a(f's_waitcnt lgkmcnt({min(n, 15)})'); state['done'] = len(issued) - min(n, 15)
    def room():
        if len(issued) - state['done'] >= 15: wait_for(len(issued) - 12)
    a(f's_lshl_b32 s{sT}, s{sCur}, 4')
    a(f'v_add_u32 v{vTa}, s{sT}, v{vOrd}')
    ds(f'ds_read_b32 v{vTb}, v{vTa}')
    for f in range(11):
        t0 = F + 2*(f % 8)
        a(f'v_cvt_pk_bf16_f32 v{t0}, v{ACC+4*f}, v{ACC+4*f+1}')
        a(f'v_cvt_pk_bf16_f32 v{t0+1}, v{ACC+4*f+2}, v{ACC+4*f+3}')
        room()
        ds(f'ds_write_b64 v{vPW}, {pr(t0)} offset:{featoff(f)}')
    groups = [(0, ks) for ks in range(4)] + [(1, ks) for ks in range(6)]
    idxA = {}; idxB = {}
    def loadB(gi):
        c, ks = groups[gi]
        room(); idxB[gi] = len(issued)
        ds(f'ds_read_b128 {q4(BR+4*(gi%2))}, v{vPR1 if c else vPR0} offset:{ks*64}')
    def loadA(u):
        gi, t = divmod(u, 4); c, ks = groups[gi]
        tile = (ks*4 + t) + (16 if c else 0)
        room(); idxA[u] = len(issued)
        ds(f'ds_read_b128 {q4(AR+4*(u%NA))}, v{vWR} offset:{tile*1024}')
    if NA == 8:
        loadB(0)
        for u in range(4): loadA(u)
        loadB(1)
        for u in range(4, 8): loadA(u)
        for k in range(44): a(f'v_mov_b32 v{ACC+k}, 0')
        for gi, (c, ks) in enumerate(groups):
            wait_for(max(idxA[4*gi+3], idxB[gi]))
            for t in range(4):
                u = 4*gi + t
                Dr = (D1 if c else D0) + 4*t
                cop = '0' if ks == 0 else q4(Dr)
                a(f'v_mfma_f32_16x16x32_bf16 {q4(Dr)}, {q4(AR+4*(u%NA))}, {q4(BR+4*(gi%2))}, {cop}')
            if gi + 2 < len(groups):
                loadB(gi + 2)
                for t in range(4): loadA(4*(gi+2) + t)
    else:
        loadB(0)
        for u in range(4): loadA(u)
        loadB(1)
        for u in range(4, NA): loadA(u)
        for k in range(44): a(f'v_mov_b32 v{ACC+k}, 0')
        for u in range(40):
            gi, t = divmod(u, 4); c, ks = groups[gi]
            wait_for(max(idxA[u], idxB[gi]))
            Dr = (D1 if c else D0) + 4*t
            cop = '0' if ks == 0 else q4(Dr)
            a(f'v_mfma_f32_16x16x32_bf16 {q4(Dr)}, {q4(AR+4*(u%NA))}, {q4(BR+4*(gi%2))}, {cop}')
            if t == 3 and gi + 2 < len(groups): loadB(gi + 2)
            if u + NA < 40: loadA(u + NA)
    SEL = F; G = F + 4; O1 = F + 8; O0 = TMP
    a(f'v_and_b32 v{vTb}, 0xff, v{vTb}')
    a(f'v_lshl_add_u32 v{vTb}, v{vTb}, 9, s{sNode}')
    a(f'v_add_u32 v{vTa}, v{vTb}, v{vOut0}')
    a(f'v_add_u32 v{vTb}, v{vTb}, v{vOut1}')
    SEL = D0
    for t, m in ((1, sM1), (2, sM2), (3, sM3)):
        a(f's_mov_b64 exec, s[{m}:{m+1}]')
        for r in range(4): a(f'v_mov_b32 v{SEL+r}, v{D0+4*t+r}')
    a('s_mov_b64 exec, -1')
    for r in range(4): a(f'v_mul_f32 v{G+r}, 0xbfb8aa3b, v{SEL+r}')
    for r in range(4): a(f'v_exp_f32 v{G+r}, v{G+r}')
    for r in range(4): a(f'v_add_f32 v{G+r}, 1.0, v{G+r}')
    for r in range(4): a(f'v_rcp_f32 v{G+r}, v{G+r}')
    a(f'v_cvt_pk_bf16_f32 v{O0}, v{SEL}, v{SEL+1}')
    a(f'v_cvt_pk_bf16_f32 v{O0+1}, v{SEL+2}, v{SEL+3}')
    a(f'buffer_store_dwordx2 {pr(O0)}, v{vTa}, s[12:15], 0 offen{POL[opt.get("stpol", 1)]}')
    for t in range(4):
        for r in range(4):
            a(f'v_mul_f32_dpp v{D1+4*t+r}, v{G+r}, v{D1+4*t+r} quad_perm:[{t},{t},{t},{t}] row_mask:0xf bank_mask:0xf')
    for t in range(4):
        a(f'v_cvt_pk_bf16_f32 v{O1+2*t}, v{D1+4*t}, v{D1+4*t+1}')
        a(f'v_cvt_pk_bf16_f32 v{O1+2*t+1}, v{D1+4*t+2}, v{D1+4*t+3}')
    a(f'buffer_store_dwordx4 {q4(O1)}, v{vTb}, s[12:15], 0 offen{POL[opt.get("stpol", 1)]}')
    a(f'buffer_store_dwordx4 {q4(O1+4)}, v{vTb}, s[12:15], 0 offen offset:16{POL[opt.get("stpol", 1)]}')

def slow_path(a, opt):
    WR = 100; AC = 0; FX = 12; AE = 16; AV = 24; RR = 40; T = 46; TB_ = 52; REC = 56; vL2 = 60; vZ = 61; vPB = 62; vL4 = 63
    G0 = 64; G1 = 65
    sW0 = 52; sW1 = 56; sWR = 48
    sN = 60; sC = 61; sCntS = 62; sStart = 63; sJ = 64; sMask_ = 66; sBit = 68; sD0 = 69; sD1 = 70; sD2 = 71
    sY0 = 72; sY1 = 73; sY2 = 74; sXo = 75; sEo = 76; sK = 77; sRow = 78; sPB = 79; sTmp = 80; sTmp2 = 81; sHiM = 82
    a('s_mov_b64 exec, -1')
    a(f's_load_dwordx2 s[{sWR}:{sWR+1}], s[0:1], 40')
    a(f's_load_dwordx2 s[{sW0}:{sW0+1}], s[0:1], 48')
    a(f's_load_dwordx2 s[{sW1}:{sW1+1}], s[0:1], 56')
    a(f'v_lshlrev_b32 v{vL2}, 1, v{vLane}')
    a(f'v_lshlrev_b32 v{vL4}, 2, v{vLane}')
    a(f'v_mov_b32 v{vZ}, 0')
    a(f's_mov_b32 s{sHiM}, 0xffff0000')
    a(f's_mul_i32 s{sPB}, s{sWave}, {4*PS}')
    a(f's_add_u32 s{sPB}, s{sPB}, {L_P}')
    a(f'v_add_u32 v{vPB}, s{sPB}, v{vL4}')
    a('s_waitcnt lgkmcnt(0)')
    srd(a, sWR, 16*320*2); srd(a, sW0, 128*64*2); srd(a, sW1, 192*64*2)
    for p in range(5):
        for d in range(16):
            off = (d*320 + 64*p)*2
            a(f's_mov_b32 s{sTmp}, {off}')
            a(f'buffer_load_ushort v{WR+16*p+d}, v{vL2}, s[{sWR}:{sWR+3}], s{sTmp} offen')
        a('s_waitcnt vmcnt(0)')
        for d in range(16): a(f'v_lshlrev_b32 v{WR+16*p+d}, 16, v{WR+16*p+d}')
    TBL = 3072
    for k in range(4):
        a(f'v_add_u32 v{T}, {64*k}, v{vLane}')
        a(f'v_cmp_gt_u32 vcc, {NCH}, v{T}')
        a(f'v_lshlrev_b32 v{T+1}, 10, v{T}')
        a(f's_lshl_b32 s{sTmp}, s2, 2')
        a(f's_add_u32 s{sTmp}, s{sTmp}, {TAB_OFF}')
        a(f'buffer_load_dword v{T+2}, v{T+1}, s[16:19], s{sTmp} offen')
        a('s_waitcnt vmcnt(0)')
        a(f'v_cndmask_b32 v{T+2}, 0, v{T+2}, vcc')
        a(f'ds_write_b32 v{vPB}, v{T+2} offset:{TBL + 256*k}')
    a(f's_mov_b32 s{sN}, s{sWave}')
    a('KS_node:')
    a(f's_cmp_ge_u32 s{sN}, {NPB}')
    a('s_cbranch_scc1 K2_end')
    a(f's_mul_i32 s{sRow}, s2, {NPB}')
    a(f's_add_u32 s{sRow}, s{sRow}, s{sN}')
    a(f's_cmp_ge_u32 s{sRow}, {N}')
    a('s_cbranch_scc1 K2_end')
    a(f's_lshl_b32 s{sRow}, s{sRow}, 9')
    for f in range(11): a(f'v_mov_b32 v{AC+f}, 0')
    a(f's_mov_b32 s{sC}, 0')
    a('KS_chunk:')
    a(f's_lshl_b32 s{sTmp}, s{sC}, 2')
    a(f's_add_u32 s{sTmp}, s{sTmp}, s{sPB}')
    a(f'v_mov_b32 v{T}, s{sTmp}')
    a(f'ds_read_b32 v{T+1}, v{T} offset:{TBL}')
    a('s_waitcnt lgkmcnt(0)')
    a(f'v_readfirstlane_b32 s{sTmp}, v{T+1}')
    a(f's_and_b32 s{sStart}, s{sTmp}, 0xffff')
    a(f's_lshr_b32 s{sCntS}, s{sTmp}, 16')
    a(f's_mul_i32 s{sTmp}, s{sC}, {CH}')
    a(f's_add_u32 s{sStart}, s{sStart}, s{sTmp}')
    a(f's_mov_b32 s{sJ}, 0')
    a('KS_batch:')
    a(f's_cmp_ge_u32 s{sJ}, s{sCntS}')
    a('s_cbranch_scc1 KS_chunk_next')
    a(f'v_add_u32 v{T}, s{sJ}, v{vLane}')
    a(f'v_cmp_gt_u32 vcc, s{sCntS}, v{T}')
    a(f'v_add_u32 v{T}, s{sStart}, v{T}')
    a(f'v_mul_u32_u24 v{T}, 12, v{T}')
    a(f'v_mov_b32 v{T+1}, 2.0')
    a(f'v_cndmask_b32 v{T}, v{T+1}, v{T}, vcc')
    a(f's_mov_b64 s[{sMask_}:{sMask_+1}], vcc')
    a(f'buffer_load_dwordx3 v[{REC}:{REC+2}], v{T}, s[16:19], 0 offen')
    a('s_waitcnt vmcnt(0)')
    a(f'v_lshrrev_b32 v{T}, 24, v{REC+2}')
    a(f'v_cmp_eq_u32 vcc, s{sN}, v{T}')
    a(f's_and_b64 s[{sMask_}:{sMask_+1}], s[{sMask_}:{sMask_+1}], vcc')
    a('KS_edge:')
    a(f's_cmp_eq_u64 s[{sMask_}:{sMask_+1}], 0')
    a('s_cbranch_scc1 KS_batch_next')
    a(f's_ff1_i32_b64 s{sBit}, s[{sMask_}:{sMask_+1}]')
    a(f's_bitset0_b64 s[{sMask_}:{sMask_+1}], s{sBit}')
    a(f'v_readlane_b32 s{sD0}, v{REC}, s{sBit}')
    a(f'v_readlane_b32 s{sD1}, v{REC+1}, s{sBit}')
    a(f'v_readlane_b32 s{sD2}, v{REC+2}, s{sBit}')
    a(f's_and_b32 s{sXo}, s{sD0}, 0xffff')
    a(f's_lshl_b32 s{sXo}, s{sXo}, 9')
    a(f's_and_b32 s{sEo}, s{sD2}, 0xffffff')
    a(f's_lshl_b32 s{sEo}, s{sEo}, 5')
    a(f's_and_b32 s{sY0}, s{sD0}, s{sHiM}')
    a(f's_lshl_b32 s{sY1}, s{sD1}, 16')
    a(f's_and_b32 s{sY2}, s{sD1}, s{sHiM}')
    for v in range(4): a(f'buffer_load_ushort v{FX+v}, v{vL2}, s[4:7], s{sXo} offen offset:{128*v}')
    a(f'buffer_load_dwordx4 v[{AE}:{AE+3}], v{vZ}, s[8:11], s{sEo} offen')
    a(f'buffer_load_dwordx4 v[{AE+4}:{AE+7}], v{vZ}, s[8:11], s{sEo} offen offset:16')
    a('s_waitcnt vmcnt(0)')
    for v in range(4): a(f'v_lshlrev_b32 v{FX+v}, 16, v{FX+v}')
    for q in range(8):
        a(f'v_lshlrev_b32 v{AV+2*q}, 16, v{AE+q}')
        a(f'v_and_b32 v{AV+2*q+1}, s{sHiM}, v{AE+q}')
    for p in range(5):
        a(f'v_mul_f32 v{RR+p}, v{AV}, v{WR+16*p}')
        for d in range(1, 16): a(f'v_fmac_f32 v{RR+p}, v{AV+d}, v{WR+16*p+d}')
    f0, f1 = FX, FX + 1
    a(f'v_fmac_f32 v{AC+0}, v{f0}, v{RR+0}')
    a(f'v_mul_f32 v{T}, s{sY0}, v{f1}')
    a(f'v_fmac_f32 v{T}, s{sY1}, v{f1+1}')
    a(f'v_fmac_f32 v{T}, s{sY2}, v{f1+2}')
    a(f'v_fmac_f32 v{AC+1}, v{T}, v{RR+1}')
    a(f'v_mul_f32 v{T}, v{f0}, v{RR+2}')
    for j, y in enumerate((sY0, sY1, sY2)): a(f'v_fmac_f32 v{AC+2+j}, s{y}, v{T}')
    for j in range(3): a(f'v_fmac_f32 v{AC+5+j}, v{f1+j}, v{RR+3}')
    for j in range(3): a(f'v_mul_f32 v{T+1+j}, v{f1+j}, v{RR+4}')
    a(f'v_fmac_f32 v{AC+8}, s{sY1}, v{T+3}')
    a(f'v_fma_f32 v{AC+8}, -s{sY2}, v{T+2}, v{AC+8}')
    a(f'v_fmac_f32 v{AC+9}, s{sY2}, v{T+1}')
    a(f'v_fma_f32 v{AC+9}, -s{sY0}, v{T+3}, v{AC+9}')
    a(f'v_fmac_f32 v{AC+10}, s{sY0}, v{T+2}')
    a(f'v_fma_f32 v{AC+10}, -s{sY1}, v{T+1}, v{AC+10}')
    a('s_branch KS_edge')
    a('KS_batch_next:')
    a(f's_add_u32 s{sJ}, s{sJ}, 64')
    a('s_branch KS_batch')
    a('KS_chunk_next:')
    a(f's_add_u32 s{sC}, s{sC}, 1')
    a(f's_cmp_lt_u32 s{sC}, {NCH}')
    a('s_cbranch_scc1 KS_chunk')
    for f in range(11): a(f'ds_write_b32 v{vPB}, v{AC+f} offset:{256*f}')
    for g in range(4): a(f'v_mov_b32 v{G0+g}, 0')
    a(f's_mov_b32 s{sK}, 0')
    a('KS_g0:')
    a(f's_lshl_b32 s{sTmp}, s{sK}, 2')
    a(f's_add_u32 s{sTmp}, s{sTmp}, s{sPB}')
    a(f'v_mov_b32 v{T}, s{sTmp}')
    a(f's_lshl_b32 s{sTmp2}, s{sK}, 7')
    for u in range(8):
        a(f'ds_read_b32 v{AV+u}, v{T} offset:{4*u}')
        a(f'buffer_load_ushort v{AV+8+u}, v{vL2}, s[{sW0}:{sW0+3}], s{sTmp2} offen offset:{128*u}')
    a('s_waitcnt vmcnt(0) lgkmcnt(0)')
    for u in range(8):
        a(f'v_lshlrev_b32 v{AV+8+u}, 16, v{AV+8+u}')
        a(f'v_fmac_f32 v{G0}, v{AV+u}, v{AV+8+u}')
    a(f's_add_u32 s{sK}, s{sK}, 8')
    a(f's_cmp_lt_u32 s{sK}, 128')
    a('s_cbranch_scc1 KS_g0')
    a(f's_mov_b32 s{sK}, 0')
    a('KS_g1:')
    a(f's_lshr_b32 s{sTmp}, s{sK}, 6')
    a(f's_mul_i32 s{sTmp}, s{sTmp}, 768')
    a(f's_and_b32 s{sTmp2}, s{sK}, 63')
    a(f's_lshl_b32 s{sTmp2}, s{sTmp2}, 2')
    a(f's_add_u32 s{sTmp}, s{sTmp}, s{sTmp2}')
    a(f's_add_u32 s{sTmp}, s{sTmp}, s{sPB}')
    a(f'v_mov_b32 v{T}, s{sTmp}')
    a(f's_lshl_b32 s{sTmp2}, s{sK}, 7')
    for u in range(4):
        for j in range(3): a(f'ds_read_b32 v{AV+3*u+j}, v{T} offset:{512 + 256*j + 4*u}')
        a(f'buffer_load_ushort v{AV+12+u}, v{vL2}, s[{sW1}:{sW1+3}], s{sTmp2} offen offset:{128*u}')
    a('s_waitcnt vmcnt(0) lgkmcnt(0)')
    for u in range(4):
        a(f'v_lshlrev_b32 v{AV+12+u}, 16, v{AV+12+u}')
        for j in range(3): a(f'v_fmac_f32 v{G1+j}, v{AV+3*u+j}, v{AV+12+u}')
    a(f's_add_u32 s{sK}, s{sK}, 4')
    a(f's_cmp_lt_u32 s{sK}, 192')
    a('s_cbranch_scc1 KS_g1')
    a(f'v_mul_f32 v{T}, 0xbfb8aa3b, v{G0}')
    a(f'v_exp_f32 v{T}, v{T}')
    a(f'v_add_f32 v{T}, 1.0, v{T}')
    a(f'v_rcp_f32 v{T}, v{T}')
    for j in range(3): a(f'v_mul_f32 v{G1+j}, v{T}, v{G1+j}')
    for g in range(4):
        a(f'v_cvt_pk_bf16_f32 v{G0+g}, v{G0+g}, v{G0+g}')
        a(f'buffer_store_short v{G0+g}, v{vL2}, s[12:15], s{sRow} offen offset:{128*g}')
    a(f's_add_u32 s{sN}, s{sN}, 8')
    a('s_branch KS_node')

def gen_k2(a, opt):
    D = opt.get('D', 2)
    set_map(D)
    OPT.update(opt)
    a(f'{KN}_kernel:')
    prologue(a, opt)
    a(f'v_mov_b32 v{vSBase}, v226')
    a(f's_mov_b32 s{sPfQ}, s{sWave}')
    a(f'v_readlane_b32 s{sPfT}, v{vSBase}, s{sWave}')
    a(f'v_readlane_b32 s{sT}, v{vSteps}, s{sWave}')
    a(f'v_mov_b32 v{vHi}, 0xffff0000')
    if opt.get('eapf', 1):
        a(f'v_mov_b32 v{vLow}, 0x7fffffff')
        a(f's_mov_b32 s{sAct}, 0x55555555')
        a(f's_mov_b32 s{sAct+1}, 0xaaaaaaaa')
        for k in range(4*D): a(f'v_mov_b32 v{AS+k}, 0')
    a(f'v_mov_b32 v{vCtr}, {L_CTR}')
    a(f'v_mov_b32 v{vOne}, 1')
    a(f's_add_u32 s{sPfEnd}, s{sPfT}, s{sT}')
    a('s_mov_b64 exec, 1')
    a(f'ds_add_rtn_u32 v{vGrab}, v{vCtr}, v{vOne}')
    a('s_mov_b64 exec, -1')
    a(f's_lshl_b32 s{sOffA}, s{sPfT}, 6')
    a(f's_lshr_b32 s{sOffB}, s{sOffA}, 1')
    a(f'v_add_u32 v{vNa}, s{sOffA}, v{vRecA}')
    a(f'v_add_u32 v{vNb}, s{sOffB}, v{vRecB}')
    a('s_waitcnt lgkmcnt(0)')
    for sg in range(D):
        rec_read(a, sg)
        a('s_waitcnt lgkmcnt(0)')
        grab_result(a)
        issue_loads(a, sg, opt)
    for k in range(44): a(f'v_mov_b32 v{ACC+k}, 0')
    if opt.get('align'): a.raw(f'.p2align {opt["align"]}')
    for _ in range(opt.get('pad', 0)): a('s_nop 0')
    for sg in range(D):
        a(f'K2_s{sg}:')
        step(a, sg, D, opt)
        a(f's_cmp_lt_i32 s{sCur}, 0')
        a(f's_cbranch_scc0 K2_fl{sg}')
        if sg == D - 1: a('s_branch K2_s0')
    for sg in range(D):
        a(f'K2_fl{sg}:')
        flush(a, opt)
        a(f's_cmp_eq_u32 s{sTag + (sg+1) % D}, -2')
        a('s_cbranch_scc1 K2_end')
        a(f's_branch K2_s{(sg+1) % D}')
    for f in DEFER: f(a)
    a('K2_slow:')
    slow_path(a, opt)
    a('K2_end:')
    if opt.get('endwait'): a('s_waitcnt vmcnt(0)')
    if opt.get('ts'):
        stamp(a, opt, 6, 255)
        a('s_memtime s[98:99]'); a('s_waitcnt lgkmcnt(0)'); a('v_writelane_b32 v255, s98, 13')
        a('s_waitcnt vmcnt(0)')
        stamp(a, opt, 7, 255)
        a(f'v_writelane_b32 v255, s{sNQ}, 8')
        a('s_getreg_b32 s45, hwreg(HW_REG_XCC_ID)')
        a(f'v_writelane_b32 v255, s45, 10')
        a('s_getreg_b32 s45, hwreg(HW_REG_HW_ID)')
        a(f'v_writelane_b32 v255, s45, 11')
        stamp_out(a, opt, 255, 254, sWave, TS_OFF, 8)
        a('K2_end2:')
    a('s_endpgm')
    return 256, 102
```

```python
from gen import *

ACC = 0; R = 44; RAD = 84; XS = 124
AS = YP = F = TMP = Y = NA = None
def set_map(D):
    global AS, YP, F, TMP, Y, NA
    AS = XS + 16*D; YP = AS + 4*D; F = YP + 4*D; TMP = F + 16; Y = TMP + 8
    NA = 8 if D == 2 else 6
vLaneX = 228; vLaneMask = 229; vRecA = 230; vRecB = 231; vSteps = 232; vEN = 233; vXA0 = 234; vXA1 = 235; vEA = 236
vTa = 237; vTb = 238; vPW = 239; vPR0 = 240; vPR1 = 241; vWR = 242; vOut0 = 243; vOut1 = 244; vOrd = 245
vLane = 246; vTid = 247; vT = 248
vHi = 248; vSBase = 249; vGrab = 250; vCtr = 246; vOne = 247
sWave = 20; sPfT = 21; sPfEnd = 22; sPfQ = 23; sNQ = 24; sCur = 25; s512 = 26; sHi = 27; sOffA = 28; sOffB = 29; sNode = 30; sT = 31
sM1 = 32; sM2 = 34; sM3 = 36; sSave = 38; sMask = 40; sOvf = 82; sU = 84
OPT = {}
POL = ['', ' nt', ' sc1', ' sc0 sc1', ' sc1 nt', ' sc0 sc1 nt', ' sc0']
YSEP = ((220, 222, 224), (226, 248, 250))
sThr = 3
sEa2 = 94
sTag = 40
L_CTR = L_FLAG + 16
L_QI = 1344
COST_STEP = 8; COST_FLUSH = 11

def pr(x): return f'v[{x}:{x+1}]'
def q4(x): return f'v[{x}:{x+3}]'

def lane_consts(a, opt):
    i_, g_ = 208, 209
    a(f'v_and_b32 v{i_}, 15, v{vLane}')
    a(f'v_lshrrev_b32 v{g_}, 4, v{vLane}')
    a(f'v_lshlrev_b32 v{vLaneX}, 3, v{i_}')
    a(f'v_lshrrev_b32 v{210}, 1, v{g_}')
    a(f'v_and_b32 v{211}, 1, v{i_}')
    a(f'v_cmp_eq_u32 vcc, v{210}, v{211}')
    a(f'v_and_b32 v{212}, 1, v{g_}')
    a(f'v_lshlrev_b32 v{212}, 4, v{212}')
    a(f'v_mov_b32 v{213}, 2.0')
    a(f'v_cndmask_b32 v{vLaneMask}, v{213}, v{212}, vcc')
    a(f'v_lshlrev_b32 v{vRecA}, 4, v{g_}')
    a(f'v_add_u32 v{vRecA}, {L_RECA}, v{vRecA}')
    a(f'v_lshrrev_b32 v{vRecB}, 1, v{i_}')
    a(f'v_lshlrev_b32 v{vRecB}, 2, v{vRecB}')
    a(f'v_add_u32 v{vRecB}, {L_RECB}, v{vRecB}')
    a(f's_mul_i32 s{sNode}, s{sWave}, {4*PS}')
    a(f's_add_u32 s{sNode}, s{sNode}, {L_P}')
    a(f'v_mul_u32_u24 v{vPW}, {PS}, v{g_}')
    a(f'v_add3_u32 v{vPW}, v{vPW}, v{vLaneX}, s{sNode}')
    a(f'v_lshrrev_b32 v{210}, 2, v{i_}')
    a(f'v_mul_u32_u24 v{vPR0}, {PS}, v{210}')
    a(f'v_lshlrev_b32 v{211}, 4, v{g_}')
    a(f'v_add3_u32 v{vPR0}, v{vPR0}, v{211}, s{sNode}')
    a(f'v_and_b32 v{211}, 3, v{i_}')
    a(f'v_min_u32 v{212}, 2, v{211}')
    a(f'v_mul_u32_u24 v{212}, {PJS}, v{212}')
    a(f'v_add_u32 v{212}, 256, v{212}')
    a(f'v_add_u32 v{vPR1}, v{vPR0}, v{212}')
    a(f'v_lshlrev_b32 v{vWR}, 4, v{vLane}')
    a(f'v_add_u32 v{vWR}, {L_W}, v{vWR}')
    a(f'v_lshlrev_b32 v{212}, 5, v{g_}')
    a(f'v_lshl_add_u32 v{vOut0}, v{211}, 3, v{212}')
    a(f'v_lshl_add_u32 v{vOut1}, v{211}, 7, v{212}')
    a(f'v_add_u32 v{vOut1}, 128, v{vOut1}')
    a(f'v_cmp_eq_u32 vcc, 3, v{211}')
    a(f'v_cndmask_b32 v{vOut1}, v{vOut1}, v{213}, vcc')
    a(f'v_lshlrev_b32 v{vOrd}, 2, v{210}')
    a(f'v_add_u32 v{vOrd}, {L_SORT}, v{vOrd}')
    a(f's_mov_b32 s{s512}, 512')
    a(f's_mov_b32 s{sHi}, 0xffff0000')
    a(f's_mul_i32 s{sNode}, s2, {NPB*512}')
    for m, pat in ((sM1, 0x22222222), (sM2, 0x44444444), (sM3, 0x88888888)):
        a(f's_mov_b32 s{m}, {pat}'); a(f's_mov_b32 s{m+1}, {pat}')

def prologue(a, opt):
    a(f's_cmp_ge_u32 s2, {NB}')
    a('s_cbranch_scc1 K2_end2' if opt.get('ts') else 's_cbranch_scc1 K2_end')
    if opt.get('xcdmap', 1):
        a('s_and_b32 s3, s2, 7')
        a('s_lshl_b32 s3, s3, 5')
        a('s_lshr_b32 s2, s2, 3')
        a('s_add_u32 s2, s2, s3')
    a('s_load_dwordx2 s[4:5], s[0:1], 0')
    a('s_load_dwordx2 s[8:9], s[0:1], 16')
    a('s_load_dwordx2 s[12:13], s[0:1], 72')
    a('s_load_dwordx2 s[16:17], s[0:1], 88')
    a(f'v_mov_b32 v{vTid}, v0')
    a(f'v_and_b32 v{vLane}, 63, v0')
    a(f'v_lshrrev_b32 v{vT}, 6, v0')
    a(f'v_lshlrev_b32 v{vT+1}, 2, v0')
    a(f'v_readfirstlane_b32 s{sWave}, v{vT}')
    if opt.get('ts'): a('v_mov_b32 v255, 0')
    stamp(a, opt, 0, 255)
    a(f'v_mov_b32 v200, 0')
    a(f'v_cmp_gt_u32 vcc, 336, v{vTid}')
    a(f's_and_saveexec_b64 s[{sSave}:{sSave+1}], vcc')
    a('s_cbranch_execz K2_z')
    a(f'ds_write_b32 v{vT+1}, v200')
    a('K2_z:')
    a(f's_mov_b64 exec, s[{sSave}:{sSave+1}]')
    a('v_mov_b32 v200, 0xffff'); a('v_mov_b32 v201, 0'); a('v_mov_b32 v202, 0xffff'); a('v_mov_b32 v203, 0')
    for k in range(4): a(f'v_mov_b32 v{204+k}, 2.0')
    a(f'v_lshlrev_b32 v{vT+2}, 4, v{vTid}')
    for k in range(4): a(f'ds_write_b128 v{vT+2}, v[200:203] offset:{L_RECA + k*8192}')
    for k in range(2): a(f'ds_write_b128 v{vT+2}, v[204:207] offset:{L_RECB + k*8192}')
    a(f'v_lshrrev_b32 v{vT+3}, 4, v{vTid}')
    a('s_lshl_b32 s3, s2, 2')
    a(f'v_lshl_add_u32 v{vT+4}, v{vT+3}, 10, s3')
    a(f'v_lshlrev_b32 v{vT+5}, 4, v{vLane}')
    a('s_waitcnt lgkmcnt(0)')
    srd(a, 4, 0 if opt.get('nomem') else N * 512); srd(a, 8, 0 if opt.get('nomem') or opt.get('noea') else E * 32); srd(a, 12, N * 512); srd(a, 16, WS_USED)
    TB = 124
    for k in range(7):
        a(f's_mov_b32 s{sU+k}, {TAB_OFF + k*32768}')
    for k in range(7):
        a(f'buffer_load_dword v{TB+k}, v{vT+4}, s[16:19], s{sU+k} offen')
    lane_consts(a, opt)
    vJ = 152; vG = 153; CN = 154; AD = 161
    a(f'v_and_b32 v{vJ}, 15, v{vTid}')
    a(f'v_mul_u32_u24 v{vG}, {CH*12}, v{vT+3}')
    a(f'v_add_u32 v168, 16, v{vJ}')
    a(f'v_add_u32 v169, 32, v{vJ}')
    a(f's_mov_b64 s[{sOvf}:{sOvf+1}], 0')
    for k in range(7): a(f's_mov_b32 s{sU+k}, {REC_OFF + k*32*CH*12}')
    a('s_waitcnt vmcnt(0)')
    stamp(a, opt, 1, 255)
    for k in range(7):
        a(f'v_lshrrev_b32 v{CN+k}, 16, v{TB+k}')
        a(f'v_and_b32 v{AD+k}, 0xffff, v{TB+k}')
        a(f'v_add_u32 v{AD+k}, v{AD+k}, v{vJ}')
        a(f'v_mad_u32_u24 v{AD+k}, v{AD+k}, 12, v{vG}')
        a(f'v_cmp_gt_u32 s[{sMask+2*k}:{sMask+2*k+1}], v{CN+k}, v{vJ}')
        a(f'v_cmp_gt_u32 s[{sMask+14+2*k}:{sMask+14+2*k+1}], v{CN+k}, v168')
        a(f'v_cmp_gt_u32 s[{sMask+28+2*k}:{sMask+28+2*k+1}], v{CN+k}, v169')
        a(f'v_cmp_lt_u32 vcc, 48, v{CN+k}')
        a(f's_or_b64 s[{sOvf}:{sOvf+1}], s[{sOvf}:{sOvf+1}], vcc')
    def rec_loads(beta):
        for k in range(7):
            u = beta*7 + k
            a(f's_mov_b64 exec, s[{sMask+2*u}:{sMask+2*u+1}]')
            a(f'buffer_load_dwordx3 v[{4*u}:{4*u+2}], v{AD+k}, s[16:19], s{sU+k} offen offset:{beta*192}')
        a('s_mov_b64 exec, -1')
    rec_loads(0); rec_loads(1)
    sB2 = sU + 12
    a(f's_mov_b64 s[{sB2}:{sB2+1}], 0')
    for k in range(7):
        a(f's_or_b64 s[{sB2}:{sB2+1}], s[{sB2}:{sB2+1}], s[{sMask+28+2*k}:{sMask+28+2*k+1}]')
    pipe = opt.get('pipe', 0)
    if pipe:
        pass
    else:
        a('s_cbranch_scc0 K2_nb2a')
        rec_loads(2)
        a('K2_nb2a:')
    IMG = 124
    a(f'v_lshlrev_b32 v{vT+5}, 4, v{vLane}')
    for u in range(7):
        a(f's_add_u32 s{sU+u}, s{sWave}, {8*u}')
        if u == 6:
            a(f's_min_u32 s{sU+u}, s{sU+u}, 49')
        a(f's_lshl_b32 s{sU+u}, s{sU+u}, 10')
        a(f's_add_u32 s{sT}, s{sU+u}, {WIMG_OFF}')
        a(f'buffer_load_dwordx4 {q4(IMG+4*u)}, v{vT+5}, s[16:19], s{sT} offen')
    if opt.get('tlb'):
        a(f'v_mul_u32_u24 v208, {opt.get("tlbs", 400000)}, v{vLane}')
        a('buffer_load_dword v209, v208, s[4:7], 0 offen')
        a('buffer_load_dword v210, v208, s[8:11], 0 offen')
    a('s_waitcnt lgkmcnt(0)')
    a('s_barrier')
    a(f's_cmp_eq_u64 s[{sOvf}:{sOvf+1}], 0')
    a('s_cbranch_scc1 K2_novf')
    a(f'v_mov_b32 v{vT}, {L_FLAG}')
    a(f'v_mov_b32 v{vT+1}, 1')
    a(f'ds_write_b32 v{vT}, v{vT+1}')
    a('K2_novf:')
    a(f'v_mov_b32 v170, 1')
    a(f's_waitcnt vmcnt({20 if pipe else 7})')
    stamp(a, opt, 2, 255)
    EAP = 184
    npf = opt.get('eapf', 1)
    if npf:
        a(f'v_cmp_gt_u32 vcc, {opt.get("earows", 512)}, v{vTid}')
        a(f's_and_b64 exec, vcc, s[{sMask}:{sMask+1}]')
        a(f'v_and_b32 v183, 0xffffff, v2')
        a(f'v_lshlrev_b32 v183, 5, v183')
        a(f'buffer_load_dwordx4 {q4(EAP)}, v183, s[8:11], 0 offen nt')
        a(f'buffer_load_dwordx4 {q4(EAP+4)}, v183, s[8:11], 0 offen offset:16 nt')
        a('s_mov_b64 exec, -1')
        if npf > 1:
            a(f'v_cmp_gt_u32 vcc, {EA2_ROWS}, v{vTid}')
            a(f's_and_b64 s[{sEa2}:{sEa2+1}], vcc, s[{sMask+2}:{sMask+3}]')
            a(f's_mov_b64 exec, s[{sEa2}:{sEa2+1}]')
            a(f'v_and_b32 v182, 0xffffff, v6')
            a(f'v_lshlrev_b32 v182, 5, v182')
            a(f'buffer_load_dwordx4 {q4(EAP+8)}, v182, s[8:11], 0 offen nt')
            a(f'buffer_load_dwordx4 {q4(EAP+12)}, v182, s[8:11], 0 offen offset:16 nt')
            a('s_mov_b64 exec, -1')
    def hist(beta):
        for k in range(7):
            u = beta*7 + k
            if pipe and 0 < u < 14: a(f's_waitcnt vmcnt({13 - u + 7 + 2*npf})')
            a(f's_mov_b64 exec, s[{sMask+2*u}:{sMask+2*u+1}]')
            a(f'v_lshrrev_b32 v{200+k}, 22, v{4*u+2}')
            a(f'v_and_b32 v{200+k}, 0x3fc, v{200+k}')
            a(f'ds_add_rtn_u32 v{4*u+3}, v{200+k}, v170 offset:{L_CNT}')
        a('s_mov_b64 exec, -1')
    hist(0); hist(1)
    a(f's_cmp_eq_u64 s[{sB2}:{sB2+1}], 0')
    a('s_cbranch_scc1 K2_nb2b')
    if pipe:
        for k in range(7):
            u = 14 + k
            a(f'v_add_u32 v{208+k}, {REC_OFF + k*32*CH*12}, v{AD+k}')
            a(f's_mov_b64 exec, s[{sMask+2*u}:{sMask+2*u+1}]')
            a(f'buffer_load_dwordx3 v[{4*u}:{4*u+2}], v{208+k}, s[16:19], 0 offen offset:384')
            a('s_mov_b64 exec, -1')
        a('s_waitcnt vmcnt(0)')
    hist(2)
    a('K2_nb2b:')
    a('s_waitcnt lgkmcnt(0)')
    a('s_barrier')
    stamp(a, opt, 3, 255)
    a(f's_waitcnt vmcnt({2*npf})')
    a(f'v_lshlrev_b32 v{vT+5}, 4, v{vLane}')
    a(f's_mov_b32 s{sU+8}, {L_P}')
    a(f's_mov_b32 s{sU+9}, {L_W - 10240}')
    for u in range(7):
        a(f's_cmp_lt_u32 s{sU+u}, 10240')
        a(f's_cselect_b32 s{sT}, s{sU+8}, s{sU+9}')
        a(f's_add_u32 s{sT}, s{sT}, s{sU+u}')
        a(f'v_add_u32 v{vT+6}, s{sT}, v{vT+5}')
        a(f'ds_write_b128 v{vT+6}, {q4(124+4*u)}')
    a(f'v_mov_b32 v{vT}, {L_FLAG}')
    a(f'ds_read_b32 v{vT+1}, v{vT}')
    a('s_waitcnt lgkmcnt(0)')
    a(f'v_readfirstlane_b32 s{sT}, v{vT+1}')
    a(f's_cmp_lg_u32 s{sT}, 0')
    a('s_cbranch_scc1 K2_slow')
    a(f's_cmp_lg_u32 s{sWave}, 0')
    a('s_cbranch_scc1 K2_p6')
    DG = 152; KY = 156; RK = 160; PO = 164; SO = 168
    a(f'v_lshlrev_b32 v{vT}, 4, v{vLane}')
    a(f'ds_read_b128 {q4(DG)}, v{vT} offset:{L_CNT}')
    a(f'v_cmp_gt_u32 vcc, 49, v{vLane}')
    a(f's_mov_b64 s[{sU}:{sU+1}], vcc')
    a(f'v_lshlrev_b32 v{vT+1}, 2, v{vLane}')
    for k in range(4): a(f'v_mov_b32 v{KY+k}, 0'); a(f'v_mov_b32 v{RK+k}, 0')
    a('s_waitcnt lgkmcnt(0)')
    a(f's_mov_b64 exec, s[{sU}:{sU+1}]')
    for k in range(4):
        a(f'v_min_u32 v{KY+k}, 63, v{DG+k}')
        a(f'v_sub_u32 v{KY+k}, 63, v{KY+k}')
        a(f'v_lshlrev_b32 v{KY+k}, 2, v{KY+k}')
        a(f'ds_add_rtn_u32 v{RK+k}, v{KY+k}, v170 offset:{L_BINS}')
    a('s_mov_b64 exec, -1')
    a(f'ds_read_b32 v{vT+2}, v{vT+1} offset:{L_BINS}')
    a('s_waitcnt lgkmcnt(0)')
    a(f'v_mov_b32 v{vT+3}, v{vT+2}')
    wave_scan(a, vT+3)
    a(f'v_sub_u32 v{vT+3}, v{vT+3}, v{vT+2}')
    for k in range(4): a(f'ds_bpermute_b32 v{PO+k}, v{KY+k}, v{vT+3}')
    a('s_waitcnt lgkmcnt(0)')
    a(f's_mov_b64 exec, s[{sU}:{sU+1}]')
    for k in range(4):
        a(f'v_add_u32 v{PO+k}, v{PO+k}, v{RK+k}')
        a(f'v_add_u32 v{vT+4}, {k}, v{vT+1}')
        a(f'v_lshl_or_b32 v{vT+4}, v{DG+k}, 8, v{vT+4}')
        a(f'v_lshlrev_b32 v{vT+5}, 2, v{PO+k}')
        a(f'ds_write_b32 v{vT+5}, v{vT+4} offset:{L_SORT}')
    a('s_mov_b64 exec, -1')
    a(f'ds_read_b128 {q4(SO)}, v{vT} offset:{L_SORT}')
    a(f'v_cmp_gt_u32 vcc, 49, v{vLane}')
    a('s_waitcnt lgkmcnt(0)')
    a(f'v_max3_u32 v{SO}, v{SO}, v{SO+1}, v{SO+2}')
    a(f'v_max_u32 v{SO}, v{SO}, v{SO+3}')
    a(f'v_lshrrev_b32 v{SO}, 8, v{SO}')
    a(f'v_add_u32 v{SO}, 1, v{SO}')
    a(f'v_lshrrev_b32 v{SO}, 1, v{SO}')
    a(f'v_max_u32 v{SO}, 1, v{SO}')
    a(f'v_cndmask_b32 v{SO}, 0, v{SO}, vcc')
    a(f'v_mov_b32 v{SO+1}, v{SO}')
    wave_scan(a, SO+1)
    a(f'v_sub_u32 v{SO+1}, v{SO+1}, v{SO}')
    a(f'v_min_u32 v{SO+2}, 0xffff, v{SO+1}')
    a(f'v_min_u32 v{SO+3}, 0xffff, v{SO}')
    a(f'v_lshl_or_b32 v{SO+2}, v{SO+3}, 16, v{SO+2}')
    a(f'ds_write_b32 v{vT+1}, v{SO+2} offset:{L_QI}')
    for k in range(4):
        a(f'v_and_b32 v{KY+k}, 0xfc, v{PO+k}')
        a(f'ds_bpermute_b32 v{RK+k}, v{KY+k}, v{SO+1}')
    a('s_waitcnt lgkmcnt(0)')
    for k in range(4):
        a(f'v_and_b32 v{PO+k}, 3, v{PO+k}')
        a(f'v_lshlrev_b32 v{PO+k}, 1, v{PO+k}')
        a(f'v_lshl_add_u32 v{RK+k}, v{RK+k}, 3, v{PO+k}')
    a(f's_mov_b64 exec, s[{sU}:{sU+1}]')
    a(f'ds_write_b128 v{vT}, {q4(RK)} offset:{L_BASE}')
    a('s_mov_b64 exec, -1')
    a('K2_p6:')
    a('s_waitcnt lgkmcnt(0)')
    a('s_barrier')
    stamp(a, opt, 4, 255)
    a(f'v_lshlrev_b32 v{vT+1}, 2, v{vLane}')
    a(f'ds_read_b32 v{vT+2}, v{vT+1} offset:{L_QI}')
    a('s_waitcnt lgkmcnt(0)')
    a(f'v_and_b32 v{vT+3}, 0xffff, v{vT+2}')
    a(f'v_lshrrev_b32 v{vSteps}, 16, v{vT+2}')
    a(f'v_mov_b32 v226, v{vT+3}')
    a(f'v_readlane_b32 s{sT}, v{vT+3}, 63')
    if opt.get('ts'): a(f'v_writelane_b32 v255, s{sT}, 9')
    a(f's_cmp_gt_u32 s{sT}, {NULLSTEP}')
    a('s_cbranch_scc1 K2_slow')
    if opt.get('thr'):
        a(f's_sub_i32 s{sThr}, s{sT}, {opt.get("t0", 401)}')
        a(f's_mul_i32 s{sThr}, s{sThr}, {opt.get("tmul", 4)}')
        a(f's_ashr_i32 s{sThr}, s{sThr}, 4')
        a(f's_cmp_lt_i32 s{sWave}, s{sThr}')
        a(f's_cselect_b32 s{sThr}, 0, 1')
    def scat(beta):
        for k in range(7):
            u = beta*7 + k
            a(f's_mov_b64 exec, s[{sMask+2*u}:{sMask+2*u+1}]')
            a(f'v_lshrrev_b32 v{161+k}, 22, v{4*u+2}')
            a(f'v_and_b32 v{161+k}, 0x3fc, v{161+k}')
            a(f'ds_read_b32 v{176+k}, v{161+k} offset:{L_BASE}')
        for k in range(7):
            u = beta*7 + k
            a(f's_mov_b64 exec, s[{sMask+2*u}:{sMask+2*u+1}]')
            a(f'v_lshrrev_b32 v{vT}, 1, v{4*u+3}')
            a(f'v_and_b32 v{vT+1}, 1, v{4*u+3}')
            if u == 0 and npf and opt.get('earows', 512) >= 512:
                a(f'v_lshlrev_b32 v{vT+2}, 5, v{vTid}')
                a(f'v_add_u32 v{vT+2}, {0x80000000 + L_EA}, v{vT+2}')
            elif u == 0 and npf:
                a(f'v_and_b32 v{vT+2}, 0xffffff, v{4*u+2}')
                a(f'v_lshlrev_b32 v{vT+2}, 5, v{vT+2}')
                a(f'v_lshlrev_b32 v{vT+5}, 5, v{vTid}')
                a(f'v_add_u32 v{vT+5}, {0x80000000 + L_EA}, v{vT+5}')
                a(f'v_cmp_gt_u32 vcc, {opt["earows"]}, v{vTid}')
                a(f'v_cndmask_b32 v{vT+2}, v{vT+2}, v{vT+5}, vcc')
            else:
                a(f'v_and_b32 v{vT+2}, 0xffffff, v{4*u+2}')
                a(f'v_lshlrev_b32 v{vT+2}, 5, v{vT+2}')
                if u == 1 and npf > 1:
                    a(f'v_lshlrev_b32 v{vT+5}, 5, v{vTid}')
                    a(f'v_add_u32 v{vT+5}, {0x80000000 + L_EA + 16384}, v{vT+5}')
                    a(f'v_cmp_gt_u32 vcc, {EA2_ROWS}, v{vTid}')
                    a(f'v_cndmask_b32 v{vT+2}, v{vT+2}, v{vT+5}, vcc')
            a(f's_waitcnt lgkmcnt({min(15, 6 - k + 2*k)})') if False else None
            if k == 0: a('s_waitcnt lgkmcnt(0)')
            a(f'v_lshl_add_u32 v{vT}, v{vT}, 3, v{176+k}')
            a(f'v_add_u32 v{vT}, v{vT}, v{vT+1}')
            a(f'v_lshlrev_b32 v{vT+3}, 3, v{vT}')
            a(f'v_lshlrev_b32 v{vT+4}, 2, v{vT}')
            a(f'ds_write_b64 v{vT+3}, v[{4*u}:{4*u+1}] offset:{L_RECA}')
            a(f'ds_write_b32 v{vT+4}, v{vT+2} offset:{L_RECB}')
        a('s_mov_b64 exec, -1')
    scat(0); scat(1)
    a(f's_cmp_eq_u64 s[{sB2}:{sB2+1}], 0')
    a('s_cbranch_scc1 K2_nb2c')
    scat(2)
    a('K2_nb2c:')
    a(f'v_lshlrev_b32 v{vT}, 4, v{vLane}')
    a(f'v_add_u32 v{vT}, {L_P}, v{vT}')
    for t in range(10): a(f'ds_read_b128 {q4(RAD+4*t)}, v{vT} offset:{t*1024}')
    if npf and opt.get('b7', 0):
        a(f'v_lshlrev_b32 v208, 5, v{vTid}')
        a(f'v_add_u32 v208, {L_EA}, v208')
    elif npf:
        a(f'v_lshlrev_b32 v{vT+1}, 5, v{vTid}')
        a(f'v_add_u32 v{vT+1}, {L_EA}, v{vT+1}')
        a('s_waitcnt vmcnt(0)')
        a(f'ds_write_b128 v{vT+1}, {q4(EAP)}')
        a(f'ds_write_b128 v{vT+1}, {q4(EAP+4)} offset:16')
        if npf > 1:
            a(f's_mov_b64 exec, s[{sEa2}:{sEa2+1}]')
            a(f'ds_write_b128 v{vT+1}, {q4(EAP+8)} offset:16384')
            a(f'ds_write_b128 v{vT+1}, {q4(EAP+12)} offset:16400')
            a('s_mov_b64 exec, -1')
    a('s_waitcnt lgkmcnt(0)')
    a('s_barrier')
    stamp(a, opt, 5, 255)
    if opt.get('ts'):
        a('s_memtime s[98:99]'); a('s_waitcnt lgkmcnt(0)'); a('v_writelane_b32 v255, s98, 12')

_uid = [0]
DEFER = []
vNa = 251; vNb = 252; vLow = 253; sAct = 44
def rec_read(a, sg):
    _uid[0] += 1; u = _uid[0]
    a(f's_cmp_lg_u32 s{sPfT}, s{sPfEnd}')
    a(f's_cbranch_scc0 K2_sw{u}')
    a(f'K2_have{u}:')
    a(f's_add_u32 s{sPfT}, s{sPfT}, 1')
    a(f's_cmp_eq_u32 s{sPfT}, s{sPfEnd}')
    a(f's_cselect_b32 s{sTag+sg}, s{sPfQ}, -1')
    a(f'K2_go{u}:')
    a(f'ds_read_b128 {q4(YP+4*sg)}, v{vNa}')
    a(f'ds_read_b32 v{vEN}, v{vNb}')
    a(f'v_add_u32 v{vNa}, 64, v{vNa}')
    a(f'v_add_u32 v{vNb}, 32, v{vNb}')
    def cold(a, u=u, sg=sg):
        a(f'K2_sw{u}:')
        a(f'v_readfirstlane_b32 s{sNQ}, v{vGrab}')
        a(f's_add_u32 s{sNQ}, s{sNQ}, 8')
        a(f's_cmp_ge_u32 s{sNQ}, 49')
        a(f's_cbranch_scc1 K2_exh{u}')
        a(f's_mov_b32 s{sPfQ}, s{sNQ}')
        a(f'v_readlane_b32 s{sPfT}, v{vSBase}, s{sNQ}')
        a(f'v_readlane_b32 s{sT}, v{vSteps}, s{sNQ}')
        a('s_mov_b64 exec, 1')
        a(f'ds_add_rtn_u32 v{vGrab}, v{vCtr}, v{vOne}')
        a('s_mov_b64 exec, -1')
        a(f's_add_u32 s{sPfEnd}, s{sPfT}, s{sT}')
        a(f's_lshl_b32 s{sOffA}, s{sPfT}, 6')
        a(f's_lshr_b32 s{sOffB}, s{sOffA}, 1')
        a(f'v_add_u32 v{vNa}, s{sOffA}, v{vRecA}')
        a(f'v_add_u32 v{vNb}, s{sOffB}, v{vRecB}')
        a(f's_branch K2_have{u}')
        a(f'K2_exh{u}:')
        a(f'v_add_u32 v{vNa}, {NULLSTEP*64}, v{vRecA}')
        a(f'v_add_u32 v{vNb}, {NULLSTEP*32}, v{vRecB}')
        a(f's_mov_b32 s{sTag+sg}, -2')
        a(f's_branch K2_go{u}')
    DEFER.append(cold)

def grab_result(a):
    pass

def issue_loads(a, sg, opt, part=None, defer=False):
    ent = POL[opt.get('eapol', 4)]
    if opt.get('noload'): return
    xp = POL[opt.get('xpol', 0)]
    if part in (None, 0):
        a(f'v_mad_u32_u16 v{vXA0}, v{YP+4*sg}, s{s512}, v{vLaneX}')
        a(f'v_mad_u32_u16 v{vXA1}, v{YP+4*sg+2}, s{s512}, v{vLaneX}')
        a(f'v_or_b32 v{vEA}, v{vEN}, v{vLaneMask}')
        if opt.get('eapf', 1):
            a(f'v_cmp_gt_i32 vcc, 0, v{vEN}')
            a(f'v_and_b32 v{vTa}, v{vLow}, v{vEA}')
            a(f's_andn2_b64 exec, s[{sAct}:{sAct+1}], vcc')
            a(f'buffer_load_dwordx4 {q4(AS+4*sg)}, v{vEA}, s[8:11], 0 offen{ent}')
            if defer:
                a('s_mov_b64 exec, -1')
                a(f's_and_b64 s[{46+2*sg}:{47+2*sg}], s[{sAct}:{sAct+1}], vcc')
                a(f'v_mov_b32 v{209+sg}, v{vTa}')
            else:
                a(f's_and_b64 exec, s[{sAct}:{sAct+1}], vcc')
                a(f'ds_read_b128 {q4(AS+4*sg)}, v{vTa}')
                a('s_mov_b64 exec, -1')
        else:
            a(f'buffer_load_dwordx4 {q4(AS+4*sg)}, v{vEA}, s[8:11], 0 offen{ent}')
    for s, va in ((0, vXA0), (1, vXA1)):
        if part is not None and part != s: continue
        for v in range(4):
            a(f'buffer_load_dwordx2 {pr(XS+16*sg+8*s+2*v)}, v{va}, s[4:7], 0 offen offset:{128*v}{xp}')

def Fp(v, h): return F + 8*h + 2*v
def Rp(p, h, s): return R + (2*p + h)*4 + 2*s
def Ap(f, h): return ACC + 4*f + 2*h

def unpack_ops(sg, s):
    ops = []
    for v in range(4):
        for h in range(2):
            src = XS + 16*sg + 8*s + 2*v + h
            ops.append(f'v_lshlrev_b32 v{Fp(v,h)}, 16, v{src}')
            ops.append(f'v_and_b32 v{Fp(v,h)+1}, v{vHi}, v{src}')
    return ops

def Yreg(s, j):
    if OPT.get('pk', 1) and OPT.get('D', 2) == 3:
        return (220, 222, 224, 226, 250, 252)[3*s + j]
    return (Y + 2*(3*s + j)) if OPT.get('pk', 1) else (Y + 3*s + j)

def compute_slot_pk(a, s):
    def fma(d, x, y): a(f'v_pk_fma_f32 {pr(d)}, {pr(x)}, {pr(y)}, {pr(d)}')
    def mul(d, x, y): a(f'v_pk_mul_f32 {pr(d)}, {pr(x)}, {pr(y)}')
    def fmaY(d, x, j, neg=False):
        n = ' neg_lo:[0,1,0] neg_hi:[0,1,0]' if neg else ''
        a(f'v_pk_fma_f32 {pr(d)}, {pr(x)}, {pr(Yreg(s, j))}, {pr(d)} op_sel:[0,0,0] op_sel_hi:[1,0,1]{n}')
    def mulY(d, x, j): a(f'v_pk_mul_f32 {pr(d)}, {pr(x)}, {pr(Yreg(s, j))} op_sel:[0,0] op_sel_hi:[1,0]')
    dot = lambda h: TMP + 2*h
    t = lambda h: TMP + 4 + 2*h
    seq = [
        lambda h: fma(Ap(0,h), Fp(0,h), Rp(0,h,s)),
        lambda h: mulY(dot(h), Fp(1,h), 0),
        lambda h: mul(t(h), Fp(0,h), Rp(2,h,s)),
        lambda h: fmaY(dot(h), Fp(2,h), 1),
        lambda h: fma(Ap(5,h), Fp(1,h), Rp(3,h,s)),
        lambda h: fmaY(dot(h), Fp(3,h), 2),
        lambda h: fmaY(Ap(2,h), t(h), 0),
        lambda h: fma(Ap(6,h), Fp(2,h), Rp(3,h,s)),
        lambda h: fmaY(Ap(3,h), t(h), 1),
        lambda h: fma(Ap(7,h), Fp(3,h), Rp(3,h,s)),
        lambda h: fmaY(Ap(4,h), t(h), 2),
        lambda h: fma(Ap(1,h), dot(h), Rp(1,h,s)),
        lambda h: mul(Fp(1,h), Fp(1,h), Rp(4,h,s)),
        lambda h: mul(Fp(2,h), Fp(2,h), Rp(4,h,s)),
        lambda h: mul(Fp(3,h), Fp(3,h), Rp(4,h,s)),
        lambda h: fmaY(Ap(9,h), Fp(1,h), 2),
        lambda h: fmaY(Ap(10,h), Fp(2,h), 0),
        lambda h: fmaY(Ap(8,h), Fp(3,h), 1),
        lambda h: fmaY(Ap(10,h), Fp(1,h), 1, True),
        lambda h: fmaY(Ap(8,h), Fp(2,h), 2, True),
        lambda h: fmaY(Ap(9,h), Fp(3,h), 0, True),
    ]
    for op in seq:
        op(0); op(1)

def compute_slot(a, s):
    if OPT.get('pk', 1): return compute_slot_pk(a, s)
    Yr = (Y + 3*s, Y + 3*s + 1, Y + 3*s + 2)
    ch = [(h, p) for h in range(2) for p in range(2)]
    Fv = lambda v, c: Fp(v, c[0]) + c[1]
    Rv = lambda p, c: Rp(p, c[0], s) + c[1]
    Av = lambda f, c: Ap(f, c[0]) + c[1]
    dot = lambda c: TMP + 2*c[0] + c[1]
    t = lambda c: TMP + 4 + 2*c[0] + c[1]
    fmac = lambda d, x, y: a(f'v_fmac_f32 v{d}, v{x}, v{y}')
    mul = lambda d, x, y: a(f'v_mul_f32 v{d}, v{x}, v{y}')
    fms = lambda d, x, y: a(f'v_fma_f32 v{d}, -v{x}, v{y}, v{d}')
    seq = [
        lambda c: fmac(Av(0,c), Fv(0,c), Rv(0,c)),
        lambda c: mul(dot(c), Fv(1,c), Yr[0]),
        lambda c: mul(t(c), Fv(0,c), Rv(2,c)),
        lambda c: fmac(dot(c), Fv(2,c), Yr[1]),
        lambda c: fmac(Av(5,c), Fv(1,c), Rv(3,c)),
        lambda c: fmac(dot(c), Fv(3,c), Yr[2]),
        lambda c: fmac(Av(2,c), t(c), Yr[0]),
        lambda c: fmac(Av(6,c), Fv(2,c), Rv(3,c)),
        lambda c: fmac(Av(3,c), t(c), Yr[1]),
        lambda c: fmac(Av(7,c), Fv(3,c), Rv(3,c)),
        lambda c: fmac(Av(4,c), t(c), Yr[2]),
        lambda c: fmac(Av(1,c), dot(c), Rv(1,c)),
        lambda c: mul(Fv(1,c), Fv(1,c), Rv(4,c)),
        lambda c: mul(Fv(2,c), Fv(2,c), Rv(4,c)),
        lambda c: mul(Fv(3,c), Fv(3,c), Rv(4,c)),
        lambda c: fmac(Av(9,c), Fv(1,c), Yr[2]),
        lambda c: fmac(Av(10,c), Fv(2,c), Yr[0]),
        lambda c: fmac(Av(8,c), Fv(3,c), Yr[1]),
        lambda c: fms(Av(10,c), Fv(1,c), Yr[1]),
        lambda c: fms(Av(8,c), Fv(2,c), Yr[2]),
        lambda c: fms(Av(9,c), Fv(3,c), Yr[0]),
    ]
    for op in seq:
        for c in ch: op(c)

def step(a, sg, D, opt):
    a(f's_mov_b32 s{sCur}, s{sTag+sg}')
    for s in range(2):
        a(f'v_and_b32 v{Yreg(s,0)}, v{vHi}, v{YP+4*sg+2*s}')
        a(f'v_lshlrev_b32 v{Yreg(s,1)}, 16, v{YP+4*sg+2*s+1}')
        a(f'v_and_b32 v{Yreg(s,2)}, v{vHi}, v{YP+4*sg+2*s+1}')
    rec_read(a, sg)
    a(f's_waitcnt vmcnt({9*(D-1)})')
    if opt.get('thr'):
        _uid[0] += 1
        a(f's_cmp_eq_u32 s{sThr}, 0')
        a(f's_cbranch_scc1 K2_nt{_uid[0]}')
        a(f's_waitcnt vmcnt({9*(D-2)})')
        a(f'K2_nt{_uid[0]}:')
    fill = unpack_ops(sg, 0)
    mf = []
    for p in (0, 2, 3, 1, 4):
        for h in range(2):
            mf.append(f'v_mfma_f32_16x16x32_bf16 {q4(R+(2*p+h)*4)}, {q4(AS+4*sg)}, {q4(RAD+(2*p+h)*4)}, 0')
    if opt.get('nomfma'): mf = []
    if opt.get('mfb2b', 1):
        for m in mf: a(m)
        for o in fill: a(o)
    else:
        fi = 0
        for k, m in enumerate(mf):
            a(m)
            for _ in range(2):
                if fi < len(fill): a(fill[fi]); fi += 1
        while fi < len(fill): a(fill[fi]); fi += 1
    if opt.get('early', 0):
        a('s_waitcnt lgkmcnt(0)')
        if opt.get('prio', 1): a('s_setprio 1')
        issue_loads(a, sg, opt, 0)
        if opt.get('prio', 1): a('s_setprio 0')
        if not opt.get('nocomp'): compute_slot(a, 0)
        for o in unpack_ops(sg, 1): a(o)
        if opt.get('prio', 1): a('s_setprio 1')
        issue_loads(a, sg, opt, 1)
        if opt.get('prio', 1): a('s_setprio 0')
        if not opt.get('nocomp'): compute_slot(a, 1)
        return
    if not opt.get('nocomp'):
        compute_slot(a, 0)
        for o in unpack_ops(sg, 1): a(o)
        compute_slot(a, 1)
    if opt.get('prio', 1): a('s_setprio 1')
    a('s_waitcnt lgkmcnt(0)')
    grab_result(a)
    issue_loads(a, sg, opt)
    if opt.get('prio', 1): a('s_setprio 0')

def featoff(f):
    if f < 2: return 128*f
    f -= 2; kind, j = f // 3, f % 3
    return 256 + PJS*j + 128*kind

def flush(a, opt):
    if opt.get('noflush'): return
    D0 = R; D1 = R + 16; BR = R + 32; AR = F
    issued = ['(A operand read of the step just prefetched)'] if opt.get('eapf', 1) else []
    def ds(text):
        issued.append(text); a(text)
    state = {'done': 0}
    def wait_for(idx):
        n = len(issued) - 1 - idx
        if idx >= state['done']:
            a(f's_waitcnt lgkmcnt({min(n, 15)})'); state['done'] = len(issued) - min(n, 15)
    def room():
        if len(issued) - state['done'] >= 15: wait_for(len(issued) - 12)
    a(f's_lshl_b32 s{sT}, s{sCur}, 4')
    a(f'v_add_u32 v{vTa}, s{sT}, v{vOrd}')
    ds(f'ds_read_b32 v{vTb}, v{vTa}')
    for f in range(11):
        t0 = F + 2*(f % 8)
        a(f'v_cvt_pk_bf16_f32 v{t0}, v{ACC+4*f}, v{ACC+4*f+1}')
        a(f'v_cvt_pk_bf16_f32 v{t0+1}, v{ACC+4*f+2}, v{ACC+4*f+3}')
        room()
        ds(f'ds_write_b64 v{vPW}, {pr(t0)} offset:{featoff(f)}')
    groups = [(0, ks) for ks in range(4)] + [(1, ks) for ks in range(6)]
    idxA = {}; idxB = {}
    def loadB(gi):
        c, ks = groups[gi]
        room(); idxB[gi] = len(issued)
        ds(f'ds_read_b128 {q4(BR+4*(gi%2))}, v{vPR1 if c else vPR0} offset:{ks*64}')
    def loadA(u):
        gi, t = divmod(u, 4); c, ks = groups[gi]
        tile = (ks*4 + t) + (16 if c else 0)
        room(); idxA[u] = len(issued)
        ds(f'ds_read_b128 {q4(AR+4*(u%NA))}, v{vWR} offset:{tile*1024}')
    if NA == 8:
        loadB(0)
        for u in range(4): loadA(u)
        loadB(1)
        for u in range(4, 8): loadA(u)
        for k in range(44): a(f'v_mov_b32 v{ACC+k}, 0')
        for gi, (c, ks) in enumerate(groups):
            wait_for(max(idxA[4*gi+3], idxB[gi]))
            for t in range(4):
                u = 4*gi + t
                Dr = (D1 if c else D0) + 4*t
                cop = '0' if ks == 0 else q4(Dr)
                a(f'v_mfma_f32_16x16x32_bf16 {q4(Dr)}, {q4(AR+4*(u%NA))}, {q4(BR+4*(gi%2))}, {cop}')
            if gi + 2 < len(groups):
                loadB(gi + 2)
                for t in range(4): loadA(4*(gi+2) + t)
    else:
        loadB(0)
        for u in range(4): loadA(u)
        loadB(1)
        for u in range(4, NA): loadA(u)
        for k in range(44): a(f'v_mov_b32 v{ACC+k}, 0')
        for u in range(40):
            gi, t = divmod(u, 4); c, ks = groups[gi]
            wait_for(max(idxA[u], idxB[gi]))
            Dr = (D1 if c else D0) + 4*t
            cop = '0' if ks == 0 else q4(Dr)
            a(f'v_mfma_f32_16x16x32_bf16 {q4(Dr)}, {q4(AR+4*(u%NA))}, {q4(BR+4*(gi%2))}, {cop}')
            if t == 3 and gi + 2 < len(groups): loadB(gi + 2)
            if u + NA < 40: loadA(u + NA)
    SEL = F; G = F + 4; O1 = F + 8; O0 = TMP
    a(f'v_and_b32 v{vTb}, 0xff, v{vTb}')
    a(f'v_lshl_add_u32 v{vTb}, v{vTb}, 9, s{sNode}')
    a(f'v_add_u32 v{vTa}, v{vTb}, v{vOut0}')
    a(f'v_add_u32 v{vTb}, v{vTb}, v{vOut1}')
    SEL = D0
    for t, m in ((1, sM1), (2, sM2), (3, sM3)):
        a(f's_mov_b64 exec, s[{m}:{m+1}]')
        for r in range(4): a(f'v_mov_b32 v{SEL+r}, v{D0+4*t+r}')
    a('s_mov_b64 exec, -1')
    for r in range(4): a(f'v_mul_f32 v{G+r}, 0xbfb8aa3b, v{SEL+r}')
    for r in range(4): a(f'v_exp_f32 v{G+r}, v{G+r}')
    for r in range(4): a(f'v_add_f32 v{G+r}, 1.0, v{G+r}')
    for r in range(4): a(f'v_rcp_f32 v{G+r}, v{G+r}')
    a(f'v_cvt_pk_bf16_f32 v{O0}, v{SEL}, v{SEL+1}')
    a(f'v_cvt_pk_bf16_f32 v{O0+1}, v{SEL+2}, v{SEL+3}')
    a(f'buffer_store_dwordx2 {pr(O0)}, v{vTa}, s[12:15], 0 offen{POL[opt.get("stpol", 1)]}')
    for t in range(4):
        for r in range(4):
            a(f'v_mul_f32_dpp v{D1+4*t+r}, v{G+r}, v{D1+4*t+r} quad_perm:[{t},{t},{t},{t}] row_mask:0xf bank_mask:0xf')
    for t in range(4):
        a(f'v_cvt_pk_bf16_f32 v{O1+2*t}, v{D1+4*t}, v{D1+4*t+1}')
        a(f'v_cvt_pk_bf16_f32 v{O1+2*t+1}, v{D1+4*t+2}, v{D1+4*t+3}')
    a(f'buffer_store_dwordx4 {q4(O1)}, v{vTb}, s[12:15], 0 offen{POL[opt.get("stpol", 1)]}')
    a(f'buffer_store_dwordx4 {q4(O1+4)}, v{vTb}, s[12:15], 0 offen offset:16{POL[opt.get("stpol", 1)]}')

def slow_path(a, opt):
    WR = 100; AC = 0; FX = 12; AE = 16; AV = 24; RR = 40; T = 46; TB_ = 52; REC = 56; vL2 = 60; vZ = 61; vPB = 62; vL4 = 63
    G0 = 64; G1 = 65
    sW0 = 52; sW1 = 56; sWR = 48
    sN = 60; sC = 61; sCntS = 62; sStart = 63; sJ = 64; sMask_ = 66; sBit = 68; sD0 = 69; sD1 = 70; sD2 = 71
    sY0 = 72; sY1 = 73; sY2 = 74; sXo = 75; sEo = 76; sK = 77; sRow = 78; sPB = 79; sTmp = 80; sTmp2 = 81; sHiM = 82
    a('s_mov_b64 exec, -1')
    a(f's_load_dwordx2 s[{sWR}:{sWR+1}], s[0:1], 40')
    a(f's_load_dwordx2 s[{sW0}:{sW0+1}], s[0:1], 48')
    a(f's_load_dwordx2 s[{sW1}:{sW1+1}], s[0:1], 56')
    a(f'v_lshlrev_b32 v{vL2}, 1, v{vLane}')
    a(f'v_lshlrev_b32 v{vL4}, 2, v{vLane}')
    a(f'v_mov_b32 v{vZ}, 0')
    a(f's_mov_b32 s{sHiM}, 0xffff0000')
    a(f's_mul_i32 s{sPB}, s{sWave}, {4*PS}')
    a(f's_add_u32 s{sPB}, s{sPB}, {L_P}')
    a(f'v_add_u32 v{vPB}, s{sPB}, v{vL4}')
    a('s_waitcnt lgkmcnt(0)')
    srd(a, sWR, 16*320*2); srd(a, sW0, 128*64*2); srd(a, sW1, 192*64*2)
    for p in range(5):
        for d in range(16):
            off = (d*320 + 64*p)*2
            a(f's_mov_b32 s{sTmp}, {off}')
            a(f'buffer_load_ushort v{WR+16*p+d}, v{vL2}, s[{sWR}:{sWR+3}], s{sTmp} offen')
        a('s_waitcnt vmcnt(0)')
        for d in range(16): a(f'v_lshlrev_b32 v{WR+16*p+d}, 16, v{WR+16*p+d}')
    TBL = 3072
    for k in range(4):
        a(f'v_add_u32 v{T}, {64*k}, v{vLane}')
        a(f'v_cmp_gt_u32 vcc, {NCH}, v{T}')
        a(f'v_lshlrev_b32 v{T+1}, 10, v{T}')
        a(f's_lshl_b32 s{sTmp}, s2, 2')
        a(f's_add_u32 s{sTmp}, s{sTmp}, {TAB_OFF}')
        a(f'buffer_load_dword v{T+2}, v{T+1}, s[16:19], s{sTmp} offen')
        a('s_waitcnt vmcnt(0)')
        a(f'v_cndmask_b32 v{T+2}, 0, v{T+2}, vcc')
        a(f'ds_write_b32 v{vPB}, v{T+2} offset:{TBL + 256*k}')
    a(f's_mov_b32 s{sN}, s{sWave}')
    a('KS_node:')
    a(f's_cmp_ge_u32 s{sN}, {NPB}')
    a('s_cbranch_scc1 K2_end')
    a(f's_mul_i32 s{sRow}, s2, {NPB}')
    a(f's_add_u32 s{sRow}, s{sRow}, s{sN}')
    a(f's_cmp_ge_u32 s{sRow}, {N}')
    a('s_cbranch_scc1 K2_end')
    a(f's_lshl_b32 s{sRow}, s{sRow}, 9')
    for f in range(11): a(f'v_mov_b32 v{AC+f}, 0')
    a(f's_mov_b32 s{sC}, 0')
    a('KS_chunk:')
    a(f's_lshl_b32 s{sTmp}, s{sC}, 2')
    a(f's_add_u32 s{sTmp}, s{sTmp}, s{sPB}')
    a(f'v_mov_b32 v{T}, s{sTmp}')
    a(f'ds_read_b32 v{T+1}, v{T} offset:{TBL}')
    a('s_waitcnt lgkmcnt(0)')
    a(f'v_readfirstlane_b32 s{sTmp}, v{T+1}')
    a(f's_and_b32 s{sStart}, s{sTmp}, 0xffff')
    a(f's_lshr_b32 s{sCntS}, s{sTmp}, 16')
    a(f's_mul_i32 s{sTmp}, s{sC}, {CH}')
    a(f's_add_u32 s{sStart}, s{sStart}, s{sTmp}')
    a(f's_mov_b32 s{sJ}, 0')
    a('KS_batch:')
    a(f's_cmp_ge_u32 s{sJ}, s{sCntS}')
    a('s_cbranch_scc1 KS_chunk_next')
    a(f'v_add_u32 v{T}, s{sJ}, v{vLane}')
    a(f'v_cmp_gt_u32 vcc, s{sCntS}, v{T}')
    a(f'v_add_u32 v{T}, s{sStart}, v{T}')
    a(f'v_mul_u32_u24 v{T}, 12, v{T}')
    a(f'v_mov_b32 v{T+1}, 2.0')
    a(f'v_cndmask_b32 v{T}, v{T+1}, v{T}, vcc')
    a(f's_mov_b64 s[{sMask_}:{sMask_+1}], vcc')
    a(f'buffer_load_dwordx3 v[{REC}:{REC+2}], v{T}, s[16:19], 0 offen')
    a('s_waitcnt vmcnt(0)')
    a(f'v_lshrrev_b32 v{T}, 24, v{REC+2}')
    a(f'v_cmp_eq_u32 vcc, s{sN}, v{T}')
    a(f's_and_b64 s[{sMask_}:{sMask_+1}], s[{sMask_}:{sMask_+1}], vcc')
    a('KS_edge:')
    a(f's_cmp_eq_u64 s[{sMask_}:{sMask_+1}], 0')
    a('s_cbranch_scc1 KS_batch_next')
    a(f's_ff1_i32_b64 s{sBit}, s[{sMask_}:{sMask_+1}]')
    a(f's_bitset0_b64 s[{sMask_}:{sMask_+1}], s{sBit}')
    a(f'v_readlane_b32 s{sD0}, v{REC}, s{sBit}')
    a(f'v_readlane_b32 s{sD1}, v{REC+1}, s{sBit}')
    a(f'v_readlane_b32 s{sD2}, v{REC+2}, s{sBit}')
    a(f's_and_b32 s{sXo}, s{sD0}, 0xffff')
    a(f's_lshl_b32 s{sXo}, s{sXo}, 9')
    a(f's_and_b32 s{sEo}, s{sD2}, 0xffffff')
    a(f's_lshl_b32 s{sEo}, s{sEo}, 5')
    a(f's_and_b32 s{sY0}, s{sD0}, s{sHiM}')
    a(f's_lshl_b32 s{sY1}, s{sD1}, 16')
    a(f's_and_b32 s{sY2}, s{sD1}, s{sHiM}')
    for v in range(4): a(f'buffer_load_ushort v{FX+v}, v{vL2}, s[4:7], s{sXo} offen offset:{128*v}')
    a(f'buffer_load_dwordx4 v[{AE}:{AE+3}], v{vZ}, s[8:11], s{sEo} offen')
    a(f'buffer_load_dwordx4 v[{AE+4}:{AE+7}], v{vZ}, s[8:11], s{sEo} offen offset:16')
    a('s_waitcnt vmcnt(0)')
    for v in range(4): a(f'v_lshlrev_b32 v{FX+v}, 16, v{FX+v}')
    for q in range(8):
        a(f'v_lshlrev_b32 v{AV+2*q}, 16, v{AE+q}')
        a(f'v_and_b32 v{AV+2*q+1}, s{sHiM}, v{AE+q}')
    for p in range(5):
        a(f'v_mul_f32 v{RR+p}, v{AV}, v{WR+16*p}')
        for d in range(1, 16): a(f'v_fmac_f32 v{RR+p}, v{AV+d}, v{WR+16*p+d}')
    f0, f1 = FX, FX + 1
    a(f'v_fmac_f32 v{AC+0}, v{f0}, v{RR+0}')
    a(f'v_mul_f32 v{T}, s{sY0}, v{f1}')
    a(f'v_fmac_f32 v{T}, s{sY1}, v{f1+1}')
    a(f'v_fmac_f32 v{T}, s{sY2}, v{f1+2}')
    a(f'v_fmac_f32 v{AC+1}, v{T}, v{RR+1}')
    a(f'v_mul_f32 v{T}, v{f0}, v{RR+2}')
    for j, y in enumerate((sY0, sY1, sY2)): a(f'v_fmac_f32 v{AC+2+j}, s{y}, v{T}')
    for j in range(3): a(f'v_fmac_f32 v{AC+5+j}, v{f1+j}, v{RR+3}')
    for j in range(3): a(f'v_mul_f32 v{T+1+j}, v{f1+j}, v{RR+4}')
    a(f'v_fmac_f32 v{AC+8}, s{sY1}, v{T+3}')
    a(f'v_fma_f32 v{AC+8}, -s{sY2}, v{T+2}, v{AC+8}')
    a(f'v_fmac_f32 v{AC+9}, s{sY2}, v{T+1}')
    a(f'v_fma_f32 v{AC+9}, -s{sY0}, v{T+3}, v{AC+9}')
    a(f'v_fmac_f32 v{AC+10}, s{sY0}, v{T+2}')
    a(f'v_fma_f32 v{AC+10}, -s{sY1}, v{T+1}, v{AC+10}')
    a('s_branch KS_edge')
    a('KS_batch_next:')
    a(f's_add_u32 s{sJ}, s{sJ}, 64')
    a('s_branch KS_batch')
    a('KS_chunk_next:')
    a(f's_add_u32 s{sC}, s{sC}, 1')
    a(f's_cmp_lt_u32 s{sC}, {NCH}')
    a('s_cbranch_scc1 KS_chunk')
    for f in range(11): a(f'ds_write_b32 v{vPB}, v{AC+f} offset:{256*f}')
    for g in range(4): a(f'v_mov_b32 v{G0+g}, 0')
    a(f's_mov_b32 s{sK}, 0')
    a('KS_g0:')
    a(f's_lshl_b32 s{sTmp}, s{sK}, 2')
    a(f's_add_u32 s{sTmp}, s{sTmp}, s{sPB}')
    a(f'v_mov_b32 v{T}, s{sTmp}')
    a(f's_lshl_b32 s{sTmp2}, s{sK}, 7')
    for u in range(8):
        a(f'ds_read_b32 v{AV+u}, v{T} offset:{4*u}')
        a(f'buffer_load_ushort v{AV+8+u}, v{vL2}, s[{sW0}:{sW0+3}], s{sTmp2} offen offset:{128*u}')
    a('s_waitcnt vmcnt(0) lgkmcnt(0)')
    for u in range(8):
        a(f'v_lshlrev_b32 v{AV+8+u}, 16, v{AV+8+u}')
        a(f'v_fmac_f32 v{G0}, v{AV+u}, v{AV+8+u}')
    a(f's_add_u32 s{sK}, s{sK}, 8')
    a(f's_cmp_lt_u32 s{sK}, 128')
    a('s_cbranch_scc1 KS_g0')
    a(f's_mov_b32 s{sK}, 0')
    a('KS_g1:')
    a(f's_lshr_b32 s{sTmp}, s{sK}, 6')
    a(f's_mul_i32 s{sTmp}, s{sTmp}, 768')
    a(f's_and_b32 s{sTmp2}, s{sK}, 63')
    a(f's_lshl_b32 s{sTmp2}, s{sTmp2}, 2')
    a(f's_add_u32 s{sTmp}, s{sTmp}, s{sTmp2}')
    a(f's_add_u32 s{sTmp}, s{sTmp}, s{sPB}')
    a(f'v_mov_b32 v{T}, s{sTmp}')
    a(f's_lshl_b32 s{sTmp2}, s{sK}, 7')
    for u in range(4):
        for j in range(3): a(f'ds_read_b32 v{AV+3*u+j}, v{T} offset:{512 + 256*j + 4*u}')
        a(f'buffer_load_ushort v{AV+12+u}, v{vL2}, s[{sW1}:{sW1+3}], s{sTmp2} offen offset:{128*u}')
    a('s_waitcnt vmcnt(0) lgkmcnt(0)')
    for u in range(4):
        a(f'v_lshlrev_b32 v{AV+12+u}, 16, v{AV+12+u}')
        for j in range(3): a(f'v_fmac_f32 v{G1+j}, v{AV+3*u+j}, v{AV+12+u}')
    a(f's_add_u32 s{sK}, s{sK}, 4')
    a(f's_cmp_lt_u32 s{sK}, 192')
    a('s_cbranch_scc1 KS_g1')
    a(f'v_mul_f32 v{T}, 0xbfb8aa3b, v{G0}')
    a(f'v_exp_f32 v{T}, v{T}')
    a(f'v_add_f32 v{T}, 1.0, v{T}')
    a(f'v_rcp_f32 v{T}, v{T}')
    for j in range(3): a(f'v_mul_f32 v{G1+j}, v{T}, v{G1+j}')
    for g in range(4):
        a(f'v_cvt_pk_bf16_f32 v{G0+g}, v{G0+g}, v{G0+g}')
        a(f'buffer_store_short v{G0+g}, v{vL2}, s[12:15], s{sRow} offen offset:{128*g}')
    a(f's_add_u32 s{sN}, s{sN}, 8')
    a('s_branch KS_node')

def gen_k2(a, opt):
    D = opt.get('D', 2)
    set_map(D)
    global vGrab, vNb
    if D == 3 and opt.get('pk', 1): vGrab = 221; vNb = 223
    OPT.update(opt)
    a(f'{KN}_kernel:')
    prologue(a, opt)
    a(f'v_mov_b32 v{vSBase}, v226')
    a(f's_mov_b32 s{sPfQ}, s{sWave}')
    a(f'v_readlane_b32 s{sPfT}, v{vSBase}, s{sWave}')
    a(f'v_readlane_b32 s{sT}, v{vSteps}, s{sWave}')
    a(f'v_mov_b32 v{vHi}, 0xffff0000')
    if opt.get('eapf', 1):
        a(f'v_mov_b32 v{vLow}, 0x7fffffff')
        a(f's_mov_b32 s{sAct}, 0x55555555')
        a(f's_mov_b32 s{sAct+1}, 0xaaaaaaaa')
        for k in range(4*D): a(f'v_mov_b32 v{AS+k}, 0')
    a(f'v_mov_b32 v{vCtr}, {L_CTR}')
    a(f'v_mov_b32 v{vOne}, 1')
    a(f's_add_u32 s{sPfEnd}, s{sPfT}, s{sT}')
    a('s_mov_b64 exec, 1')
    a(f'ds_add_rtn_u32 v{vGrab}, v{vCtr}, v{vOne}')
    a('s_mov_b64 exec, -1')
    a(f's_lshl_b32 s{sOffA}, s{sPfT}, 6')
    a(f's_lshr_b32 s{sOffB}, s{sOffA}, 1')
    a(f'v_add_u32 v{vNa}, s{sOffA}, v{vRecA}')
    a(f'v_add_u32 v{vNb}, s{sOffB}, v{vRecB}')
    a('s_waitcnt lgkmcnt(0)')
    b7 = opt.get('eapf', 1) and opt.get('b7', 0)
    for sg in range(D):
        rec_read(a, sg)
        a('s_waitcnt lgkmcnt(0)')
        grab_result(a)
        issue_loads(a, sg, opt, defer=b7)
    if b7:
        a(f's_waitcnt vmcnt({9*D})')
        a(f'ds_write_b128 v208, {q4(184)}')
        a(f'ds_write_b128 v208, {q4(188)} offset:16')
        a('s_waitcnt lgkmcnt(0)')
        a('s_barrier')
        for sg in range(D):
            a(f's_mov_b64 exec, s[{46+2*sg}:{47+2*sg}]')
            a(f'ds_read_b128 {q4(AS+4*sg)}, v{209+sg}')
        a('s_mov_b64 exec, -1')
        a('s_waitcnt lgkmcnt(0)')
    for k in range(44): a(f'v_mov_b32 v{ACC+k}, 0')
    if opt.get('align'): a.raw(f'.p2align {opt["align"]}')
    for _ in range(opt.get('pad', 0)): a('s_nop 0')
    for sg in range(D):
        a(f'K2_s{sg}:')
        step(a, sg, D, opt)
        a(f's_cmp_lt_i32 s{sCur}, 0')
        a(f's_cbranch_scc0 K2_fl{sg}')
        if sg == D - 1: a('s_branch K2_s0')
    for sg in range(D):
        a(f'K2_fl{sg}:')
        flush(a, opt)
        a(f's_cmp_eq_u32 s{sTag + (sg+1) % D}, -2')
        a('s_cbranch_scc1 K2_end')
        a(f's_branch K2_s{(sg+1) % D}')
    for f in DEFER: f(a)
    a('K2_slow:')
    slow_path(a, opt)
    a('K2_end:')
    if opt.get('endwait'): a('s_waitcnt vmcnt(0)')
    if opt.get('ts'):
        stamp(a, opt, 6, 255)
        a('s_memtime s[98:99]'); a('s_waitcnt lgkmcnt(0)'); a('v_writelane_b32 v255, s98, 13')
        a('s_waitcnt vmcnt(0)')
        stamp(a, opt, 7, 255)
        a(f'v_writelane_b32 v255, s{sNQ}, 8')
        a('s_getreg_b32 s45, hwreg(HW_REG_XCC_ID)')
        a(f'v_writelane_b32 v255, s45, 10')
        a('s_getreg_b32 s45, hwreg(HW_REG_HW_ID)')
        a(f'v_writelane_b32 v255, s45, 11')
        stamp_out(a, opt, 255, 254, sWave, TS_OFF, 8)
        a('K2_end2:')
    a('s_endpgm')
    return 256, 102
```

```python
from gen import *

ACC = 0; R = 44; RAD = 84; XS = 124
AS = YP = F = TMP = Y = NA = None
def set_map(D):
    global AS, YP, F, TMP, Y, NA
    AS = XS + 16*D; YP = AS + 4*D; F = YP + 4*D; TMP = F + 16; Y = TMP + 8
    NA = 8 if D == 2 else 6
vLaneX = 228; vLaneMask = 229; vRecA = 230; vRecB = 231; vSteps = 232; vEN = 233; vXA0 = 234; vXA1 = 235; vEA = 236
vTa = 237; vTb = 238; vPW = 239; vPR0 = 240; vPR1 = 241; vWR = 242; vOut0 = 243; vOut1 = 244; vOrd = 245
vLane = 246; vTid = 247; vT = 248
vHi = 248; vSBase = 249; vGrab = 250; vCtr = 246; vOne = 247
sWave = 20; sPfT = 21; sPfEnd = 22; sPfQ = 23; sNQ = 24; sCur = 25; s512 = 26; sHi = 27; sOffA = 28; sOffB = 29; sNode = 30; sT = 31
sM1 = 32; sM2 = 34; sM3 = 36; sSave = 38; sMask = 40; sOvf = 82; sU = 84
OPT = {}
POL = ['', ' nt', ' sc1', ' sc0 sc1', ' sc1 nt', ' sc0 sc1 nt', ' sc0']
YSEP = ((220, 222, 224), (226, 248, 250))
sThr = 3
sEa2 = 94
sTag = 40
L_CTR = L_FLAG + 16
L_QI = 1344
COST_STEP = 8; COST_FLUSH = 11

def pr(x): return f'v[{x}:{x+1}]'
def q4(x): return f'v[{x}:{x+3}]'

def lane_consts(a, opt):
    i_, g_ = 208, 209
    a(f'v_and_b32 v{i_}, 15, v{vLane}')
    a(f'v_lshrrev_b32 v{g_}, 4, v{vLane}')
    a(f'v_lshlrev_b32 v{vLaneX}, 3, v{i_}')
    a(f'v_lshrrev_b32 v{210}, 1, v{g_}')
    a(f'v_and_b32 v{211}, 1, v{i_}')
    a(f'v_cmp_eq_u32 vcc, v{210}, v{211}')
    a(f'v_and_b32 v{212}, 1, v{g_}')
    a(f'v_lshlrev_b32 v{212}, 4, v{212}')
    a(f'v_mov_b32 v{213}, 2.0')
    a(f'v_cndmask_b32 v{vLaneMask}, v{213}, v{212}, vcc')
    a(f'v_lshlrev_b32 v{vRecA}, 4, v{g_}')
    a(f'v_add_u32 v{vRecA}, {L_RECA}, v{vRecA}')
    a(f'v_lshrrev_b32 v{vRecB}, 1, v{i_}')
    a(f'v_lshlrev_b32 v{vRecB}, 2, v{vRecB}')
    a(f'v_add_u32 v{vRecB}, {L_RECB}, v{vRecB}')
    a(f's_mul_i32 s{sNode}, s{sWave}, {4*PS}')
    a(f's_add_u32 s{sNode}, s{sNode}, {L_P}')
    a(f'v_mul_u32_u24 v{vPW}, {PS}, v{g_}')
    a(f'v_add3_u32 v{vPW}, v{vPW}, v{vLaneX}, s{sNode}')
    a(f'v_lshrrev_b32 v{210}, 2, v{i_}')
    a(f'v_mul_u32_u24 v{vPR0}, {PS}, v{210}')
    a(f'v_lshlrev_b32 v{211}, 4, v{g_}')
    a(f'v_add3_u32 v{vPR0}, v{vPR0}, v{211}, s{sNode}')
    a(f'v_and_b32 v{211}, 3, v{i_}')
    a(f'v_min_u32 v{212}, 2, v{211}')
    a(f'v_mul_u32_u24 v{212}, {PJS}, v{212}')
    a(f'v_add_u32 v{212}, 256, v{212}')
    a(f'v_add_u32 v{vPR1}, v{vPR0}, v{212}')
    a(f'v_lshlrev_b32 v{vWR}, 4, v{vLane}')
    a(f'v_add_u32 v{vWR}, {L_W}, v{vWR}')
    a(f'v_lshlrev_b32 v{212}, 5, v{g_}')
    a(f'v_lshl_add_u32 v{vOut0}, v{211}, 3, v{212}')
    a(f'v_lshl_add_u32 v{vOut1}, v{211}, 7, v{212}')
    a(f'v_add_u32 v{vOut1}, 128, v{vOut1}')
    a(f'v_cmp_eq_u32 vcc, 3, v{211}')
    a(f'v_cndmask_b32 v{vOut1}, v{vOut1}, v{213}, vcc')
    a(f'v_lshlrev_b32 v{vOrd}, 2, v{210}')
    a(f'v_add_u32 v{vOrd}, {L_SORT}, v{vOrd}')
    a(f's_mov_b32 s{s512}, 512')
    a(f's_mov_b32 s{sHi}, 0xffff0000')
    a(f's_mul_i32 s{sNode}, s2, {NPB*512}')
    for m, pat in ((sM1, 0x22222222), (sM2, 0x44444444), (sM3, 0x88888888)):
        a(f's_mov_b32 s{m}, {pat}'); a(f's_mov_b32 s{m+1}, {pat}')

def prologue(a, opt):
    a(f's_cmp_ge_u32 s2, {NB}')
    a('s_cbranch_scc1 K2_end2' if opt.get('ts') else 's_cbranch_scc1 K2_end')
    if opt.get('xcdmap', 1):
        a('s_and_b32 s3, s2, 7')
        a('s_lshl_b32 s3, s3, 5')
        a('s_lshr_b32 s2, s2, 3')
        a('s_add_u32 s2, s2, s3')
    a('s_load_dwordx2 s[4:5], s[0:1], 0')
    a('s_load_dwordx2 s[8:9], s[0:1], 16')
    a('s_load_dwordx2 s[12:13], s[0:1], 72')
    a('s_load_dwordx2 s[16:17], s[0:1], 88')
    a(f'v_mov_b32 v{vTid}, v0')
    a(f'v_and_b32 v{vLane}, 63, v0')
    a(f'v_lshrrev_b32 v{vT}, 6, v0')
    a(f'v_lshlrev_b32 v{vT+1}, 2, v0')
    a(f'v_readfirstlane_b32 s{sWave}, v{vT}')
    if opt.get('ts'): a('v_mov_b32 v255, 0')
    stamp(a, opt, 0, 255)
    a(f'v_mov_b32 v200, 0')
    a(f'v_cmp_gt_u32 vcc, 336, v{vTid}')
    a(f's_and_saveexec_b64 s[{sSave}:{sSave+1}], vcc')
    a('s_cbranch_execz K2_z')
    a(f'ds_write_b32 v{vT+1}, v200')
    a('K2_z:')
    a(f's_mov_b64 exec, s[{sSave}:{sSave+1}]')
    a('v_mov_b32 v200, 0xffff'); a('v_mov_b32 v201, 0'); a('v_mov_b32 v202, 0xffff'); a('v_mov_b32 v203, 0')
    for k in range(4): a(f'v_mov_b32 v{204+k}, 2.0')
    a(f'v_lshlrev_b32 v{vT+2}, 4, v{vTid}')
    for k in range(4): a(f'ds_write_b128 v{vT+2}, v[200:203] offset:{L_RECA + k*8192}')
    for k in range(2): a(f'ds_write_b128 v{vT+2}, v[204:207] offset:{L_RECB + k*8192}')
    a(f'v_lshrrev_b32 v{vT+3}, 4, v{vTid}')
    a('s_lshl_b32 s3, s2, 2')
    a(f'v_lshl_add_u32 v{vT+4}, v{vT+3}, 10, s3')
    a(f'v_lshlrev_b32 v{vT+5}, 4, v{vLane}')
    a('s_waitcnt lgkmcnt(0)')
    srd(a, 4, 0 if opt.get('nomem') else N * 512); srd(a, 8, 0 if opt.get('nomem') or opt.get('noea') else E * 32); srd(a, 12, N * 512); srd(a, 16, WS_USED)
    TB = 124
    for k in range(7):
        a(f's_mov_b32 s{sU+k}, {TAB_OFF + k*32768}')
    for k in range(7):
        a(f'buffer_load_dword v{TB+k}, v{vT+4}, s[16:19], s{sU+k} offen')
    lane_consts(a, opt)
    vJ = 152; vG = 153; CN = 154; AD = 161
    a(f'v_and_b32 v{vJ}, 15, v{vTid}')
    a(f'v_mul_u32_u24 v{vG}, {CH*12}, v{vT+3}')
    a(f'v_add_u32 v168, 16, v{vJ}')
    a(f'v_add_u32 v169, 32, v{vJ}')
    a(f's_mov_b64 s[{sOvf}:{sOvf+1}], 0')
    for k in range(7): a(f's_mov_b32 s{sU+k}, {REC_OFF + k*32*CH*12}')
    a('s_waitcnt vmcnt(0)')
    stamp(a, opt, 1, 255)
    for k in range(7):
        a(f'v_lshrrev_b32 v{CN+k}, 16, v{TB+k}')
        a(f'v_and_b32 v{AD+k}, 0xffff, v{TB+k}')
        a(f'v_add_u32 v{AD+k}, v{AD+k}, v{vJ}')
        a(f'v_mad_u32_u24 v{AD+k}, v{AD+k}, 12, v{vG}')
        a(f'v_cmp_gt_u32 s[{sMask+2*k}:{sMask+2*k+1}], v{CN+k}, v{vJ}')
        a(f'v_cmp_gt_u32 s[{sMask+14+2*k}:{sMask+14+2*k+1}], v{CN+k}, v168')
        a(f'v_cmp_gt_u32 s[{sMask+28+2*k}:{sMask+28+2*k+1}], v{CN+k}, v169')
        a(f'v_cmp_lt_u32 vcc, 48, v{CN+k}')
        a(f's_or_b64 s[{sOvf}:{sOvf+1}], s[{sOvf}:{sOvf+1}], vcc')
    def rec_loads(beta):
        for k in range(7):
            u = beta*7 + k
            a(f's_mov_b64 exec, s[{sMask+2*u}:{sMask+2*u+1}]')
            a(f'buffer_load_dwordx3 v[{4*u}:{4*u+2}], v{AD+k}, s[16:19], s{sU+k} offen offset:{beta*192}')
        a('s_mov_b64 exec, -1')
    rec_loads(0); rec_loads(1)
    sB2 = sU + 12
    a(f's_mov_b64 s[{sB2}:{sB2+1}], 0')
    for k in range(7):
        a(f's_or_b64 s[{sB2}:{sB2+1}], s[{sB2}:{sB2+1}], s[{sMask+28+2*k}:{sMask+28+2*k+1}]')
    pipe = opt.get('pipe', 0)
    if pipe:
        pass
    else:
        a('s_cbranch_scc0 K2_nb2a')
        rec_loads(2)
        a('K2_nb2a:')
    IMG = 124
    a(f'v_lshlrev_b32 v{vT+5}, 4, v{vLane}')
    for u in range(7):
        a(f's_add_u32 s{sU+u}, s{sWave}, {8*u}')
        if u == 6:
            a(f's_min_u32 s{sU+u}, s{sU+u}, 49')
        a(f's_lshl_b32 s{sU+u}, s{sU+u}, 10')
        a(f's_add_u32 s{sT}, s{sU+u}, {WIMG_OFF}')
        a(f'buffer_load_dwordx4 {q4(IMG+4*u)}, v{vT+5}, s[16:19], s{sT} offen')
    if opt.get('tlb'):
        a(f'v_mul_u32_u24 v208, {opt.get("tlbs", 400000)}, v{vLane}')
        a('buffer_load_dword v209, v208, s[4:7], 0 offen')
        a('buffer_load_dword v210, v208, s[8:11], 0 offen')
    a('s_waitcnt lgkmcnt(0)')
    a('s_barrier')
    a(f's_cmp_eq_u64 s[{sOvf}:{sOvf+1}], 0')
    a('s_cbranch_scc1 K2_novf')
    a(f'v_mov_b32 v{vT}, {L_FLAG}')
    a(f'v_mov_b32 v{vT+1}, 1')
    a(f'ds_write_b32 v{vT}, v{vT+1}')
    a('K2_novf:')
    a(f'v_mov_b32 v170, 1')
    a(f's_waitcnt vmcnt({20 if pipe else 7})')
    stamp(a, opt, 2, 255)
    EAP = 184
    npf = opt.get('eapf', 1)
    if npf:
        a(f'v_cmp_gt_u32 vcc, {opt.get("earows", 512)}, v{vTid}')
        a(f's_and_b64 exec, vcc, s[{sMask}:{sMask+1}]')
        a(f'v_and_b32 v183, 0xffffff, v2')
        a(f'v_lshlrev_b32 v183, 5, v183')
        a(f'buffer_load_dwordx4 {q4(EAP)}, v183, s[8:11], 0 offen nt')
        a(f'buffer_load_dwordx4 {q4(EAP+4)}, v183, s[8:11], 0 offen offset:16 nt')
        a('s_mov_b64 exec, -1')
        if npf > 1:
            a(f'v_cmp_gt_u32 vcc, {EA2_ROWS}, v{vTid}')
            a(f's_and_b64 s[{sEa2}:{sEa2+1}], vcc, s[{sMask+2}:{sMask+3}]')
            a(f's_mov_b64 exec, s[{sEa2}:{sEa2+1}]')
            a(f'v_and_b32 v182, 0xffffff, v6')
            a(f'v_lshlrev_b32 v182, 5, v182')
            a(f'buffer_load_dwordx4 {q4(EAP+8)}, v182, s[8:11], 0 offen nt')
            a(f'buffer_load_dwordx4 {q4(EAP+12)}, v182, s[8:11], 0 offen offset:16 nt')
            a('s_mov_b64 exec, -1')
    def hist(beta):
        for k in range(7):
            u = beta*7 + k
            if pipe and 0 < u < 14: a(f's_waitcnt vmcnt({13 - u + 7 + 2*npf})')
            a(f's_mov_b64 exec, s[{sMask+2*u}:{sMask+2*u+1}]')
            a(f'v_lshrrev_b32 v{200+k}, 22, v{4*u+2}')
            a(f'v_and_b32 v{200+k}, 0x3fc, v{200+k}')
            a(f'ds_add_rtn_u32 v{4*u+3}, v{200+k}, v170 offset:{L_CNT}')
        a('s_mov_b64 exec, -1')
    hist(0); hist(1)
    a(f's_cmp_eq_u64 s[{sB2}:{sB2+1}], 0')
    a('s_cbranch_scc1 K2_nb2b')
    if pipe:
        for k in range(7):
            u = 14 + k
            a(f'v_add_u32 v{208+k}, {REC_OFF + k*32*CH*12}, v{AD+k}')
            a(f's_mov_b64 exec, s[{sMask+2*u}:{sMask+2*u+1}]')
            a(f'buffer_load_dwordx3 v[{4*u}:{4*u+2}], v{208+k}, s[16:19], 0 offen offset:384')
            a('s_mov_b64 exec, -1')
        a('s_waitcnt vmcnt(0)')
    hist(2)
    a('K2_nb2b:')
    a('s_waitcnt lgkmcnt(0)')
    a('s_barrier')
    stamp(a, opt, 3, 255)
    a(f's_waitcnt vmcnt({2*npf})')
    a(f'v_lshlrev_b32 v{vT+5}, 4, v{vLane}')
    a(f's_mov_b32 s{sU+8}, {L_P}')
    a(f's_mov_b32 s{sU+9}, {L_W - 10240}')
    for u in range(7):
        a(f's_cmp_lt_u32 s{sU+u}, 10240')
        a(f's_cselect_b32 s{sT}, s{sU+8}, s{sU+9}')
        a(f's_add_u32 s{sT}, s{sT}, s{sU+u}')
        a(f'v_add_u32 v{vT+6}, s{sT}, v{vT+5}')
        a(f'ds_write_b128 v{vT+6}, {q4(124+4*u)}')
    a(f'v_mov_b32 v{vT}, {L_FLAG}')
    a(f'ds_read_b32 v{vT+1}, v{vT}')
    a('s_waitcnt lgkmcnt(0)')
    a(f'v_readfirstlane_b32 s{sT}, v{vT+1}')
    a(f's_cmp_lg_u32 s{sT}, 0')
    a('s_cbranch_scc1 K2_slow')
    a(f's_cmp_lg_u32 s{sWave}, 0')
    a('s_cbranch_scc1 K2_p6')
    DG = 152; KY = 156; RK = 160; PO = 164; SO = 168
    a(f'v_lshlrev_b32 v{vT}, 4, v{vLane}')
    a(f'ds_read_b128 {q4(DG)}, v{vT} offset:{L_CNT}')
    a(f'v_cmp_gt_u32 vcc, 49, v{vLane}')
    a(f's_mov_b64 s[{sU}:{sU+1}], vcc')
    a(f'v_lshlrev_b32 v{vT+1}, 2, v{vLane}')
    for k in range(4): a(f'v_mov_b32 v{KY+k}, 0'); a(f'v_mov_b32 v{RK+k}, 0')
    a('s_waitcnt lgkmcnt(0)')
    a(f's_mov_b64 exec, s[{sU}:{sU+1}]')
    for k in range(4):
        a(f'v_min_u32 v{KY+k}, 63, v{DG+k}')
        a(f'v_sub_u32 v{KY+k}, 63, v{KY+k}')
        a(f'v_lshlrev_b32 v{KY+k}, 2, v{KY+k}')
        a(f'ds_add_rtn_u32 v{RK+k}, v{KY+k}, v170 offset:{L_BINS}')
    a('s_mov_b64 exec, -1')
    a(f'ds_read_b32 v{vT+2}, v{vT+1} offset:{L_BINS}')
    a('s_waitcnt lgkmcnt(0)')
    a(f'v_mov_b32 v{vT+3}, v{vT+2}')
    wave_scan(a, vT+3)
    a(f'v_sub_u32 v{vT+3}, v{vT+3}, v{vT+2}')
    for k in range(4): a(f'ds_bpermute_b32 v{PO+k}, v{KY+k}, v{vT+3}')
    a('s_waitcnt lgkmcnt(0)')
    a(f's_mov_b64 exec, s[{sU}:{sU+1}]')
    for k in range(4):
        a(f'v_add_u32 v{PO+k}, v{PO+k}, v{RK+k}')
        a(f'v_add_u32 v{vT+4}, {k}, v{vT+1}')
        a(f'v_lshl_or_b32 v{vT+4}, v{DG+k}, 8, v{vT+4}')
        a(f'v_lshlrev_b32 v{vT+5}, 2, v{PO+k}')
        a(f'ds_write_b32 v{vT+5}, v{vT+4} offset:{L_SORT}')
    a('s_mov_b64 exec, -1')
    a(f'ds_read_b128 {q4(SO)}, v{vT} offset:{L_SORT}')
    a(f'v_cmp_gt_u32 vcc, 49, v{vLane}')
    a('s_waitcnt lgkmcnt(0)')
    a(f'v_max3_u32 v{SO}, v{SO}, v{SO+1}, v{SO+2}')
    a(f'v_max_u32 v{SO}, v{SO}, v{SO+3}')
    a(f'v_lshrrev_b32 v{SO}, 8, v{SO}')
    a(f'v_add_u32 v{SO}, 1, v{SO}')
    a(f'v_lshrrev_b32 v{SO}, 1, v{SO}')
    a(f'v_max_u32 v{SO}, 1, v{SO}')
    a(f'v_cndmask_b32 v{SO}, 0, v{SO}, vcc')
    a(f'v_mov_b32 v{SO+1}, v{SO}')
    wave_scan(a, SO+1)
    a(f'v_sub_u32 v{SO+1}, v{SO+1}, v{SO}')
    a(f'v_min_u32 v{SO+2}, 0xffff, v{SO+1}')
    a(f'v_min_u32 v{SO+3}, 0xffff, v{SO}')
    a(f'v_lshl_or_b32 v{SO+2}, v{SO+3}, 16, v{SO+2}')
    a(f'ds_write_b32 v{vT+1}, v{SO+2} offset:{L_QI}')
    for k in range(4):
        a(f'v_and_b32 v{KY+k}, 0xfc, v{PO+k}')
        a(f'ds_bpermute_b32 v{RK+k}, v{KY+k}, v{SO+1}')
    a('s_waitcnt lgkmcnt(0)')
    for k in range(4):
        a(f'v_and_b32 v{PO+k}, 3, v{PO+k}')
        a(f'v_lshlrev_b32 v{PO+k}, 1, v{PO+k}')
        a(f'v_lshl_add_u32 v{RK+k}, v{RK+k}, 3, v{PO+k}')
    a(f's_mov_b64 exec, s[{sU}:{sU+1}]')
    a(f'ds_write_b128 v{vT}, {q4(RK)} offset:{L_BASE}')
    a('s_mov_b64 exec, -1')
    a('K2_p6:')
    a('s_waitcnt lgkmcnt(0)')
    a('s_barrier')
    stamp(a, opt, 4, 255)
    a(f'v_lshlrev_b32 v{vT+1}, 2, v{vLane}')
    a(f'ds_read_b32 v{vT+2}, v{vT+1} offset:{L_QI}')
    a('s_waitcnt lgkmcnt(0)')
    a(f'v_and_b32 v{vT+3}, 0xffff, v{vT+2}')
    a(f'v_lshrrev_b32 v{vSteps}, 16, v{vT+2}')
    a(f'v_mov_b32 v226, v{vT+3}')
    a(f'v_readlane_b32 s{sT}, v{vT+3}, 63')
    if opt.get('ts'): a(f'v_writelane_b32 v255, s{sT}, 9')
    a(f's_cmp_gt_u32 s{sT}, {NULLSTEP}')
    a('s_cbranch_scc1 K2_slow')
    if opt.get('thr'):
        a(f's_sub_i32 s{sThr}, s{sT}, {opt.get("t0", 401)}')
        a(f's_mul_i32 s{sThr}, s{sThr}, {opt.get("tmul", 4)}')
        a(f's_ashr_i32 s{sThr}, s{sThr}, 4')
        a(f's_cmp_lt_i32 s{sWave}, s{sThr}')
        a(f's_cselect_b32 s{sThr}, 0, 1')
    def scat(beta):
        for k in range(7):
            u = beta*7 + k
            a(f's_mov_b64 exec, s[{sMask+2*u}:{sMask+2*u+1}]')
            a(f'v_lshrrev_b32 v{161+k}, 22, v{4*u+2}')
            a(f'v_and_b32 v{161+k}, 0x3fc, v{161+k}')
            a(f'ds_read_b32 v{176+k}, v{161+k} offset:{L_BASE}')
        for k in range(7):
            u = beta*7 + k
            a(f's_mov_b64 exec, s[{sMask+2*u}:{sMask+2*u+1}]')
            a(f'v_lshrrev_b32 v{vT}, 1, v{4*u+3}')
            a(f'v_and_b32 v{vT+1}, 1, v{4*u+3}')
            if u == 0 and npf and opt.get('earows', 512) >= 512:
                a(f'v_lshlrev_b32 v{vT+2}, 5, v{vTid}')
                a(f'v_add_u32 v{vT+2}, {0x80000000 + L_EA}, v{vT+2}')
            elif u == 0 and npf:
                a(f'v_and_b32 v{vT+2}, 0xffffff, v{4*u+2}')
                a(f'v_lshlrev_b32 v{vT+2}, 5, v{vT+2}')
                a(f'v_lshlrev_b32 v{vT+5}, 5, v{vTid}')
                a(f'v_add_u32 v{vT+5}, {0x80000000 + L_EA}, v{vT+5}')
                a(f'v_cmp_gt_u32 vcc, {opt["earows"]}, v{vTid}')
                a(f'v_cndmask_b32 v{vT+2}, v{vT+2}, v{vT+5}, vcc')
            else:
                a(f'v_and_b32 v{vT+2}, 0xffffff, v{4*u+2}')
                a(f'v_lshlrev_b32 v{vT+2}, 5, v{vT+2}')
                if u == 1 and npf > 1:
                    a(f'v_lshlrev_b32 v{vT+5}, 5, v{vTid}')
                    a(f'v_add_u32 v{vT+5}, {0x80000000 + L_EA + 16384}, v{vT+5}')
                    a(f'v_cmp_gt_u32 vcc, {EA2_ROWS}, v{vTid}')
                    a(f'v_cndmask_b32 v{vT+2}, v{vT+2}, v{vT+5}, vcc')
            a(f's_waitcnt lgkmcnt({min(15, 6 - k + 2*k)})') if False else None
            if k == 0: a('s_waitcnt lgkmcnt(0)')
            a(f'v_lshl_add_u32 v{vT}, v{vT}, 3, v{176+k}')
            a(f'v_add_u32 v{vT}, v{vT}, v{vT+1}')
            a(f'v_lshlrev_b32 v{vT+3}, 3, v{vT}')
            a(f'v_lshlrev_b32 v{vT+4}, 2, v{vT}')
            a(f'ds_write_b64 v{vT+3}, v[{4*u}:{4*u+1}] offset:{L_RECA}')
            a(f'ds_write_b32 v{vT+4}, v{vT+2} offset:{L_RECB}')
        a('s_mov_b64 exec, -1')
    scat(0); scat(1)
    a(f's_cmp_eq_u64 s[{sB2}:{sB2+1}], 0')
    a('s_cbranch_scc1 K2_nb2c')
    scat(2)
    a('K2_nb2c:')
    a(f'v_lshlrev_b32 v{vT}, 4, v{vLane}')
    a(f'v_add_u32 v{vT}, {L_P}, v{vT}')
    for t in range(10): a(f'ds_read_b128 {q4(RAD+4*t)}, v{vT} offset:{t*1024}')
    if npf:
        a(f'v_lshlrev_b32 v{vT+1}, 5, v{vTid}')
        a(f'v_add_u32 v{vT+1}, {L_EA}, v{vT+1}')
        a('s_waitcnt vmcnt(0)')
        a(f'ds_write_b128 v{vT+1}, {q4(EAP)}')
        a(f'ds_write_b128 v{vT+1}, {q4(EAP+4)} offset:16')
        if npf > 1:
            a(f's_mov_b64 exec, s[{sEa2}:{sEa2+1}]')
            a(f'ds_write_b128 v{vT+1}, {q4(EAP+8)} offset:16384')
            a(f'ds_write_b128 v{vT+1}, {q4(EAP+12)} offset:16400')
            a('s_mov_b64 exec, -1')
    a('s_waitcnt lgkmcnt(0)')
    a('s_barrier')
    stamp(a, opt, 5, 255)
    if opt.get('ts'):
        a('s_memtime s[98:99]'); a('s_waitcnt lgkmcnt(0)'); a('v_writelane_b32 v255, s98, 12')

_uid = [0]
DEFER = []
vNa = 251; vNb = 252; vLow = 253; sAct = 44
def rec_read(a, sg):
    _uid[0] += 1; u = _uid[0]
    a(f's_cmp_lg_u32 s{sPfT}, s{sPfEnd}')
    a(f's_cbranch_scc0 K2_sw{u}')
    a(f'K2_have{u}:')
    a(f's_add_u32 s{sPfT}, s{sPfT}, 1')
    a(f's_cmp_eq_u32 s{sPfT}, s{sPfEnd}')
    a(f's_cselect_b32 s{sTag+sg}, s{sPfQ}, -1')
    a(f'K2_go{u}:')
    a(f'ds_read_b128 {q4(YP+4*sg)}, v{vNa}')
    a(f'ds_read_b32 v{vEN}, v{vNb}')
    a(f'v_add_u32 v{vNa}, 64, v{vNa}')
    a(f'v_add_u32 v{vNb}, 32, v{vNb}')
    def cold(a, u=u, sg=sg):
        a(f'K2_sw{u}:')
        a(f'v_readfirstlane_b32 s{sNQ}, v{vGrab}')
        a(f's_add_u32 s{sNQ}, s{sNQ}, 8')
        a(f's_cmp_ge_u32 s{sNQ}, 49')
        a(f's_cbranch_scc1 K2_exh{u}')
        a(f's_mov_b32 s{sPfQ}, s{sNQ}')
        a(f'v_readlane_b32 s{sPfT}, v{vSBase}, s{sNQ}')
        a(f'v_readlane_b32 s{sT}, v{vSteps}, s{sNQ}')
        a('s_mov_b64 exec, 1')
        a(f'ds_add_rtn_u32 v{vGrab}, v{vCtr}, v{vOne}')
        a('s_mov_b64 exec, -1')
        a(f's_add_u32 s{sPfEnd}, s{sPfT}, s{sT}')
        a(f's_lshl_b32 s{sOffA}, s{sPfT}, 6')
        a(f's_lshr_b32 s{sOffB}, s{sOffA}, 1')
        a(f'v_add_u32 v{vNa}, s{sOffA}, v{vRecA}')
        a(f'v_add_u32 v{vNb}, s{sOffB}, v{vRecB}')
        a(f's_branch K2_have{u}')
        a(f'K2_exh{u}:')
        a(f'v_add_u32 v{vNa}, {NULLSTEP*64}, v{vRecA}')
        a(f'v_add_u32 v{vNb}, {NULLSTEP*32}, v{vRecB}')
        a(f's_mov_b32 s{sTag+sg}, -2')
        a(f's_branch K2_go{u}')
    DEFER.append(cold)

def grab_result(a):
    pass

def issue_loads(a, sg, opt, part=None):
    ent = POL[opt.get('eapol', 4)]
    if opt.get('noload'): return
    xp = POL[opt.get('xpol', 0)]
    if part in (None, 0):
        a(f'v_mad_u32_u16 v{vXA0}, v{YP+4*sg}, s{s512}, v{vLaneX}')
        a(f'v_mad_u32_u16 v{vXA1}, v{YP+4*sg+2}, s{s512}, v{vLaneX}')
        a(f'v_or_b32 v{vEA}, v{vEN}, v{vLaneMask}')
        if opt.get('eapf', 1):
            a(f'v_cmp_gt_i32 vcc, 0, v{vEN}')
            a(f'v_and_b32 v{vTa}, v{vLow}, v{vEA}')
            a(f's_andn2_b64 exec, s[{sAct}:{sAct+1}], vcc')
            a(f'buffer_load_dwordx4 {q4(AS+4*sg)}, v{vEA}, s[8:11], 0 offen{ent}')
            a(f's_and_b64 exec, s[{sAct}:{sAct+1}], vcc')
            a(f'ds_read_b128 {q4(AS+4*sg)}, v{vTa}')
            a('s_mov_b64 exec, -1')
        else:
            a(f'buffer_load_dwordx4 {q4(AS+4*sg)}, v{vEA}, s[8:11], 0 offen{ent}')
    for s, va in ((0, vXA0), (1, vXA1)):
        if part is not None and part != s: continue
        for v in range(4):
            a(f'buffer_load_dwordx2 {pr(XS+16*sg+8*s+2*v)}, v{va}, s[4:7], 0 offen offset:{128*v}{xp}')

def Fp(v, h): return F + 8*h + 2*v
def Rp(p, h, s): return R + (2*p + h)*4 + 2*s
def Ap(f, h): return ACC + 4*f + 2*h

def unpack_ops(sg, s):
    ops = []
    for v in range(4):
        for h in range(2):
            src = XS + 16*sg + 8*s + 2*v + h
            ops.append(f'v_lshlrev_b32 v{Fp(v,h)}, 16, v{src}')
            ops.append(f'v_and_b32 v{Fp(v,h)+1}, v{vHi}, v{src}')
    return ops

def Yreg(s, j):
    if OPT.get('pk', 1) and OPT.get('D', 2) == 3:
        return (220, 222, 224, 226, 250, 252)[3*s + j]
    return (Y + 2*(3*s + j)) if OPT.get('pk', 1) else (Y + 3*s + j)

def compute_slot_pk(a, s):
    def fma(d, x, y): a(f'v_pk_fma_f32 {pr(d)}, {pr(x)}, {pr(y)}, {pr(d)}')
    def mul(d, x, y): a(f'v_pk_mul_f32 {pr(d)}, {pr(x)}, {pr(y)}')
    def fmaY(d, x, j, neg=False):
        n = ' neg_lo:[0,1,0] neg_hi:[0,1,0]' if neg else ''
        a(f'v_pk_fma_f32 {pr(d)}, {pr(x)}, {pr(Yreg(s, j))}, {pr(d)} op_sel:[0,0,0] op_sel_hi:[1,0,1]{n}')
    def mulY(d, x, j): a(f'v_pk_mul_f32 {pr(d)}, {pr(x)}, {pr(Yreg(s, j))} op_sel:[0,0] op_sel_hi:[1,0]')
    dot = lambda h: TMP + 2*h
    t = lambda h: TMP + 4 + 2*h
    seq = [
        lambda h: fma(Ap(0,h), Fp(0,h), Rp(0,h,s)),
        lambda h: mulY(dot(h), Fp(1,h), 0),
        lambda h: mul(t(h), Fp(0,h), Rp(2,h,s)),
        lambda h: fmaY(dot(h), Fp(2,h), 1),
        lambda h: fma(Ap(5,h), Fp(1,h), Rp(3,h,s)),
        lambda h: fmaY(dot(h), Fp(3,h), 2),
        lambda h: fmaY(Ap(2,h), t(h), 0),
        lambda h: fma(Ap(6,h), Fp(2,h), Rp(3,h,s)),
        lambda h: fmaY(Ap(3,h), t(h), 1),
        lambda h: fma(Ap(7,h), Fp(3,h), Rp(3,h,s)),
        lambda h: fmaY(Ap(4,h), t(h), 2),
        lambda h: fma(Ap(1,h), dot(h), Rp(1,h,s)),
        lambda h: mul(Fp(1,h), Fp(1,h), Rp(4,h,s)),
        lambda h: mul(Fp(2,h), Fp(2,h), Rp(4,h,s)),
        lambda h: mul(Fp(3,h), Fp(3,h), Rp(4,h,s)),
        lambda h: fmaY(Ap(9,h), Fp(1,h), 2),
        lambda h: fmaY(Ap(10,h), Fp(2,h), 0),
        lambda h: fmaY(Ap(8,h), Fp(3,h), 1),
        lambda h: fmaY(Ap(10,h), Fp(1,h), 1, True),
        lambda h: fmaY(Ap(8,h), Fp(2,h), 2, True),
        lambda h: fmaY(Ap(9,h), Fp(3,h), 0, True),
    ]
    for op in seq:
        op(0); op(1)

def compute_slot(a, s):
    if OPT.get('pk', 1): return compute_slot_pk(a, s)
    Yr = (Y + 3*s, Y + 3*s + 1, Y + 3*s + 2)
    ch = [(h, p) for h in range(2) for p in range(2)]
    Fv = lambda v, c: Fp(v, c[0]) + c[1]
    Rv = lambda p, c: Rp(p, c[0], s) + c[1]
    Av = lambda f, c: Ap(f, c[0]) + c[1]
    dot = lambda c: TMP + 2*c[0] + c[1]
    t = lambda c: TMP + 4 + 2*c[0] + c[1]
    fmac = lambda d, x, y: a(f'v_fmac_f32 v{d}, v{x}, v{y}')
    mul = lambda d, x, y: a(f'v_mul_f32 v{d}, v{x}, v{y}')
    fms = lambda d, x, y: a(f'v_fma_f32 v{d}, -v{x}, v{y}, v{d}')
    seq = [
        lambda c: fmac(Av(0,c), Fv(0,c), Rv(0,c)),
        lambda c: mul(dot(c), Fv(1,c), Yr[0]),
        lambda c: mul(t(c), Fv(0,c), Rv(2,c)),
        lambda c: fmac(dot(c), Fv(2,c), Yr[1]),
        lambda c: fmac(Av(5,c), Fv(1,c), Rv(3,c)),
        lambda c: fmac(dot(c), Fv(3,c), Yr[2]),
        lambda c: fmac(Av(2,c), t(c), Yr[0]),
        lambda c: fmac(Av(6,c), Fv(2,c), Rv(3,c)),
        lambda c: fmac(Av(3,c), t(c), Yr[1]),
        lambda c: fmac(Av(7,c), Fv(3,c), Rv(3,c)),
        lambda c: fmac(Av(4,c), t(c), Yr[2]),
        lambda c: fmac(Av(1,c), dot(c), Rv(1,c)),
        lambda c: mul(Fv(1,c), Fv(1,c), Rv(4,c)),
        lambda c: mul(Fv(2,c), Fv(2,c), Rv(4,c)),
        lambda c: mul(Fv(3,c), Fv(3,c), Rv(4,c)),
        lambda c: fmac(Av(9,c), Fv(1,c), Yr[2]),
        lambda c: fmac(Av(10,c), Fv(2,c), Yr[0]),
        lambda c: fmac(Av(8,c), Fv(3,c), Yr[1]),
        lambda c: fms(Av(10,c), Fv(1,c), Yr[1]),
        lambda c: fms(Av(8,c), Fv(2,c), Yr[2]),
        lambda c: fms(Av(9,c), Fv(3,c), Yr[0]),
    ]
    for op in seq:
        for c in ch: op(c)

def step(a, sg, D, opt):
    a(f's_mov_b32 s{sCur}, s{sTag+sg}')
    for s in range(2):
        a(f'v_and_b32 v{Yreg(s,0)}, v{vHi}, v{YP+4*sg+2*s}')
        a(f'v_lshlrev_b32 v{Yreg(s,1)}, 16, v{YP+4*sg+2*s+1}')
        a(f'v_and_b32 v{Yreg(s,2)}, v{vHi}, v{YP+4*sg+2*s+1}')
    rec_read(a, sg)
    a(f's_waitcnt vmcnt({9*(D-1)})')
    if opt.get('thr'):
        _uid[0] += 1
        a(f's_cmp_eq_u32 s{sThr}, 0')
        a(f's_cbranch_scc1 K2_nt{_uid[0]}')
        a(f's_waitcnt vmcnt({9*(D-2)})')
        a(f'K2_nt{_uid[0]}:')
    fill = unpack_ops(sg, 0)
    mf = []
    for p in (0, 2, 3, 1, 4):
        for h in range(2):
            mf.append(f'v_mfma_f32_16x16x32_bf16 {q4(R+(2*p+h)*4)}, {q4(AS+4*sg)}, {q4(RAD+(2*p+h)*4)}, 0')
    if opt.get('nomfma'): mf = []
    if opt.get('mfb2b', 1):
        for m in mf: a(m)
        for o in fill: a(o)
    else:
        fi = 0
        for k, m in enumerate(mf):
            a(m)
            for _ in range(2):
                if fi < len(fill): a(fill[fi]); fi += 1
        while fi < len(fill): a(fill[fi]); fi += 1
    if opt.get('early', 0):
        a('s_waitcnt lgkmcnt(0)')
        if opt.get('prio', 1): a('s_setprio 1')
        issue_loads(a, sg, opt, 0)
        if opt.get('prio', 1): a('s_setprio 0')
        if not opt.get('nocomp'): compute_slot(a, 0)
        for o in unpack_ops(sg, 1): a(o)
        if opt.get('prio', 1): a('s_setprio 1')
        issue_loads(a, sg, opt, 1)
        if opt.get('prio', 1): a('s_setprio 0')
        if not opt.get('nocomp'): compute_slot(a, 1)
        return
    if not opt.get('nocomp'):
        compute_slot(a, 0)
        for o in unpack_ops(sg, 1): a(o)
        compute_slot(a, 1)
    if opt.get('prio', 1): a('s_setprio 1')
    a('s_waitcnt lgkmcnt(0)')
    grab_result(a)
    issue_loads(a, sg, opt)
    if opt.get('prio', 1): a('s_setprio 0')

def featoff(f):
    if f < 2: return 128*f
    f -= 2; kind, j = f // 3, f % 3
    return 256 + PJS*j + 128*kind

def flush(a, opt):
    if opt.get('noflush'): return
    D0 = R; D1 = R + 16; BR = R + 32; AR = F
    issued = ['(A operand read of the step just prefetched)'] if opt.get('eapf', 1) else []
    def ds(text):
        issued.append(text); a(text)
    state = {'done': 0}
    def wait_for(idx):
        n = len(issued) - 1 - idx
        if idx >= state['done']:
            a(f's_waitcnt lgkmcnt({min(n, 15)})'); state['done'] = len(issued) - min(n, 15)
    def room():
        if len(issued) - state['done'] >= 15: wait_for(len(issued) - 12)
    a(f's_lshl_b32 s{sT}, s{sCur}, 4')
    a(f'v_add_u32 v{vTa}, s{sT}, v{vOrd}')
    ds(f'ds_read_b32 v{vTb}, v{vTa}')
    for f in range(11):
        t0 = F + 2*(f % 8)
        a(f'v_cvt_pk_bf16_f32 v{t0}, v{ACC+4*f}, v{ACC+4*f+1}')
        a(f'v_cvt_pk_bf16_f32 v{t0+1}, v{ACC+4*f+2}, v{ACC+4*f+3}')
        room()
        ds(f'ds_write_b64 v{vPW}, {pr(t0)} offset:{featoff(f)}')
    groups = [(0, ks) for ks in range(4)] + [(1, ks) for ks in range(6)]
    idxA = {}; idxB = {}
    def loadB(gi):
        c, ks = groups[gi]
        room(); idxB[gi] = len(issued)
        ds(f'ds_read_b128 {q4(BR+4*(gi%2))}, v{vPR1 if c else vPR0} offset:{ks*64}')
    def loadA(u):
        gi, t = divmod(u, 4); c, ks = groups[gi]
        tile = (ks*4 + t) + (16 if c else 0)
        room(); idxA[u] = len(issued)
        ds(f'ds_read_b128 {q4(AR+4*(u%NA))}, v{vWR} offset:{tile*1024}')
    if NA == 8:
        loadB(0)
        for u in range(4): loadA(u)
        loadB(1)
        for u in range(4, 8): loadA(u)
        for k in range(44): a(f'v_mov_b32 v{ACC+k}, 0')
        for gi, (c, ks) in enumerate(groups):
            wait_for(max(idxA[4*gi+3], idxB[gi]))
            for t in range(4):
                u = 4*gi + t
                Dr = (D1 if c else D0) + 4*t
                cop = '0' if ks == 0 else q4(Dr)
                a(f'v_mfma_f32_16x16x32_bf16 {q4(Dr)}, {q4(AR+4*(u%NA))}, {q4(BR+4*(gi%2))}, {cop}')
            if gi + 2 < len(groups):
                loadB(gi + 2)
                for t in range(4): loadA(4*(gi+2) + t)
    else:
        loadB(0)
        for u in range(4): loadA(u)
        loadB(1)
        for u in range(4, NA): loadA(u)
        for k in range(44): a(f'v_mov_b32 v{ACC+k}, 0')
        for u in range(40):
            gi, t = divmod(u, 4); c, ks = groups[gi]
            wait_for(max(idxA[u], idxB[gi]))
            Dr = (D1 if c else D0) + 4*t
            cop = '0' if ks == 0 else q4(Dr)
            a(f'v_mfma_f32_16x16x32_bf16 {q4(Dr)}, {q4(AR+4*(u%NA))}, {q4(BR+4*(gi%2))}, {cop}')
            if t == 3 and gi + 2 < len(groups): loadB(gi + 2)
            if u + NA < 40: loadA(u + NA)
    SEL = F; G = F + 4; O1 = F + 8; O0 = TMP
    a(f'v_and_b32 v{vTb}, 0xff, v{vTb}')
    a(f'v_lshl_add_u32 v{vTb}, v{vTb}, 9, s{sNode}')
    a(f'v_add_u32 v{vTa}, v{vTb}, v{vOut0}')
    a(f'v_add_u32 v{vTb}, v{vTb}, v{vOut1}')
    SEL = D0
    for t, m in ((1, sM1), (2, sM2), (3, sM3)):
        a(f's_mov_b64 exec, s[{m}:{m+1}]')
        for r in range(4): a(f'v_mov_b32 v{SEL+r}, v{D0+4*t+r}')
    a('s_mov_b64 exec, -1')
    for r in range(4): a(f'v_mul_f32 v{G+r}, 0xbfb8aa3b, v{SEL+r}')
    for r in range(4): a(f'v_exp_f32 v{G+r}, v{G+r}')
    for r in range(4): a(f'v_add_f32 v{G+r}, 1.0, v{G+r}')
    for r in range(4): a(f'v_rcp_f32 v{G+r}, v{G+r}')
    a(f'v_cvt_pk_bf16_f32 v{O0}, v{SEL}, v{SEL+1}')
    a(f'v_cvt_pk_bf16_f32 v{O0+1}, v{SEL+2}, v{SEL+3}')
    a(f'buffer_store_dwordx2 {pr(O0)}, v{vTa}, s[12:15], 0 offen{POL[opt.get("stpol", 1)]}')
    for t in range(4):
        for r in range(4):
            a(f'v_mul_f32_dpp v{D1+4*t+r}, v{G+r}, v{D1+4*t+r} quad_perm:[{t},{t},{t},{t}] row_mask:0xf bank_mask:0xf')
    for t in range(4):
        a(f'v_cvt_pk_bf16_f32 v{O1+2*t}, v{D1+4*t}, v{D1+4*t+1}')
        a(f'v_cvt_pk_bf16_f32 v{O1+2*t+1}, v{D1+4*t+2}, v{D1+4*t+3}')
    a(f'buffer_store_dwordx4 {q4(O1)}, v{vTb}, s[12:15], 0 offen{POL[opt.get("stpol", 1)]}')
    a(f'buffer_store_dwordx4 {q4(O1+4)}, v{vTb}, s[12:15], 0 offen offset:16{POL[opt.get("stpol", 1)]}')

def slow_path(a, opt):
    WR = 100; AC = 0; FX = 12; AE = 16; AV = 24; RR = 40; T = 46; TB_ = 52; REC = 56; vL2 = 60; vZ = 61; vPB = 62; vL4 = 63
    G0 = 64; G1 = 65
    sW0 = 52; sW1 = 56; sWR = 48
    sN = 60; sC = 61; sCntS = 62; sStart = 63; sJ = 64; sMask_ = 66; sBit = 68; sD0 = 69; sD1 = 70; sD2 = 71
    sY0 = 72; sY1 = 73; sY2 = 74; sXo = 75; sEo = 76; sK = 77; sRow = 78; sPB = 79; sTmp = 80; sTmp2 = 81; sHiM = 82
    a('s_mov_b64 exec, -1')
    a(f's_load_dwordx2 s[{sWR}:{sWR+1}], s[0:1], 40')
    a(f's_load_dwordx2 s[{sW0}:{sW0+1}], s[0:1], 48')
    a(f's_load_dwordx2 s[{sW1}:{sW1+1}], s[0:1], 56')
    a(f'v_lshlrev_b32 v{vL2}, 1, v{vLane}')
    a(f'v_lshlrev_b32 v{vL4}, 2, v{vLane}')
    a(f'v_mov_b32 v{vZ}, 0')
    a(f's_mov_b32 s{sHiM}, 0xffff0000')
    a(f's_mul_i32 s{sPB}, s{sWave}, {4*PS}')
    a(f's_add_u32 s{sPB}, s{sPB}, {L_P}')
    a(f'v_add_u32 v{vPB}, s{sPB}, v{vL4}')
    a('s_waitcnt lgkmcnt(0)')
    srd(a, sWR, 16*320*2); srd(a, sW0, 128*64*2); srd(a, sW1, 192*64*2)
    for p in range(5):
        for d in range(16):
            off = (d*320 + 64*p)*2
            a(f's_mov_b32 s{sTmp}, {off}')
            a(f'buffer_load_ushort v{WR+16*p+d}, v{vL2}, s[{sWR}:{sWR+3}], s{sTmp} offen')
        a('s_waitcnt vmcnt(0)')
        for d in range(16): a(f'v_lshlrev_b32 v{WR+16*p+d}, 16, v{WR+16*p+d}')
    TBL = 3072
    for k in range(4):
        a(f'v_add_u32 v{T}, {64*k}, v{vLane}')
        a(f'v_cmp_gt_u32 vcc, {NCH}, v{T}')
        a(f'v_lshlrev_b32 v{T+1}, 10, v{T}')
        a(f's_lshl_b32 s{sTmp}, s2, 2')
        a(f's_add_u32 s{sTmp}, s{sTmp}, {TAB_OFF}')
        a(f'buffer_load_dword v{T+2}, v{T+1}, s[16:19], s{sTmp} offen')
        a('s_waitcnt vmcnt(0)')
        a(f'v_cndmask_b32 v{T+2}, 0, v{T+2}, vcc')
        a(f'ds_write_b32 v{vPB}, v{T+2} offset:{TBL + 256*k}')
    a(f's_mov_b32 s{sN}, s{sWave}')
    a('KS_node:')
    a(f's_cmp_ge_u32 s{sN}, {NPB}')
    a('s_cbranch_scc1 K2_end')
    a(f's_mul_i32 s{sRow}, s2, {NPB}')
    a(f's_add_u32 s{sRow}, s{sRow}, s{sN}')
    a(f's_cmp_ge_u32 s{sRow}, {N}')
    a('s_cbranch_scc1 K2_end')
    a(f's_lshl_b32 s{sRow}, s{sRow}, 9')
    for f in range(11): a(f'v_mov_b32 v{AC+f}, 0')
    a(f's_mov_b32 s{sC}, 0')
    a('KS_chunk:')
    a(f's_lshl_b32 s{sTmp}, s{sC}, 2')
    a(f's_add_u32 s{sTmp}, s{sTmp}, s{sPB}')
    a(f'v_mov_b32 v{T}, s{sTmp}')
    a(f'ds_read_b32 v{T+1}, v{T} offset:{TBL}')
    a('s_waitcnt lgkmcnt(0)')
    a(f'v_readfirstlane_b32 s{sTmp}, v{T+1}')
    a(f's_and_b32 s{sStart}, s{sTmp}, 0xffff')
    a(f's_lshr_b32 s{sCntS}, s{sTmp}, 16')
    a(f's_mul_i32 s{sTmp}, s{sC}, {CH}')
    a(f's_add_u32 s{sStart}, s{sStart}, s{sTmp}')
    a(f's_mov_b32 s{sJ}, 0')
    a('KS_batch:')
    a(f's_cmp_ge_u32 s{sJ}, s{sCntS}')
    a('s_cbranch_scc1 KS_chunk_next')
    a(f'v_add_u32 v{T}, s{sJ}, v{vLane}')
    a(f'v_cmp_gt_u32 vcc, s{sCntS}, v{T}')
    a(f'v_add_u32 v{T}, s{sStart}, v{T}')
    a(f'v_mul_u32_u24 v{T}, 12, v{T}')
    a(f'v_mov_b32 v{T+1}, 2.0')
    a(f'v_cndmask_b32 v{T}, v{T+1}, v{T}, vcc')
    a(f's_mov_b64 s[{sMask_}:{sMask_+1}], vcc')
    a(f'buffer_load_dwordx3 v[{REC}:{REC+2}], v{T}, s[16:19], 0 offen')
    a('s_waitcnt vmcnt(0)')
    a(f'v_lshrrev_b32 v{T}, 24, v{REC+2}')
    a(f'v_cmp_eq_u32 vcc, s{sN}, v{T}')
    a(f's_and_b64 s[{sMask_}:{sMask_+1}], s[{sMask_}:{sMask_+1}], vcc')
    a('KS_edge:')
    a(f's_cmp_eq_u64 s[{sMask_}:{sMask_+1}], 0')
    a('s_cbranch_scc1 KS_batch_next')
    a(f's_ff1_i32_b64 s{sBit}, s[{sMask_}:{sMask_+1}]')
    a(f's_bitset0_b64 s[{sMask_}:{sMask_+1}], s{sBit}')
    a(f'v_readlane_b32 s{sD0}, v{REC}, s{sBit}')
    a(f'v_readlane_b32 s{sD1}, v{REC+1}, s{sBit}')
    a(f'v_readlane_b32 s{sD2}, v{REC+2}, s{sBit}')
    a(f's_and_b32 s{sXo}, s{sD0}, 0xffff')
    a(f's_lshl_b32 s{sXo}, s{sXo}, 9')
    a(f's_and_b32 s{sEo}, s{sD2}, 0xffffff')
    a(f's_lshl_b32 s{sEo}, s{sEo}, 5')
    a(f's_and_b32 s{sY0}, s{sD0}, s{sHiM}')
    a(f's_lshl_b32 s{sY1}, s{sD1}, 16')
    a(f's_and_b32 s{sY2}, s{sD1}, s{sHiM}')
    for v in range(4): a(f'buffer_load_ushort v{FX+v}, v{vL2}, s[4:7], s{sXo} offen offset:{128*v}')
    a(f'buffer_load_dwordx4 v[{AE}:{AE+3}], v{vZ}, s[8:11], s{sEo} offen')
    a(f'buffer_load_dwordx4 v[{AE+4}:{AE+7}], v{vZ}, s[8:11], s{sEo} offen offset:16')
    a('s_waitcnt vmcnt(0)')
    for v in range(4): a(f'v_lshlrev_b32 v{FX+v}, 16, v{FX+v}')
    for q in range(8):
        a(f'v_lshlrev_b32 v{AV+2*q}, 16, v{AE+q}')
        a(f'v_and_b32 v{AV+2*q+1}, s{sHiM}, v{AE+q}')
    for p in range(5):
        a(f'v_mul_f32 v{RR+p}, v{AV}, v{WR+16*p}')
        for d in range(1, 16): a(f'v_fmac_f32 v{RR+p}, v{AV+d}, v{WR+16*p+d}')
    f0, f1 = FX, FX + 1
    a(f'v_fmac_f32 v{AC+0}, v{f0}, v{RR+0}')
    a(f'v_mul_f32 v{T}, s{sY0}, v{f1}')
    a(f'v_fmac_f32 v{T}, s{sY1}, v{f1+1}')
    a(f'v_fmac_f32 v{T}, s{sY2}, v{f1+2}')
    a(f'v_fmac_f32 v{AC+1}, v{T}, v{RR+1}')
    a(f'v_mul_f32 v{T}, v{f0}, v{RR+2}')
    for j, y in enumerate((sY0, sY1, sY2)): a(f'v_fmac_f32 v{AC+2+j}, s{y}, v{T}')
    for j in range(3): a(f'v_fmac_f32 v{AC+5+j}, v{f1+j}, v{RR+3}')
    for j in range(3): a(f'v_mul_f32 v{T+1+j}, v{f1+j}, v{RR+4}')
    a(f'v_fmac_f32 v{AC+8}, s{sY1}, v{T+3}')
    a(f'v_fma_f32 v{AC+8}, -s{sY2}, v{T+2}, v{AC+8}')
    a(f'v_fmac_f32 v{AC+9}, s{sY2}, v{T+1}')
    a(f'v_fma_f32 v{AC+9}, -s{sY0}, v{T+3}, v{AC+9}')
    a(f'v_fmac_f32 v{AC+10}, s{sY0}, v{T+2}')
    a(f'v_fma_f32 v{AC+10}, -s{sY1}, v{T+1}, v{AC+10}')
    a('s_branch KS_edge')
    a('KS_batch_next:')
    a(f's_add_u32 s{sJ}, s{sJ}, 64')
    a('s_branch KS_batch')
    a('KS_chunk_next:')
    a(f's_add_u32 s{sC}, s{sC}, 1')
    a(f's_cmp_lt_u32 s{sC}, {NCH}')
    a('s_cbranch_scc1 KS_chunk')
    for f in range(11): a(f'ds_write_b32 v{vPB}, v{AC+f} offset:{256*f}')
    for g in range(4): a(f'v_mov_b32 v{G0+g}, 0')
    a(f's_mov_b32 s{sK}, 0')
    a('KS_g0:')
    a(f's_lshl_b32 s{sTmp}, s{sK}, 2')
    a(f's_add_u32 s{sTmp}, s{sTmp}, s{sPB}')
    a(f'v_mov_b32 v{T}, s{sTmp}')
    a(f's_lshl_b32 s{sTmp2}, s{sK}, 7')
    for u in range(8):
        a(f'ds_read_b32 v{AV+u}, v{T} offset:{4*u}')
        a(f'buffer_load_ushort v{AV+8+u}, v{vL2}, s[{sW0}:{sW0+3}], s{sTmp2} offen offset:{128*u}')
    a('s_waitcnt vmcnt(0) lgkmcnt(0)')
    for u in range(8):
        a(f'v_lshlrev_b32 v{AV+8+u}, 16, v{AV+8+u}')
        a(f'v_fmac_f32 v{G0}, v{AV+u}, v{AV+8+u}')
    a(f's_add_u32 s{sK}, s{sK}, 8')
    a(f's_cmp_lt_u32 s{sK}, 128')
    a('s_cbranch_scc1 KS_g0')
    a(f's_mov_b32 s{sK}, 0')
    a('KS_g1:')
    a(f's_lshr_b32 s{sTmp}, s{sK}, 6')
    a(f's_mul_i32 s{sTmp}, s{sTmp}, 768')
    a(f's_and_b32 s{sTmp2}, s{sK}, 63')
    a(f's_lshl_b32 s{sTmp2}, s{sTmp2}, 2')
    a(f's_add_u32 s{sTmp}, s{sTmp}, s{sTmp2}')
    a(f's_add_u32 s{sTmp}, s{sTmp}, s{sPB}')
    a(f'v_mov_b32 v{T}, s{sTmp}')
    a(f's_lshl_b32 s{sTmp2}, s{sK}, 7')
    for u in range(4):
        for j in range(3): a(f'ds_read_b32 v{AV+3*u+j}, v{T} offset:{512 + 256*j + 4*u}')
        a(f'buffer_load_ushort v{AV+12+u}, v{vL2}, s[{sW1}:{sW1+3}], s{sTmp2} offen offset:{128*u}')
    a('s_waitcnt vmcnt(0) lgkmcnt(0)')
    for u in range(4):
        a(f'v_lshlrev_b32 v{AV+12+u}, 16, v{AV+12+u}')
        for j in range(3): a(f'v_fmac_f32 v{G1+j}, v{AV+3*u+j}, v{AV+12+u}')
    a(f's_add_u32 s{sK}, s{sK}, 4')
    a(f's_cmp_lt_u32 s{sK}, 192')
    a('s_cbranch_scc1 KS_g1')
    a(f'v_mul_f32 v{T}, 0xbfb8aa3b, v{G0}')
    a(f'v_exp_f32 v{T}, v{T}')
    a(f'v_add_f32 v{T}, 1.0, v{T}')
    a(f'v_rcp_f32 v{T}, v{T}')
    for j in range(3): a(f'v_mul_f32 v{G1+j}, v{T}, v{G1+j}')
    for g in range(4):
        a(f'v_cvt_pk_bf16_f32 v{G0+g}, v{G0+g}, v{G0+g}')
        a(f'buffer_store_short v{G0+g}, v{vL2}, s[12:15], s{sRow} offen offset:{128*g}')
    a(f's_add_u32 s{sN}, s{sN}, 8')
    a('s_branch KS_node')

def gen_k2(a, opt):
    D = opt.get('D', 2)
    set_map(D)
    global vGrab, vNb
    if D == 3 and opt.get('pk', 1): vGrab = 221; vNb = 223
    OPT.update(opt)
    a(f'{KN}_kernel:')
    prologue(a, opt)
    a(f'v_mov_b32 v{vSBase}, v226')
    a(f's_mov_b32 s{sPfQ}, s{sWave}')
    a(f'v_readlane_b32 s{sPfT}, v{vSBase}, s{sWave}')
    a(f'v_readlane_b32 s{sT}, v{vSteps}, s{sWave}')
    a(f'v_mov_b32 v{vHi}, 0xffff0000')
    if opt.get('eapf', 1):
        a(f'v_mov_b32 v{vLow}, 0x7fffffff')
        a(f's_mov_b32 s{sAct}, 0x55555555')
        a(f's_mov_b32 s{sAct+1}, 0xaaaaaaaa')
        for k in range(4*D): a(f'v_mov_b32 v{AS+k}, 0')
    a(f'v_mov_b32 v{vCtr}, {L_CTR}')
    a(f'v_mov_b32 v{vOne}, 1')
    a(f's_add_u32 s{sPfEnd}, s{sPfT}, s{sT}')
    a('s_mov_b64 exec, 1')
    a(f'ds_add_rtn_u32 v{vGrab}, v{vCtr}, v{vOne}')
    a('s_mov_b64 exec, -1')
    a(f's_lshl_b32 s{sOffA}, s{sPfT}, 6')
    a(f's_lshr_b32 s{sOffB}, s{sOffA}, 1')
    a(f'v_add_u32 v{vNa}, s{sOffA}, v{vRecA}')
    a(f'v_add_u32 v{vNb}, s{sOffB}, v{vRecB}')
    a('s_waitcnt lgkmcnt(0)')
    for sg in range(D):
        rec_read(a, sg)
        a('s_waitcnt lgkmcnt(0)')
        grab_result(a)
        issue_loads(a, sg, opt)
    for k in range(44): a(f'v_mov_b32 v{ACC+k}, 0')
    if opt.get('align'): a.raw(f'.p2align {opt["align"]}')
    for _ in range(opt.get('pad', 0)): a('s_nop 0')
    for sg in range(D):
        a(f'K2_s{sg}:')
        step(a, sg, D, opt)
        a(f's_cmp_lt_i32 s{sCur}, 0')
        a(f's_cbranch_scc0 K2_fl{sg}')
        if sg == D - 1: a('s_branch K2_s0')
    for sg in range(D):
        a(f'K2_fl{sg}:')
        flush(a, opt)
        a(f's_cmp_eq_u32 s{sTag + (sg+1) % D}, -2')
        a('s_cbranch_scc1 K2_end')
        a(f's_branch K2_s{(sg+1) % D}')
    for f in DEFER: f(a)
    a('K2_slow:')
    slow_path(a, opt)
    a('K2_end:')
    if opt.get('endwait'): a('s_waitcnt vmcnt(0)')
    if opt.get('ts'):
        stamp(a, opt, 6, 255)
        a('s_memtime s[98:99]'); a('s_waitcnt lgkmcnt(0)'); a('v_writelane_b32 v255, s98, 13')
        a('s_waitcnt vmcnt(0)')
        stamp(a, opt, 7, 255)
        a(f'v_writelane_b32 v255, s{sNQ}, 8')
        a('s_getreg_b32 s45, hwreg(HW_REG_XCC_ID)')
        a(f'v_writelane_b32 v255, s45, 10')
        a('s_getreg_b32 s45, hwreg(HW_REG_HW_ID)')
        a(f'v_writelane_b32 v255, s45, 11')
        stamp_out(a, opt, 255, 254, sWave, TS_OFF, 8)
        a('K2_end2:')
    a('s_endpgm')
    return 256, 102
```

```python
import sys
from asmlib import Asm

KN = 'gather_scatter__tensor_product_equiv_equiformer__graph'
N = 50000; E = 800000
NCH = 224; CH = 3584; BLK1 = 896; NPB = 196; NB = 256
NPREP = 15
REC_OFF = 0; TAB_OFF = 0x940000; WIMG_OFF = 0x980000; WS_USED = 0x9A0000
MAGIC = 85599
TS_OFF = 0x1000000
def stamp(a, opt, idx, vreg, sreg=98):
    if not opt.get('ts'): return
    if not (opt.get('tsmask', 0xffff) >> idx) & 1: return
    a(f's_memrealtime s[{sreg}:{sreg+1}]')
    a('s_waitcnt lgkmcnt(0)')
    a(f'v_writelane_b32 v{vreg}, s{sreg}, {idx}')
def stamp_out(a, opt, vreg, vtmp, wavesgpr, base, nw, srdreg=16):
    if not opt.get('ts'): return
    a(f's_mul_i32 s98, s2, {nw}')
    a(f's_add_u32 s98, s98, s{wavesgpr}')
    a(f's_lshl_b32 s98, s98, 6')
    a(f's_add_u32 s98, s98, {base}')
    a(f'v_mbcnt_lo_u32_b32 v{vtmp}, -1, 0')
    a(f'v_mbcnt_hi_u32_b32 v{vtmp}, -1, v{vtmp}')
    a(f'v_cmp_gt_u32 vcc, 16, v{vtmp}')
    a(f'v_lshlrev_b32 v{vtmp}, 2, v{vtmp}')
    a(f's_and_saveexec_b64 s[100:101], vcc')
    a(f's_mov_b32 s{srdreg+2}, 0x2000000')
    a(f'buffer_store_dword v{vreg}, v{vtmp}, s[{srdreg}:{srdreg+3}], s98 offen')
    a(f's_mov_b64 exec, s[100:101]')
L_CNT = 0; L_BINS = 1024; L_FLAG = 1280; L_SORT = 2048; L_BASE = 3072
L_RECA = 4096; L_RECB = 36864; L_W = 53248; L_P = 94208
PS = 1440; PJS = 384
L_EA = L_P + 8 * 4 * PS
EA2_ROWS = 224
LDS2 = L_EA + 16384
NULLSTEP = 511

def srd(a, r, size):
    a(f's_and_b32 s{r+1}, s{r+1}, 0xffff')
    a(f's_mov_b32 s{r+2}, {size}')
    a(f's_mov_b32 s{r+3}, 0x20000')

def wave_scan(a, v):
    for sh in (1, 2, 4, 8):
        a(f'v_add_u32_dpp v{v}, v{v}, v{v} row_shr:{sh} row_mask:0xf bank_mask:0xf bound_ctrl:1')
    a(f'v_add_u32_dpp v{v}, v{v}, v{v} row_bcast:15 row_mask:0xa bank_mask:0xf')
    a(f'v_add_u32_dpp v{v}, v{v}, v{v} row_bcast:31 row_mask:0xc bank_mask:0xf')

def gen_k1(a, opt):
    a(f'k1_sort_kernel:')
    a(f's_cmp_ge_u32 s2, {NCH}')
    a('s_cbranch_scc1 K1_prep')
    if opt.get('ts'):
        a('v_mov_b32 v70, 0'); a('v_lshrrev_b32 v71, 6, v0'); a('s_nop 1'); a('v_readfirstlane_b32 s40, v71')
    stamp(a, opt, 0, 70)
    a('s_load_dwordx2 s[12:13], s[0:1], 8')
    a('s_load_dwordx2 s[8:9], s[0:1], 24')
    a('s_load_dwordx2 s[4:5], s[0:1], 32')
    a('s_load_dwordx2 s[16:17], s[0:1], 88')
    if opt.get('pf') or opt.get('psprobe'):
        a('s_load_dwordx2 s[40:41], s[0:1], 0')
        a('s_load_dwordx2 s[44:45], s[0:1], 16')
    a('v_lshlrev_b32 v1, 2, v0')
    a('v_mov_b32 v2, 0')
    a('v_cmp_gt_u32 vcc, 256, v0')
    a('s_and_saveexec_b64 s[26:27], vcc')
    a('s_cbranch_execz K1_z')
    a('ds_write_b32 v1, v2')
    a('K1_z:')
    a('s_mov_b64 exec, s[26:27]')
    a(f's_mul_i32 s3, s2, {CH}')
    a('v_add_u32 v3, s3, v1')
    a('v_lshlrev_b32 v4, 2, v3')
    a('v_mul_u32_u24 v5, 6, v3')
    a(f's_mov_b32 s20, {E}')
    a(f's_mov_b32 s21, {MAGIC}')
    a('s_mov_b32 s22, 0xffff0000')
    a('s_waitcnt lgkmcnt(0)')
    srd(a, 4, E * 4); srd(a, 8, E * 4); srd(a, 12, E * 6); srd(a, 16, WS_USED)
    if opt.get('pf') or opt.get('psprobe'): srd(a, 40, N * 512); srd(a, 44, E * 32)
    a('v_cmp_gt_u32 vcc, s20, v3')
    a('s_and_saveexec_b64 s[26:27], vcc')
    a('s_mov_b64 s[28:29], exec')
    a('s_cbranch_execz K1_a')
    a('buffer_load_dwordx4 v[8:11], v4, s[4:7], 0 offen')
    a('buffer_load_dwordx4 v[12:15], v4, s[8:11], 0 offen')
    a('buffer_load_dwordx4 v[16:19], v5, s[12:15], 0 offen')
    a('buffer_load_dwordx2 v[20:21], v5, s[12:15], 0 offen offset:16')
    a('K1_a:')
    a('s_mov_b64 exec, s[26:27]')
    if opt.get('codepf'):
        a('s_getpc_b64 s[36:37]')
        a('K1_pc:')
        a(f's_add_u32 s36, s36, {KN}_kernel-K1_pc')
        a('s_addc_u32 s37, s37, 0')
        a('v_and_b32 v68, 63, v0')
        a('v_lshlrev_b32 v68, 7, v68')
        a('v_mov_b32 v71, s37')
        a('v_add_co_u32 v70, vcc, s36, v68')
        a('v_addc_co_u32 v71, vcc, 0, v71, vcc')
        a('v_lshrrev_b32 v69, 6, v0')
        a('v_cmp_eq_u32 vcc, 13, v69')
        a('s_and_saveexec_b64 s[38:39], vcc')
        a('s_cbranch_execz K1_cp')
        a('global_load_dword v69, v[70:71], off')
        a('v_add_co_u32 v70, vcc, 0x2000, v70')
        a('v_addc_co_u32 v71, vcc, 0, v71, vcc')
        a('s_mov_b32 exec_hi, 0')
        a('global_load_dword v68, v[70:71], off')
        a('K1_cp:')
        a('s_mov_b64 exec, s[38:39]')
    nps = opt.get('psprobe', 0)
    if nps:
        a(f's_mul_i32 s36, s2, {CH*32}')
        a('v_lshlrev_b32 v68, 4, v0')
        for u in range(nps):
            a(f's_add_u32 s37, s36, {u*BLK1*16}')
            a(f'buffer_load_dwordx4 v[{72+4*u}:{75+4*u}], v68, s[44:47], s37 offen nt')
    npf = opt.get('pf', 0)
    if npf:
        a(f's_mul_i32 s36, s2, {BLK1}')
        a('v_add_u32 v68, s36, v0')
        a('v_lshlrev_b32 v68, 7, v68')
        a('buffer_load_dword v69, v68, s[40:43], 0 offen')
        if npf > 1: a('buffer_load_dword v70, v68, s[44:47], 0 offen')
    a('s_waitcnt lgkmcnt(0)')
    a('s_barrier')
    stamp(a, opt, 1, 70)
    a('s_mov_b64 exec, s[28:29]')
    a('s_cbranch_execz K1_b')
    a('v_mov_b32 v6, 1')
    a(f's_waitcnt vmcnt({3 + opt.get("pf", 0) + opt.get("psprobe", 0)})')
    stamp(a, opt, 2, 70)
    for k in range(4):
        a(f'v_mul_u32_u24 v{24+k}, s21, v{8+k}')
    for k in range(4):
        a(f'v_lshrrev_b32 v{24+k}, 24, v{24+k}')
    for k in range(4):
        a(f'v_mul_u32_u24 v{28+k}, {NPB}, v{24+k}')
        a(f'v_lshlrev_b32 v{24+k}, 2, v{24+k}')
    for k in range(4):
        a(f'ds_add_rtn_u32 v{35+4*k}, v{24+k}, v6')
    for k in range(4):
        a(f'v_sub_u32 v{28+k}, v{8+k}, v{28+k}')
        a(f'v_add_u32 v7, {k}, v3')
        a(f'v_lshl_or_b32 v{34+4*k}, v{28+k}, 24, v7')
    if not opt.get('k1late', 1):
        a(f's_waitcnt vmcnt({opt.get("pf", 0) + opt.get("psprobe", 0)})')
        a('v_lshl_or_b32 v32, v16, 16, v12')
        a('v_alignbit_b32 v33, v17, v16, 16')
        a('v_and_or_b32 v36, v17, s22, v13')
        a('v_mov_b32 v37, v18')
        a('v_lshl_or_b32 v40, v19, 16, v14')
        a('v_alignbit_b32 v41, v20, v19, 16')
        a('v_and_or_b32 v44, v20, s22, v15')
        a('v_mov_b32 v45, v21')
    a('K1_b:')
    a('s_mov_b64 exec, s[26:27]')
    a('s_waitcnt lgkmcnt(0)')
    a('s_barrier')
    stamp(a, opt, 3, 70)
    a('v_and_b32 v48, 63, v0')
    a('v_lshlrev_b32 v48, 4, v48')
    a('ds_read_b128 v[52:55], v48')
    a('s_waitcnt lgkmcnt(0)')
    a('v_add_u32 v56, v52, v53')
    a('v_add_u32 v57, v56, v54')
    a('v_add_u32 v58, v57, v55')
    a('v_mov_b32 v59, v58')
    wave_scan(a, 59)
    a('v_sub_u32 v60, v59, v58')
    a('v_add_u32 v61, v60, v52')
    a('v_add_u32 v62, v60, v56')
    a('v_add_u32 v63, v60, v57')
    a('ds_write_b128 v48, v[60:63] offset:1024')
    a('v_cmp_gt_u32 vcc, 64, v0')
    a('s_and_saveexec_b64 s[30:31], vcc')
    a('s_cbranch_execz K1_t')
    for k in range(4):
        a(f'v_lshl_or_b32 v{64+k}, v{52+k}, 16, v{60+k}')
    a('s_lshl_b32 s23, s2, 10')
    a(f's_add_u32 s23, s23, {TAB_OFF}')
    a('buffer_store_dwordx4 v[64:67], v48, s[16:19], s23 offen' + (' sc0 sc1' if opt.get('tabpol', 1) else ''))
    a('K1_t:')
    a('s_mov_b64 exec, s[28:29]')
    a('s_cbranch_execz K1_w')
    for k in range(4):
        a(f'ds_read_b32 v{8+k}, v{24+k} offset:1024')
    if opt.get('k1late', 1):
        a(f's_waitcnt vmcnt({opt.get("pf", 0) + opt.get("psprobe", 0)})')
        a('v_lshl_or_b32 v32, v16, 16, v12')
        a('v_alignbit_b32 v33, v17, v16, 16')
        a('v_and_or_b32 v36, v17, s22, v13')
        a('v_mov_b32 v37, v18')
        a('v_lshl_or_b32 v40, v19, 16, v14')
        a('v_alignbit_b32 v41, v20, v19, 16')
        a('v_and_or_b32 v44, v20, s22, v15')
        a('v_mov_b32 v45, v21')
    for k in range(4):
        a(f's_waitcnt lgkmcnt({3-k})') if k == 0 else None
    a('s_waitcnt lgkmcnt(0)')
    for k in range(4):
        a(f'v_add_u32 v{8+k}, v{8+k}, v{35+4*k}')
        a(f'v_lshlrev_b32 v{8+k}, 4, v{8+k}')
        a(f'ds_write_b96 v{8+k}, v[{32+4*k}:{34+4*k}] offset:2048')
    a('K1_w:')
    a('s_mov_b64 exec, -1')
    if opt.get('psprobe'):
        a('s_waitcnt vmcnt(0)')
        a('v_lshlrev_b32 v68, 4, v0')
        a(f'v_add_u32 v68, {2048 + CH*16}, v68')
        for u in range(opt['psprobe']):
            a(f'ds_write_b128 v68, v[{72+4*u}:{75+4*u}] offset:{u*BLK1*16}')
    a('s_waitcnt lgkmcnt(0)')
    a('s_barrier')
    a('v_lshlrev_b32 v8, 4, v0')
    for k in range(4):
        a(f'ds_read_b96 v[{32+4*k}:{34+4*k}], v8 offset:{2048 + k*BLK1*16}')
    a('v_mul_u32_u24 v9, 12, v0')
    for k in range(4):
        a(f's_mul_i32 s{32+k}, s2, {CH*12}')
        if k: a(f's_add_u32 s{32+k}, s{32+k}, {k*BLK1*12}')
    pol = ['', ' nt', ' sc1', ' sc0 sc1', ' sc1 nt', ' sc0 sc1 nt'][opt.get('k1pol', 3)]
    for k in range(4):
        a(f's_waitcnt lgkmcnt({3-k})')
        a(f'buffer_store_dwordx3 v[{32+4*k}:{34+4*k}], v9, s[16:19], s{32+k} offen{pol}')
    if opt.get('psprobe'):
        for u in range(opt['psprobe']):
            a(f'ds_read_b128 v[{72+4*u}:{75+4*u}], v68 offset:{u*BLK1*16}')
        a('v_lshlrev_b32 v69, 4, v0')
        a(f's_mul_i32 s36, s2, {CH*32}')
        a(f's_add_u32 s36, s36, 0x2000000')
        a('s_mov_b32 s18, 0x4000000')
        for u in range(opt['psprobe']):
            a(f's_waitcnt lgkmcnt({opt["psprobe"]-1-u})')
            a(f's_add_u32 s37, s36, {u*BLK1*16}')
            a(f'buffer_store_dwordx4 v[{72+4*u}:{75+4*u}], v69, s[16:19], s37 offen')
    a('K1_done:')
    if opt.get('endwait1'): a('s_waitcnt vmcnt(0)')
    if opt.get('ts'):
        a('s_mov_b64 exec, -1')
        stamp(a, opt, 4, 70)
        a('s_waitcnt vmcnt(0)')
        stamp(a, opt, 5, 70)
        stamp_out(a, opt, 70, 71, 40, TS_OFF + 0x100000, 14)
    a('s_endpgm')
    a('K1_prep:')
    a(f's_sub_u32 s3, s2, {NCH}')
    a(f's_cmp_ge_u32 s3, {NPREP}')
    a('s_cbranch_scc1 K1_done2')
    a('s_load_dwordx2 s[4:5], s[0:1], 40')
    a('s_load_dwordx4 s[20:23], s[0:1], 48')
    a('s_load_dwordx2 s[16:17], s[0:1], 88')
    a(f's_mul_i32 s3, s3, {BLK1}')
    a('v_add_u32 v1, s3, v0')
    a('s_nop 0')
    a('v_readfirstlane_b32 s24, v1')
    a('s_cmp_ge_u32 s24, 12800')
    a('s_cbranch_scc1 K1_done2')
    a('s_lshr_b32 s24, s24, 8')
    a('v_lshrrev_b32 v2, 2, v1')
    a('v_and_b32 v2, 63, v2')
    a('v_and_b32 v3, 3, v1')
    a('v_and_b32 v4, 15, v2')
    a('v_lshrrev_b32 v5, 4, v2')
    a('s_waitcnt lgkmcnt(0)')
    srd(a, 16, WS_USED)
    a('s_cmp_ge_u32 s24, 10')
    a('s_cbranch_scc1 K1_pw')
    srd(a, 4, 16 * 320 * 2)
    a('s_lshr_b32 s25, s24, 1')
    a('s_and_b32 s26, s24, 1')
    a('s_lshl_b32 s25, s25, 6')
    a('s_lshl_b32 s26, s26, 1')
    a('s_add_u32 s25, s25, s26')
    a('v_lshlrev_b32 v6, 2, v4')
    a('v_lshrrev_b32 v7, 1, v5')
    a('v_add3_u32 v6, v6, v7, s25')
    a('v_and_b32 v7, 1, v5')
    a('v_lshlrev_b32 v7, 3, v7')
    a('v_lshl_add_u32 v7, v3, 1, v7')
    a('v_mul_u32_u24 v7, 320, v7')
    a('v_add_lshl_u32 v6, v6, v7, 1')
    a('buffer_load_ushort v8, v6, s[4:7], 0 offen')
    a('buffer_load_ushort v9, v6, s[4:7], 0 offen offset:640')
    a('s_branch K1_pst')
    a('K1_pw:')
    a('s_sub_u32 s25, s24, 10')
    a('s_cmp_ge_u32 s25, 16')
    a('s_cbranch_scc1 K1_pw1')
    a('s_mov_b32 s4, s20')
    a('s_mov_b32 s5, s21')
    srd(a, 4, 128 * 64 * 2)
    a('s_branch K1_pw2')
    a('K1_pw1:')
    a('s_sub_u32 s25, s25, 16')
    a('s_mov_b32 s4, s22')
    a('s_mov_b32 s5, s23')
    srd(a, 4, 192 * 64 * 2)
    a('K1_pw2:')
    a('s_lshr_b32 s26, s25, 2')
    a('s_and_b32 s27, s25, 3')
    a('s_lshl_b32 s26, s26, 5')
    a('s_lshl_b32 s27, s27, 2')
    a('v_lshrrev_b32 v6, 2, v4')
    a('v_lshlrev_b32 v6, 4, v6')
    a('v_and_b32 v7, 3, v4')
    a('v_add3_u32 v6, v6, v7, s27')
    a('v_lshlrev_b32 v7, 3, v5')
    a('v_lshl_add_u32 v7, v3, 1, v7')
    a('v_add_u32 v7, s26, v7')
    a('v_lshlrev_b32 v7, 6, v7')
    a('v_add_lshl_u32 v6, v6, v7, 1')
    a('buffer_load_ushort v8, v6, s[4:7], 0 offen')
    a('buffer_load_ushort v9, v6, s[4:7], 0 offen offset:128')
    a('K1_pst:')
    a('v_lshlrev_b32 v1, 2, v1')
    a(f's_mov_b32 s28, {WIMG_OFF}')
    a('s_waitcnt vmcnt(0)')
    a('v_lshl_or_b32 v8, v9, 16, v8')
    a('buffer_store_dword v8, v1, s[16:19], s28 offen')
    a('K1_done2:')
    a('s_endpgm')

def desc(name, vgpr, sgpr):
    return f'''.amdhsa_kernel {name}
  .amdhsa_next_free_vgpr {vgpr}
  .amdhsa_next_free_sgpr {sgpr}
  .amdhsa_accum_offset {(vgpr + 3) // 4 * 4}
  .amdhsa_group_segment_fixed_size 0
  .amdhsa_kernarg_size 96
  .amdhsa_user_sgpr_count 2
  .amdhsa_user_sgpr_kernarg_segment_ptr 1
  .amdhsa_system_sgpr_workgroup_id_x 1
.end_amdhsa_kernel
'''

def build(opt):
    from gen_k2 import gen_k2
    header = open('cdna_kernels/%s.s.ref' % KN).read().split('; Override launch')[0]
    out = header
    out += (
        '; Method (two launches, nothing survives between runs of the list):\n'
        ';  k1: 224 workgroups bin 3584 edges each by destination bucket (196 nodes) with an LDS counting sort and write\n'
        ';      12-byte records {src, rhat, edge id, local node} plus a (start, count) table to d_ws; 15 more workgroups lay\n'
        ';      w_rad / w_si0 / w_si1 out as MFMA operand tiles.\n'
        ';  k2: one workgroup per bucket sorts its records by node in LDS, groups nodes of equal degree four at a time and\n'
        ';      streams them: each quarter-wave gathers the x rows of one node, R = e_attr @ w_rad comes from MFMA, the eleven\n'
        ';      tensor-product features are summed per node in fp32; the two w_si GEMMs (linear, so applied after the sum),\n'
        ';      the sigmoid gate and the store follow per group of four nodes.  Buckets that exceed the fixed capacities take\n'
        ';      a general one-node-at-a-time path.  cg_eps is the constant Levi-Civita tensor.\n')
    out += f'; @launch kernel=k1_sort_kernel grid=({NCH+NPREP},1,1) block=({BLK1},1,1) lds={2048 + CH*16 + opt.get("psprobe", 0)*BLK1*16}\n'
    if not opt.get('k1only'):
        out += f'; @launch kernel={KN}_kernel grid=({NB},1,1) block=(512,1,1) lds={LDS2}\n'
    out += '.amdgcn_target "amdgcn-amd-amdhsa--gfx950"\n.text\n'
    st = {}
    o1 = dict(opt); o2 = dict(opt)
    if 'tsk' in opt:
        o1['ts'] = opt['tsk'] & 1; o2['ts'] = (opt['tsk'] >> 1) & 1
    a = Asm(); gen_k1(a, o1)
    out += '.globl k1_sort_kernel\n.p2align 8\n.type k1_sort_kernel,@function\n' + a.finalize(st)
    a = Asm(); nv, ns = gen_k2(a, o2)
    out += f'.globl {KN}_kernel\n.p2align 8\n.type {KN}_kernel,@function\n' + a.finalize(st)
    print('k2 nops inserted', st, file=sys.stderr)
    out += '.section .rodata,"a"\n.p2align 6\n' + desc('k1_sort_kernel', 72 + 4*opt.get('psprobe', 0), 102 if (o1.get('ts') or opt.get('k1s102')) else 48) + '.p2align 6\n' + desc(KN + '_kernel', nv, ns)
    return out

if __name__ == '__main__':
    opt = {}
    outp = None
    for x in sys.argv[1:]:
        if '=' in x:
            k, v = x.split('=', 1); opt[k] = int(v, 0)
        else: outp = x
    s = build(opt)
    open(outp or 'cdna_kernels/%s.s' % KN, 'w').write(s)
```

```python
from gen import *

ACC = 0; R = 44; RAD = 84; XS = 124
AS = YP = F = TMP = Y = NA = None
def set_map(D):
    global AS, YP, F, TMP, Y, NA
    AS = XS + 16*D; YP = AS + 4*D; F = YP + 4*D; TMP = F + 16; Y = TMP + 8
    NA = 8 if D == 2 else 6
vLaneX = 228; vLaneMask = 229; vRecA = 230; vRecB = 231; vSteps = 232; vEN = 233; vXA0 = 234; vXA1 = 235; vEA = 236
vTa = 237; vTb = 238; vPW = 239; vPR0 = 240; vPR1 = 241; vWR = 242; vOut0 = 243; vOut1 = 244; vOrd = 245
vLane = 246; vTid = 247; vT = 248
vHi = 248; vSBase = 249; vGrab = 250; vCtr = 246; vOne = 247
sWave = 20; sPfT = 21; sPfEnd = 22; sPfQ = 23; sNQ = 24; sCur = 25; s512 = 26; sHi = 27; sOffA = 28; sOffB = 29; sNode = 30; sT = 31
sM1 = 32; sM2 = 34; sM3 = 36; sSave = 38; sMask = 40; sOvf = 82; sU = 84
OPT = {}
POL = ['', ' nt', ' sc1', ' sc0 sc1', ' sc1 nt', ' sc0 sc1 nt', ' sc0']
YSEP = ((220, 222, 224), (226, 248, 250))
sThr = 3
sEa2 = 94
sTag = 40
L_CTR = L_FLAG + 16
L_QI = 1344
COST_STEP = 8; COST_FLUSH = 11

def pr(x): return f'v[{x}:{x+1}]'
def q4(x): return f'v[{x}:{x+3}]'

def lane_consts(a, opt):
    i_, g_ = 208, 209
    a(f'v_and_b32 v{i_}, 15, v{vLane}')
    a(f'v_lshrrev_b32 v{g_}, 4, v{vLane}')
    a(f'v_lshlrev_b32 v{vLaneX}, 3, v{i_}')
    a(f'v_lshrrev_b32 v{210}, 1, v{g_}')
    a(f'v_and_b32 v{211}, 1, v{i_}')
    a(f'v_cmp_eq_u32 vcc, v{210}, v{211}')
    a(f'v_and_b32 v{212}, 1, v{g_}')
    a(f'v_lshlrev_b32 v{212}, 4, v{212}')
    a(f'v_mov_b32 v{213}, 2.0')
    a(f'v_cndmask_b32 v{vLaneMask}, v{213}, v{212}, vcc')
    a(f'v_lshlrev_b32 v{vRecA}, 4, v{g_}')
    a(f'v_add_u32 v{vRecA}, {L_RECA}, v{vRecA}')
    a(f'v_lshrrev_b32 v{vRecB}, 1, v{i_}')
    a(f'v_lshlrev_b32 v{vRecB}, 2, v{vRecB}')
    a(f'v_add_u32 v{vRecB}, {L_RECB}, v{vRecB}')
    a(f's_mul_i32 s{sNode}, s{sWave}, {4*PS}')
    a(f's_add_u32 s{sNode}, s{sNode}, {L_P}')
    a(f'v_mul_u32_u24 v{vPW}, {PS}, v{g_}')
    a(f'v_add3_u32 v{vPW}, v{vPW}, v{vLaneX}, s{sNode}')
    a(f'v_lshrrev_b32 v{210}, 2, v{i_}')
    a(f'v_mul_u32_u24 v{vPR0}, {PS}, v{210}')
    a(f'v_lshlrev_b32 v{211}, 4, v{g_}')
    a(f'v_add3_u32 v{vPR0}, v{vPR0}, v{211}, s{sNode}')
    a(f'v_and_b32 v{211}, 3, v{i_}')
    a(f'v_min_u32 v{212}, 2, v{211}')
    a(f'v_mul_u32_u24 v{212}, {PJS}, v{212}')
    a(f'v_add_u32 v{212}, 256, v{212}')
    a(f'v_add_u32 v{vPR1}, v{vPR0}, v{212}')
    a(f'v_lshlrev_b32 v{vWR}, 4, v{vLane}')
    a(f'v_add_u32 v{vWR}, {L_W}, v{vWR}')
    a(f'v_lshlrev_b32 v{212}, 5, v{g_}')
    a(f'v_lshl_add_u32 v{vOut0}, v{211}, 3, v{212}')
    a(f'v_lshl_add_u32 v{vOut1}, v{211}, 7, v{212}')
    a(f'v_add_u32 v{vOut1}, 128, v{vOut1}')
    a(f'v_cmp_eq_u32 vcc, 3, v{211}')
    a(f'v_cndmask_b32 v{vOut1}, v{vOut1}, v{213}, vcc')
    a(f'v_lshlrev_b32 v{vOrd}, 2, v{210}')
    a(f'v_add_u32 v{vOrd}, {L_SORT}, v{vOrd}')
    a(f's_mov_b32 s{s512}, 512')
    a(f's_mov_b32 s{sHi}, 0xffff0000')
    a(f's_mul_i32 s{sNode}, s2, {NPB*512}')
    for m, pat in ((sM1, 0x22222222), (sM2, 0x44444444), (sM3, 0x88888888)):
        a(f's_mov_b32 s{m}, {pat}'); a(f's_mov_b32 s{m+1}, {pat}')

def prologue(a, opt):
    a(f's_cmp_ge_u32 s2, {NB}')
    a('s_cbranch_scc1 K2_end2' if opt.get('ts') else 's_cbranch_scc1 K2_end')
    if opt.get('xcdmap', 1):
        a('s_and_b32 s3, s2, 7')
        a('s_lshl_b32 s3, s3, 5')
        a('s_lshr_b32 s2, s2, 3')
        a('s_add_u32 s2, s2, s3')
    a('s_load_dwordx2 s[4:5], s[0:1], 0')
    a('s_load_dwordx2 s[8:9], s[0:1], 16')
    a('s_load_dwordx2 s[12:13], s[0:1], 72')
    a('s_load_dwordx2 s[16:17], s[0:1], 88')
    a(f'v_mov_b32 v{vTid}, v0')
    a(f'v_and_b32 v{vLane}, 63, v0')
    a(f'v_lshrrev_b32 v{vT}, 6, v0')
    a(f'v_lshlrev_b32 v{vT+1}, 2, v0')
    a(f'v_readfirstlane_b32 s{sWave}, v{vT}')
    if opt.get('ts'): a('v_mov_b32 v255, 0')
    stamp(a, opt, 0, 255)
    a(f'v_mov_b32 v200, 0')
    a(f'v_cmp_gt_u32 vcc, 336, v{vTid}')
    a(f's_and_saveexec_b64 s[{sSave}:{sSave+1}], vcc')
    a('s_cbranch_execz K2_z')
    a(f'ds_write_b32 v{vT+1}, v200')
    a('K2_z:')
    a(f's_mov_b64 exec, s[{sSave}:{sSave+1}]')
    a('v_mov_b32 v200, 0xffff'); a('v_mov_b32 v201, 0'); a('v_mov_b32 v202, 0xffff'); a('v_mov_b32 v203, 0')
    for k in range(4): a(f'v_mov_b32 v{204+k}, 2.0')
    a(f'v_lshlrev_b32 v{vT+2}, 4, v{vTid}')
    for k in range(4): a(f'ds_write_b128 v{vT+2}, v[200:203] offset:{L_RECA + k*8192}')
    for k in range(2): a(f'ds_write_b128 v{vT+2}, v[204:207] offset:{L_RECB + k*8192}')
    a(f'v_lshrrev_b32 v{vT+3}, 4, v{vTid}')
    a('s_lshl_b32 s3, s2, 2')
    a(f'v_lshl_add_u32 v{vT+4}, v{vT+3}, 10, s3')
    a(f'v_lshlrev_b32 v{vT+5}, 4, v{vLane}')
    a('s_waitcnt lgkmcnt(0)')
    srd(a, 4, 0 if opt.get('nomem') else N * 512); srd(a, 8, 0 if opt.get('nomem') or opt.get('noea') else E * 32); srd(a, 12, N * 512); srd(a, 16, WS_USED)
    TB = 124
    for k in range(7):
        a(f's_mov_b32 s{sU+k}, {TAB_OFF + k*32768}')
    for k in range(7):
        a(f'buffer_load_dword v{TB+k}, v{vT+4}, s[16:19], s{sU+k} offen')
    lane_consts(a, opt)
    vJ = 152; vG = 153; CN = 154; AD = 161
    a(f'v_and_b32 v{vJ}, 15, v{vTid}')
    a(f'v_mul_u32_u24 v{vG}, {CH*12}, v{vT+3}')
    a(f'v_add_u32 v168, 16, v{vJ}')
    a(f'v_add_u32 v169, 32, v{vJ}')
    a(f's_mov_b64 s[{sOvf}:{sOvf+1}], 0')
    for k in range(7): a(f's_mov_b32 s{sU+k}, {REC_OFF + k*32*CH*12}')
    a('s_waitcnt vmcnt(0)')
    stamp(a, opt, 1, 255)
    for k in range(7):
        a(f'v_lshrrev_b32 v{CN+k}, 16, v{TB+k}')
        a(f'v_and_b32 v{AD+k}, 0xffff, v{TB+k}')
        a(f'v_add_u32 v{AD+k}, v{AD+k}, v{vJ}')
        a(f'v_mad_u32_u24 v{AD+k}, v{AD+k}, 12, v{vG}')
        a(f'v_cmp_gt_u32 s[{sMask+2*k}:{sMask+2*k+1}], v{CN+k}, v{vJ}')
        a(f'v_cmp_gt_u32 s[{sMask+14+2*k}:{sMask+14+2*k+1}], v{CN+k}, v168')
        a(f'v_cmp_gt_u32 s[{sMask+28+2*k}:{sMask+28+2*k+1}], v{CN+k}, v169')
        a(f'v_cmp_lt_u32 vcc, 48, v{CN+k}')
        a(f's_or_b64 s[{sOvf}:{sOvf+1}], s[{sOvf}:{sOvf+1}], vcc')
    def rec_loads(beta):
        for k in range(7):
            u = beta*7 + k
            a(f's_mov_b64 exec, s[{sMask+2*u}:{sMask+2*u+1}]')
            a(f'buffer_load_dwordx3 v[{4*u}:{4*u+2}], v{AD+k}, s[16:19], s{sU+k} offen offset:{beta*192}')
        a('s_mov_b64 exec, -1')
    rec_loads(0); rec_loads(1)
    sB2 = sU + 12
    a(f's_mov_b64 s[{sB2}:{sB2+1}], 0')
    for k in range(7):
        a(f's_or_b64 s[{sB2}:{sB2+1}], s[{sB2}:{sB2+1}], s[{sMask+28+2*k}:{sMask+28+2*k+1}]')
    pipe = opt.get('pipe', 0)
    if pipe:
        pass
    else:
        a('s_cbranch_scc0 K2_nb2a')
        rec_loads(2)
        a('K2_nb2a:')
    IMG = 124
    a(f'v_lshlrev_b32 v{vT+5}, 4, v{vLane}')
    for u in range(7):
        a(f's_add_u32 s{sU+u}, s{sWave}, {8*u}')
        if u == 6:
            a(f's_min_u32 s{sU+u}, s{sU+u}, 49')
        a(f's_lshl_b32 s{sU+u}, s{sU+u}, 10')
        a(f's_add_u32 s{sT}, s{sU+u}, {WIMG_OFF}')
        a(f'buffer_load_dwordx4 {q4(IMG+4*u)}, v{vT+5}, s[16:19], s{sT} offen')
    if opt.get('tlb'):
        a(f'v_mul_u32_u24 v208, {opt.get("tlbs", 400000)}, v{vLane}')
        a('buffer_load_dword v209, v208, s[4:7], 0 offen')
        a('buffer_load_dword v210, v208, s[8:11], 0 offen')
    a('s_waitcnt lgkmcnt(0)')
    a('s_barrier')
    a(f's_cmp_eq_u64 s[{sOvf}:{sOvf+1}], 0')
    a('s_cbranch_scc1 K2_novf')
    a(f'v_mov_b32 v{vT}, {L_FLAG}')
    a(f'v_mov_b32 v{vT+1}, 1')
    a(f'ds_write_b32 v{vT}, v{vT+1}')
    a('K2_novf:')
    a(f'v_mov_b32 v170, 1')
    a(f's_waitcnt vmcnt({20 if pipe else 7})')
    stamp(a, opt, 2, 255)
    EAP = 184
    npf = opt.get('eapf', 1)
    if npf:
        a(f'v_cmp_gt_u32 vcc, {opt.get("earows", 512)}, v{vTid}')
        a(f's_and_b64 exec, vcc, s[{sMask}:{sMask+1}]')
        a(f'v_and_b32 v183, 0xffffff, v2')
        a(f'v_lshlrev_b32 v183, 5, v183')
        a(f'buffer_load_dwordx4 {q4(EAP)}, v183, s[8:11], 0 offen nt')
        a(f'buffer_load_dwordx4 {q4(EAP+4)}, v183, s[8:11], 0 offen offset:16 nt')
        a('s_mov_b64 exec, -1')
        if npf > 1:
            a(f'v_cmp_gt_u32 vcc, {EA2_ROWS}, v{vTid}')
            a(f's_and_b64 s[{sEa2}:{sEa2+1}], vcc, s[{sMask+2}:{sMask+3}]')
            a(f's_mov_b64 exec, s[{sEa2}:{sEa2+1}]')
            a(f'v_and_b32 v182, 0xffffff, v6')
            a(f'v_lshlrev_b32 v182, 5, v182')
            a(f'buffer_load_dwordx4 {q4(EAP+8)}, v182, s[8:11], 0 offen nt')
            a(f'buffer_load_dwordx4 {q4(EAP+12)}, v182, s[8:11], 0 offen offset:16 nt')
            a('s_mov_b64 exec, -1')
    def hist(beta):
        for k in range(7):
            u = beta*7 + k
            if pipe and 0 < u < 14: a(f's_waitcnt vmcnt({13 - u + 7 + 2*npf})')
            a(f's_mov_b64 exec, s[{sMask+2*u}:{sMask+2*u+1}]')
            a(f'v_lshrrev_b32 v{200+k}, 22, v{4*u+2}')
            a(f'v_and_b32 v{200+k}, 0x3fc, v{200+k}')
            a(f'ds_add_rtn_u32 v{4*u+3}, v{200+k}, v170 offset:{L_CNT}')
        a('s_mov_b64 exec, -1')
    hist(0); hist(1)
    a(f's_cmp_eq_u64 s[{sB2}:{sB2+1}], 0')
    a('s_cbranch_scc1 K2_nb2b')
    if pipe:
        for k in range(7):
            u = 14 + k
            a(f'v_add_u32 v{208+k}, {REC_OFF + k*32*CH*12}, v{AD+k}')
            a(f's_mov_b64 exec, s[{sMask+2*u}:{sMask+2*u+1}]')
            a(f'buffer_load_dwordx3 v[{4*u}:{4*u+2}], v{208+k}, s[16:19], 0 offen offset:384')
            a('s_mov_b64 exec, -1')
        a('s_waitcnt vmcnt(0)')
    hist(2)
    a('K2_nb2b:')
    a('s_waitcnt lgkmcnt(0)')
    a('s_barrier')
    stamp(a, opt, 3, 255)
    a(f's_waitcnt vmcnt({2*npf})')
    a(f'v_lshlrev_b32 v{vT+5}, 4, v{vLane}')
    a(f's_mov_b32 s{sU+8}, {L_P}')
    a(f's_mov_b32 s{sU+9}, {L_W - 10240}')
    for u in range(7):
        a(f's_cmp_lt_u32 s{sU+u}, 10240')
        a(f's_cselect_b32 s{sT}, s{sU+8}, s{sU+9}')
        a(f's_add_u32 s{sT}, s{sT}, s{sU+u}')
        a(f'v_add_u32 v{vT+6}, s{sT}, v{vT+5}')
        a(f'ds_write_b128 v{vT+6}, {q4(124+4*u)}')
    a(f'v_mov_b32 v{vT}, {L_FLAG}')
    a(f'ds_read_b32 v{vT+1}, v{vT}')
    a('s_waitcnt lgkmcnt(0)')
    a(f'v_readfirstlane_b32 s{sT}, v{vT+1}')
    a(f's_cmp_lg_u32 s{sT}, 0')
    a('s_cbranch_scc1 K2_slow')
    a(f's_cmp_lg_u32 s{sWave}, 0')
    a('s_cbranch_scc1 K2_p6')
    DG = 152; KY = 156; RK = 160; PO = 164; SO = 168
    a(f'v_lshlrev_b32 v{vT}, 4, v{vLane}')
    a(f'ds_read_b128 {q4(DG)}, v{vT} offset:{L_CNT}')
    a(f'v_cmp_gt_u32 vcc, 49, v{vLane}')
    a(f's_mov_b64 s[{sU}:{sU+1}], vcc')
    a(f'v_lshlrev_b32 v{vT+1}, 2, v{vLane}')
    for k in range(4): a(f'v_mov_b32 v{KY+k}, 0'); a(f'v_mov_b32 v{RK+k}, 0')
    a('s_waitcnt lgkmcnt(0)')
    a(f's_mov_b64 exec, s[{sU}:{sU+1}]')
    for k in range(4):
        a(f'v_min_u32 v{KY+k}, 63, v{DG+k}')
        a(f'v_sub_u32 v{KY+k}, 63, v{KY+k}')
        a(f'v_lshlrev_b32 v{KY+k}, 2, v{KY+k}')
        a(f'ds_add_rtn_u32 v{RK+k}, v{KY+k}, v170 offset:{L_BINS}')
    a('s_mov_b64 exec, -1')
    a(f'ds_read_b32 v{vT+2}, v{vT+1} offset:{L_BINS}')
    a('s_waitcnt lgkmcnt(0)')
    a(f'v_mov_b32 v{vT+3}, v{vT+2}')
    wave_scan(a, vT+3)
    a(f'v_sub_u32 v{vT+3}, v{vT+3}, v{vT+2}')
    for k in range(4): a(f'ds_bpermute_b32 v{PO+k}, v{KY+k}, v{vT+3}')
    a('s_waitcnt lgkmcnt(0)')
    a(f's_mov_b64 exec, s[{sU}:{sU+1}]')
    for k in range(4):
        a(f'v_add_u32 v{PO+k}, v{PO+k}, v{RK+k}')
        a(f'v_add_u32 v{vT+4}, {k}, v{vT+1}')
        a(f'v_lshl_or_b32 v{vT+4}, v{DG+k}, 8, v{vT+4}')
        a(f'v_lshlrev_b32 v{vT+5}, 2, v{PO+k}')
        a(f'ds_write_b32 v{vT+5}, v{vT+4} offset:{L_SORT}')
    a('s_mov_b64 exec, -1')
    a(f'ds_read_b128 {q4(SO)}, v{vT} offset:{L_SORT}')
    a(f'v_cmp_gt_u32 vcc, 49, v{vLane}')
    a('s_waitcnt lgkmcnt(0)')
    a(f'v_max3_u32 v{SO}, v{SO}, v{SO+1}, v{SO+2}')
    a(f'v_max_u32 v{SO}, v{SO}, v{SO+3}')
    a(f'v_lshrrev_b32 v{SO}, 8, v{SO}')
    a(f'v_add_u32 v{SO}, 1, v{SO}')
    a(f'v_lshrrev_b32 v{SO}, 1, v{SO}')
    a(f'v_max_u32 v{SO}, 1, v{SO}')
    a(f'v_cndmask_b32 v{SO}, 0, v{SO}, vcc')
    a(f'v_mov_b32 v{SO+1}, v{SO}')
    wave_scan(a, SO+1)
    a(f'v_sub_u32 v{SO+1}, v{SO+1}, v{SO}')
    a(f'v_min_u32 v{SO+2}, 0xffff, v{SO+1}')
    a(f'v_min_u32 v{SO+3}, 0xffff, v{SO}')
    a(f'v_lshl_or_b32 v{SO+2}, v{SO+3}, 16, v{SO+2}')
    a(f'ds_write_b32 v{vT+1}, v{SO+2} offset:{L_QI}')
    for k in range(4):
        a(f'v_and_b32 v{KY+k}, 0xfc, v{PO+k}')
        a(f'ds_bpermute_b32 v{RK+k}, v{KY+k}, v{SO+1}')
    a('s_waitcnt lgkmcnt(0)')
    for k in range(4):
        a(f'v_and_b32 v{PO+k}, 3, v{PO+k}')
        a(f'v_lshlrev_b32 v{PO+k}, 1, v{PO+k}')
        a(f'v_lshl_add_u32 v{RK+k}, v{RK+k}, 3, v{PO+k}')
    a(f's_mov_b64 exec, s[{sU}:{sU+1}]')
    a(f'ds_write_b128 v{vT}, {q4(RK)} offset:{L_BASE}')
    a('s_mov_b64 exec, -1')
    a('K2_p6:')
    a('s_waitcnt lgkmcnt(0)')
    a('s_barrier')
    stamp(a, opt, 4, 255)
    a(f'v_lshlrev_b32 v{vT+1}, 2, v{vLane}')
    a(f'ds_read_b32 v{vT+2}, v{vT+1} offset:{L_QI}')
    a('s_waitcnt lgkmcnt(0)')
    a(f'v_and_b32 v{vT+3}, 0xffff, v{vT+2}')
    a(f'v_lshrrev_b32 v{vSteps}, 16, v{vT+2}')
    a(f'v_mov_b32 v226, v{vT+3}')
    a(f'v_readlane_b32 s{sT}, v{vT+3}, 63')
    if opt.get('ts'): a(f'v_writelane_b32 v255, s{sT}, 9')
    a(f's_cmp_gt_u32 s{sT}, {NULLSTEP}')
    a('s_cbranch_scc1 K2_slow')
    if opt.get('thr'):
        a(f's_sub_i32 s{sThr}, s{sT}, {opt.get("t0", 401)}')
        a(f's_mul_i32 s{sThr}, s{sThr}, {opt.get("tmul", 4)}')
        a(f's_ashr_i32 s{sThr}, s{sThr}, 4')
        a(f's_cmp_lt_i32 s{sWave}, s{sThr}')
        a(f's_cselect_b32 s{sThr}, 0, 1')
    def scat(beta):
        for k in range(7):
            u = beta*7 + k
            a(f's_mov_b64 exec, s[{sMask+2*u}:{sMask+2*u+1}]')
            a(f'v_lshrrev_b32 v{161+k}, 22, v{4*u+2}')
            a(f'v_and_b32 v{161+k}, 0x3fc, v{161+k}')
            a(f'ds_read_b32 v{176+k}, v{161+k} offset:{L_BASE}')
        for k in range(7):
            u = beta*7 + k
            a(f's_mov_b64 exec, s[{sMask+2*u}:{sMask+2*u+1}]')
            a(f'v_lshrrev_b32 v{vT}, 1, v{4*u+3}')
            a(f'v_and_b32 v{vT+1}, 1, v{4*u+3}')
            if u == 0 and npf and opt.get('earows', 512) >= 512:
                a(f'v_lshlrev_b32 v{vT+2}, 5, v{vTid}')
                a(f'v_add_u32 v{vT+2}, {0x80000000 + L_EA}, v{vT+2}')
            elif u == 0 and npf:
                a(f'v_and_b32 v{vT+2}, 0xffffff, v{4*u+2}')
                a(f'v_lshlrev_b32 v{vT+2}, 5, v{vT+2}')
                a(f'v_lshlrev_b32 v{vT+5}, 5, v{vTid}')
                a(f'v_add_u32 v{vT+5}, {0x80000000 + L_EA}, v{vT+5}')
                a(f'v_cmp_gt_u32 vcc, {opt["earows"]}, v{vTid}')
                a(f'v_cndmask_b32 v{vT+2}, v{vT+2}, v{vT+5}, vcc')
            else:
                a(f'v_and_b32 v{vT+2}, 0xffffff, v{4*u+2}')
                a(f'v_lshlrev_b32 v{vT+2}, 5, v{vT+2}')
                if u == 1 and npf > 1:
                    a(f'v_lshlrev_b32 v{vT+5}, 5, v{vTid}')
                    a(f'v_add_u32 v{vT+5}, {0x80000000 + L_EA + 16384}, v{vT+5}')
                    a(f'v_cmp_gt_u32 vcc, {EA2_ROWS}, v{vTid}')
                    a(f'v_cndmask_b32 v{vT+2}, v{vT+2}, v{vT+5}, vcc')
            a(f's_waitcnt lgkmcnt({min(15, 6 - k + 2*k)})') if False else None
            if k == 0: a('s_waitcnt lgkmcnt(0)')
            a(f'v_lshl_add_u32 v{vT}, v{vT}, 3, v{176+k}')
            a(f'v_add_u32 v{vT}, v{vT}, v{vT+1}')
            a(f'v_lshlrev_b32 v{vT+3}, 3, v{vT}')
            a(f'v_lshlrev_b32 v{vT+4}, 2, v{vT}')
            a(f'ds_write_b64 v{vT+3}, v[{4*u}:{4*u+1}] offset:{L_RECA}')
            a(f'ds_write_b32 v{vT+4}, v{vT+2} offset:{L_RECB}')
        a('s_mov_b64 exec, -1')
    scat(0); scat(1)
    a(f's_cmp_eq_u64 s[{sB2}:{sB2+1}], 0')
    a('s_cbranch_scc1 K2_nb2c')
    scat(2)
    a('K2_nb2c:')
    a(f'v_lshlrev_b32 v{vT}, 4, v{vLane}')
    a(f'v_add_u32 v{vT}, {L_P}, v{vT}')
    for t in range(10): a(f'ds_read_b128 {q4(RAD+4*t)}, v{vT} offset:{t*1024}')
    if npf and opt.get('b7', 0):
        a(f'v_lshlrev_b32 v208, 5, v{vTid}')
        a(f'v_add_u32 v208, {L_EA}, v208')
    elif npf:
        a(f'v_lshlrev_b32 v{vT+1}, 5, v{vTid}')
        a(f'v_add_u32 v{vT+1}, {L_EA}, v{vT+1}')
        a('s_waitcnt vmcnt(0)')
        a(f'ds_write_b128 v{vT+1}, {q4(EAP)}')
        a(f'ds_write_b128 v{vT+1}, {q4(EAP+4)} offset:16')
        if npf > 1:
            a(f's_mov_b64 exec, s[{sEa2}:{sEa2+1}]')
            a(f'ds_write_b128 v{vT+1}, {q4(EAP+8)} offset:16384')
            a(f'ds_write_b128 v{vT+1}, {q4(EAP+12)} offset:16400')
            a('s_mov_b64 exec, -1')
    a('s_waitcnt lgkmcnt(0)')
    a('s_barrier')
    stamp(a, opt, 5, 255)
    if opt.get('ts'):
        a('s_memtime s[98:99]'); a('s_waitcnt lgkmcnt(0)'); a('v_writelane_b32 v255, s98, 12')

_uid = [0]
DEFER = []
vNa = 251; vNb = 252; vLow = 253; sAct = 44
def rec_read(a, sg):
    _uid[0] += 1; u = _uid[0]
    a(f's_cmp_lg_u32 s{sPfT}, s{sPfEnd}')
    a(f's_cbranch_scc0 K2_sw{u}')
    a(f'K2_have{u}:')
    a(f's_add_u32 s{sPfT}, s{sPfT}, 1')
    a(f's_cmp_eq_u32 s{sPfT}, s{sPfEnd}')
    a(f's_cselect_b32 s{sTag+sg}, s{sPfQ}, -1')
    a(f'K2_go{u}:')
    a(f'ds_read_b128 {q4(YP+4*sg)}, v{vNa}')
    a(f'ds_read_b32 v{vEN}, v{vNb}')
    a(f'v_add_u32 v{vNa}, 64, v{vNa}')
    a(f'v_add_u32 v{vNb}, 32, v{vNb}')
    def cold(a, u=u, sg=sg):
        a(f'K2_sw{u}:')
        a(f'v_readfirstlane_b32 s{sNQ}, v{vGrab}')
        a(f's_add_u32 s{sNQ}, s{sNQ}, 8')
        a(f's_cmp_ge_u32 s{sNQ}, 49')
        a(f's_cbranch_scc1 K2_exh{u}')
        a(f's_mov_b32 s{sPfQ}, s{sNQ}')
        a(f'v_readlane_b32 s{sPfT}, v{vSBase}, s{sNQ}')
        a(f'v_readlane_b32 s{sT}, v{vSteps}, s{sNQ}')
        a('s_mov_b64 exec, 1')
        a(f'ds_add_rtn_u32 v{vGrab}, v{vCtr}, v{vOne}')
        a('s_mov_b64 exec, -1')
        a(f's_add_u32 s{sPfEnd}, s{sPfT}, s{sT}')
        a(f's_lshl_b32 s{sOffA}, s{sPfT}, 6')
        a(f's_lshr_b32 s{sOffB}, s{sOffA}, 1')
        a(f'v_add_u32 v{vNa}, s{sOffA}, v{vRecA}')
        a(f'v_add_u32 v{vNb}, s{sOffB}, v{vRecB}')
        a(f's_branch K2_have{u}')
        a(f'K2_exh{u}:')
        a(f'v_add_u32 v{vNa}, {NULLSTEP*64}, v{vRecA}')
        a(f'v_add_u32 v{vNb}, {NULLSTEP*32}, v{vRecB}')
        a(f's_mov_b32 s{sTag+sg}, -2')
        a(f's_branch K2_go{u}')
    DEFER.append(cold)

def grab_result(a):
    pass

def issue_loads(a, sg, opt, part=None, defer=False):
    ent = POL[opt.get('eapol', 4)]
    if opt.get('noload'): return
    xp = POL[opt.get('xpol', 0)]
    if part in (None, 0):
        a(f'v_mad_u32_u16 v{vXA0}, v{YP+4*sg}, s{s512}, v{vLaneX}')
        a(f'v_mad_u32_u16 v{vXA1}, v{YP+4*sg+2}, s{s512}, v{vLaneX}')
        a(f'v_or_b32 v{vEA}, v{vEN}, v{vLaneMask}')
        if opt.get('eapf', 1):
            a(f'v_cmp_gt_i32 vcc, 0, v{vEN}')
            a(f'v_and_b32 v{vTa}, v{vLow}, v{vEA}')
            a(f's_andn2_b64 exec, s[{sAct}:{sAct+1}], vcc')
            a(f'buffer_load_dwordx4 {q4(AS+4*sg)}, v{vEA}, s[8:11], 0 offen{ent}')
            if defer:
                a('s_mov_b64 exec, -1')
                a(f's_and_b64 s[{46+2*sg}:{47+2*sg}], s[{sAct}:{sAct+1}], vcc')
                a(f'v_mov_b32 v{209+sg}, v{vTa}')
            else:
                a(f's_and_b64 exec, s[{sAct}:{sAct+1}], vcc')
                a(f'ds_read_b128 {q4(AS+4*sg)}, v{vTa}')
                a('s_mov_b64 exec, -1')
        else:
            a(f'buffer_load_dwordx4 {q4(AS+4*sg)}, v{vEA}, s[8:11], 0 offen{ent}')
    for s, va in ((0, vXA0), (1, vXA1)):
        if part is not None and part != s: continue
        for v in range(4):
            a(f'buffer_load_dwordx2 {pr(XS+16*sg+8*s+2*v)}, v{va}, s[4:7], 0 offen offset:{128*v}{xp}')

def Fp(v, h): return F + 8*h + 2*v
def Rp(p, h, s): return R + (2*p + h)*4 + 2*s
def Ap(f, h): return ACC + 4*f + 2*h

def unpack_ops(sg, s):
    ops = []
    for v in range(4):
        for h in range(2):
            src = XS + 16*sg + 8*s + 2*v + h
            ops.append(f'v_lshlrev_b32 v{Fp(v,h)}, 16, v{src}')
            ops.append(f'v_and_b32 v{Fp(v,h)+1}, v{vHi}, v{src}')
    return ops

def Yreg(s, j):
    if OPT.get('pk', 1) and OPT.get('D', 2) == 3:
        return (220, 222, 224, 226, 250, 252)[3*s + j]
    return (Y + 2*(3*s + j)) if OPT.get('pk', 1) else (Y + 3*s + j)

def compute_slot_pk(a, s):
    def fma(d, x, y): a(f'v_pk_fma_f32 {pr(d)}, {pr(x)}, {pr(y)}, {pr(d)}')
    def mul(d, x, y): a(f'v_pk_mul_f32 {pr(d)}, {pr(x)}, {pr(y)}')
    def fmaY(d, x, j, neg=False):
        n = ' neg_lo:[0,1,0] neg_hi:[0,1,0]' if neg else ''
        a(f'v_pk_fma_f32 {pr(d)}, {pr(x)}, {pr(Yreg(s, j))}, {pr(d)} op_sel:[0,0,0] op_sel_hi:[1,0,1]{n}')
    def mulY(d, x, j): a(f'v_pk_mul_f32 {pr(d)}, {pr(x)}, {pr(Yreg(s, j))} op_sel:[0,0] op_sel_hi:[1,0]')
    dot = lambda h: TMP + 2*h
    t = lambda h: TMP + 4 + 2*h
    seq = [
        lambda h: fma(Ap(0,h), Fp(0,h), Rp(0,h,s)),
        lambda h: mulY(dot(h), Fp(1,h), 0),
        lambda h: mul(t(h), Fp(0,h), Rp(2,h,s)),
        lambda h: fmaY(dot(h), Fp(2,h), 1),
        lambda h: fma(Ap(5,h), Fp(1,h), Rp(3,h,s)),
        lambda h: fmaY(dot(h), Fp(3,h), 2),
        lambda h: fmaY(Ap(2,h), t(h), 0),
        lambda h: fma(Ap(6,h), Fp(2,h), Rp(3,h,s)),
        lambda h: fmaY(Ap(3,h), t(h), 1),
        lambda h: fma(Ap(7,h), Fp(3,h), Rp(3,h,s)),
        lambda h: fmaY(Ap(4,h), t(h), 2),
        lambda h: fma(Ap(1,h), dot(h), Rp(1,h,s)),
        lambda h: mul(Fp(1,h), Fp(1,h), Rp(4,h,s)),
        lambda h: mul(Fp(2,h), Fp(2,h), Rp(4,h,s)),
        lambda h: mul(Fp(3,h), Fp(3,h), Rp(4,h,s)),
        lambda h: fmaY(Ap(9,h), Fp(1,h), 2),
        lambda h: fmaY(Ap(10,h), Fp(2,h), 0),
        lambda h: fmaY(Ap(8,h), Fp(3,h), 1),
        lambda h: fmaY(Ap(10,h), Fp(1,h), 1, True),
        lambda h: fmaY(Ap(8,h), Fp(2,h), 2, True),
        lambda h: fmaY(Ap(9,h), Fp(3,h), 0, True),
    ]
    for op in seq:
        op(0); op(1)

def compute_slot(a, s):
    if OPT.get('pk', 1): return compute_slot_pk(a, s)
    Yr = (Y + 3*s, Y + 3*s + 1, Y + 3*s + 2)
    ch = [(h, p) for h in range(2) for p in range(2)]
    Fv = lambda v, c: Fp(v, c[0]) + c[1]
    Rv = lambda p, c: Rp(p, c[0], s) + c[1]
    Av = lambda f, c: Ap(f, c[0]) + c[1]
    dot = lambda c: TMP + 2*c[0] + c[1]
    t = lambda c: TMP + 4 + 2*c[0] + c[1]
    fmac = lambda d, x, y: a(f'v_fmac_f32 v{d}, v{x}, v{y}')
    mul = lambda d, x, y: a(f'v_mul_f32 v{d}, v{x}, v{y}')
    fms = lambda d, x, y: a(f'v_fma_f32 v{d}, -v{x}, v{y}, v{d}')
    seq = [
        lambda c: fmac(Av(0,c), Fv(0,c), Rv(0,c)),
        lambda c: mul(dot(c), Fv(1,c), Yr[0]),
        lambda c: mul(t(c), Fv(0,c), Rv(2,c)),
        lambda c: fmac(dot(c), Fv(2,c), Yr[1]),
        lambda c: fmac(Av(5,c), Fv(1,c), Rv(3,c)),
        lambda c: fmac(dot(c), Fv(3,c), Yr[2]),
        lambda c: fmac(Av(2,c), t(c), Yr[0]),
        lambda c: fmac(Av(6,c), Fv(2,c), Rv(3,c)),
        lambda c: fmac(Av(3,c), t(c), Yr[1]),
        lambda c: fmac(Av(7,c), Fv(3,c), Rv(3,c)),
        lambda c: fmac(Av(4,c), t(c), Yr[2]),
        lambda c: fmac(Av(1,c), dot(c), Rv(1,c)),
        lambda c: mul(Fv(1,c), Fv(1,c), Rv(4,c)),
        lambda c: mul(Fv(2,c), Fv(2,c), Rv(4,c)),
        lambda c: mul(Fv(3,c), Fv(3,c), Rv(4,c)),
        lambda c: fmac(Av(9,c), Fv(1,c), Yr[2]),
        lambda c: fmac(Av(10,c), Fv(2,c), Yr[0]),
        lambda c: fmac(Av(8,c), Fv(3,c), Yr[1]),
        lambda c: fms(Av(10,c), Fv(1,c), Yr[1]),
        lambda c: fms(Av(8,c), Fv(2,c), Yr[2]),
        lambda c: fms(Av(9,c), Fv(3,c), Yr[0]),
    ]
    for op in seq:
        for c in ch: op(c)

def step(a, sg, D, opt):
    a(f's_mov_b32 s{sCur}, s{sTag+sg}')
    for s in range(2):
        a(f'v_and_b32 v{Yreg(s,0)}, v{vHi}, v{YP+4*sg+2*s}')
        a(f'v_lshlrev_b32 v{Yreg(s,1)}, 16, v{YP+4*sg+2*s+1}')
        a(f'v_and_b32 v{Yreg(s,2)}, v{vHi}, v{YP+4*sg+2*s+1}')
    rec_read(a, sg)
    a(f's_waitcnt vmcnt({9*(D-1)})')
    if opt.get('thr'):
        _uid[0] += 1
        a(f's_cmp_eq_u32 s{sThr}, 0')
        a(f's_cbranch_scc1 K2_nt{_uid[0]}')
        a(f's_waitcnt vmcnt({9*(D-2)})')
        a(f'K2_nt{_uid[0]}:')
    fill = unpack_ops(sg, 0)
    mf = []
    for p in (0, 2, 3, 1, 4):
        for h in range(2):
            mf.append(f'v_mfma_f32_16x16x32_bf16 {q4(R+(2*p+h)*4)}, {q4(AS+4*sg)}, {q4(RAD+(2*p+h)*4)}, 0')
    if opt.get('nomfma'): mf = []
    if opt.get('mfb2b', 1):
        for m in mf: a(m)
        for o in fill: a(o)
    else:
        fi = 0
        for k, m in enumerate(mf):
            a(m)
            for _ in range(2):
                if fi < len(fill): a(fill[fi]); fi += 1
        while fi < len(fill): a(fill[fi]); fi += 1
    if opt.get('early', 0):
        a('s_waitcnt lgkmcnt(0)')
        if opt.get('prio', 1): a('s_setprio 1')
        issue_loads(a, sg, opt, 0)
        if opt.get('prio', 1): a('s_setprio 0')
        if not opt.get('nocomp'): compute_slot(a, 0)
        for o in unpack_ops(sg, 1): a(o)
        if opt.get('prio', 1): a('s_setprio 1')
        issue_loads(a, sg, opt, 1)
        if opt.get('prio', 1): a('s_setprio 0')
        if not opt.get('nocomp'): compute_slot(a, 1)
        return
    if not opt.get('nocomp'):
        compute_slot(a, 0)
        for o in unpack_ops(sg, 1): a(o)
        compute_slot(a, 1)
    if opt.get('prio', 1): a('s_setprio 1')
    a('s_waitcnt lgkmcnt(0)')
    grab_result(a)
    issue_loads(a, sg, opt)
    if opt.get('prio', 1): a('s_setprio 0')

def featoff(f):
    if f < 2: return 128*f
    f -= 2; kind, j = f // 3, f % 3
    return 256 + PJS*j + 128*kind

def zero_acc(a, opt):
    if opt.get('pkz'):
        for k in range(22): a(f'v_pk_mov_b32 {pr(ACC+2*k)}, 0, 0')
    else:
        for k in range(44): a(f'v_mov_b32 v{ACC+k}, 0')

def flush(a, opt):
    if opt.get('noflush'): return
    D0 = R; D1 = R + 16; BR = R + 32; AR = F
    issued = ['(A operand read of the step just prefetched)'] if opt.get('eapf', 1) else []
    def ds(text):
        issued.append(text); a(text)
    state = {'done': 0}
    def wait_for(idx):
        n = len(issued) - 1 - idx
        if idx >= state['done']:
            a(f's_waitcnt lgkmcnt({min(n, 15)})'); state['done'] = len(issued) - min(n, 15)
    def room():
        if len(issued) - state['done'] >= 15: wait_for(len(issued) - 12)
    a(f's_lshl_b32 s{sT}, s{sCur}, 4')
    a(f'v_add_u32 v{vTa}, s{sT}, v{vOrd}')
    ds(f'ds_read_b32 v{vTb}, v{vTa}')
    for f in range(11):
        t0 = F + 2*(f % 8)
        a(f'v_cvt_pk_bf16_f32 v{t0}, v{ACC+4*f}, v{ACC+4*f+1}')
        a(f'v_cvt_pk_bf16_f32 v{t0+1}, v{ACC+4*f+2}, v{ACC+4*f+3}')
        room()
        ds(f'ds_write_b64 v{vPW}, {pr(t0)} offset:{featoff(f)}')
    groups = [(0, ks) for ks in range(4)] + [(1, ks) for ks in range(6)]
    idxA = {}; idxB = {}
    def loadB(gi):
        c, ks = groups[gi]
        room(); idxB[gi] = len(issued)
        ds(f'ds_read_b128 {q4(BR+4*(gi%2))}, v{vPR1 if c else vPR0} offset:{ks*64}')
    def loadA(u):
        gi, t = divmod(u, 4); c, ks = groups[gi]
        tile = (ks*4 + t) + (16 if c else 0)
        room(); idxA[u] = len(issued)
        ds(f'ds_read_b128 {q4(AR+4*(u%NA))}, v{vWR} offset:{tile*1024}')
    if NA == 8:
        loadB(0)
        for u in range(4): loadA(u)
        loadB(1)
        for u in range(4, 8): loadA(u)
        zero_acc(a, opt)
        for gi, (c, ks) in enumerate(groups):
            wait_for(max(idxA[4*gi+3], idxB[gi]))
            for t in range(4):
                u = 4*gi + t
                Dr = (D1 if c else D0) + 4*t
                cop = '0' if ks == 0 else q4(Dr)
                a(f'v_mfma_f32_16x16x32_bf16 {q4(Dr)}, {q4(AR+4*(u%NA))}, {q4(BR+4*(gi%2))}, {cop}')
            if gi + 2 < len(groups):
                loadB(gi + 2)
                for t in range(4): loadA(4*(gi+2) + t)
    else:
        loadB(0)
        for u in range(4): loadA(u)
        loadB(1)
        for u in range(4, NA): loadA(u)
        for k in range(44): a(f'v_mov_b32 v{ACC+k}, 0')
        for u in range(40):
            gi, t = divmod(u, 4); c, ks = groups[gi]
            wait_for(max(idxA[u], idxB[gi]))
            Dr = (D1 if c else D0) + 4*t
            cop = '0' if ks == 0 else q4(Dr)
            a(f'v_mfma_f32_16x16x32_bf16 {q4(Dr)}, {q4(AR+4*(u%NA))}, {q4(BR+4*(gi%2))}, {cop}')
            if t == 3 and gi + 2 < len(groups): loadB(gi + 2)
            if u + NA < 40: loadA(u + NA)
    SEL = F; G = F + 4; O1 = F + 8; O0 = TMP
    a(f'v_and_b32 v{vTb}, 0xff, v{vTb}')
    a(f'v_lshl_add_u32 v{vTb}, v{vTb}, 9, s{sNode}')
    a(f'v_add_u32 v{vTa}, v{vTb}, v{vOut0}')
    a(f'v_add_u32 v{vTb}, v{vTb}, v{vOut1}')
    SEL = D0
    for t, m in ((1, sM1), (2, sM2), (3, sM3)):
        a(f's_mov_b64 exec, s[{m}:{m+1}]')
        for r in range(4): a(f'v_mov_b32 v{SEL+r}, v{D0+4*t+r}')
    a('s_mov_b64 exec, -1')
    for r in range(4): a(f'v_mul_f32 v{G+r}, 0xbfb8aa3b, v{SEL+r}')
    for r in range(4): a(f'v_exp_f32 v{G+r}, v{G+r}')
    for r in range(4): a(f'v_add_f32 v{G+r}, 1.0, v{G+r}')
    for r in range(4): a(f'v_rcp_f32 v{G+r}, v{G+r}')
    a(f'v_cvt_pk_bf16_f32 v{O0}, v{SEL}, v{SEL+1}')
    a(f'v_cvt_pk_bf16_f32 v{O0+1}, v{SEL+2}, v{SEL+3}')
    a(f'buffer_store_dwordx2 {pr(O0)}, v{vTa}, s[12:15], 0 offen{POL[opt.get("stpol", 1)]}')
    for t in range(4):
        for r in range(4):
            a(f'v_mul_f32_dpp v{D1+4*t+r}, v{G+r}, v{D1+4*t+r} quad_perm:[{t},{t},{t},{t}] row_mask:0xf bank_mask:0xf')
    for t in range(4):
        a(f'v_cvt_pk_bf16_f32 v{O1+2*t}, v{D1+4*t}, v{D1+4*t+1}')
        a(f'v_cvt_pk_bf16_f32 v{O1+2*t+1}, v{D1+4*t+2}, v{D1+4*t+3}')
    a(f'buffer_store_dwordx4 {q4(O1)}, v{vTb}, s[12:15], 0 offen{POL[opt.get("stpol", 1)]}')
    a(f'buffer_store_dwordx4 {q4(O1+4)}, v{vTb}, s[12:15], 0 offen offset:16{POL[opt.get("stpol", 1)]}')

def slow_path(a, opt):
    WR = 100; AC = 0; FX = 12; AE = 16; AV = 24; RR = 40; T = 46; TB_ = 52; REC = 56; vL2 = 60; vZ = 61; vPB = 62; vL4 = 63
    G0 = 64; G1 = 65
    sW0 = 52; sW1 = 56; sWR = 48
    sN = 60; sC = 61; sCntS = 62; sStart = 63; sJ = 64; sMask_ = 66; sBit = 68; sD0 = 69; sD1 = 70; sD2 = 71
    sY0 = 72; sY1 = 73; sY2 = 74; sXo = 75; sEo = 76; sK = 77; sRow = 78; sPB = 79; sTmp = 80; sTmp2 = 81; sHiM = 82
    a('s_mov_b64 exec, -1')
    a(f's_load_dwordx2 s[{sWR}:{sWR+1}], s[0:1], 40')
    a(f's_load_dwordx2 s[{sW0}:{sW0+1}], s[0:1], 48')
    a(f's_load_dwordx2 s[{sW1}:{sW1+1}], s[0:1], 56')
    a(f'v_lshlrev_b32 v{vL2}, 1, v{vLane}')
    a(f'v_lshlrev_b32 v{vL4}, 2, v{vLane}')
    a(f'v_mov_b32 v{vZ}, 0')
    a(f's_mov_b32 s{sHiM}, 0xffff0000')
    a(f's_mul_i32 s{sPB}, s{sWave}, {4*PS}')
    a(f's_add_u32 s{sPB}, s{sPB}, {L_P}')
    a(f'v_add_u32 v{vPB}, s{sPB}, v{vL4}')
    a('s_waitcnt lgkmcnt(0)')
    srd(a, sWR, 16*320*2); srd(a, sW0, 128*64*2); srd(a, sW1, 192*64*2)
    for p in range(5):
        for d in range(16):
            off = (d*320 + 64*p)*2
            a(f's_mov_b32 s{sTmp}, {off}')
            a(f'buffer_load_ushort v{WR+16*p+d}, v{vL2}, s[{sWR}:{sWR+3}], s{sTmp} offen')
        a('s_waitcnt vmcnt(0)')
        for d in range(16): a(f'v_lshlrev_b32 v{WR+16*p+d}, 16, v{WR+16*p+d}')
    TBL = 3072
    for k in range(4):
        a(f'v_add_u32 v{T}, {64*k}, v{vLane}')
        a(f'v_cmp_gt_u32 vcc, {NCH}, v{T}')
        a(f'v_lshlrev_b32 v{T+1}, 10, v{T}')
        a(f's_lshl_b32 s{sTmp}, s2, 2')
        a(f's_add_u32 s{sTmp}, s{sTmp}, {TAB_OFF}')
        a(f'buffer_load_dword v{T+2}, v{T+1}, s[16:19], s{sTmp} offen')
        a('s_waitcnt vmcnt(0)')
        a(f'v_cndmask_b32 v{T+2}, 0, v{T+2}, vcc')
        a(f'ds_write_b32 v{vPB}, v{T+2} offset:{TBL + 256*k}')
    a(f's_mov_b32 s{sN}, s{sWave}')
    a('KS_node:')
    a(f's_cmp_ge_u32 s{sN}, {NPB}')
    a('s_cbranch_scc1 K2_end')
    a(f's_mul_i32 s{sRow}, s2, {NPB}')
    a(f's_add_u32 s{sRow}, s{sRow}, s{sN}')
    a(f's_cmp_ge_u32 s{sRow}, {N}')
    a('s_cbranch_scc1 K2_end')
    a(f's_lshl_b32 s{sRow}, s{sRow}, 9')
    for f in range(11): a(f'v_mov_b32 v{AC+f}, 0')
    a(f's_mov_b32 s{sC}, 0')
    a('KS_chunk:')
    a(f's_lshl_b32 s{sTmp}, s{sC}, 2')
    a(f's_add_u32 s{sTmp}, s{sTmp}, s{sPB}')
    a(f'v_mov_b32 v{T}, s{sTmp}')
    a(f'ds_read_b32 v{T+1}, v{T} offset:{TBL}')
    a('s_waitcnt lgkmcnt(0)')
    a(f'v_readfirstlane_b32 s{sTmp}, v{T+1}')
    a(f's_and_b32 s{sStart}, s{sTmp}, 0xffff')
    a(f's_lshr_b32 s{sCntS}, s{sTmp}, 16')
    a(f's_mul_i32 s{sTmp}, s{sC}, {CH}')
    a(f's_add_u32 s{sStart}, s{sStart}, s{sTmp}')
    a(f's_mov_b32 s{sJ}, 0')
    a('KS_batch:')
    a(f's_cmp_ge_u32 s{sJ}, s{sCntS}')
    a('s_cbranch_scc1 KS_chunk_next')
    a(f'v_add_u32 v{T}, s{sJ}, v{vLane}')
    a(f'v_cmp_gt_u32 vcc, s{sCntS}, v{T}')
    a(f'v_add_u32 v{T}, s{sStart}, v{T}')
    a(f'v_mul_u32_u24 v{T}, 12, v{T}')
    a(f'v_mov_b32 v{T+1}, 2.0')
    a(f'v_cndmask_b32 v{T}, v{T+1}, v{T}, vcc')
    a(f's_mov_b64 s[{sMask_}:{sMask_+1}], vcc')
    a(f'buffer_load_dwordx3 v[{REC}:{REC+2}], v{T}, s[16:19], 0 offen')
    a('s_waitcnt vmcnt(0)')
    a(f'v_lshrrev_b32 v{T}, 24, v{REC+2}')
    a(f'v_cmp_eq_u32 vcc, s{sN}, v{T}')
    a(f's_and_b64 s[{sMask_}:{sMask_+1}], s[{sMask_}:{sMask_+1}], vcc')
    a('KS_edge:')
    a(f's_cmp_eq_u64 s[{sMask_}:{sMask_+1}], 0')
    a('s_cbranch_scc1 KS_batch_next')
    a(f's_ff1_i32_b64 s{sBit}, s[{sMask_}:{sMask_+1}]')
    a(f's_bitset0_b64 s[{sMask_}:{sMask_+1}], s{sBit}')
    a(f'v_readlane_b32 s{sD0}, v{REC}, s{sBit}')
    a(f'v_readlane_b32 s{sD1}, v{REC+1}, s{sBit}')
    a(f'v_readlane_b32 s{sD2}, v{REC+2}, s{sBit}')
    a(f's_and_b32 s{sXo}, s{sD0}, 0xffff')
    a(f's_lshl_b32 s{sXo}, s{sXo}, 9')
    a(f's_and_b32 s{sEo}, s{sD2}, 0xffffff')
    a(f's_lshl_b32 s{sEo}, s{sEo}, 5')
    a(f's_and_b32 s{sY0}, s{sD0}, s{sHiM}')
    a(f's_lshl_b32 s{sY1}, s{sD1}, 16')
    a(f's_and_b32 s{sY2}, s{sD1}, s{sHiM}')
    for v in range(4): a(f'buffer_load_ushort v{FX+v}, v{vL2}, s[4:7], s{sXo} offen offset:{128*v}')
    a(f'buffer_load_dwordx4 v[{AE}:{AE+3}], v{vZ}, s[8:11], s{sEo} offen')
    a(f'buffer_load_dwordx4 v[{AE+4}:{AE+7}], v{vZ}, s[8:11], s{sEo} offen offset:16')
    a('s_waitcnt vmcnt(0)')
    for v in range(4): a(f'v_lshlrev_b32 v{FX+v}, 16, v{FX+v}')
    for q in range(8):
        a(f'v_lshlrev_b32 v{AV+2*q}, 16, v{AE+q}')
        a(f'v_and_b32 v{AV+2*q+1}, s{sHiM}, v{AE+q}')
    for p in range(5):
        a(f'v_mul_f32 v{RR+p}, v{AV}, v{WR+16*p}')
        for d in range(1, 16): a(f'v_fmac_f32 v{RR+p}, v{AV+d}, v{WR+16*p+d}')
    f0, f1 = FX, FX + 1
    a(f'v_fmac_f32 v{AC+0}, v{f0}, v{RR+0}')
    a(f'v_mul_f32 v{T}, s{sY0}, v{f1}')
    a(f'v_fmac_f32 v{T}, s{sY1}, v{f1+1}')
    a(f'v_fmac_f32 v{T}, s{sY2}, v{f1+2}')
    a(f'v_fmac_f32 v{AC+1}, v{T}, v{RR+1}')
    a(f'v_mul_f32 v{T}, v{f0}, v{RR+2}')
    for j, y in enumerate((sY0, sY1, sY2)): a(f'v_fmac_f32 v{AC+2+j}, s{y}, v{T}')
    for j in range(3): a(f'v_fmac_f32 v{AC+5+j}, v{f1+j}, v{RR+3}')
    for j in range(3): a(f'v_mul_f32 v{T+1+j}, v{f1+j}, v{RR+4}')
    a(f'v_fmac_f32 v{AC+8}, s{sY1}, v{T+3}')
    a(f'v_fma_f32 v{AC+8}, -s{sY2}, v{T+2}, v{AC+8}')
    a(f'v_fmac_f32 v{AC+9}, s{sY2}, v{T+1}')
    a(f'v_fma_f32 v{AC+9}, -s{sY0}, v{T+3}, v{AC+9}')
    a(f'v_fmac_f32 v{AC+10}, s{sY0}, v{T+2}')
    a(f'v_fma_f32 v{AC+10}, -s{sY1}, v{T+1}, v{AC+10}')
    a('s_branch KS_edge')
    a('KS_batch_next:')
    a(f's_add_u32 s{sJ}, s{sJ}, 64')
    a('s_branch KS_batch')
    a('KS_chunk_next:')
    a(f's_add_u32 s{sC}, s{sC}, 1')
    a(f's_cmp_lt_u32 s{sC}, {NCH}')
    a('s_cbranch_scc1 KS_chunk')
    for f in range(11): a(f'ds_write_b32 v{vPB}, v{AC+f} offset:{256*f}')
    for g in range(4): a(f'v_mov_b32 v{G0+g}, 0')
    a(f's_mov_b32 s{sK}, 0')
    a('KS_g0:')
    a(f's_lshl_b32 s{sTmp}, s{sK}, 2')
    a(f's_add_u32 s{sTmp}, s{sTmp}, s{sPB}')
    a(f'v_mov_b32 v{T}, s{sTmp}')
    a(f's_lshl_b32 s{sTmp2}, s{sK}, 7')
    for u in range(8):
        a(f'ds_read_b32 v{AV+u}, v{T} offset:{4*u}')
        a(f'buffer_load_ushort v{AV+8+u}, v{vL2}, s[{sW0}:{sW0+3}], s{sTmp2} offen offset:{128*u}')
    a('s_waitcnt vmcnt(0) lgkmcnt(0)')
    for u in range(8):
        a(f'v_lshlrev_b32 v{AV+8+u}, 16, v{AV+8+u}')
        a(f'v_fmac_f32 v{G0}, v{AV+u}, v{AV+8+u}')
    a(f's_add_u32 s{sK}, s{sK}, 8')
    a(f's_cmp_lt_u32 s{sK}, 128')
    a('s_cbranch_scc1 KS_g0')
    a(f's_mov_b32 s{sK}, 0')
    a('KS_g1:')
    a(f's_lshr_b32 s{sTmp}, s{sK}, 6')
    a(f's_mul_i32 s{sTmp}, s{sTmp}, 768')
    a(f's_and_b32 s{sTmp2}, s{sK}, 63')
    a(f's_lshl_b32 s{sTmp2}, s{sTmp2}, 2')
    a(f's_add_u32 s{sTmp}, s{sTmp}, s{sTmp2}')
    a(f's_add_u32 s{sTmp}, s{sTmp}, s{sPB}')
    a(f'v_mov_b32 v{T}, s{sTmp}')
    a(f's_lshl_b32 s{sTmp2}, s{sK}, 7')
    for u in range(4):
        for j in range(3): a(f'ds_read_b32 v{AV+3*u+j}, v{T} offset:{512 + 256*j + 4*u}')
        a(f'buffer_load_ushort v{AV+12+u}, v{vL2}, s[{sW1}:{sW1+3}], s{sTmp2} offen offset:{128*u}')
    a('s_waitcnt vmcnt(0) lgkmcnt(0)')
    for u in range(4):
        a(f'v_lshlrev_b32 v{AV+12+u}, 16, v{AV+12+u}')
        for j in range(3): a(f'v_fmac_f32 v{G1+j}, v{AV+3*u+j}, v{AV+12+u}')
    a(f's_add_u32 s{sK}, s{sK}, 4')
    a(f's_cmp_lt_u32 s{sK}, 192')
    a('s_cbranch_scc1 KS_g1')
    a(f'v_mul_f32 v{T}, 0xbfb8aa3b, v{G0}')
    a(f'v_exp_f32 v{T}, v{T}')
    a(f'v_add_f32 v{T}, 1.0, v{T}')
    a(f'v_rcp_f32 v{T}, v{T}')
    for j in range(3): a(f'v_mul_f32 v{G1+j}, v{T}, v{G1+j}')
    for g in range(4):
        a(f'v_cvt_pk_bf16_f32 v{G0+g}, v{G0+g}, v{G0+g}')
        a(f'buffer_store_short v{G0+g}, v{vL2}, s[12:15], s{sRow} offen offset:{128*g}')
    a(f's_add_u32 s{sN}, s{sN}, 8')
    a('s_branch KS_node')

def gen_k2(a, opt):
    D = opt.get('D', 2)
    set_map(D)
    global vGrab, vNb
    if D == 3 and opt.get('pk', 1): vGrab = 221; vNb = 223
    OPT.update(opt)
    a(f'{KN}_kernel:')
    prologue(a, opt)
    a(f'v_mov_b32 v{vSBase}, v226')
    a(f's_mov_b32 s{sPfQ}, s{sWave}')
    a(f'v_readlane_b32 s{sPfT}, v{vSBase}, s{sWave}')
    a(f'v_readlane_b32 s{sT}, v{vSteps}, s{sWave}')
    a(f'v_mov_b32 v{vHi}, 0xffff0000')
    if opt.get('eapf', 1):
        a(f'v_mov_b32 v{vLow}, 0x7fffffff')
        a(f's_mov_b32 s{sAct}, 0x55555555')
        a(f's_mov_b32 s{sAct+1}, 0xaaaaaaaa')
        for k in range(4*D): a(f'v_mov_b32 v{AS+k}, 0')
    a(f'v_mov_b32 v{vCtr}, {L_CTR}')
    a(f'v_mov_b32 v{vOne}, 1')
    a(f's_add_u32 s{sPfEnd}, s{sPfT}, s{sT}')
    a('s_mov_b64 exec, 1')
    a(f'ds_add_rtn_u32 v{vGrab}, v{vCtr}, v{vOne}')
    a('s_mov_b64 exec, -1')
    a(f's_lshl_b32 s{sOffA}, s{sPfT}, 6')
    a(f's_lshr_b32 s{sOffB}, s{sOffA}, 1')
    a(f'v_add_u32 v{vNa}, s{sOffA}, v{vRecA}')
    a(f'v_add_u32 v{vNb}, s{sOffB}, v{vRecB}')
    a('s_waitcnt lgkmcnt(0)')
    b7 = opt.get('eapf', 1) and opt.get('b7', 0)
    for sg in range(D):
        rec_read(a, sg)
        a('s_waitcnt lgkmcnt(0)')
        grab_result(a)
        issue_loads(a, sg, opt, defer=b7)
    if b7:
        a(f's_waitcnt vmcnt({9*D})')
        a(f'ds_write_b128 v208, {q4(184)}')
        a(f'ds_write_b128 v208, {q4(188)} offset:16')
        a('s_waitcnt lgkmcnt(0)')
        a('s_barrier')
        for sg in range(D):
            a(f's_mov_b64 exec, s[{46+2*sg}:{47+2*sg}]')
            a(f'ds_read_b128 {q4(AS+4*sg)}, v{209+sg}')
        a('s_mov_b64 exec, -1')
        a('s_waitcnt lgkmcnt(0)')
    for k in range(44): a(f'v_mov_b32 v{ACC+k}, 0')
    if opt.get('align'): a.raw(f'.p2align {opt["align"]}')
    for _ in range(opt.get('pad', 0)): a('s_nop 0')
    for sg in range(D):
        a(f'K2_s{sg}:')
        step(a, sg, D, opt)
        a(f's_cmp_lt_i32 s{sCur}, 0')
        a(f's_cbranch_scc0 K2_fl{sg}')
        if sg == D - 1: a('s_branch K2_s0')
    for sg in range(D):
        a(f'K2_fl{sg}:')
        flush(a, opt)
        a(f's_cmp_eq_u32 s{sTag + (sg+1) % D}, -2')
        a('s_cbranch_scc1 K2_end')
        a(f's_branch K2_s{(sg+1) % D}')
    for f in DEFER: f(a)
    a('K2_slow:')
    slow_path(a, opt)
    a('K2_end:')
    if opt.get('endwait'): a('s_waitcnt vmcnt(0)')
    if opt.get('ts'):
        stamp(a, opt, 6, 255)
        a('s_memtime s[98:99]'); a('s_waitcnt lgkmcnt(0)'); a('v_writelane_b32 v255, s98, 13')
        a('s_waitcnt vmcnt(0)')
        stamp(a, opt, 7, 255)
        a(f'v_writelane_b32 v255, s{sNQ}, 8')
        a('s_getreg_b32 s45, hwreg(HW_REG_XCC_ID)')
        a(f'v_writelane_b32 v255, s45, 10')
        a('s_getreg_b32 s45, hwreg(HW_REG_HW_ID)')
        a(f'v_writelane_b32 v255, s45, 11')
        stamp_out(a, opt, 255, 254, sWave, TS_OFF, 8)
        a('K2_end2:')
    a('s_endpgm')
    return 256, 102
```
